```python
import torch

def _softmax(x, axis=-1):
    return torch.softmax(x, dim=axis)
def _gelu(x):
    return torch.nn.functional.gelu(x, approximate="tanh")
def _silu(x):
    return torch.nn.functional.silu(x)
def _sigmoid(x):
    return torch.sigmoid(x)
def _layernorm(x, axis=-1, eps=1e-5):
    m = x.mean(dim=axis, keepdim=True)
    v = x.var(dim=axis, keepdim=True, unbiased=False)
    return (x - m) / torch.sqrt(v + eps)
def _scatter_add(tgt, idx, src, axis=0):
    return tgt.clone().index_add_(axis, idx, src)
def _segment_sum(src, seg, n):
    out = torch.zeros((n,) + src.shape[1:], dtype=src.dtype)
    return out.index_add_(0, seg, src)
def _pad(x, pw):
    flat = tuple(v for pair in reversed(pw) for v in pair)
    return torch.nn.functional.pad(x, flat)

kernel_name = 'concat_heads__mha_block_cached__mha_block_cached__near_ridge'

def setup_inputs():

    _w = (lambda a: (lambda t: t.to(torch.bfloat16) if t.is_floating_point() else t)(torch.as_tensor(a)))
    def _A_setup():
        B, Sq, D = 8, 160, 448
        H, Sk, Dh = 16, 1024, 256
        return {
            "x": _w((lambda *s: torch.randn(*s, dtype=torch.bfloat16) * 0.8)(B, Sq, D)),
            "k_cache": _w((lambda *s: torch.randn(*s, dtype=torch.bfloat16) * 0.8)(B, H, Sk, Dh)),
            "v_cache": _w((lambda *s: torch.randn(*s, dtype=torch.bfloat16) * 0.05)(B, H, Sk, Dh)),
            "wq": _w((lambda *s: torch.randn(*s, dtype=torch.bfloat16) * 0.8)(D, H * Dh) * (D ** -0.5)),
            "wo": _w((lambda *s: torch.randn(*s, dtype=torch.bfloat16) * 0.05)(H * Dh, D) * ((H * Dh) ** -0.5)),
        }
    _A_in = _A_setup()

    def _B_setup():
        B, Sq, D = 8, 160, 448
        H, Sk, Dh = 16, 1024, 256
        return {
            "x": _w((lambda *s: torch.randn(*s, dtype=torch.bfloat16) * 0.8)(B, Sq, D)),
            "k_cache": _w((lambda *s: torch.randn(*s, dtype=torch.bfloat16) * 0.8)(B, H, Sk, Dh)),
            "v_cache": _w((lambda *s: torch.randn(*s, dtype=torch.bfloat16) * 0.05)(B, H, Sk, Dh)),
            "wq": _w((lambda *s: torch.randn(*s, dtype=torch.bfloat16) * 0.8)(D, H * Dh) * (D ** -0.5)),
            "wo": _w((lambda *s: torch.randn(*s, dtype=torch.bfloat16) * 0.05)(H * Dh, D) * ((H * Dh) ** -0.5)),
        }
    _B_in = _B_setup()

    return {
        "A_x": _A_in["x"],
        "A_k_cache": _A_in["k_cache"],
        "A_v_cache": _A_in["v_cache"],
        "A_wq": _A_in["wq"],
        "A_wo": _A_in["wo"],
        "B_x": _B_in["x"],
        "B_k_cache": _B_in["k_cache"],
        "B_v_cache": _B_in["v_cache"],
        "B_wq": _B_in["wq"],
        "B_wo": _B_in["wo"],
    }

def reference(A_x, A_k_cache, A_v_cache, A_wq, A_wo, B_x, B_k_cache, B_v_cache, B_wq, B_wo):
    def _A_ref(x, k_cache, v_cache, wq, wo):
        B, Sq, D = x.shape
        H, Dh = 16, 256
        q = (lambda x, *d: x.permute(*d))((x @ wq).reshape(B, Sq, H, Dh), 0, 2, 1, 3)
        scores = torch.einsum("bhqd,bhkd->bhqk", q, k_cache) * (Dh ** -0.5)
        p = _softmax(scores, axis=-1)
        o = torch.einsum("bhqk,bhkd->bhqd", p, v_cache)
        return (lambda x, *d: x.permute(*d))(o, 0, 2, 1, 3).reshape(B, Sq, H * Dh) @ wo

    def _B_ref(x, k_cache, v_cache, wq, wo):
        B, Sq, D = x.shape
        H, Dh = 16, 256
        q = (lambda x, *d: x.permute(*d))((x @ wq).reshape(B, Sq, H, Dh), 0, 2, 1, 3)
        scores = torch.einsum("bhqd,bhkd->bhqk", q, k_cache) * (Dh ** -0.5)
        p = _softmax(scores, axis=-1)
        o = torch.einsum("bhqk,bhkd->bhqd", p, v_cache)
        return (lambda x, *d: x.permute(*d))(o, 0, 2, 1, 3).reshape(B, Sq, H * Dh) @ wo

    a = _A_ref(A_x, A_k_cache, A_v_cache, A_wq, A_wo)
    b = _B_ref(B_x, B_k_cache, B_v_cache, B_wq, B_wo)
    return torch.concatenate([a, b], axis=-1)
```

```python
import re

REG_RE = re.compile(r'^(-?)(abs\()?([vas])(\d+|\[(\d+):(\d+)\])\)?$')

def regs_of(tok):
    tok = tok.strip()
    if tok in ("vcc",): return {("s", "vcc")}
    if tok in ("exec",): return {("s", "exec")}
    if tok == "m0": return {("s", "m0")}
    if tok == "scc": return {("s", "scc")}
    m = REG_RE.match(tok)
    if not m: return set()
    k = m.group(3)
    if m.group(5) is not None:
        return {(k, i) for i in range(int(m.group(5)), int(m.group(6)) + 1)}
    return {(k, int(m.group(4)))}

def split_ops(s):
    out, depth, cur = [], 0, ""
    for ch in s:
        if ch in "[(": depth += 1
        if ch in "])": depth -= 1
        if ch == "," and depth == 0:
            out.append(cur.strip()); cur = ""
        else:
            cur += ch
    if cur.strip(): out.append(cur.strip())
    return out

TRANS = ("v_exp_f32", "v_log_f32", "v_rcp_f32", "v_rsq_f32", "v_sqrt_f32")

class Ins:
    __slots__ = ("text", "mn", "kind", "rd", "wr", "ops", "srcc", "states", "passes", "cost")
    def __init__(self, text):
        self.text = text
        t = text.split(";")[0].strip()
        self.rd, self.wr, self.srcc = set(), set(), set()
        self.states = 1; self.passes = 0; self.cost = 1
        if not t or t.endswith(":") or t.startswith("."):
            self.mn = ""; self.kind = "label" if t.endswith(":") else "none"; self.ops = []; self.states = 0; self.cost = 0
            return
        parts = t.split(None, 1)
        mn = parts[0]; self.mn = mn
        rest = parts[1] if len(parts) > 1 else ""
        ops = split_ops(rest)
        if ops:
            last = ops[-1].split()
            ops[-1] = last[0]; mods = last[1:]
        else:
            mods = []
        self.ops = ops
        R = lambda i: regs_of(ops[i]) if i < len(ops) else set()
        if mn.startswith("v_mfma"):
            self.kind = "mfma"
            self.wr = R(0); self.rd = R(1) | R(2) | R(3); self.srcc = R(3)
            self.passes = 8 if "32x32x16" in mn else 4
            self.cost = 2
        elif mn.startswith("ds_read") or mn.startswith("ds_bpermute"):
            self.kind = "ds"; self.wr = R(0); self.rd = set().union(*[R(i) for i in range(1, len(ops))])
        elif mn.startswith("ds_write") or mn.startswith("ds_add"):
            self.kind = "ds"; self.rd = set().union(*[R(i) for i in range(len(ops))])
        elif mn.startswith("buffer_load") or mn.startswith("global_load"):
            self.kind = "vmem"
            if "lds" in mods or "_lds_" in mn:
                self.rd = set().union(*[R(i) for i in range(len(ops))]) | {("s", "m0")}
                self.kind = "dma"
            else:
                self.wr = R(0); self.rd = set().union(*[R(i) for i in range(1, len(ops))])
        elif mn.startswith("buffer_store") or mn.startswith("global_store"):
            self.kind = "vstore"; self.rd = set().union(*[R(i) for i in range(len(ops))])
        elif mn.startswith("buffer_atomic") or mn.startswith("global_atomic"):
            self.kind = "vmem"; self.rd = set().union(*[R(i) for i in range(len(ops))])
            if "sc0" in mods: self.wr = R(0)
        elif mn.startswith("buffer_"):
            self.kind = "vmem"
        elif mn.startswith("v_cmp"):
            self.kind = "valu"; self.wr = R(0); self.rd = R(1) | R(2)
        elif mn.startswith("v_permlane") and "swap" in mn:
            self.kind = "valu"; self.wr = R(0) | R(1); self.rd = R(0) | R(1)
        elif mn.startswith("v_"):
            self.kind = "valu"
            self.wr = R(0); self.rd = set().union(*[R(i) for i in range(1, len(ops))]) if len(ops) > 1 else set()
            if mn.startswith("v_fmac") or mn.startswith("v_dot2c"): self.rd |= R(0)
            if mn.startswith("v_cndmask") and len(ops) == 3: self.rd |= {("s", "vcc")}
            if "_co_" in mn: self.wr |= R(1)
            if mn in TRANS or mn.replace("_e32", "").replace("_e64", "") in TRANS: self.cost = 2
        elif mn == "s_nop":
            self.kind = "nop"; self.states = int(ops[0], 0) + 1; self.cost = self.states
        elif mn.startswith("s_load") or mn.startswith("s_memtime") or mn.startswith("s_memrealtime"):
            self.kind = "smem"; self.wr = R(0); self.rd = R(1)
        elif mn.startswith("s_cbranch") or mn == "s_branch" or mn.startswith("s_setpc") or mn.startswith("s_call") or mn.startswith("s_swappc"):
            self.kind = "branch"
            if "vcc" in mn: self.rd = {("s", "vcc")}
        elif mn.startswith("s_waitcnt") or mn in ("s_barrier", "s_endpgm", "s_setprio", "s_sleep"):
            self.kind = "ctl"
        elif mn.startswith("s_cmp"):
            self.kind = "salu"; self.rd = R(0) | R(1)
        elif mn.startswith("s_"):
            self.kind = "salu"; self.wr = R(0); self.rd = set().union(*[R(i) for i in range(1, len(ops))]) if len(ops) > 1 else set()
        else:
            raise ValueError("unknown instruction: " + text)
    def is_trans(self):
        return self.mn.replace("_e32", "").replace("_e64", "") in TRANS

TIMEBASED = True
def check_hazards(lines, name=""):
    ins = [Ins(l) for l in lines]
    ins = [i for i in ins if i.kind not in ("label", "none")]
    probs = []
    W = 24
    tm = []; t = 0; lastm = None
    for i_ in ins:
        if i_.kind == "mfma" and lastm is not None and TIMEBASED: t = max(t, lastm[0] + lastm[1])
        tm.append(t)
        if i_.kind == "mfma": lastm = (t, i_.passes)
        t += i_.states
    for j, c in enumerate(ins):
        dist = 0
        for i in range(j - 1, max(-1, j - W - 1), -1):
            p = ins[i]
            if p.kind == "mfma": dist = max(dist, min(tm[j] - tm[i] - 1, dist + 8))
            need = 0; why = ""
            vec = lambda s: {r for r in s if r[0] in "va"}
            sg = lambda s: {r for r in s if r[0] == "s"}
            if p.kind == "mfma":
                n = {8: (12, 10, 7), 4: (8, 6, 3)}[p.passes]
                if c.kind == "mfma":
                    ab = c.rd - c.srcc if not (c.srcc & (regs_of(c.ops[1]) | regs_of(c.ops[2]))) else c.rd
                    ab = regs_of(c.ops[1]) | regs_of(c.ops[2])
                    if p.wr & ab: need, why = n[0], "mfma D -> mfma A/B"
                    elif p.wr & c.srcc and (p.wr != c.srcc or p.passes != c.passes): need, why = n[1], "mfma D -> overlapping C"
                    elif p.wr & c.wr and p.wr != c.srcc: need, why = n[1], "mfma D -> mfma D (WAW, non-chain)"
                elif c.kind in ("valu",):
                    if p.wr & (c.rd | c.wr): need, why = n[0], "mfma D -> valu"
                    elif p.srcc & c.wr: need, why = n[2], "mfma C read -> valu write"
                elif c.kind in ("ds", "vmem", "vstore", "dma"):
                    if p.wr & (c.rd | c.wr): need, why = n[0], "mfma D -> mem"
            elif p.kind == "valu":
                if c.kind == "mfma" and vec(p.wr) & c.rd: need, why = 2, "valu -> mfma"
                if c.kind == "valu":
                    if p.is_trans() and not c.is_trans() and p.wr & c.rd: need, why = max(need, 1), "trans -> valu"
                    if c.mn.startswith("v_permlane") and vec(p.wr) & c.rd: need, why = 2, "valu -> permlane"
                    if (c.mn.startswith("v_readfirstlane") or c.mn.startswith("v_readlane")) and vec(p.wr) & c.rd: need, why = max(need, 1), "valu -> readlane"
                    if sg(p.wr) & c.rd: need, why = max(need, 2), "valu sgpr -> valu read"
                    if "dpp" in c.mn and vec(p.wr) & c.rd: need, why = 2, "valu->dpp"
                if c.kind in ("vmem", "vstore", "dma") and sg(p.wr) & c.rd: need, why = 5, "valu sgpr -> vmem"
                if c.kind in ("ds", "vmem", "vstore", "dma") and p.is_trans() and p.wr & c.rd: need, why = max(need, 1), "trans -> mem"
            elif p.kind == "salu":
                if ("s", "m0") in p.wr and c.kind == "dma": need, why = 1, "m0 -> dma"
            elif p.kind == "vstore":
                if ("x4" in p.mn or "x3" in p.mn):
                    data = regs_of(p.ops[0]) if p.mn.startswith("buffer") else regs_of(p.ops[1])
                    if c.kind == "valu" and data & c.wr: need, why = 2, "store data WAR valu"
                    elif data & c.wr: need, why = 1, "store data WAR"
            if need > dist:
                probs.append(f"[{name}] need {need} have {dist}: {why}\n    {p.text}\n    {c.text}")
            dist += p.states
            if dist >= 20: break
    return probs


WAIT_RE = re.compile(r'lgkmcnt\((\d+)\)')
def autowait(lines, fifo0=(), look=True, vm_since0=0):
    fifo = [Ins(t) for t in fifo0]
    out = []
    vm_since = vm_since0
    ins = [None if l.startswith("@") or "@vm" in l else Ins(l) for l in lines]
    def need_idx(i):
        regs = i.rd | i.wr
        idx = -1
        for k, f in enumerate(fifo):
            if f.wr & regs: idx = k
        return idx
    def wait_to(idx):
        n = len(fifo) - 1 - idx
        out.append(f"s_waitcnt lgkmcnt({n})")
        del fifo[:idx + 1]
    for p, l in enumerate(lines):
        if l == "@waitw":
            idx = -1
            for k, f in enumerate(fifo):
                if f.mn.startswith("ds_write"): idx = k
            if idx >= 0: wait_to(idx)
            continue
        if "@vm" in l:
            l = l.replace("@vm", str(vm_since)); ins[p] = Ins(l)
        i = ins[p]
        if i.kind in ("label", "none"):
            out.append(l); continue
        if i.mn.startswith("s_waitcnt"):
            m = WAIT_RE.search(l)
            if m:
                n = int(m.group(1))
                if len(fifo) > n: del fifo[:len(fifo) - n]
            out.append(l); continue
        if i.kind == "smem":
            assert not fifo or True
        idx = need_idx(i)
        if idx >= 0:
            if look and i.kind == "mfma":
                seen = 0
                for q in range(p + 1, len(lines)):
                    j = ins[q]
                    if j is None: break
                    if j.kind == "mfma":
                        seen += 1
                        k = need_idx(j)
                        if k > idx:
                            if len(fifo) - 1 - k >= 4: idx = k
                            break
                        if seen >= 2: break
            wait_to(idx)
        if i.kind == "ds":
            if len(fifo) >= 15: wait_to(len(fifo) - 15)
            fifo.append(i)
        if i.kind == "dma": vm_since = 0
        elif i.kind in ("vmem", "vstore"): vm_since += 1
        out.append(l)
    return out, [f.text for f in fifo], vm_since
```

```python
import sys, math, struct
from asmlib import Ins, check_hazards, autowait

NAME = "concat_heads__mha_block_cached__mha_block_cached__near_ridge"
MF = "v_mfma_f32_32x32x16_bf16"

def f2u(x): return struct.unpack("<I", struct.pack("<f", x))[0]
def vr(b, n=4): return f"v[{b}:{b+n-1}]"
def ar(b, n=4): return f"a[{b}:{b+n-1}]"

class P:
    NB = 11
    NPRE = 7
    BAR_BEFORE = 4
    MAXR = 3
    DMA0 = 0
    DMAS = 1
    STAMP = False
    KVNT = " nt"
    STMOD = " sc1"
    RDMOD = ""

OM = 0
Q, Q5, O5 = 0, 64, 128
SA, SB, S5 = 128, 144, 160
KA = 176; VA = 184; OK = 188; OV = 192
M_, TH_, L_, F_ = 196, 197, 198, 199
M5, L5, TH5, F5 = 200, 201, 202, 203
T0, T1, T2, T3 = 204, 205, 206, 207
LN16 = 208
T4, T5, WRB = 209, 210, 211
FR = 212
WQA = 160; XA = 164; X5A = 168; OWQ = 172; OX = 173
QF = 128
sK, sV_, sX, sWQ, sWS = 8, 12, 16, 20, 24
sW, sW4K = 28, 29
sRET = 30
sC, sTT, sIC = 32, 33, 34
sFM, sF5, sNFM, sNF5 = 35, 36, 37, 38
sCNT = 39
sSO, sSO2 = 40, 41
sAW, sBW, sCW = 42, 43, 44
sDK, sDV, sVS = 45, 46, 47
sPOS, sNEG = 48, 49
sT0, sT1, sT2, sT3 = 50, 51, 52, 53
sBLK, sB, sH = 54, 55, 56
sH1, sVO, sVO2, sGS = 57, 58, 59, 60
sWO = 62
sB0, sB1, sQB = 64, 65, 66
sPX = 68
sST = 76
PART = 143360
STAMP_OFF = 48 << 20

def srd(b): return f"s[{b}:{b+3}]"

def bufseq(nb, n=64):
    rounds = -(-n // nb)
    sizes = [n // rounds + (1 if i < n % rounds else 0) for i in range(rounds)]
    seq = []
    for s in sizes: seq += list(range(s))
    return seq

def cost(items): return sum(0 if x.startswith("@") else (1 if "@" in x else Ins(x).cost) for it in items for x in it)

class Sched:
    def __init__(self):
        self.mf = []
        self.frag = {}
        self.order = []
        self.fixed = {}
        self.pre = {}
        self.windows = []
        self.bars = {}
        self.init_out = []
    def add_frag(self, f, buf, rds, pre=(), epoch=0):
        self.frag[f] = dict(buf=buf, rds=rds, pre=list(pre), epoch=epoch); self.order.append(f)
    def add_fixed(self, g, item): self.fixed.setdefault(g, []).append(item)
    def run(self, maxr, maxout=15):
        n = len(self.mf)
        last_use = {}
        for i, (t, fs) in enumerate(self.mf):
            for f in fs: last_use[f] = i
        out = []
        bufuser = {}
        for f in self.init_out:
            out += [f] * len(self.frag[f]["rds"]); bufuser[self.frag[f]["buf"]] = f
        qi = 0
        order = [f for f in self.order if f not in self.init_out]
        gaps = [[] for _ in range(n + 1)]
        waits = [0] * n
        epoch = 0
        def try_issue(g, lim, mo=maxout):
            nonlocal qi
            cnt = 0
            while qi < len(order):
                f = order[qi]; d = self.frag[f]; rds = d["rds"]
                if d["epoch"] > epoch: break
                pu = bufuser.get(d["buf"])
                if pu is not None and last_use.get(pu, 10**9) > g: break
                if len(out) + len(rds) > mo: break
                if cnt + len(rds) > lim and cnt > 0: break
                if d["pre"]: gaps[g + 1].append(list(d["pre"]))
                for r in rds: gaps[g + 1].append([r]); out.append(f)
                bufuser[d["buf"]] = f; cnt += len(rds); qi += 1
        try_issue(-1, 16)
        for it in self.fixed.get(-1, []): gaps[0].append(it)
        for i in range(n):
            need = list(self.mf[i][1])
            for f in need:
                assert f in self.init_out or f in order[:qi], f"frag {f} not issued before mfma {i}: {self.mf[i][0]}"
            pend = [f for f in need if f in out]
            if pend:
                idx = max(j for j, x in enumerate(out) if x in pend)
                waits[i] = 1
                del out[:idx + 1]
            if i in self.bars:
                assert all(self.frag[f]["epoch"] > epoch for f in order[qi:]), f"barrier at {i} before all reads issued"
                gaps[i + 1].append(("BAR", list(self.bars[i])))
                out.clear(); epoch += 1
                try_issue(i, 8)
            else:
                try_issue(i, maxr)
            for it in self.fixed.get(i, []): gaps[i + 1].append(it)
        try_issue(n - 1, 99, 15)
        assert qi == len(order), f"unissued frags {order[qi:]}"
        post = [[] for _ in range(n + 1)]
        for k in range(n + 1):
            for p, it in enumerate(gaps[k]):
                if isinstance(it, tuple):
                    post[k] = [it[1]] + gaps[k][p + 1:]; gaps[k] = gaps[k][:p]; break
        fixedc = [cost(gaps[k]) + cost(post[k]) for k in range(n + 1)]
        for i in range(n):
            fixedc[i] += waits[i] * 0.6 + len(self.pre.get(i, []))
        for (g0, g1, items) in self.windows:
            tot = cost(items)
            idxs = list(range(g0 + 1, g1 + 1))
            cap = 1
            while sum(max(0, cap - fixedc[k]) for k in idxs) < tot + 2: cap += 0.5
            room = [max(0, cap - fixedc[k]) for k in idxs]
            scale = tot / max(1e-9, sum(room))
            acc = 0.0; used = 0; p = 0
            for k, r in zip(idxs, room):
                acc += r * scale
                while p < len(items) and used + cost([items[p]]) / 2.0 <= acc + 1e-9:
                    gaps[k].append(items[p]); c = cost([items[p]]); used += c; fixedc[k] += c; p += 1
            while p < len(items):
                gaps[idxs[-1]].append(items[p]); p += 1
        L = []
        def flat(items):
            for it in items: L.extend(it)
        flat(gaps[0]); flat(post[0])
        for i in range(n):
            L.extend(self.pre.get(i, []))
            L.append(self.mf[i][0])
            flat(gaps[i + 1]); flat(post[i + 1])
        return L

class Gen:
    def __init__(self):
        self.L = []
        self.R = []
        self.uid = 0
        self.seq = bufseq(P.NB)
        self.nstamp = 0
        self.sec = {}
    def e(self, s): self.L.append(s)
    def lab(self, p):
        self.uid += 1; return f"L{p}_{self.uid}"
    def stamp(self, k=None):
        if not P.STAMP: return []
        if k is None:
            k = self.nstamp; self.nstamp += 1
        r = sST + 2 * k
        assert r + 1 < 102
        return ["s_waitcnt lgkmcnt(0)", f"s_memrealtime s[{r}:{r+1}]", "s_waitcnt lgkmcnt(0)"]

    def softmax(self, S, five):
        m, th, l, f = (M5, TH5, L5, F5) if five else (M_, TH_, L_, F_)
        sF, sNF = (sF5, sNF5) if five else (sFM, sNFM)
        s = lambda j: f"v{S + j}"
        it = []
        it.append([f"v_max3_f32 v{T0}, {s(0)}, {s(1)}, {s(2)}"])
        it.append([f"v_max3_f32 v{T1}, {s(3)}, {s(4)}, {s(5)}"])
        for k, (a, b) in enumerate([(6, 7), (8, 9), (10, 11), (12, 13), (14, 15)]):
            t = T0 if k % 2 == 0 else T1
            it.append([f"v_max3_f32 v{t}, v{t}, {s(a)}, {s(b)}"])
        it.append([f"v_max_f32 v{T0}, v{T0}, v{T1}"])
        r1, ret = self.lab("r1"), self.lab("r1ret")
        it.append([f"v_cmp_gt_f32 vcc, v{T0}, v{th}", f"s_cbranch_vccnz {r1}", f"{ret}:"])
        self.R += [f"{r1}:",
                   f"v_mov_b32 v{T1}, v{T0}", "s_nop 1",
                   f"v_permlane32_swap_b32 v{T0}, v{T1}", "s_nop 1",
                   f"v_max_f32 v{T0}, v{T0}, v{T1}",
                   f"v_mul_f32 v{T0}, s{sC}, v{T0}",
                   f"v_max_f32 v{T0}, v{T0}, v{m}",
                   f"v_sub_f32 v{T1}, v{m}, v{T0}",
                   f"v_exp_f32 v{f}, v{T1}",
                   f"v_mov_b32 v{m}, v{T0}",
                   f"v_add_f32 v{T1}, s{sTT}, v{T0}",
                   f"v_mul_f32 v{th}, s{sIC}, v{T1}",
                   f"v_mul_f32 v{l}, v{l}, v{f}",
                   f"s_mov_b32 s{sF}, s{sNF}", f"s_mov_b32 s{sNF}, 1",
                   f"s_branch {ret}"]
        F = lambda j: [f"v_fma_f32 {s(j)}, {s(j)}, s{sC}, -v{m}"]
        E = lambda j: [f"v_exp_f32 {s(j)}, {s(j)}"]
        A = lambda j: [f"v_add_f32 v{l}, v{l}, {s(j)}"]
        C = lambda k: [f"v_cvt_pk_bf16_f32 {s(k)}, {s(2*k)}, {s(2*k+1)}"]
        for j in range(16 + 4):
            if j < 16: it.append(F(j))
            if 0 <= j - 1 < 16: it.append(E(j - 1))
            if 0 <= j - 3 < 16: it.append(A(j - 3))
            if j - 4 >= 0 and (j - 4) % 2 == 1: it.append(C((j - 4) // 2))
        return it

    def rescale_check(self, five):
        stub, ret = self.lab("r2"), self.lab("r2ret")
        pre = [f"s_or_b32 s{sT0}, s{sFM}, s{sF5}" if five else f"s_cmp_lg_u32 s{sFM}, 0",
               f"s_cbranch_scc1 {stub}", f"{ret}:"]
        k1, k2 = self.lab("k"), self.lab("k")
        self.R += [f"{stub}:", f"s_cmp_lg_u32 s{sFM}, 0", f"s_cbranch_scc0 {k1}",
                   f"s_call_b64 s[{sRET}:{sRET+1}], L_resc_main", f"{k1}:"]
        if five:
            self.R += [f"s_cmp_lg_u32 s{sF5}, 0", f"s_cbranch_scc0 {k2}",
                       f"s_call_b64 s[{sRET}:{sRET+1}], L_resc_5", f"{k2}:"]
        self.R += [f"s_branch {ret}"]
        return pre

    def resc_subs(self):
        self.R += ["L_resc_main:", "s_nop 7", "s_nop 7"]
        for k in range(128): self.R.append(f"v_mul_f32 v{OM+k}, v{OM+k}, v{F_}")
        self.R += [f"s_mov_b32 s{sFM}, 0", "s_nop 1", f"s_setpc_b64 s[{sRET}:{sRET+1}]"]
        self.R += ["L_resc_5:", "s_nop 7", "s_nop 7"]
        ts = [T2, T3, T4, T5]
        for k in range(0, 128, 4):
            for u in range(4): self.R.append(f"v_accvgpr_read_b32 v{ts[u]}, a{O5+k+u}")
            for u in range(4): self.R.append(f"v_mul_f32 v{ts[u]}, v{ts[u]}, v{F5}")
            for u in range(4): self.R.append(f"v_accvgpr_write_b32 a{O5+k+u}, v{ts[u]}")
        self.R += [f"s_mov_b32 s{sF5}, 0", "s_nop 1", f"s_setpc_b64 s[{sRET}:{sRET+1}]"]

    def vrds(self, idx, t, j):
        b = FR + 4 * self.seq[idx % 64]
        off = t * 8192 + (j >> 2) * 256
        return [f"ds_read_b64_tr_b16 {vr(b,2)}, v{VA+(j&3)} offset:{off}",
                f"ds_read_b64_tr_b16 {vr(b+2,2)}, v{VA+(j&3)} offset:{off+4096}"]
    def krds(self, idx, sg):
        b = FR + 4 * self.seq[idx % 64]
        return [f"ds_read_b128 {vr(b)}, v{KA+(sg&7)} offset:{(sg >> 3) * 256}"]
    def pre_fifo(self):
        o = []
        for k in range(P.NPRE): o += self.vrds(k, k // 8, k % 8)
        return o

    def dma_items(self):
        nt = P.KVNT
        it = []
        ld = lambda vo, s, so, u: f"buffer_load_dwordx4 v{vo}, {srd(s)}, s{so} offen offset:{u*1024}{nt} lds"
        it.append([f"s_cmp_lt_u32 s{sBW}, 98304", f"s_cselect_b32 s{sDK}, s{sPOS}, s{sNEG}",
                   f"s_add_u32 s{sCW}, s{sBW}, s{sDK}", f"s_mov_b32 m0, s{sCW}", f"s_add_u32 s{sSO2}, s{sSO}, 16384",
                   ld(OK + 0, sK, sSO, 0)])
        for u in range(1, 4): it.append([ld(OK + u, sK, sSO, u)])
        it.append([f"s_add_u32 m0, s{sCW}, 16384", f"s_sub_u32 s{sDK}, s{sDK}, s{sH1}", ld(OK + 0, sK, sSO2, 0)])
        for u in range(1, 4): it.append([ld(OK + u, sK, sSO2, u)])
        it.append([f"s_mov_b32 m0, s{sAW}", f"s_add_u32 s{sVO2}, s{sVO}, s{sGS}", ld(OV + 0, sV_, sVO, 0)])
        for u in range(1, 4): it.append([ld(OV + u, sV_, sVO, u)])
        it.append([f"s_add_u32 m0, s{sAW}, 16384", f"s_mov_b32 s{sAW}, s{sBW}", ld(OV + 0, sV_, sVO2, 0)])
        for u in range(1, 4): it.append([ld(OV + u, sV_, sVO2, u)])
        it[-1] += [f"s_mov_b32 s{sBW}, s{sCW}", f"s_add_u32 s{sSO}, s{sSO}, 32768", f"s_add_u32 s{sVO}, s{sVO}, 32768"]
        return it

    def step_sched(self, pv, qk, five):
        sc = Sched()
        blocks = {}
        def pvblock(sub, S, with5):
            base = 32 * sub
            g0 = len(sc.mf)
            sc.pre[g0] = self.rescale_check(with5)
            tj = [(t, j) for t in range(2) for j in range(8)]
            if sub == 1 and not qk: tj = [(t, j) for j in range(8) for t in range(2)]
            for p, (t, j) in enumerate(tj):
                idx = base + p
                pre = [f"v_add_u32 v{VA+j}, s{sH1}, v{VA+j}"] if (sub == 1 and t == 0 and j < 4) else []
                sc.add_frag(idx, self.seq[idx], self.vrds(idx, t, j), pre)
                fb = vr(FR + 4 * self.seq[idx])
                sc.mf.append((f"{MF} {vr(OM+16*j,16)}, {fb}, {vr(S+4*t)}, {vr(OM+16*j,16)}", [idx]))
                if with5:
                    sc.mf.append((f"{MF} {ar(O5+16*j,16)}, {fb}, {vr(S5+4*t)}, {ar(O5+16*j,16)}", [idx]))
            blocks[("pv", sub)] = (g0, len(sc.mf))
        def qkblock(sub, S, with5):
            base = 32 * sub + 16
            g0 = len(sc.mf)
            for sg in range(16):
                idx = base + sg
                pre = [f"v_add_u32 v{KA+sg}, s{sH1}, v{KA+sg}"] if (sub == 1 and sg < 8) else []
                sc.add_frag(idx, self.seq[idx], self.krds(idx, sg), pre)
                fb = vr(FR + 4 * self.seq[idx])
                sc.mf.append((f"{MF} {vr(S,16)}, {fb}, {ar(Q+4*sg)}, {'0' if sg == 0 else vr(S,16)}", [idx]))
                if with5:
                    sc.mf.append((f"{MF} {vr(S5,16)}, {fb}, {ar(Q5+4*sg)}, {'0' if sg == 0 else vr(S5,16)}", [idx]))
            blocks[("qk", sub)] = (g0, len(sc.mf))
        if pv: pvblock(0, SA, five == "Y")
        if qk: qkblock(0, SA, five == "X")
        mid = len(sc.mf)
        if pv: pvblock(1, SB, False)
        if qk: qkblock(1, SB, False)
        if pv: sc.init_out = list(range(P.NPRE))
        return sc, blocks, mid

    def step(self, pv, five):
        sc, blocks, mid = self.step_sched(pv, True, five)
        n = len(sc.mf)
        if pv: sc.windows.append((2, mid - 1, self.softmax(SB, False)))
        items = self.softmax(SA, False)
        if five == "X": items += self.softmax(S5, True)
        sc.windows.append((mid + 2, n - 1, items))
        for k in range(P.NPRE):
            pre = [f"v_add_u32 v{VA+k}, s{sDV}, v{VA+k}"] if (pv and k < 4) else []
            sc.add_frag(64 + k, self.seq[k], self.vrds(k, k // 8, k % 8), pre, epoch=1)
        bg = n - 1 - P.BAR_BEFORE
        sc.bars[bg] = ["s_waitcnt vmcnt(8) lgkmcnt(0)", "s_barrier"]
        for u in range(8):
            sc.add_fixed(min(n - 1, bg + 1 + u // 3), [f"v_add_u32 v{KA+u}, s{sDK}, v{KA+u}"])
        if pv:
            sc.add_fixed(20, [f"s_cmp_lt_u32 s{sVS}, 98304", f"s_cselect_b32 s{sDV}, s{sPOS}, s{sNEG}",
                              f"s_add_u32 s{sVS}, s{sVS}, s{sDV}", f"s_sub_u32 s{sDV}, s{sDV}, s{sH1}"])
            for k, it in enumerate(self.dma_items()):
                sc.add_fixed(P.DMA0 + k * P.DMAS, it)
        L = sc.run(P.MAXR)
        L, fifo, _ = autowait(L, self.pre_fifo() if pv else [])
        assert fifo == self.pre_fifo(), fifo
        return L

    SL = {1: 65536, 2: 131072, 3: 0}
    def final(self, five):
        sc, blocks, mid = self.step_sched(True, False, "Y" if five else None)
        n15 = len(sc.mf)
        SC = [KA, KA + 1, KA + 2, KA + 3]
        ST = [OK, OK + 2, T2]
        A1, A2, A3 = KA + 4, KA + 5, KA + 6
        RN = KA + 7
        a = []
        a.append([f"v_mov_b32 v{T4}, v{L5}", f"v_lshrrev_b32 v{A1}, 1, v{LN16}", f"s_lshl_b32 s{sT0}, s{sW}, 9"])
        a.append([f"v_permlane32_swap_b32 v{L5}, v{T4}", f"s_add_u32 s{sT1}, s{sT0}, 65536"])
        a.append([f"v_add_u32 v{A1}, s{sT1}, v{A1}", f"v_add_f32 v{L5}, v{L5}, v{T4}"])
        for y in range(4): a.append([f"ds_write_b64 v{A1}, {vr(M5,2)} offset:{y*8192}"])
        a.append([f"s_xor_b32 s{sT0}, s{sW}, 1", f"s_lshl_b32 s{sT0}, s{sT0}, 13", f"v_add_u32 v{A1}, s{sT0}, v{A1}"])
        a.append([f"v_xor_b32 v{A2}, 1024, v{A1}", f"v_xor_b32 v{A3}, 1536, v{A1}", f"v_xor_b32 v{A1}, 512, v{A1}"])
        a.append(["@waitw", "s_barrier"])
        for k, A in zip(range(3), (A1, A2, A3)): a.append([f"ds_read_b64 {vr(ST[k],2)}, v{A}"])
        sm = self.softmax(SB, False)
        h = len(sm) // 3
        a += sm[:h]
        for k, A in zip((1, 2, 3), (A1, A2, A3)):
            a.append([f"s_xor_b32 s{sT0}, s{sW}, {k}", f"s_lshl_b32 s{sT0}, s{sT0}, 13",
                      f"s_add_u32 s{sT0}, s{sT0}, {self.SL[k]}", f"v_add_u32 v{A}, s{sT0}, v{LN16}"])
        a.append([f"v_max3_f32 v{T4}, v{M5}, v{ST[0]}, v{ST[1]}"]); a.append([f"v_max_f32 v{T4}, v{T4}, v{ST[2]}"])
        ms = [M5] + ST
        for k in range(4): a.append([f"v_sub_f32 v{SC[k]}, v{ms[k]}, v{T4}"])
        for k in range(4): a.append([f"v_exp_f32 v{SC[k]}, v{SC[k]}"])
        a.append([f"v_mul_f32 v{T4}, v{SC[0]}, v{L5}"])
        for k in range(1, 4): a.append([f"v_fmac_f32 v{T4}, v{SC[k]}, v{ms[k]+1}"])
        a.append([f"v_rcp_f32 v{T4}, v{T4}", "s_nop 0"])
        for k in range(4): a.append([f"v_mul_f32 v{SC[k]}, v{SC[k]}, v{T4}"])
        wr = []
        for j in (1, 2, 3, 5, 6, 7):
            A = (A1, A2, A3)[(j & 3) - 1]
            for g in range(4):
                wr.append([f"ds_write_b128 v{A}, {ar(O5+16*j+4*g)} offset:{(j>>2)*4096 + g*1024}"])
        rest = sm[h:]
        if not five:
            mix = []
            for k in range(max(len(rest), len(wr))):
                if k < len(rest): mix.append(rest[k])
                if k % 2 == 0 and k // 2 < len(wr): mix.append(wr[k // 2])
            done = (max(len(rest), len(wr)) + 1) // 2
            mix += wr[done:]
            a += mix
        else:
            a += rest
        sc.windows.append((1, mid - 1, a))
        b = []
        b.append([f"v_mov_b32 v{T4}, v{L_}", "s_nop 1", f"v_permlane32_swap_b32 v{L_}, v{T4}", "s_nop 0"])
        b.append([f"v_add_f32 v{RN}, v{L_}, v{T4}"]); b.append([f"v_rcp_f32 v{RN}, v{RN}", "s_nop 0"])
        ACC = list(range(SA, SA + 16)) + list(range(S5, S5 + 16))
        own = []
        for k in range(32):
            src = O5 + (k if k < 16 else 64 + k - 16)
            own.append([f"v_accvgpr_read_b32 v{ACC[k]}, a{src}"])
        for k in range(32): own.append([f"v_mul_f32 v{ACC[k]}, v{ACC[k]}, v{SC[0]}"])
        if five: b += wr[:8]
        sc.windows.append((mid + 1, mid + 4, b))
        def conv(j):
            it = []
            for k in range(8):
                r = OM + 16 * j + 2 * k
                it.append([f"v_mul_f32 v{r}, v{r}, v{RN}"]); it.append([f"v_mul_f32 v{r+1}, v{r+1}, v{RN}"])
            for k in range(8):
                r = OM + 16 * j + 2 * k
                it.append([f"v_cvt_pk_bf16_f32 v{OM+8*j+k}, v{r}, v{r+1}"])
            return it
        w2 = wr[8:] if five else []
        for j in range(6):
            it = conv(j)
            for q in range(3):
                if w2: it.insert(8 * q + 4, w2.pop(0))
            sc.windows.append((mid + 2 * j + 3, mid + 2 * j + 5, it))
        L = sc.run(P.MAXR, maxout=12)
        tail = []
        for it in w2: tail += it
        for it in own[:32]: tail += it
        for j in (6, 7):
            for it in conv(j): tail += it
        WR = FR; WA = VA
        for s_ in range(2):
            for jj in range(4):
                tail.append(f"v_xor_b32 v{WR+4*s_+jj}, {jj*4096 + s_*64}, v{WRB}")
        tail += ["s_waitcnt vmcnt(0) lgkmcnt(0)", "s_barrier"]
        tail += self.stamp(5)
        L += tail
        sc = Sched()
        NWB = 16
        fcount = [0]
        accs = [64, 80, 96, 112]
        tiles = []
        def tile(base, s_, acc, epoch, acc5=None, only5=False):
            g0 = len(sc.mf)
            for sg in range(16):
                j, t = sg >> 1, sg & 1
                f = ("w", fcount[0]); bufi = fcount[0] % NWB; fcount[0] += 1
                off = (j >> 2) * 16384 + t * 2048
                pre = [f"v_add_u32 v{WA+(j&3)}, {base}, v{WR+4*s_+(j&3)}"] if (t == 0 and j < 4) else []
                sc.add_frag(f, bufi, [f"ds_read_b64_tr_b16 {ar(4*bufi,2)}, v{WA+(j&3)} offset:{off}",
                                      f"ds_read_b64_tr_b16 {ar(4*bufi+2,2)}, v{WA+(j&3)} offset:{off+1024}"], pre, epoch)
                if not only5:
                    sc.mf.append((f"{MF} {vr(acc,16)}, {ar(4*bufi)}, {vr(OM+4*sg)}, {'0' if sg == 0 else vr(acc,16)}", [f]))
                if acc5 is not None:
                    sc.mf.append((f"{MF} {vr(acc5,16)}, {ar(4*bufi)}, {ar(64+4*sg)}, {'0' if sg == 0 else vr(acc5,16)}", [f]))
            return g0, len(sc.mf)
        def store(acc, so):
            it = []
            for k in range(8): it.append([f"v_cvt_pk_bf16_f32 v{acc+k}, v{acc+2*k}, v{acc+2*k+1}"])
            it.append([so, f"buffer_store_dwordx4 {vr(acc)}, v{LN16}, {srd(sWS)}, s{sT3} offen{P.STMOD}"])
            it.append([f"buffer_store_dwordx4 {vr(acc+4)}, v{LN16}, {srd(sWS)}, s{sT3} offen offset:1024{P.STMOD}"])
            return it
        def wodma(c, slot):
            it = []
            for g in range(2):
                for u in range(4):
                    pre = []
                    if u == 0:
                        pre = [f"s_add_u32 m0, s{sW4K}, {slot*32768 + g*16384}", f"s_add_u32 s{sT2}, s{sQB}, {c*128 + g*114688}"]
                    it.append(pre + [f"buffer_load_dwordx4 v{OV+u}, {srd(sV_)}, s{sT2} offen offset:{u*1024} lds"])
            return it
        pend = []
        def flush(g0, g1):
            nonlocal pend
            it = []
            for (acc, so) in pend: it += store(acc, so)
            pend = []
            if it: sc.windows.append((g0, g1, it))
        so2 = lambda p, ntb: f"s_add_u32 s{sT3}, s{sPX+2+p}, {ntb*2048}"
        g0, g1 = tile("98304", 0, 64, 0); g2, g3 = tile("98304", 1, 80, 0)
        for k, it in enumerate(wodma(1, 1)): sc.add_fixed(k, it)
        RB = [96, 224]
        m = []
        m.append([f"s_lshl_b32 s{sT0}, s{sW}, 13", f"v_add_u32 v{A3}, s{sT0}, v{LN16}"])
        m.append([f"v_add_u32 v{A1}, {self.SL[1]}, v{A3}", f"v_add_u32 v{A2}, {self.SL[2]}, v{A3}"])
        rd = lambda A, rb: [[f"ds_read_b128 {vr(rb+4*g)}, v{A} offset:{g*1024}"] for g in range(8)]
        fm = lambda k, rb: [[f"v_fmac_f32 v{ACC[q]}, v{rb+q}, v{SC[k]}"] for q in range(32)]
        def mix(x, y, r):
            o = []; y = list(y)
            for k, it in enumerate(x):
                o.append(it)
                if k % r == r - 1 and y: o.append(y.pop(0))
            return o + y
        m += mix(own[32:], rd(A1, RB[0]) + rd(A2, RB[1]), 2)
        m += fm(1, RB[0])
        m += mix(fm(2, RB[1]), rd(A3, RB[0]), 2)
        m += fm(3, RB[0])
        for k in range(16): m.append([f"v_cvt_pk_bf16_f32 v{RB[1]+k}, v{ACC[2*k]}, v{ACC[2*k+1]}"])
        for g in range(4): m.append([f"ds_write_b128 v{A3}, {vr(RB[1]+4*g)} offset:{g*1024}"])
        bC = g3 - 1 - 3
        sc.windows.append((0, bC + 1, m))
        sc.bars[bC] = ["s_waitcnt vmcnt(0) lgkmcnt(0)", "s_barrier"] + self.stamp(6)
        pend = [(64, so2(0, 0)), (80, so2(1, 0))]
        g0, g1 = tile("32768", 0, 96, 1); g2, g3 = tile("32768", 1, 112, 1)
        g4, g5 = tile(f"s{sB0}", 0, None, 1, acc5=128, only5=True)
        for k, it in enumerate(wodma(2, 2) + wodma(3, 4)): sc.add_fixed(bC + 1 + k, it)
        o5 = []
        for q in range(4):
            o5.append([f"v_xor_b32 v{A1}, {q*8192}, v{A3}"])
            for hi in range(2):
                for t in range(2):
                    sg = 8 * hi + 2 * q + t
                    o5.append([f"ds_read_b128 {ar(64+4*sg)}, v{A1} offset:{hi*2048 + t*1024}"])
        sc.windows.append((g1 - 2, g3 - 4, o5))
        flush(g1 - 2, g3)
        pend = [(96, so2(0, 2)), (112, so2(1, 2))]
        bD = g5 - 1 - 3
        flush(g4 + 2, bD)
        sc.bars[bD] = ["s_waitcnt vmcnt(@vm) lgkmcnt(0)", "s_barrier",
                       f"s_cmp_lt_u32 s{sW}, 2", f"s_cselect_b32 s{sB0}, s{sPOS}, s{sT1}", f"s_cselect_b32 s{sB1}, s{sT1}, s{sPOS}"] + self.stamp(7)
        sc.add_fixed(g4, [f"s_mov_b32 s{sT1}, 131072"])
        pend = [(128, f"s_add_u32 s{sT3}, s{sVO}, 0")]
        rot = [64, 80, 96, 112, 144, 160, 128]
        ri = [0]
        def nacc():
            r = rot[ri[0] % len(rot)]; ri[0] += 1; return r
        def pair(pi, epoch, dma):
            nonlocal pend
            last = None
            for p in range(4):
                acc = nacc(); acc5 = nacc() if p == 0 else None
                g0, g1 = tile(f"s{sB0 if p < 2 else sB1}", p & 1, acc, epoch, acc5=acc5)
                st0 = g0 + 2
                if p == 0 and dma: st0 = g0 + len(dma) - 2
                flush(st0, g1 - (5 if p == 3 else 1))
                so = f"s_add_u32 s{sT3}, s{sPX+p}, {pi*8192}" if p < 2 else f"s_xor_b32 s{sT3}, s{sPX+p-2}, 4096\n"
                if p >= 2:
                    so = f"s_add_u32 s{sT3}, s{sPX+4+p-2}, {pi*8192}"
                pend.append((acc, so))
                if acc5 is not None: pend.append((acc5, f"s_add_u32 s{sT3}, s{sVO}, {pi*8192}"))
                last = g1
            return last
        d2 = wodma(4, 0) + wodma(5, 3) + wodma(6, 1)
        for k, it in enumerate(d2): sc.add_fixed(bD + 1 + k, it)
        gl = pair(1, 2, d2)
        bE = gl - 1 - 3
        sc.bars[bE] = ["s_waitcnt vmcnt(@vm) lgkmcnt(0)", "s_barrier",
                       f"s_cmp_lt_u32 s{sW}, 2", f"s_cselect_b32 s{sB0}, 0, s{sT1}", f"s_cselect_b32 s{sB1}, s{sT1}, 0"] + self.stamp(8)
        sc.add_fixed(bE - 2, [f"s_mov_b32 s{sT1}, 98304"])
        pair(2, 3, None)
        for p in range(2):
            acc = nacc(); acc5 = nacc() if p == 0 else None
            g0, g1 = tile("32768", p, acc, 3, acc5=acc5)
            flush(g0 + 2, g1 - 1)
            pend.append((acc, so2(p, 12)))
            if acc5 is not None: pend.append((acc5, f"s_add_u32 s{sT3}, s{sVO2}, {12*2048}"))
        L2 = sc.run(P.MAXR, maxout=10)
        L2 += ["s_nop 7", "s_nop 3"]
        for (acc, so) in pend:
            for it in store(acc, so): L2 += it
        L, fifo, _ = autowait(L, self.pre_fifo())
        assert not fifo
        L2, fifo, _ = autowait(L2)
        return L, L2

    def qproj_dma(self, c):
        b = c % 2
        it = []
        for k in range(8):
            it.append([f"s_add_u32 m0, s{sT2}, {32768 + b*32768 + k*4096}",
                       f"s_add_u32 s{sT0}, s{sT3}, {(64*c + 8*k) * 8192}",
                       f"buffer_load_dwordx4 v{OWQ}, {srd(sWQ)}, s{sT0} offen lds"])
        for k in range(5):
            it.append([f"s_add_u32 m0, s{sT2}, {98304 + b*20480 + k*4096}",
                       f"s_add_u32 s{sT0}, s{sT1}, {k*4*7168 + c*128}",
                       f"buffer_load_dwordx4 v{OX}, {srd(sX)}, s{sT0} offen lds"])
        return it

    def qproj_chunk(self, c):
        sc = Sched()
        b = c % 2
        for sp in range(4):
            xo, x5 = ("xo", sp), ("x5", sp)
            sc.add_frag(xo, ("xo", sp % 2), [f"ds_read_b128 {ar(QF+32+4*(sp%2))}, v{XA+sp} offset:{b*20480}"])
            sc.add_frag(x5, ("x5", sp % 2), [f"ds_read_b128 {ar(QF+40+4*(sp%2))}, v{X5A+sp} offset:{b*20480}"])
            for j in range(8):
                f = ("w", sp, j)
                off = b * 32768 + sp * 8192 + (j >> 2) * 256
                sc.add_frag(f, ("w", j), [f"ds_read_b64_tr_b16 {ar(QF+4*j,2)}, v{WQA+(j&3)} offset:{off}",
                                          f"ds_read_b64_tr_b16 {ar(QF+4*j+2,2)}, v{WQA+(j&3)} offset:{off+2048}"])
                first = (c == 0 and sp == 0)
                sc.mf.append((f"{MF} {vr(16*j,16)}, {ar(QF+4*j)}, {ar(QF+32+4*(sp%2))}, {'0' if first else vr(16*j,16)}", [f, xo]))
                if j % 4 == 0:
                    a5 = 128 + 16 * (j // 4)
                    sc.mf.append((f"{MF} {vr(a5,16)}, {ar(QF+4*j)}, {ar(QF+40+4*(sp%2))}, {'0' if first else vr(a5,16)}", [f, x5]))
        return sc

    def attn_kernel(self):
        e = self.e
        e(".globl attn_kernel"); e(".p2align 8"); e(".type attn_kernel,@function"); e("attn_kernel:")
        p0 = len(self.L)
        e("s_cmp_ge_u32 s2, 256"); e("s_cbranch_scc1 L_attn_end")
        e(f"s_and_b32 s{sT0}, s2, 7"); e(f"s_lshr_b32 s{sBLK}, s{sT0}, 2"); e(f"s_mul_i32 s{sT1}, s{sBLK}, 40")
        e(f"s_add_u32 s4, s0, s{sT1}"); e("s_addc_u32 s5, s1, 0")
        e("s_load_dwordx8 s[64:71], s[4:5], 0")
        e(f"s_load_dwordx2 s[{sWO}:{sWO+1}], s[4:5], 32")
        e("s_load_dwordx2 s[72:73], s[0:1], 96")
        for x in self.stamp(0): e(x)
        T6, T7, T8 = FR, FR + 1, FR + 2
        e(f"v_lshrrev_b32 v{T0}, 6, v0"); e(f"v_and_b32 v{T8}, 63, v0"); e("s_nop 0")
        e(f"v_readfirstlane_b32 s{sW}, v{T0}")
        e(f"s_lshr_b32 s{sT1}, s2, 3")
        e(f"s_and_b32 s{sH}, s{sT0}, 3"); e(f"s_lshl_b32 s{sH}, s{sH}, 2"); e(f"s_and_b32 s{sT2}, s{sT1}, 3")
        e(f"s_add_u32 s{sH}, s{sH}, s{sT2}"); e(f"s_lshr_b32 s{sB}, s{sT1}, 2")
        e(f"s_lshl_b32 s{sW4K}, s{sW}, 12")
        ln = T8
        r32, hf, rr, cc, gl = T0, T1, T2, T3, T4
        e(f"v_and_b32 v{r32}, 31, v{ln}"); e(f"v_lshrrev_b32 v{hf}, 5, v{ln}")
        e(f"v_bfe_u32 v{rr}, v{ln}, 2, 2"); e(f"v_and_b32 v{cc}, 3, v{ln}"); e(f"v_bfe_u32 v{gl}, v{ln}, 4, 1")
        e(f"v_lshlrev_b32 v{LN16}, 4, v{ln}")
        e(f"s_and_b32 s{sT0}, s{sW}, 1")
        e(f"s_lshl_b32 s{sT1}, s{sT0}, 3")
        e(f"v_lshlrev_b32 v{T5}, 2, v{hf}"); e(f"v_xor_b32 v{T5}, v{T5}, v{r32}"); e(f"v_xor_b32 v{T5}, s{sT1}, v{T5}")
        e(f"v_lshlrev_b32 v{T5}, 4, v{T5}"); e(f"v_lshl_add_u32 v{OWQ}, v{hf}, 13, v{T5}")
        e(f"s_lshl_b32 s{sT1}, s{sT0}, 2")
        e(f"v_and_b32 v{T5}, 7, v{ln}"); e(f"v_lshrrev_b32 v{T6}, 4, v{ln}"); e(f"v_xor_b32 v{T5}, v{T5}, v{T6}")
        e(f"v_xor_b32 v{T5}, s{sT1}, v{T5}"); e(f"v_lshlrev_b32 v{T5}, 4, v{T5}")
        e(f"v_lshrrev_b32 v{T6}, 3, v{ln}"); e(f"v_mul_u32_u24 v{T6}, 896, v{T6}"); e(f"v_add_u32 v{OX}, v{T5}, v{T6}")
        e("s_waitcnt lgkmcnt(0)")
        e(f"s_mul_i32 s{sT0}, s{sB}, 143360")
        e(f"s_add_u32 s{sX}, s64, s{sT0}"); e(f"s_addc_u32 s{sX+1}, s65, 0"); e(f"s_mov_b32 s{sX+2}, 143360"); e(f"s_mov_b32 s{sX+3}, 0x20000")
        e(f"s_lshl_b32 s{sT0}, s{sH}, 9")
        e(f"s_add_u32 s{sWQ}, s70, s{sT0}"); e(f"s_addc_u32 s{sWQ+1}, s71, 0")
        e(f"s_sub_u32 s{sWQ+2}, {448*8192}, s{sT0}"); e(f"s_mov_b32 s{sWQ+3}, 0x20000")
        e(f"s_lshl_b32 s{sT2}, s{sW}, 10"); e(f"s_lshl_b32 s{sT3}, s{sW}, 14"); e(f"s_mul_i32 s{sT1}, s{sW}, 7168")
        for c in range(2):
            for it in self.qproj_dma(c):
                for x in it: e(x)
        e(f"s_lshl_b32 s{sT0}, s{sB}, 4"); e(f"s_add_u32 s{sT0}, s{sT0}, s{sH}"); e(f"s_lshl_b32 s{sCNT}, s{sT0}, 19")
        for s_, p in ((sK, 66), (sV_, 68)):
            e(f"s_add_u32 s{s_}, s{p}, s{sCNT}"); e(f"s_addc_u32 s{s_+1}, s{p+1}, 0")
            e(f"s_mov_b32 s{s_+2}, 524288"); e(f"s_mov_b32 s{s_+3}, 0x20000")
        e(f"s_lshl_b32 s{sCNT}, s{sBLK}, 7"); e(f"s_add_u32 s{sT0}, s{sT0}, s{sCNT}"); e(f"s_mul_i32 s{sT0}, s{sT0}, {PART}")
        e(f"s_add_u32 s{sWS}, s72, s{sT0}"); e(f"s_addc_u32 s{sWS+1}, s73, 0")
        e(f"s_mov_b32 s{sWS+2}, {PART}"); e(f"s_mov_b32 s{sWS+3}, 0x20000")
        e(f"s_and_b32 s{sT0}, s{sW}, 1"); e(f"s_lshl_b32 s{sT0}, s{sT0}, 3")
        e(f"v_xor_b32 v{T5}, v{r32}, v{hf}"); e(f"v_xor_b32 v{T5}, s{sT0}, v{T5}"); e(f"v_lshlrev_b32 v{T5}, 4, v{T5}")
        e(f"v_lshl_add_u32 v{OK}, v{hf}, 9, v{T5}")
        for u in range(1, 4): e(f"v_xor_b32 v{OK+u}, {32*u}, v{OK}")
        e(f"v_lshlrev_b32 v{T5}, 2, v{hf}"); e(f"v_xor_b32 v{T5}, v{T5}, v{r32}"); e(f"v_lshlrev_b32 v{T5}, 4, v{T5}")
        e(f"v_lshl_add_u32 v{OV}, v{hf}, 9, v{T5}"); e(f"v_xor_b32 v{OV+1}, 128, v{OV}")
        e(f"v_mov_b32 v{OV+2}, v{OV}"); e(f"v_mov_b32 v{OV+3}, v{OV+1}")
        def kv_tile(pos):
            isk = pos % 2 == 0
            out = []
            for g in range(2):
                out.append(f"s_add_u32 m0, s{sW4K}, {(pos%5)*32768 + g*16384}")
                out.append(f"s_add_u32 s{sT0}, s{sW4K}, {(pos//2)*32768 + g*16384}")
                for u in range(4):
                    vo = OK + u if isk else OV + u
                    out.append(f"buffer_load_dwordx4 v{vo}, {srd(sK if isk else sV_)}, s{sT0} offen offset:{u*1024}{P.KVNT} lds")
            return out
        for x in kv_tile(0): e(x)
        e(f"s_and_b32 s{sCNT}, s{sW}, 1"); e(f"s_lshl_b32 s{sCNT}, s{sCNT}, 14")
        e(f"s_lshl_b32 s{sH1}, s{sCNT}, 1"); e(f"s_sub_u32 s{sH1}, 16384, s{sH1}")
        e(f"s_lshl_b32 s{sT0}, s{sW}, 2")
        e(f"v_and_b32 v{T5}, 15, v{r32}"); e(f"v_xor_b32 v{T5}, v{T5}, v{hf}"); e(f"v_xor_b32 v{T5}, s{sT0}, v{T5}")
        e(f"v_lshlrev_b32 v{T5}, 4, v{T5}"); e(f"v_lshl_add_u32 v{KA}, v{r32}, 9, v{T5}"); e(f"v_add_u32 v{KA}, s{sCNT}, v{KA}")
        for j in range(1, 8): e(f"v_xor_b32 v{KA+j}, {32*j}, v{KA}")
        e(f"v_xor_b32 v{T5}, s{sW}, v{rr}"); e(f"v_lshlrev_b32 v{T5}, 6, v{T5}")
        e(f"v_lshl_add_u32 v{T5}, v{gl}, 5, v{T5}")
        e(f"v_lshl_add_u32 v{T6}, v{cc}, 3, v{T5}")
        e(f"v_lshl_add_u32 v{T7}, v{hf}, 2, v{rr}"); e(f"v_lshl_add_u32 v{T6}, v{T7}, 9, v{T6}")
        e(f"s_add_u32 s{sCNT}, s{sCNT}, 32768")
        e(f"v_add_u32 v{VA}, s{sCNT}, v{T6}")
        for j in range(1, 4): e(f"v_xor_b32 v{VA+j}, {64*j}, v{VA}")
        e(f"v_and_b32 v{T6}, 1, v{cc}"); e(f"v_lshlrev_b32 v{T6}, 4, v{T6}")
        e(f"v_and_b32 v{WRB}, 2, v{cc}"); e(f"v_lshl_add_u32 v{T6}, v{WRB}, 2, v{T6}")
        e(f"v_lshrrev_b32 v{WRB}, 1, v{rr}"); e(f"v_xor_b32 v{WRB}, s{sW}, v{WRB}"); e(f"v_and_b32 v{WRB}, 1, v{WRB}")
        e(f"v_lshl_add_u32 v{WRB}, v{WRB}, 6, v{T6}"); e(f"v_lshl_add_u32 v{WRB}, v{gl}, 5, v{WRB}")
        e(f"v_lshl_add_u32 v{WRB}, v{T7}, 7, v{WRB}"); e(f"v_add_u32 v{WRB}, s{sW4K}, v{WRB}")
        e(f"v_add_u32 v{T5}, v{T5}, v{T6}")
        e(f"v_lshl_add_u32 v{T7}, v{hf}, 3, v{rr}"); e(f"v_lshl_add_u32 v{T5}, v{T7}, 9, v{T5}")
        e(f"v_add_u32 v{WQA}, 32768, v{T5}")
        for j in range(1, 4): e(f"v_xor_b32 v{WQA+j}, {64*j}, v{WQA}")
        e(f"v_bfe_u32 v{T5}, v{r32}, 1, 3"); e(f"v_xor_b32 v{T5}, v{T5}, v{hf}"); e(f"v_lshlrev_b32 v{T5}, 4, v{T5}")
        e(f"v_lshl_add_u32 v{T5}, v{r32}, 7, v{T5}")
        e(f"v_add_u32 v{X5A}, {98304+16384}, v{T5}")
        e(f"v_add_u32 v{T5}, 98304, v{T5}"); e(f"v_add_u32 v{XA}, s{sW4K}, v{T5}")
        for s in range(1, 4):
            e(f"v_xor_b32 v{XA+s}, {32*s}, v{XA}"); e(f"v_xor_b32 v{X5A+s}, {32*s}, v{X5A}")
        c = math.log2(math.e) / 16.0
        e(f"s_mov_b32 s{sC}, {hex(f2u(c))}"); e(f"s_mov_b32 s{sTT}, {hex(f2u(8.0))}"); e(f"s_mov_b32 s{sIC}, {hex(f2u(1.0/c))}")
        for s_ in (sFM, sF5, sNFM, sNF5): e(f"s_mov_b32 s{s_}, 0")
        e(f"s_mov_b32 s{sPOS}, 65536"); e(f"s_mov_b32 s{sNEG}, {hex((-98304) & 0xffffffff)}")
        for m, th, l, f in ((M_, TH_, L_, F_), (M5, TH5, L5, F5)):
            e(f"v_mov_b32 v{m}, {hex(f2u(-1e30))}"); e(f"v_mov_b32 v{th}, {hex(f2u(-3e38))}")
            e(f"v_mov_b32 v{l}, 0"); e(f"v_mov_b32 v{f}, 1.0")
        e("s_waitcnt vmcnt(21)"); e("s_barrier")
        for x in self.stamp(1): e(x)
        for c in range(7):
            sc = self.qproj_chunk(c)
            if c >= 1 and c + 1 < 7:
                for k, it in enumerate(self.qproj_dma(c + 1)): sc.add_fixed(k, it)
            L, fifo, _ = autowait(sc.run(4))
            assert not fifo
            for x in L: e(x)
            if c < 6:
                e(f"s_waitcnt vmcnt({8 if c == 0 else 0})"); e("s_barrier")
        for x in self.stamp(2): e(x)
        e("s_nop 7"); e("s_nop 3")
        for k in range(16):
            e(f"v_cvt_pk_bf16_f32 v{128+k}, v{128+2*k}, v{128+2*k+1}")
        e(f"s_lshl_b32 s{sT0}, s{sW}, 11"); e(f"s_add_u32 s{sT0}, s{sT0}, 139264")
        e(f"v_add_u32 v{T5}, s{sT0}, v{LN16}")
        for k, off in enumerate((0, 1024, 8192, 9216)):
            e(f"ds_write_b128 v{T5}, {vr(128+4*k)} offset:{off}")
        for u in range(4): e(f"v_mov_b32 v{SB+u}, 0")
        e("s_waitcnt lgkmcnt(0)"); e("s_barrier")
        for pos in (1, 2, 3):
            for x in kv_tile(pos): e(x)
        e(f"s_lshl_b32 s{sT0}, s{sW}, 11")
        for q in range(4):
            e(f"s_xor_b32 s{sT1}, s{sT0}, {q*2048}"); e(f"s_add_u32 s{sT1}, s{sT1}, 139264")
            e(f"v_add_u32 v{T5}, s{sT1}, v{LN16}")
            if q == 3: e("s_waitcnt lgkmcnt(8)")
            for hi in range(2):
                for t in range(2):
                    sg = 8 * hi + 2 * q + t
                    e(f"ds_read_b128 {ar(Q5+4*sg)}, v{T5} offset:{hi*8192 + t*1024}")
        for k in range(64):
            if k % 8 == 0: e(f"{MF} {ar(O5+2*k,16)}, {vr(SB)}, {vr(SB)}, 0")
            e(f"v_cvt_pk_bf16_f32 v{FR+(k&7)}, v{2*k}, v{2*k+1}")
            if k >= 2: e(f"v_accvgpr_write_b32 a{Q+k-2}, v{FR+((k-2)&7)}")
        for k in (62, 63): e(f"v_accvgpr_write_b32 a{Q+k}, v{FR+(k&7)}")
        for k in range(8): e(f"{MF} {vr(OM+16*k,16)}, {vr(SB)}, {vr(SB)}, 0")
        e(f"s_sub_u32 s{sDK}, 65536, s{sH1}")
        e(f"s_mov_b32 s{sVS}, 32768")
        e(f"s_mov_b32 s{sCNT}, 15")
        e(f"s_mov_b32 s{sAW}, s{sW4K}"); e(f"s_add_u32 s{sBW}, s{sW4K}, 65536")
        e(f"s_add_u32 s{sSO}, s{sW4K}, 65536"); e(f"s_mov_b32 s{sVO}, s{sSO}"); e(f"s_mov_b32 s{sGS}, 16384")
        e("s_waitcnt lgkmcnt(0)")
        for x in self.stamp(3): e(x)
        head = self.L[p0:]
        e(f"s_cmp_lt_u32 s{sW}, 2"); e("s_cbranch_scc1 L_pro_x")
        pn = self.step(False, None)
        px = self.step(False, "X")
        sx = self.step(True, "X")
        sy = self.step(True, "Y")
        fn, op = self.final(False)
        fy, op2 = self.final(True)
        chk = lambda nm: [f"s_sub_u32 s{sCNT}, s{sCNT}, 1", f"s_cmp_le_u32 s{sCNT}, 1", f"s_cbranch_scc1 L_sp_{nm}"]
        for x in pn: e(x)
        e("L_x:")
        for x in sx + chk("x"): e(x)
        e("L_y:")
        for x in sy + chk("y"): e(x)
        e("s_branch L_x")
        e("L_pro_x:")
        for x in px: e(x)
        e("s_branch L_y")
        sw = [f"s_mul_i32 s{sT0}, s{sH}, 229376",
              f"s_add_u32 s{sV_}, s{sWO}, s{sT0}", f"s_addc_u32 s{sV_+1}, s{sWO+1}, 0", f"s_mov_b32 s{sV_+2}, 229376",
              f"s_mul_i32 s{sQB}, s{sW}, 28672", f"s_mov_b32 s{sVO}, s{sQB}", f"s_mov_b32 s{sGS}, 114688",
              f"v_lshrrev_b32 v{T2}, 7, v{LN16}", f"v_mul_u32_u24 v{T2}, 896, v{T2}",
              f"v_lshrrev_b32 v{T3}, 2, v{LN16}", f"v_and_b32 v{T3}, 64, v{T3}",
              f"v_and_b32 v{T4}, 112, v{LN16}", f"v_xor_b32 v{T3}, v{T3}, v{T4}", f"v_add_u32 v{OV}, v{T2}, v{T3}"]
        for u in range(1, 4): sw.append(f"v_add_u32 v{OV+u}, {6144*u}, v{OV}")
        for p in range(2):
            sw += [f"s_xor_b32 s{sT0}, s{sW}, {p}", f"s_lshl_b32 s{sT1}, s{sT0}, 11", f"s_add_u32 s{sPX+p}, s{sQB}, s{sT1}",
                   f"s_and_b32 s{sT2}, s{sT1}, 2048", f"s_add_u32 s{sPX+2+p}, s{sQB}, s{sT2}",
                   f"s_xor_b32 s{sT1}, s{sT1}, 4096", f"s_add_u32 s{sPX+4+p}, s{sQB}, s{sT1}"]
        sw += [f"s_cmp_lt_u32 s{sW}, 2", f"s_mov_b32 s{sT1}, 98304", f"s_cselect_b32 s{sB0}, s{sT1}, 32768"]
        fin = [f"s_lshl_b32 s{sT0}, s{sW}, 11", f"s_add_u32 s{sVO}, s{sT0}, {4*28672}",
               f"s_and_b32 s{sT0}, s{sT0}, 2048", f"s_add_u32 s{sVO2}, s{sT0}, {4*28672}"] + self.stamp(4)
        e("L_sp_x:"); e(f"s_cmp_eq_u32 s{sCNT}, 0"); e("s_cbranch_scc1 L_fin_y")
        for x in sw: e(x)
        e("s_branch L_y")
        e("L_sp_y:"); e(f"s_cmp_eq_u32 s{sCNT}, 0"); e("s_cbranch_scc1 L_fin_n")
        for x in sw: e(x)
        e("s_branch L_x")
        e("L_fin_n:")
        for x in fin + fn: e(x)
        e("s_branch L_op")
        e("L_fin_y:")
        for x in fin + fy: e(x)
        e("L_op:")
        for x in op: e(x)
        if P.STAMP:
            e("s_waitcnt vmcnt(0)")
            for x in self.stamp(9): e(x)
            e(f"s_lshl_b32 s{sT0}, s2, 2"); e(f"s_add_u32 s{sT0}, s{sT0}, s{sW}"); e(f"s_lshl_b32 s{sT0}, s{sT0}, 6")
            e(f"s_add_u32 s{sT0}, s{sT0}, {STAMP_OFF}")
            e("s_load_dwordx2 s[72:73], s[0:1], 96"); e("s_waitcnt lgkmcnt(0)")
            e(f"s_add_u32 s{sWS}, s72, s{sT0}"); e(f"s_addc_u32 s{sWS+1}, s73, 0"); e(f"s_mov_b32 s{sWS+2}, 64")
            e(f"s_getreg_b32 s{sT1}, hwreg(HW_REG_XCC_ID)")
            for k in range(12): e(f"v_mov_b32 v{k}, s{sST+2*k}" if k < 10 else f"v_mov_b32 v{k}, s{sT1}")
            e("v_mov_b32 v20, 0")
            for k in range(3): e(f"buffer_store_dwordx4 {vr(4*k)}, v20, {srd(sWS)}, 0 offen offset:{16*k}")
        e("L_attn_end:")
        e("s_endpgm")
        self.resc_subs()
        for x in self.R: e(x)
        self.R = []
        probs = []
        paths = {"head+pn+sx": head + pn + sx, "head+px+sy": head + px + sy, "sx+sy": sx + sy, "sy+sx": sy + sx,
                 "sx+sw+sy": sx + sw + sy, "sy+fn+op": sy + fin + fn + op, "sx+fy+op": sx + fin + fy + op}
        for nm, p in paths.items(): probs += check_hazards(p, nm)
        assert [x for x in op if "Lr" not in x] == [x for x in op2 if "Lr" not in x]
        self.sec = dict(head=head, pn=pn, px=px, sx=sx, sy=sy, fn=fn, fy=fy, op=op)
        return probs

    def reduce_kernel(self):
        e = self.e
        e(".globl reduce_kernel"); e(".p2align 8"); e(".type reduce_kernel,@function"); e("reduce_kernel:")
        p0 = len(self.L)
        e("s_cmp_ge_u32 s2, 560"); e("s_cbranch_scc1 L_red_end")
        e("s_load_dwordx2 s[4:5], s[0:1], 80"); e("s_load_dwordx2 s[6:7], s[0:1], 96")
        e("v_lshrrev_b32 v1, 6, v0"); e("v_lshlrev_b32 v2, 4, v0")
        e("s_mul_i32 s16, s2, 1873"); e("s_lshr_b32 s16, s16, 16"); e("s_mul_i32 s17, s16, 35"); e("s_sub_u32 s17, s2, s17")
        e("v_readfirstlane_b32 s18, v1")
        e(f"s_mul_i32 s19, s16, {16*PART}"); e("s_lshl_b32 s20, s17, 12")
        e("s_waitcnt lgkmcnt(0)")
        e("s_add_u32 s8, s6, s19"); e("s_addc_u32 s9, s7, 0"); e(f"s_mov_b32 s10, {16*PART}"); e("s_mov_b32 s11, 0x20000")
        for h in range(16):
            e(f"buffer_load_dwordx4 {vr(16+4*h)}, v2, s[8:11], s20 offen{P.RDMOD}")
            if h < 15: e(f"s_add_u32 s20, s20, {PART}")
        e("s_lshl_b32 s21, s17, 2"); e("s_add_u32 s21, s21, s18"); e("s_lshr_b32 s22, s21, 1"); e("s_and_b32 s21, s21, 1")
        e("s_mul_i32 s23, s22, 4682"); e("s_lshr_b32 s23, s23, 16"); e("s_mul_i32 s24, s23, 14"); e("s_sub_u32 s24, s22, s24")
        e("s_and_b32 s25, s16, 7"); e("s_lshr_b32 s26, s16, 3")
        e("s_mul_i32 s25, s25, 5"); e("s_add_u32 s25, s25, s23"); e(f"s_mul_i32 s25, s25, {32*1792}")
        e("s_mul_i32 s26, s26, 896"); e("s_add_u32 s25, s25, s26")
        e("s_lshl_b32 s24, s24, 6"); e("s_add_u32 s25, s25, s24"); e("s_lshl_b32 s21, s21, 5"); e("s_add_u32 s25, s25, s21")
        e("v_and_b32 v3, 31, v0"); e("v_mul_u32_u24 v3, 1792, v3"); e("v_bfe_u32 v4, v0, 5, 1"); e("v_lshl_add_u32 v3, v4, 4, v3")
        e("s_mov_b32 s12, s4"); e("s_mov_b32 s13, s5"); e(f"s_mov_b32 s14, {8*160*1792}"); e("s_mov_b32 s15, 0x20000")
        e("s_mov_b32 s27, 0xffff0000")
        for h in range(16):
            e(f"s_waitcnt vmcnt({15-h})")
            for d in range(4):
                r = 16 + 4 * h + d
                if h == 0:
                    e(f"v_lshlrev_b32 v{8+2*d}, 16, v{r}"); e(f"v_and_b32 v{9+2*d}, s27, v{r}")
                else:
                    e(f"v_lshlrev_b32 v{4+(d&1)*2}, 16, v{r}"); e(f"v_and_b32 v{5+(d&1)*2}, s27, v{r}")
                    e(f"v_pk_add_f32 {vr(8+2*d,2)}, {vr(8+2*d,2)}, {vr(4+(d&1)*2,2)}")
        for d in range(4): e(f"v_cvt_pk_bf16_f32 v{16+d}, v{8+2*d}, v{9+2*d}")
        e(f"buffer_store_dwordx4 {vr(16)}, v3, s[12:15], s25 offen")
        e("L_red_end:")
        e("s_endpgm")
        return check_hazards(self.L[p0:], "reduce")

def desc(name, vg, acc):
    return [f".amdhsa_kernel {name}", f"  .amdhsa_next_free_vgpr {vg}", "  .amdhsa_next_free_sgpr 102",
            f"  .amdhsa_accum_offset {acc}", "  .amdhsa_group_segment_fixed_size 0", "  .amdhsa_kernarg_size 104",
            "  .amdhsa_user_sgpr_count 2", "  .amdhsa_user_sgpr_kernarg_segment_ptr 1",
            "  .amdhsa_system_sgpr_workgroup_id_x 1", ".end_amdhsa_kernel"]

def build(path, verbose=True):
    g = Gen()
    ref = open(f"cdna_kernels/{NAME}.s.ref").read().splitlines()
    hdr = [l for l in ref if l.startswith(";") and "@launch" not in l]
    g.L += hdr
    g.L += ["; @launch kernel=attn_kernel grid=(256,1,1) block=(256,1,1) lds=163840",
            "; @launch kernel=reduce_kernel grid=(560,1,1) block=(256,1,1) lds=0",
            '.amdgcn_target "amdgcn-amd-amdhsa--gfx950"', ".text"]
    probs = g.attn_kernel()
    probs += g.reduce_kernel()
    g.L += ['.section .rodata,"a"', ".p2align 6"] + desc("attn_kernel", 512, 256) + [".p2align 6"] + desc("reduce_kernel", 80, 80)
    open(path, "w").write("\n".join(g.L) + "\n")
    seen = set()
    for p in probs:
        k = p.split("]", 1)[1]
        if k not in seen: print(p); seen.add(k)
    if verbose:
        for k, v in g.sec.items():
            ins = [Ins(x) for x in v]
            print(k, "instr", sum(1 for i in ins if i.states), "mfma", sum(1 for i in ins if i.kind == "mfma"),
                  "cost", sum(i.cost for i in ins))
    return g

if __name__ == "__main__":
    out = sys.argv[1] if len(sys.argv) > 1 else "k.s"
    for kv in sys.argv[2:]:
        k, v = kv.split("=", 1)
        setattr(P, k, eval(v))
    build(out)
```

```python
import re

REG_RE = re.compile(r'^(-?)(abs\()?([vas])(\d+|\[(\d+):(\d+)\])\)?$')

def regs_of(tok):
    tok = tok.strip()
    if tok in ("vcc",): return {("s", "vcc")}
    if tok in ("exec",): return {("s", "exec")}
    if tok == "m0": return {("s", "m0")}
    if tok == "scc": return {("s", "scc")}
    m = REG_RE.match(tok)
    if not m: return set()
    k = m.group(3)
    if m.group(5) is not None:
        return {(k, i) for i in range(int(m.group(5)), int(m.group(6)) + 1)}
    return {(k, int(m.group(4)))}

def split_ops(s):
    out, depth, cur = [], 0, ""
    for ch in s:
        if ch in "[(": depth += 1
        if ch in "])": depth -= 1
        if ch == "," and depth == 0:
            out.append(cur.strip()); cur = ""
        else:
            cur += ch
    if cur.strip(): out.append(cur.strip())
    return out

TRANS = ("v_exp_f32", "v_log_f32", "v_rcp_f32", "v_rsq_f32", "v_sqrt_f32")

class Ins:
    __slots__ = ("text", "mn", "kind", "rd", "wr", "ops", "srcc", "states", "passes", "cost")
    def __init__(self, text):
        self.text = text
        t = text.split(";")[0].strip()
        self.rd, self.wr, self.srcc = set(), set(), set()
        self.states = 1; self.passes = 0; self.cost = 1
        if not t or t.endswith(":") or t.startswith("."):
            self.mn = ""; self.kind = "label" if t.endswith(":") else "none"; self.ops = []; self.states = 0; self.cost = 0
            return
        parts = t.split(None, 1)
        mn = parts[0]; self.mn = mn
        rest = parts[1] if len(parts) > 1 else ""
        ops = split_ops(rest)
        if ops:
            last = ops[-1].split()
            ops[-1] = last[0]; mods = last[1:]
        else:
            mods = []
        self.ops = ops
        R = lambda i: regs_of(ops[i]) if i < len(ops) else set()
        if mn.startswith("v_mfma"):
            self.kind = "mfma"
            self.wr = R(0); self.rd = R(1) | R(2) | R(3); self.srcc = R(3)
            self.passes = 8 if "32x32x16" in mn else 4
            self.cost = 2
        elif mn.startswith("ds_read") or mn.startswith("ds_bpermute"):
            self.kind = "ds"; self.wr = R(0); self.rd = set().union(*[R(i) for i in range(1, len(ops))])
        elif mn.startswith("ds_write") or mn.startswith("ds_add"):
            self.kind = "ds"; self.rd = set().union(*[R(i) for i in range(len(ops))])
        elif mn.startswith("buffer_load") or mn.startswith("global_load"):
            self.kind = "vmem"
            if "lds" in mods or "_lds_" in mn:
                self.rd = set().union(*[R(i) for i in range(len(ops))]) | {("s", "m0")}
                self.kind = "dma"
            else:
                self.wr = R(0); self.rd = set().union(*[R(i) for i in range(1, len(ops))])
        elif mn.startswith("buffer_store") or mn.startswith("global_store"):
            self.kind = "vstore"; self.rd = set().union(*[R(i) for i in range(len(ops))])
        elif mn.startswith("buffer_atomic") or mn.startswith("global_atomic"):
            self.kind = "vmem"; self.rd = set().union(*[R(i) for i in range(len(ops))])
            if "sc0" in mods: self.wr = R(0)
        elif mn.startswith("buffer_"):
            self.kind = "vmem"
        elif mn.startswith("v_cmp"):
            self.kind = "valu"; self.wr = R(0); self.rd = R(1) | R(2)
        elif mn.startswith("v_permlane") and "swap" in mn:
            self.kind = "valu"; self.wr = R(0) | R(1); self.rd = R(0) | R(1)
        elif mn.startswith("v_"):
            self.kind = "valu"
            self.wr = R(0); self.rd = set().union(*[R(i) for i in range(1, len(ops))]) if len(ops) > 1 else set()
            if mn.startswith("v_fmac") or mn.startswith("v_dot2c"): self.rd |= R(0)
            if mn.startswith("v_cndmask") and len(ops) == 3: self.rd |= {("s", "vcc")}
            if "_co_" in mn: self.wr |= R(1)
            if mn in TRANS or mn.replace("_e32", "").replace("_e64", "") in TRANS: self.cost = 2
        elif mn == "s_nop":
            self.kind = "nop"; self.states = int(ops[0], 0) + 1; self.cost = self.states
        elif mn.startswith("s_load") or mn.startswith("s_memtime") or mn.startswith("s_memrealtime"):
            self.kind = "smem"; self.wr = R(0); self.rd = R(1)
        elif mn.startswith("s_cbranch") or mn == "s_branch" or mn.startswith("s_setpc") or mn.startswith("s_call") or mn.startswith("s_swappc"):
            self.kind = "branch"
            if "vcc" in mn: self.rd = {("s", "vcc")}
        elif mn.startswith("s_waitcnt") or mn in ("s_barrier", "s_endpgm", "s_setprio", "s_sleep"):
            self.kind = "ctl"
        elif mn.startswith("s_cmp"):
            self.kind = "salu"; self.rd = R(0) | R(1)
        elif mn.startswith("s_"):
            self.kind = "salu"; self.wr = R(0); self.rd = set().union(*[R(i) for i in range(1, len(ops))]) if len(ops) > 1 else set()
        else:
            raise ValueError("unknown instruction: " + text)
    def is_trans(self):
        return self.mn.replace("_e32", "").replace("_e64", "") in TRANS

TIMEBASED = True
def check_hazards(lines, name=""):
    ins = [Ins(l) for l in lines]
    ins = [i for i in ins if i.kind not in ("label", "none")]
    probs = []
    W = 24
    tm = []; t = 0; lastm = None
    for i_ in ins:
        if i_.kind == "mfma" and lastm is not None and TIMEBASED: t = max(t, lastm[0] + lastm[1])
        tm.append(t)
        if i_.kind == "mfma": lastm = (t, i_.passes)
        t += i_.states
    for j, c in enumerate(ins):
        dist = 0
        for i in range(j - 1, max(-1, j - W - 1), -1):
            p = ins[i]
            if p.kind == "mfma": dist = max(dist, min(tm[j] - tm[i] - 1, dist + 8))
            need = 0; why = ""
            vec = lambda s: {r for r in s if r[0] in "va"}
            sg = lambda s: {r for r in s if r[0] == "s"}
            if p.kind == "mfma":
                n = {8: (12, 10, 7), 4: (8, 6, 3)}[p.passes]
                if c.kind == "mfma":
                    ab = c.rd - c.srcc if not (c.srcc & (regs_of(c.ops[1]) | regs_of(c.ops[2]))) else c.rd
                    ab = regs_of(c.ops[1]) | regs_of(c.ops[2])
                    if p.wr & ab: need, why = n[0], "mfma D -> mfma A/B"
                    elif p.wr & c.srcc and (p.wr != c.srcc or p.passes != c.passes): need, why = n[1], "mfma D -> overlapping C"
                    elif p.wr & c.wr and p.wr != c.srcc: need, why = n[1], "mfma D -> mfma D (WAW, non-chain)"
                elif c.kind in ("valu",):
                    if p.wr & (c.rd | c.wr): need, why = n[0], "mfma D -> valu"
                    elif p.srcc & c.wr: need, why = n[2], "mfma C read -> valu write"
                elif c.kind in ("ds", "vmem", "vstore", "dma"):
                    if p.wr & (c.rd | c.wr): need, why = n[0], "mfma D -> mem"
            elif p.kind == "valu":
                if c.kind == "mfma" and vec(p.wr) & c.rd: need, why = 2, "valu -> mfma"
                if c.kind == "valu":
                    if p.is_trans() and not c.is_trans() and p.wr & c.rd: need, why = max(need, 1), "trans -> valu"
                    if c.mn.startswith("v_permlane") and vec(p.wr) & c.rd: need, why = 2, "valu -> permlane"
                    if (c.mn.startswith("v_readfirstlane") or c.mn.startswith("v_readlane")) and vec(p.wr) & c.rd: need, why = max(need, 1), "valu -> readlane"
                    if sg(p.wr) & c.rd: need, why = max(need, 2), "valu sgpr -> valu read"
                    if "dpp" in c.mn and vec(p.wr) & c.rd: need, why = 2, "valu->dpp"
                if c.kind in ("vmem", "vstore", "dma") and sg(p.wr) & c.rd: need, why = 5, "valu sgpr -> vmem"
                if c.kind in ("ds", "vmem", "vstore", "dma") and p.is_trans() and p.wr & c.rd: need, why = max(need, 1), "trans -> mem"
            elif p.kind == "salu":
                if ("s", "m0") in p.wr and c.kind == "dma": need, why = 1, "m0 -> dma"
            elif p.kind == "vstore":
                if ("x4" in p.mn or "x3" in p.mn):
                    data = regs_of(p.ops[0]) if p.mn.startswith("buffer") else regs_of(p.ops[1])
                    if c.kind == "valu" and data & c.wr: need, why = 2, "store data WAR valu"
                    elif data & c.wr: need, why = 1, "store data WAR"
            if need > dist:
                probs.append(f"[{name}] need {need} have {dist}: {why}\n    {p.text}\n    {c.text}")
            dist += p.states
            if dist >= 20: break
    return probs


WAIT_RE = re.compile(r'lgkmcnt\((\d+)\)')
def autowait(lines, fifo0=(), look=True, vm_since0=0):
    fifo = [Ins(t) for t in fifo0]
    out = []
    vm_since = vm_since0
    ins = [None if l.startswith("@") or "@vm" in l else Ins(l) for l in lines]
    def need_idx(i):
        regs = i.rd | i.wr
        idx = -1
        for k, f in enumerate(fifo):
            if f.wr & regs: idx = k
        return idx
    def wait_to(idx):
        n = len(fifo) - 1 - idx
        out.append(f"s_waitcnt lgkmcnt({n})")
        del fifo[:idx + 1]
    for p, l in enumerate(lines):
        if l == "@waitw":
            idx = -1
            for k, f in enumerate(fifo):
                if f.mn.startswith("ds_write"): idx = k
            if idx >= 0: wait_to(idx)
            continue
        if l.startswith("@waita"):
            reg = ("a", int(l.split()[1]))
            idx = -1
            for k, f in enumerate(fifo):
                if reg in f.wr: idx = k
            if idx >= 0: wait_to(idx)
            continue
        if "@vm" in l:
            l = l.replace("@vm", str(vm_since)); ins[p] = Ins(l)
        i = ins[p]
        if i.kind in ("label", "none"):
            out.append(l); continue
        if i.mn.startswith("s_waitcnt"):
            m = WAIT_RE.search(l)
            if m:
                n = int(m.group(1))
                if len(fifo) > n: del fifo[:len(fifo) - n]
            out.append(l); continue
        if i.kind == "smem":
            assert not fifo or True
        idx = need_idx(i)
        if idx >= 0:
            if look and i.kind == "mfma":
                seen = 0
                for q in range(p + 1, len(lines)):
                    j = ins[q]
                    if j is None: break
                    if j.kind == "mfma":
                        seen += 1
                        k = need_idx(j)
                        if k > idx:
                            if len(fifo) - 1 - k >= 4: idx = k
                            break
                        if seen >= 2: break
            wait_to(idx)
        if i.kind == "ds":
            if len(fifo) >= 15: wait_to(len(fifo) - 15)
            fifo.append(i)
        if i.kind == "dma": vm_since = 0
        elif i.kind in ("vmem", "vstore"): vm_since += 1
        out.append(l)
    return out, [f.text for f in fifo], vm_since
```

```python
import sys, math, struct
from asmlib import Ins, check_hazards, autowait

NAME = "concat_heads__mha_block_cached__mha_block_cached__near_ridge"
MF = "v_mfma_f32_32x32x16_bf16"

def f2u(x): return struct.unpack("<I", struct.pack("<f", x))[0]
def vr(b, n=4): return f"v[{b}:{b+n-1}]"
def ar(b, n=4): return f"a[{b}:{b+n-1}]"

class P:
    NB = 11
    NPRE = 7
    BAR_BEFORE = 4
    MAXR = 3
    DMA0 = 0
    DMAS = 1
    STAMP = False
    KVNT = " nt"
    STMOD = " sc1"
    RDMOD = ""
    KVP = [0, 2, 4, 4, 4, 10]
    QDS = 2
    QBB = 4
    WARMQ = True
    WARMO = True
    SGRP = 0

OM = 0
Q, Q5, O5 = 0, 64, 128
SA, SB, S5 = 128, 144, 160
KA = 176; VA = 184; OK = 188; OV = 192
M_, TH_, L_, F_ = 196, 197, 198, 199
M5, L5, TH5, F5 = 200, 201, 202, 203
T0, T1, T2, T3 = 204, 205, 206, 207
LN16 = 208
T4, T5, WRB = 209, 210, 211
FR = 212
WQA = 160; XA = 164; X5A = 168; OWQ = 172; OX = 173
QF = 64
PF = 128
QBUF = 53248
def SLOT(p): return ((p + 4) % 5) * 32768
sK, sV_, sX, sWQ, sWS = 8, 12, 16, 20, 24
sW, sW4K = 28, 29
sRET = 30
sC, sTT, sIC = 32, 33, 34
sFM, sF5, sNFM, sNF5 = 35, 36, 37, 38
sCNT = 39
sSO, sSO2 = 40, 41
sAW, sBW, sCW = 42, 43, 44
sDK, sDV, sVS = 45, 46, 47
sPOS, sNEG = 48, 49
sT0, sT1, sT2, sT3 = 50, 51, 52, 53
sBLK, sB, sH = 54, 55, 56
sH1, sVO, sVO2, sGS = 57, 58, 59, 60
sWO = 62
sB0, sB1, sQB = 64, 65, 66
sPX = 68
sST = 76
PART = 143360
STAMP_OFF = 48 << 20

def srd(b): return f"s[{b}:{b+3}]"

def bufseq(nb, n=64):
    rounds = -(-n // nb)
    sizes = [n // rounds + (1 if i < n % rounds else 0) for i in range(rounds)]
    seq = []
    for s in sizes: seq += list(range(s))
    return seq

def cost(items): return sum(1 if (x.startswith("@") or "@vm" in x) else Ins(x).cost for it in items for x in it)

def vmpass(lines, q):
    out = []
    for l in lines:
        if l.startswith("@vmw"):
            p = l.split(None, 2)
            idx = max(k for k, t in enumerate(q) if t == p[1])
            n = len(q) - 1 - idx
            assert n <= 63
            out.append(f"s_waitcnt vmcnt({n})" + (" " + p[2] if len(p) > 2 else ""))
            continue
        if l.startswith("buffer_"):
            q.append(l.split("@t:")[1].strip() if "@t:" in l else None)
            l = l.split(";")[0].strip()
        out.append(l)
    return out

class Sched:
    def __init__(self):
        self.mf = []
        self.frag = {}
        self.order = []
        self.fixed = {}
        self.pre = {}
        self.windows = []
        self.bars = {}
        self.init_out = []
    def add_frag(self, f, buf, rds, pre=(), epoch=0):
        self.frag[f] = dict(buf=buf, rds=rds, pre=list(pre), epoch=epoch); self.order.append(f)
    def add_fixed(self, g, item): self.fixed.setdefault(g, []).append(item)
    def run(self, maxr, maxout=15):
        n = len(self.mf)
        last_use = {}
        for i, (t, fs) in enumerate(self.mf):
            for f in fs: last_use[f] = i
        out = []
        bufuser = {}
        for f in self.init_out:
            out += [f] * len(self.frag[f]["rds"]); bufuser[self.frag[f]["buf"]] = f
        qi = 0
        order = [f for f in self.order if f not in self.init_out]
        gaps = [[] for _ in range(n + 1)]
        waits = [0] * n
        epoch = 0
        def try_issue(g, lim, mo=maxout):
            nonlocal qi
            cnt = 0
            while qi < len(order):
                f = order[qi]; d = self.frag[f]; rds = d["rds"]
                if d["epoch"] > epoch: break
                pu = bufuser.get(d["buf"])
                if pu is not None and last_use.get(pu, 10**9) > g: break
                if len(out) + len(rds) > mo: break
                if cnt + len(rds) > lim and cnt > 0: break
                if d["pre"]: gaps[g + 1].append(list(d["pre"]))
                for r in rds: gaps[g + 1].append([r]); out.append(f)
                bufuser[d["buf"]] = f; cnt += len(rds); qi += 1
        try_issue(-1, 16)
        for it in self.fixed.get(-1, []): gaps[0].append(it)
        for i in range(n):
            need = list(self.mf[i][1])
            for f in need:
                assert f in self.init_out or f in order[:qi], f"frag {f} not issued before mfma {i}: {self.mf[i][0]}"
            pend = [f for f in need if f in out]
            if pend:
                idx = max(j for j, x in enumerate(out) if x in pend)
                waits[i] = 1
                del out[:idx + 1]
            if i in self.bars:
                assert all(self.frag[f]["epoch"] > epoch for f in order[qi:]), f"barrier at {i} before all reads issued"
                gaps[i + 1].append(("BAR", list(self.bars[i])))
                out.clear(); epoch += 1
                try_issue(i, 8)
            else:
                try_issue(i, maxr)
            for it in self.fixed.get(i, []): gaps[i + 1].append(it)
        try_issue(n - 1, 99, 15)
        assert qi == len(order), f"unissued frags {order[qi:]}"
        post = [[] for _ in range(n + 1)]
        for k in range(n + 1):
            for p, it in enumerate(gaps[k]):
                if isinstance(it, tuple):
                    post[k] = [it[1]] + gaps[k][p + 1:]; gaps[k] = gaps[k][:p]; break
        fixedc = [cost(gaps[k]) + cost(post[k]) for k in range(n + 1)]
        for i in range(n):
            fixedc[i] += waits[i] * 0.6 + len(self.pre.get(i, []))
        for (g0, g1, items) in self.windows:
            tot = cost(items)
            idxs = list(range(g0 + 1, g1 + 1))
            cap = 1
            while sum(max(0, cap - fixedc[k]) for k in idxs) < tot + 2: cap += 0.5
            room = [max(0, cap - fixedc[k]) for k in idxs]
            scale = tot / max(1e-9, sum(room))
            acc = 0.0; used = 0; p = 0
            for k, r in zip(idxs, room):
                acc += r * scale
                while p < len(items) and used + cost([items[p]]) / 2.0 <= acc + 1e-9:
                    gaps[k].append(items[p]); c = cost([items[p]]); used += c; fixedc[k] += c; p += 1
            while p < len(items):
                gaps[idxs[-1]].append(items[p]); p += 1
        L = []
        def flat(items):
            for it in items: L.extend(it)
        flat(gaps[0]); flat(post[0])
        for i in range(n):
            L.extend(self.pre.get(i, []))
            L.append(self.mf[i][0])
            flat(gaps[i + 1]); flat(post[i + 1])
        return L

class Gen:
    def __init__(self):
        self.L = []
        self.R = []
        self.uid = 0
        self.seq = bufseq(P.NB)
        self.nstamp = 0
        self.sec = {}
    def e(self, s): self.L.append(s)
    def lab(self, p):
        self.uid += 1; return f"L{p}_{self.uid}"
    def stamp(self, k=None, grp=0):
        if not P.STAMP: return []
        if grp != P.SGRP and k not in (0, 9): return []
        if k is None:
            k = self.nstamp; self.nstamp += 1
        r = sST + 2 * k
        assert r + 1 < 102
        return ["s_waitcnt lgkmcnt(0)", f"s_memrealtime s[{r}:{r+1}]", "s_waitcnt lgkmcnt(0)"]

    def softmax(self, S, five):
        m, th, l, f = (M5, TH5, L5, F5) if five else (M_, TH_, L_, F_)
        sF, sNF = (sF5, sNF5) if five else (sFM, sNFM)
        s = lambda j: f"v{S + j}"
        it = []
        it.append([f"v_max3_f32 v{T0}, {s(0)}, {s(1)}, {s(2)}"])
        it.append([f"v_max3_f32 v{T1}, {s(3)}, {s(4)}, {s(5)}"])
        for k, (a, b) in enumerate([(6, 7), (8, 9), (10, 11), (12, 13), (14, 15)]):
            t = T0 if k % 2 == 0 else T1
            it.append([f"v_max3_f32 v{t}, v{t}, {s(a)}, {s(b)}"])
        it.append([f"v_max_f32 v{T0}, v{T0}, v{T1}"])
        r1, ret = self.lab("r1"), self.lab("r1ret")
        it.append([f"v_cmp_gt_f32 vcc, v{T0}, v{th}", f"s_cbranch_vccnz {r1}", f"{ret}:"])
        self.R += [f"{r1}:",
                   f"v_mov_b32 v{T1}, v{T0}", "s_nop 1",
                   f"v_permlane32_swap_b32 v{T0}, v{T1}", "s_nop 1",
                   f"v_max_f32 v{T0}, v{T0}, v{T1}",
                   f"v_mul_f32 v{T0}, s{sC}, v{T0}",
                   f"v_max_f32 v{T0}, v{T0}, v{m}",
                   f"v_sub_f32 v{T1}, v{m}, v{T0}",
                   f"v_exp_f32 v{f}, v{T1}",
                   f"v_mov_b32 v{m}, v{T0}",
                   f"v_add_f32 v{T1}, s{sTT}, v{T0}",
                   f"v_mul_f32 v{th}, s{sIC}, v{T1}",
                   f"v_mul_f32 v{l}, v{l}, v{f}",
                   f"s_mov_b32 s{sF}, s{sNF}", f"s_mov_b32 s{sNF}, 1",
                   f"s_branch {ret}"]
        F = lambda j: [f"v_fma_f32 {s(j)}, {s(j)}, s{sC}, -v{m}"]
        E = lambda j: [f"v_exp_f32 {s(j)}, {s(j)}"]
        A = lambda j: [f"v_add_f32 v{l}, v{l}, {s(j)}"]
        C = lambda k: [f"v_cvt_pk_bf16_f32 {s(k)}, {s(2*k)}, {s(2*k+1)}"]
        for j in range(16 + 4):
            if j < 16: it.append(F(j))
            if 0 <= j - 1 < 16: it.append(E(j - 1))
            if 0 <= j - 3 < 16: it.append(A(j - 3))
            if j - 4 >= 0 and (j - 4) % 2 == 1: it.append(C((j - 4) // 2))
        return it

    def rescale_check(self, five):
        stub, ret = self.lab("r2"), self.lab("r2ret")
        pre = [f"s_or_b32 s{sT0}, s{sFM}, s{sF5}" if five else f"s_cmp_lg_u32 s{sFM}, 0",
               f"s_cbranch_scc1 {stub}", f"{ret}:"]
        k1, k2 = self.lab("k"), self.lab("k")
        self.R += [f"{stub}:", f"s_cmp_lg_u32 s{sFM}, 0", f"s_cbranch_scc0 {k1}",
                   f"s_call_b64 s[{sRET}:{sRET+1}], L_resc_main", f"{k1}:"]
        if five:
            self.R += [f"s_cmp_lg_u32 s{sF5}, 0", f"s_cbranch_scc0 {k2}",
                       f"s_call_b64 s[{sRET}:{sRET+1}], L_resc_5", f"{k2}:"]
        self.R += [f"s_branch {ret}"]
        return pre

    def resc_subs(self):
        self.R += ["L_resc_main:", "s_nop 7", "s_nop 7"]
        for k in range(128): self.R.append(f"v_mul_f32 v{OM+k}, v{OM+k}, v{F_}")
        self.R += [f"s_mov_b32 s{sFM}, 0", "s_nop 1", f"s_setpc_b64 s[{sRET}:{sRET+1}]"]
        self.R += ["L_resc_5:", "s_nop 7", "s_nop 7"]
        ts = [T0, T1, T2, T3]
        for k in range(0, 128, 4):
            for u in range(4): self.R.append(f"v_accvgpr_read_b32 v{ts[u]}, a{O5+k+u}")
            for u in range(4): self.R.append(f"v_mul_f32 v{ts[u]}, v{ts[u]}, v{F5}")
            for u in range(4): self.R.append(f"v_accvgpr_write_b32 a{O5+k+u}, v{ts[u]}")
        self.R += [f"s_mov_b32 s{sF5}, 0", "s_nop 1", f"s_setpc_b64 s[{sRET}:{sRET+1}]"]

    def vrds(self, idx, t, j):
        b = FR + 4 * self.seq[idx % 64]
        off = t * 8192 + (j >> 2) * 256
        return [f"ds_read_b64_tr_b16 {vr(b,2)}, v{VA+(j&3)} offset:{off}",
                f"ds_read_b64_tr_b16 {vr(b+2,2)}, v{VA+(j&3)} offset:{off+4096}"]
    def krds(self, idx, sg):
        b = FR + 4 * self.seq[idx % 64]
        return [f"ds_read_b128 {vr(b)}, v{KA+(sg&7)} offset:{(sg >> 3) * 256}"]
    def pre_fifo(self):
        o = []
        for k in range(P.NPRE): o += self.vrds(k, k // 8, k % 8)
        return o

    def dma_items(self, nok=False):
        nt = P.KVNT
        it = []
        ld = lambda vo, s, so, u: f"buffer_load_dwordx4 v{vo}, {srd(s)}, s{so} offen offset:{u*1024}{nt} lds"
        k0 = [f"s_cmp_lt_u32 s{sBW}, 98304", f"s_cselect_b32 s{sDK}, s{sPOS}, s{sNEG}", f"s_add_u32 s{sCW}, s{sBW}, s{sDK}"]
        if nok:
            it.append(k0 + [f"s_sub_u32 s{sDK}, s{sDK}, s{sH1}"])
        else:
            it.append(k0 + [f"s_mov_b32 m0, s{sCW}", f"s_add_u32 s{sSO2}, s{sSO}, 16384", ld(OK + 0, sK, sSO, 0)])
            for u in range(1, 4): it.append([ld(OK + u, sK, sSO, u)])
            it.append([f"s_add_u32 m0, s{sCW}, 16384", f"s_sub_u32 s{sDK}, s{sDK}, s{sH1}", ld(OK + 0, sK, sSO2, 0)])
            for u in range(1, 4): it.append([ld(OK + u, sK, sSO2, u)])
        it.append([f"s_mov_b32 m0, s{sAW}", f"s_add_u32 s{sVO2}, s{sVO}, s{sGS}", ld(OV + 0, sV_, sVO, 0)])
        for u in range(1, 4): it.append([ld(OV + u, sV_, sVO, u)])
        it.append([f"s_add_u32 m0, s{sAW}, 16384", f"s_mov_b32 s{sAW}, s{sBW}", ld(OV + 0, sV_, sVO2, 0)])
        for u in range(1, 4): it.append([ld(OV + u, sV_, sVO2, u)])
        it[-1] += [f"s_mov_b32 s{sBW}, s{sCW}", f"s_add_u32 s{sSO}, s{sSO}, 32768", f"s_add_u32 s{sVO}, s{sVO}, 32768"]
        return it

    def step_sched(self, pv, qk, five, first=False):
        sc = Sched()
        blocks = {}
        def pvblock(sub, S, with5):
            base = 32 * sub
            g0 = len(sc.mf)
            if not (first and sub == 0): sc.pre[g0] = self.rescale_check(with5)
            tj = [(t, j) for t in range(2) for j in range(8)]
            if sub == 1 and not qk: tj = [(t, j) for j in range(8) for t in range(2)]
            for p, (t, j) in enumerate(tj):
                idx = base + p
                pre = [f"v_add_u32 v{VA+j}, s{sH1}, v{VA+j}"] if (sub == 1 and t == 0 and j < 4) else []
                sc.add_frag(idx, self.seq[idx], self.vrds(idx, t, j), pre)
                fb = vr(FR + 4 * self.seq[idx])
                z = first and sub == 0 and t == 0
                sc.mf.append((f"{MF} {vr(OM+16*j,16)}, {fb}, {vr(S+4*t)}, {'0' if z else vr(OM+16*j,16)}", [idx]))
                if with5:
                    sc.mf.append((f"{MF} {ar(O5+16*j,16)}, {fb}, {vr(S5+4*t)}, {'0' if z else ar(O5+16*j,16)}", [idx]))
            blocks[("pv", sub)] = (g0, len(sc.mf))
        def qkblock(sub, S, with5):
            base = 32 * sub + 16
            g0 = len(sc.mf)
            for sg in range(16):
                idx = base + sg
                pre = [f"v_add_u32 v{KA+sg}, s{sH1}, v{KA+sg}"] if (sub == 1 and sg < 8) else []
                sc.add_frag(idx, self.seq[idx], self.krds(idx, sg), pre)
                fb = vr(FR + 4 * self.seq[idx])
                sc.mf.append((f"{MF} {vr(S,16)}, {fb}, {ar(Q+4*sg)}, {'0' if sg == 0 else vr(S,16)}", [idx]))
                if with5:
                    sc.mf.append((f"{MF} {vr(S5,16)}, {fb}, {ar(Q5+4*sg)}, {'0' if sg == 0 else vr(S5,16)}", [idx]))
            blocks[("qk", sub)] = (g0, len(sc.mf))
        if pv: pvblock(0, SA, five == "Y")
        if qk: qkblock(0, SA, five == "X")
        mid = len(sc.mf)
        if pv: pvblock(1, SB, False)
        if qk: qkblock(1, SB, False)
        if pv: sc.init_out = list(range(P.NPRE))
        return sc, blocks, mid

    def qconv(self, j):
        it = []
        for k in range(8):
            r = 16 * j + 2 * k
            it.append([f"v_cvt_pk_bf16_f32 v{r}, v{r}, v{r+1}"])
            if k >= 1: it.append([f"v_accvgpr_write_b32 a{Q+8*j+k-1}, v{r-2}"])
        it.append([f"v_accvgpr_write_b32 a{Q+8*j+7}, v{16*j+14}"])
        return it
    def prek_fifo(self):
        o = []
        for k in range(P.NPRE): o += self.krds(16 + k, k)
        return o

    def step(self, pv, five, first=False, fifo0=None, vmq=None):
        sc, blocks, mid = self.step_sched(pv, True, five, first)
        if not pv and five is None:
            z = lambda k: (f"{MF} {ar(O5+16*k,16)}, {vr(S5)}, {vr(S5)}, 0", [])
            pos = len(sc.mf) - P.BAR_BEFORE - 2
            sc.mf[pos:pos] = [z(k) for k in (0, 1, 6, 7, 2, 3)]
            sc.mf += [z(4), z(5)]
            sc.add_fixed(1, [f"v_mov_b32 v{S5+u}, 0" for u in range(4)])
        n = len(sc.mf)
        if pv: sc.windows.append((2, mid - 1, self.softmax(SB, False)))
        for k in range(P.NPRE):
            pre = [f"v_add_u32 v{VA+k}, s{sDV}, v{VA+k}"] if (pv and k < 4) else []
            sc.add_frag(64 + k, self.seq[k], self.vrds(k, k // 8, k % 8), pre, epoch=1)
        bg = n - 1 - P.BAR_BEFORE - (2 if (not pv and five is None) else 0)
        sc.bars[bg] = ["s_waitcnt vmcnt(8) lgkmcnt(0)" if pv else "s_waitcnt lgkmcnt(0)", "s_barrier"]
        for u in range(8):
            sc.add_fixed(min(n - 1, bg + 1 + u // 3), [f"v_add_u32 v{KA+u}, s{sDK}, v{KA+u}"])
        if pv:
            sc.add_fixed(20, [f"s_cmp_lt_u32 s{sVS}, 98304", f"s_cselect_b32 s{sDV}, s{sPOS}, s{sNEG}",
                              f"s_add_u32 s{sVS}, s{sVS}, s{sDV}", f"s_sub_u32 s{sDV}, s{sDV}, s{sH1}"])
            for k, it in enumerate(self.dma_items(first)):
                sc.add_fixed(P.DMA0 + k * P.DMAS, it)
        else:
            sc.init_out = [16 + k for k in range(P.NPRE)]
            mul = 2 if five == "X" else 1
            for j in (2, 3, 5, 6, 7):
                sc.windows.append((mul * (2 * j - 4), mul * (2 * j - 2), self.qconv(j)))
            fl = lambda t, g, u: [f"ds_write_b128 v{T4}, {ar(PF+32*t+16*g+4*u)} offset:{SLOT(t) + g*16384 + u*1024}"]
            v0 = [["@vmw V0"]] + [fl(1, g, u) for g in range(2) for u in range(4)]
            sc.add_fixed(mid - 2, [f"@waita {Q5+63}", "s_barrier"])
            sc.windows.append((mid - 2, mid + 6, v0))
            k1 = [["@vmw K1"]] + [fl(2, g, u) for g in range(2) for u in range(4)]
            sc.windows.append((bg - 4, bg + 1, k1))
        items = self.softmax(SA, False)
        if five == "X": items += self.softmax(S5, True)
        sc.windows.append((mid + 2, n - 1, items))
        L = sc.run(P.MAXR, maxout=15 if pv else 10)
        if vmq is not None: L = vmpass(L, list(vmq))
        L, fifo, _ = autowait(L, self.pre_fifo() if pv else fifo0)
        assert fifo == self.pre_fifo(), fifo
        return L

    SL = {1: SLOT(2), 2: SLOT(4), 3: SLOT(0)}
    def final(self, five):
        sc, blocks, mid = self.step_sched(True, False, "Y" if five else None)
        n15 = len(sc.mf)
        SC = [KA, KA + 1, KA + 2, KA + 3]
        ST = [OK, OK + 2, T2]
        A1, A2, A3 = KA + 4, KA + 5, KA + 6
        RN = KA + 7
        a = []
        a.append([f"v_mov_b32 v{T4}, v{L5}", f"v_lshrrev_b32 v{A1}, 1, v{LN16}", f"s_lshl_b32 s{sT0}, s{sW}, 9"])
        a.append([f"v_permlane32_swap_b32 v{L5}, v{T4}", f"s_add_u32 s{sT1}, s{sT0}, {SLOT(2)}"])
        a.append([f"v_add_u32 v{A1}, s{sT1}, v{A1}", f"v_add_f32 v{L5}, v{L5}, v{T4}"])
        for y in range(4): a.append([f"ds_write_b64 v{A1}, {vr(M5,2)} offset:{y*8192}"])
        a.append([f"s_xor_b32 s{sT0}, s{sW}, 1", f"s_lshl_b32 s{sT0}, s{sT0}, 13", f"v_add_u32 v{A1}, s{sT0}, v{A1}"])
        a.append([f"v_xor_b32 v{A2}, 1024, v{A1}", f"v_xor_b32 v{A3}, 1536, v{A1}", f"v_xor_b32 v{A1}, 512, v{A1}"])
        a.append(["@waitw", "s_barrier"])
        for k, A in zip(range(3), (A1, A2, A3)): a.append([f"ds_read_b64 {vr(ST[k],2)}, v{A}"])
        sm = self.softmax(SB, False)
        h = len(sm) // 3
        a += sm[:h]
        for k, A in zip((1, 2, 3), (A1, A2, A3)):
            a.append([f"s_xor_b32 s{sT0}, s{sW}, {k}", f"s_lshl_b32 s{sT0}, s{sT0}, 13",
                      f"s_add_u32 s{sT0}, s{sT0}, {self.SL[k]}", f"v_add_u32 v{A}, s{sT0}, v{LN16}"])
        a.append([f"v_max3_f32 v{T4}, v{M5}, v{ST[0]}, v{ST[1]}"]); a.append([f"v_max_f32 v{T4}, v{T4}, v{ST[2]}"])
        ms = [M5] + ST
        for k in range(4): a.append([f"v_sub_f32 v{SC[k]}, v{ms[k]}, v{T4}"])
        for k in range(4): a.append([f"v_exp_f32 v{SC[k]}, v{SC[k]}"])
        a.append([f"v_mul_f32 v{T4}, v{SC[0]}, v{L5}"])
        for k in range(1, 4): a.append([f"v_fmac_f32 v{T4}, v{SC[k]}, v{ms[k]+1}"])
        a.append([f"v_rcp_f32 v{T4}, v{T4}", "s_nop 0"])
        for k in range(4): a.append([f"v_mul_f32 v{SC[k]}, v{SC[k]}, v{T4}"])
        wr = []
        for j in (1, 2, 3, 5, 6, 7):
            A = (A1, A2, A3)[(j & 3) - 1]
            for g in range(4):
                wr.append([f"ds_write_b128 v{A}, {ar(O5+16*j+4*g)} offset:{(j>>2)*4096 + g*1024}"])
        rest = sm[h:]
        if not five:
            mix = []
            for k in range(max(len(rest), len(wr))):
                if k < len(rest): mix.append(rest[k])
                if k % 2 == 0 and k // 2 < len(wr): mix.append(wr[k // 2])
            done = (max(len(rest), len(wr)) + 1) // 2
            mix += wr[done:]
            a += mix
        else:
            a += rest
        sc.windows.append((1, mid - 1, a))
        b = []
        b.append([f"v_mov_b32 v{T4}, v{L_}", "s_nop 1", f"v_permlane32_swap_b32 v{L_}, v{T4}", "s_nop 0"])
        b.append([f"v_add_f32 v{RN}, v{L_}, v{T4}"]); b.append([f"v_rcp_f32 v{RN}, v{RN}", "s_nop 0"])
        ACC = list(range(SA, SA + 16)) + list(range(S5, S5 + 16))
        own = []
        for k in range(32):
            src = O5 + (k if k < 16 else 64 + k - 16)
            own.append([f"v_accvgpr_read_b32 v{ACC[k]}, a{src}"])
        for k in range(32): own.append([f"v_mul_f32 v{ACC[k]}, v{ACC[k]}, v{SC[0]}"])
        if five: b += wr[:8]
        sc.windows.append((mid + 1, mid + 4, b))
        def conv(j):
            it = []
            for k in range(8):
                r = OM + 16 * j + 2 * k
                it.append([f"v_mul_f32 v{r}, v{r}, v{RN}"]); it.append([f"v_mul_f32 v{r+1}, v{r+1}, v{RN}"])
            for k in range(8):
                r = OM + 16 * j + 2 * k
                it.append([f"v_cvt_pk_bf16_f32 v{OM+8*j+k}, v{r}, v{r+1}"])
            return it
        w2 = wr[8:] if five else []
        for j in range(6):
            it = conv(j)
            for q in range(3):
                if w2: it.insert(8 * q + 4, w2.pop(0))
            sc.windows.append((mid + 2 * j + 3, mid + 2 * j + 5, it))
        L = sc.run(P.MAXR, maxout=12)
        tail = []
        for it in w2: tail += it
        for it in own[:32]: tail += it
        for j in (6, 7):
            for it in conv(j): tail += it
        WR = FR; WA = VA
        for s_ in range(2):
            for jj in range(4):
                tail.append(f"v_xor_b32 v{WR+4*s_+jj}, {jj*4096 + s_*64}, v{WRB}")
        tail += ["s_waitcnt vmcnt(0) lgkmcnt(0)", "s_barrier"]
        tail += self.stamp(5)
        L += tail
        sc = Sched()
        NWB = 16
        fcount = [0]
        accs = [64, 80, 96, 112]
        tiles = []
        def tile(base, s_, acc, epoch, acc5=None, only5=False):
            g0 = len(sc.mf)
            for sg in range(16):
                j, t = sg >> 1, sg & 1
                f = ("w", fcount[0]); bufi = fcount[0] % NWB; fcount[0] += 1
                off = (j >> 2) * 16384 + t * 2048
                pre = [f"v_add_u32 v{WA+(j&3)}, {base}, v{WR+4*s_+(j&3)}"] if (t == 0 and j < 4) else []
                sc.add_frag(f, bufi, [f"ds_read_b64_tr_b16 {ar(4*bufi,2)}, v{WA+(j&3)} offset:{off}",
                                      f"ds_read_b64_tr_b16 {ar(4*bufi+2,2)}, v{WA+(j&3)} offset:{off+1024}"], pre, epoch)
                if not only5:
                    sc.mf.append((f"{MF} {vr(acc,16)}, {ar(4*bufi)}, {vr(OM+4*sg)}, {'0' if sg == 0 else vr(acc,16)}", [f]))
                if acc5 is not None:
                    sc.mf.append((f"{MF} {vr(acc5,16)}, {ar(4*bufi)}, {ar(64+4*sg)}, {'0' if sg == 0 else vr(acc5,16)}", [f]))
            return g0, len(sc.mf)
        def pack(acc, dst):
            return [[f"v_cvt_pk_bf16_f32 v{dst+k}, v{acc+2*k}, v{acc+2*k+1}"] for k in range(8)]
        def store(acc, so):
            it = []
            if acc < 224: it += pack(acc, acc)
            it.append([so, f"buffer_store_dwordx4 {vr(acc)}, v{LN16}, {srd(sWS)}, s{sT3} offen{P.STMOD}"])
            it.append([f"buffer_store_dwordx4 {vr(acc+4)}, v{LN16}, {srd(sWS)}, s{sT3} offen offset:1024{P.STMOD}"])
            return it
        def wodma(c, slot):
            it = []
            for g in range(2):
                for u in range(4):
                    pre = []
                    if u == 0:
                        pre = [f"s_add_u32 m0, s{sW4K}, {SLOT(slot) + g*16384}", f"s_add_u32 s{sT2}, s{sQB}, {c*128 + g*114688}"]
                    it.append(pre + [f"buffer_load_dwordx4 v{OV+u}, {srd(sV_)}, s{sT2} offen offset:{u*1024} lds"])
            return it
        pend = []
        def flush(g0, g1):
            nonlocal pend
            it = []
            for (acc, so) in pend: it += store(acc, so)
            pend = []
            if it: sc.windows.append((g0, g1, it))
        so2 = lambda p, ntb: f"s_add_u32 s{sT3}, s{sPX+2+p}, {ntb*2048}"
        g0, g1 = tile(str(SLOT(3)), 0, 64, 0); g2, g3 = tile(str(SLOT(3)), 1, 80, 0)
        for k, it in enumerate(wodma(1, 1)): sc.add_fixed(k, it)
        RB = [96, 224]
        m = []
        m.append([f"s_lshl_b32 s{sT0}, s{sW}, 13", f"v_add_u32 v{A3}, s{sT0}, v{LN16}"])
        m.append([f"v_add_u32 v{A1}, {self.SL[1]}, v{A3}", f"v_add_u32 v{A2}, {self.SL[2]}, v{A3}", f"v_add_u32 v{A3}, {self.SL[3]}, v{A3}"])
        rd = lambda A, rb: [[f"ds_read_b128 {vr(rb+4*g)}, v{A} offset:{g*1024}"] for g in range(8)]
        fm = lambda k, rb: [[f"v_fmac_f32 v{ACC[q]}, v{rb+q}, v{SC[k]}"] for q in range(32)]
        def mix(x, y, r):
            o = []; y = list(y)
            for k, it in enumerate(x):
                o.append(it)
                if k % r == r - 1 and y: o.append(y.pop(0))
            return o + y
        m += mix(own[32:], rd(A1, RB[0]) + rd(A2, RB[1]), 2)
        m += fm(1, RB[0])
        m += mix(fm(2, RB[1]), rd(A3, RB[0]), 2)
        m += fm(3, RB[0])
        for k in range(16): m.append([f"v_cvt_pk_bf16_f32 v{RB[1]+k}, v{ACC[2*k]}, v{ACC[2*k+1]}"])
        for g in range(4): m.append([f"ds_write_b128 v{A3}, {vr(RB[1]+4*g)} offset:{g*1024}"])
        bC = g3 - 1 - 3
        sc.windows.append((0, bC + 1, m))
        sc.bars[bC] = ["s_waitcnt vmcnt(0) lgkmcnt(0)", "s_barrier"] + self.stamp(6)
        g0, g1 = tile(str(SLOT(1)), 0, 96, 1); g2, g3 = tile(str(SLOT(1)), 1, 112, 1)
        g4, g5 = tile(f"s{sB0}", 0, None, 1, acc5=128, only5=True)
        for k, it in enumerate(wodma(2, 2) + wodma(3, 4)): sc.add_fixed(bC + 1 + k, it)
        o5 = []
        for q in range(4):
            o5.append([f"v_xor_b32 v{A1}, {q*8192}, v{A3}"])
            for hi in range(2):
                for t in range(2):
                    sg = 8 * hi + 2 * q + t
                    o5.append([f"ds_read_b128 {ar(64+4*sg)}, v{A1} offset:{hi*2048 + t*1024}"])
        sc.windows.append((g1 - 2, g3 - 4, o5))
        sc.windows.append((g1 - 2, g3, pack(64, 224) + pack(80, 232)))
        bD = g5 - 1 - 3
        sc.windows.append((g4 + 2, bD, pack(96, 240) + pack(112, 248)))
        sc.bars[bD] = ["s_waitcnt vmcnt(@vm) lgkmcnt(0)", "s_barrier",
                       f"s_cmp_lt_u32 s{sW}, 2", f"s_cselect_b32 s{sB0}, {SLOT(2)}, s{sT1}", f"s_cselect_b32 s{sB1}, s{sT1}, {SLOT(2)}"] + self.stamp(7)
        sc.add_fixed(g4, [f"s_mov_b32 s{sT1}, {SLOT(4)}"])
        pend = [(224, so2(0, 0)), (232, so2(1, 0)), (240, so2(0, 2)), (248, so2(1, 2)), (128, f"s_add_u32 s{sT3}, s{sVO}, 0")]
        rot = [64, 80, 96, 112, 144, 160, 128]
        ri = [0]
        def nacc():
            r = rot[ri[0] % len(rot)]; ri[0] += 1; return r
        def pair(pi, epoch, dma):
            nonlocal pend
            last = None
            for p in range(4):
                acc = nacc(); acc5 = nacc() if p == 0 else None
                g0, g1 = tile(f"s{sB0 if p < 2 else sB1}", p & 1, acc, epoch, acc5=acc5)
                st0 = g0 + 2
                if p == 0 and dma: st0 = g0 + len(dma) - 2
                flush(st0, g1 - (5 if p == 3 else 1))
                so = f"s_add_u32 s{sT3}, s{sPX+p}, {pi*8192}" if p < 2 else f"s_xor_b32 s{sT3}, s{sPX+p-2}, 4096\n"
                if p >= 2:
                    so = f"s_add_u32 s{sT3}, s{sPX+4+p-2}, {pi*8192}"
                pend.append((acc, so))
                if acc5 is not None: pend.append((acc5, f"s_add_u32 s{sT3}, s{sVO}, {pi*8192}"))
                last = g1
            return last
        d2 = wodma(4, 0) + wodma(5, 3) + wodma(6, 1)
        for k, it in enumerate(d2): sc.add_fixed(bD + 1 + k, it)
        gl = pair(1, 2, d2)
        bE = gl - 1 - 3
        sc.bars[bE] = ["s_waitcnt vmcnt(@vm) lgkmcnt(0)", "s_barrier",
                       f"s_cmp_lt_u32 s{sW}, 2", f"s_cselect_b32 s{sB0}, {SLOT(0)}, s{sT1}", f"s_cselect_b32 s{sB1}, s{sT1}, {SLOT(0)}"] + self.stamp(8)
        sc.add_fixed(bE - 2, [f"s_mov_b32 s{sT1}, {SLOT(3)}"])
        pair(2, 3, None)
        for p in range(2):
            acc = nacc(); acc5 = nacc() if p == 0 else None
            g0, g1 = tile(str(SLOT(1)), p, acc, 3, acc5=acc5)
            flush(g0 + 2, g1 - 1)
            pend.append((acc, so2(p, 12)))
            if acc5 is not None: pend.append((acc5, f"s_add_u32 s{sT3}, s{sVO2}, {12*2048}"))
        L2 = sc.run(P.MAXR, maxout=10)
        L2 += ["s_nop 7", "s_nop 3"]
        for (acc, so) in pend:
            for it in store(acc, so): L2 += it
        L, fifo, _ = autowait(L, self.pre_fifo())
        assert not fifo
        L2, fifo, _ = autowait(L2)
        return L, L2

    def qproj_dma(self, c):
        b = (c % 3) * QBUF
        it = []
        for k in range(8):
            it.append([f"s_add_u32 m0, s{sT2}, {b + k*4096}",
                       f"s_add_u32 s{sT0}, s{sT3}, {(64*c + 8*k) * 8192}",
                       f"buffer_load_dwordx4 v{OWQ}, {srd(sWQ)}, s{sT0} offen lds ; @t:c{c}"])
        for k in range(5):
            it.append([f"s_add_u32 m0, s{sT2}, {b + 32768 + k*4096}",
                       f"s_add_u32 s{sT0}, s{sT1}, {k*4*7168 + c*128}",
                       f"buffer_load_dwordx4 v{OX}, {srd(sX)}, s{sT0} offen lds ; @t:c{c}"])
        return it
    def kv_items(self, pos, reg):
        isk = pos % 2 == 0
        tag = ("K" if isk else "V") + str(pos // 2)
        out = []
        for g in range(2):
            for u in range(4):
                pre = []
                if not reg and u == 0: pre.append(f"s_add_u32 m0, s{sW4K}, {SLOT(pos) + g*16384}")
                if u == 0: pre.append(f"s_add_u32 s{sSO2}, s{sW4K}, {(pos//2)*32768 + g*16384}")
                vo = OK + u if isk else OV + u
                if reg:
                    ld = f"buffer_load_dwordx4 {ar(PF+32*pos+16*g+4*u)}, v{vo}, {srd(sK if isk else sV_)}, s{sSO2} offen offset:{u*1024}{P.KVNT} ; @t:{tag}"
                else:
                    ld = f"buffer_load_dwordx4 v{vo}, {srd(sK if isk else sV_)}, s{sSO2} offen offset:{u*1024}{P.KVNT} lds ; @t:{tag}"
                out.append(pre + [ld])
        return out

    def qproj(self, kvq):
        sc = Sched()
        for c in range(7):
            dl = (QBUF if c % 3 else -2 * QBUF) & 0xffffffff
            adv = lambda r: [f"v_add_u32 v{r}, {hex(dl)}, v{r}"] if c else []
            g0 = len(sc.mf)
            for sp in range(4):
                xo, x5 = ("xo", c, sp), ("x5", c, sp)
                sc.add_frag(xo, ("xo", sp % 2), [f"ds_read_b128 {ar(QF+32+4*(sp%2))}, v{XA+sp}"], adv(XA + sp), c)
                sc.add_frag(x5, ("x5", sp % 2), [f"ds_read_b128 {ar(QF+40+4*(sp%2))}, v{X5A+sp}"], adv(X5A + sp), c)
                js = [0, 4, 1, 2, 3, 5, 6, 7] if (c == 6 and sp == 3) else list(range(8))
                for p, j in enumerate(js):
                    f = ("w", c, sp, j)
                    off = sp * 8192 + (j >> 2) * 256
                    sc.add_frag(f, ("w", p), [f"ds_read_b64_tr_b16 {ar(QF+4*p,2)}, v{WQA+(j&3)} offset:{off}",
                                              f"ds_read_b64_tr_b16 {ar(QF+4*p+2,2)}, v{WQA+(j&3)} offset:{off+2048}"],
                                adv(WQA + j) if (sp == 0 and j < 4) else [], c)
                    first = (c == 0 and sp == 0)
                    sc.mf.append((f"{MF} {vr(16*j,16)}, {ar(QF+4*p)}, {ar(QF+32+4*(sp%2))}, {'0' if first else vr(16*j,16)}", [f, xo]))
                    if j % 4 == 0:
                        a5 = 128 + 16 * (j // 4)
                        sc.mf.append((f"{MF} {vr(a5,16)}, {ar(QF+4*p)}, {ar(QF+40+4*(sp%2))}, {'0' if first else vr(a5,16)}", [f, x5]))
            n = len(sc.mf)
            bg = n - 1 - P.QBB
            sc.bars[bg] = [f"@vmw c{c+1} lgkmcnt(0)" if c < 6 else "s_waitcnt lgkmcnt(0)", "s_barrier"] + self.stamp(2 + c, 1)
            it = self.qproj_dma(c + 2) if 1 <= c <= 4 else []
            if c <= 4:
                for k in range(P.KVP[c + 1]): it.append(kvq.pop(0))
            if c == 5: it += self.kv_items(3, False)
            if c == 6: it += self.kv_items(4, False)
            st = max(0, g0 - P.QBB + 1)
            stride = min(P.QDS, (bg - st) / max(1, len(it)))
            for k, x in enumerate(it): sc.add_fixed(st + int(k * stride), x)
            if c == 6:
                fl = [["@vmw K0"]] + [[f"ds_write_b128 v{T3}, {ar(PF+16*g+4*u)} offset:{g*16384 + u*1024}"] for g in range(2) for u in range(4)]
                sc.windows.append((g0 + 14, g0 + 30, fl))
                sc.windows.append((n - 8, n - 5, self.qconv(0)))
                q5 = [[f"v_cvt_pk_bf16_f32 v{128+k}, v{128+2*k}, v{128+2*k+1}"] for k in range(16)]
                for k, off in enumerate((0, 1024, 8192, 9216)):
                    q5.insert(5 * k + 4 + (1 if k < 3 else 0), [f"ds_write_b128 v{T2}, {vr(128+4*k)} offset:{off}"])
                sc.windows.append((bg + 1, n, q5))
        assert not kvq
        for k in range(P.NPRE):
            sc.add_frag(16 + k, ("k", k), self.krds(16 + k, k), [], 7)
        return sc.run(4, maxout=12)

    def attn_kernel(self):
        e = self.e
        e(".globl attn_kernel"); e(".p2align 8"); e(".type attn_kernel,@function"); e("attn_kernel:")
        p0 = len(self.L)
        e("s_cmp_ge_u32 s2, 256"); e("s_cbranch_scc1 L_attn_end")
        e(f"s_and_b32 s{sT0}, s2, 7"); e(f"s_lshr_b32 s{sBLK}, s{sT0}, 2"); e(f"s_mul_i32 s{sT1}, s{sBLK}, 40")
        e(f"s_add_u32 s4, s0, s{sT1}"); e("s_addc_u32 s5, s1, 0")
        e("s_load_dwordx8 s[64:71], s[4:5], 0")
        e(f"s_load_dwordx2 s[{sWO}:{sWO+1}], s[4:5], 32")
        e("s_load_dwordx2 s[72:73], s[0:1], 96")
        for x in self.stamp(0): e(x)
        T6, T7, T8 = FR, FR + 1, FR + 2
        e(f"v_lshrrev_b32 v{T0}, 6, v0"); e(f"v_and_b32 v{T8}, 63, v0"); e("s_nop 0")
        e(f"v_readfirstlane_b32 s{sW}, v{T0}")
        e(f"s_lshr_b32 s{sT1}, s2, 3")
        e(f"s_and_b32 s{sH}, s{sT0}, 3"); e(f"s_lshl_b32 s{sH}, s{sH}, 2"); e(f"s_and_b32 s{sT2}, s{sT1}, 3")
        e(f"s_add_u32 s{sH}, s{sH}, s{sT2}"); e(f"s_lshr_b32 s{sB}, s{sT1}, 2")
        e(f"s_lshl_b32 s{sW4K}, s{sW}, 12")
        ln = T8
        r32, hf, rr, cc, gl = T0, T1, T2, T3, T4
        e(f"v_and_b32 v{r32}, 31, v{ln}"); e(f"v_lshrrev_b32 v{hf}, 5, v{ln}")
        e(f"v_bfe_u32 v{rr}, v{ln}, 2, 2"); e(f"v_and_b32 v{cc}, 3, v{ln}"); e(f"v_bfe_u32 v{gl}, v{ln}, 4, 1")
        e(f"v_lshlrev_b32 v{LN16}, 4, v{ln}")
        e(f"s_and_b32 s{sT0}, s{sW}, 1")
        e(f"s_lshl_b32 s{sT1}, s{sT0}, 3")
        e(f"v_lshlrev_b32 v{T5}, 2, v{hf}"); e(f"v_xor_b32 v{T5}, v{T5}, v{r32}"); e(f"v_xor_b32 v{T5}, s{sT1}, v{T5}")
        e(f"v_lshlrev_b32 v{T5}, 4, v{T5}"); e(f"v_lshl_add_u32 v{OWQ}, v{hf}, 13, v{T5}")
        e(f"s_lshl_b32 s{sT1}, s{sT0}, 2")
        e(f"v_and_b32 v{T5}, 7, v{ln}"); e(f"v_lshrrev_b32 v{T6}, 4, v{ln}"); e(f"v_xor_b32 v{T5}, v{T5}, v{T6}")
        e(f"v_xor_b32 v{T5}, s{sT1}, v{T5}"); e(f"v_lshlrev_b32 v{T5}, 4, v{T5}")
        e(f"v_lshrrev_b32 v{T6}, 3, v{ln}"); e(f"v_mul_u32_u24 v{T6}, 896, v{T6}"); e(f"v_add_u32 v{OX}, v{T5}, v{T6}")
        e("s_waitcnt lgkmcnt(0)")
        e(f"s_mul_i32 s{sT0}, s{sB}, 143360")
        e(f"s_add_u32 s{sX}, s64, s{sT0}"); e(f"s_addc_u32 s{sX+1}, s65, 0"); e(f"s_mov_b32 s{sX+2}, 143360"); e(f"s_mov_b32 s{sX+3}, 0x20000")
        e(f"s_lshl_b32 s{sT0}, s{sH}, 9")
        e(f"s_add_u32 s{sWQ}, s70, s{sT0}"); e(f"s_addc_u32 s{sWQ+1}, s71, 0")
        e(f"s_sub_u32 s{sWQ+2}, {448*8192}, s{sT0}"); e(f"s_mov_b32 s{sWQ+3}, 0x20000")
        e(f"s_lshl_b32 s{sT2}, s{sW}, 10"); e(f"s_lshl_b32 s{sT3}, s{sW}, 14"); e(f"s_mul_i32 s{sT1}, s{sW}, 7168")
        for c in range(3):
            for it in self.qproj_dma(c):
                for x in it: e(x)
        if P.WARMQ:
            e(f"v_lshrrev_b32 v{T5}, 3, v{ln}"); e(f"v_and_b32 v{T6}, 7, v{ln}"); e(f"v_lshlrev_b32 v{T6}, 6, v{T6}")
            e(f"v_lshl_add_u32 v{T7}, v{T5}, 13, v{T6}")
            e(f"s_lshl_b32 s{sT0}, s{sB}, 2"); e(f"s_add_u32 s{sT0}, s{sT0}, s{sW}"); e(f"s_lshl_b32 s{sT0}, s{sT0}, 16")
            e(f"s_add_u32 s{sT0}, s{sT0}, {192*8192}")
            e(f"buffer_load_dword v{FR+40}, v{T7}, {srd(sWQ)}, s{sT0} offen")
            e(f"v_mul_u32_u24 v{T5}, 896, v{T5}"); e(f"v_add_u32 v{T7}, v{T5}, v{T6}")
            e(f"s_and_b32 s{sT0}, s{sH}, 3"); e(f"s_lshl_b32 s{sT0}, s{sT0}, 2"); e(f"s_add_u32 s{sT0}, s{sT0}, s{sW}")
            e(f"s_mul_i32 s{sT0}, s{sT0}, 8960")
            e(f"buffer_load_dword v{FR+41}, v{T7}, {srd(sX)}, s{sT0} offen offset:384")
            e(f"buffer_load_dword v{FR+42}, v{T7}, {srd(sX)}, s{sT0} offen offset:{384+1792}")
        e(f"s_lshl_b32 s{sT0}, s{sB}, 4"); e(f"s_add_u32 s{sT0}, s{sT0}, s{sH}"); e(f"s_lshl_b32 s{sCNT}, s{sT0}, 19")
        for s_, p in ((sK, 66), (sV_, 68)):
            e(f"s_add_u32 s{s_}, s{p}, s{sCNT}"); e(f"s_addc_u32 s{s_+1}, s{p+1}, 0")
            e(f"s_mov_b32 s{s_+2}, 524288"); e(f"s_mov_b32 s{s_+3}, 0x20000")
        e(f"s_lshl_b32 s{sCNT}, s{sBLK}, 7"); e(f"s_add_u32 s{sT0}, s{sT0}, s{sCNT}"); e(f"s_mul_i32 s{sT0}, s{sT0}, {PART}")
        e(f"s_add_u32 s{sWS}, s72, s{sT0}"); e(f"s_addc_u32 s{sWS+1}, s73, 0")
        e(f"s_mov_b32 s{sWS+2}, {PART}"); e(f"s_mov_b32 s{sWS+3}, 0x20000")
        e(f"s_and_b32 s{sT0}, s{sW}, 1"); e(f"s_lshl_b32 s{sT0}, s{sT0}, 3")
        e(f"v_xor_b32 v{T5}, v{r32}, v{hf}"); e(f"v_xor_b32 v{T5}, s{sT0}, v{T5}"); e(f"v_lshlrev_b32 v{T5}, 4, v{T5}")
        e(f"v_lshl_add_u32 v{OK}, v{hf}, 9, v{T5}")
        for u in range(1, 4): e(f"v_xor_b32 v{OK+u}, {32*u}, v{OK}")
        e(f"v_lshlrev_b32 v{T5}, 2, v{hf}"); e(f"v_xor_b32 v{T5}, v{T5}, v{r32}"); e(f"v_lshlrev_b32 v{T5}, 4, v{T5}")
        e(f"v_lshl_add_u32 v{OV}, v{hf}, 9, v{T5}"); e(f"v_xor_b32 v{OV+1}, 128, v{OV}")
        e(f"v_mov_b32 v{OV+2}, v{OV}"); e(f"v_mov_b32 v{OV+3}, v{OV+1}")
        kvq = self.kv_items(0, True) + self.kv_items(1, True) + self.kv_items(2, True)
        for k in range(P.KVP[0]):
            for x in kvq.pop(0): e(x)
        e(f"s_and_b32 s{sCNT}, s{sW}, 1"); e(f"s_lshl_b32 s{sCNT}, s{sCNT}, 14")
        e(f"s_lshl_b32 s{sH1}, s{sCNT}, 1"); e(f"s_sub_u32 s{sH1}, 16384, s{sH1}")
        e(f"s_lshl_b32 s{sT0}, s{sW}, 2")
        e(f"v_and_b32 v{T5}, 15, v{r32}"); e(f"v_xor_b32 v{T5}, v{T5}, v{hf}"); e(f"v_xor_b32 v{T5}, s{sT0}, v{T5}")
        e(f"v_lshlrev_b32 v{T5}, 4, v{T5}"); e(f"v_lshl_add_u32 v{KA}, v{r32}, 9, v{T5}"); e(f"s_add_u32 s{sT0}, s{sCNT}, {SLOT(0)}"); e(f"v_add_u32 v{KA}, s{sT0}, v{KA}")
        for j in range(1, 8): e(f"v_xor_b32 v{KA+j}, {32*j}, v{KA}")
        e(f"v_xor_b32 v{T5}, s{sW}, v{rr}"); e(f"v_lshlrev_b32 v{T5}, 6, v{T5}")
        e(f"v_lshl_add_u32 v{T5}, v{gl}, 5, v{T5}")
        e(f"v_lshl_add_u32 v{T6}, v{cc}, 3, v{T5}")
        e(f"v_lshl_add_u32 v{T7}, v{hf}, 2, v{rr}"); e(f"v_lshl_add_u32 v{T6}, v{T7}, 9, v{T6}")
        e(f"s_add_u32 s{sCNT}, s{sCNT}, {SLOT(1)}")
        e(f"v_add_u32 v{VA}, s{sCNT}, v{T6}")
        for j in range(1, 4): e(f"v_xor_b32 v{VA+j}, {64*j}, v{VA}")
        e(f"v_and_b32 v{T6}, 1, v{cc}"); e(f"v_lshlrev_b32 v{T6}, 4, v{T6}")
        e(f"v_and_b32 v{WRB}, 2, v{cc}"); e(f"v_lshl_add_u32 v{T6}, v{WRB}, 2, v{T6}")
        e(f"v_lshrrev_b32 v{WRB}, 1, v{rr}"); e(f"v_xor_b32 v{WRB}, s{sW}, v{WRB}"); e(f"v_and_b32 v{WRB}, 1, v{WRB}")
        e(f"v_lshl_add_u32 v{WRB}, v{WRB}, 6, v{T6}"); e(f"v_lshl_add_u32 v{WRB}, v{gl}, 5, v{WRB}")
        e(f"v_lshl_add_u32 v{WRB}, v{T7}, 7, v{WRB}"); e(f"v_add_u32 v{WRB}, s{sW4K}, v{WRB}")
        e(f"v_add_u32 v{T5}, v{T5}, v{T6}")
        e(f"v_lshl_add_u32 v{T7}, v{hf}, 3, v{rr}"); e(f"v_lshl_add_u32 v{T5}, v{T7}, 9, v{T5}")
        e(f"v_mov_b32 v{WQA}, v{T5}")
        for j in range(1, 4): e(f"v_xor_b32 v{WQA+j}, {64*j}, v{WQA}")
        e(f"v_bfe_u32 v{T5}, v{r32}, 1, 3"); e(f"v_xor_b32 v{T5}, v{T5}, v{hf}"); e(f"v_lshlrev_b32 v{T5}, 4, v{T5}")
        e(f"v_lshl_add_u32 v{T5}, v{r32}, 7, v{T5}")
        e(f"v_add_u32 v{X5A}, {32768+16384}, v{T5}")
        e(f"v_add_u32 v{T5}, 32768, v{T5}"); e(f"v_add_u32 v{XA}, s{sW4K}, v{T5}")
        for s in range(1, 4):
            e(f"v_xor_b32 v{XA+s}, {32*s}, v{XA}"); e(f"v_xor_b32 v{X5A+s}, {32*s}, v{X5A}")
        c = math.log2(math.e) / 16.0
        e(f"s_mov_b32 s{sC}, {hex(f2u(c))}"); e(f"s_mov_b32 s{sTT}, {hex(f2u(8.0))}"); e(f"s_mov_b32 s{sIC}, {hex(f2u(1.0/c))}")
        for s_ in (sFM, sF5, sNFM, sNF5): e(f"s_mov_b32 s{s_}, 0")
        e(f"s_mov_b32 s{sPOS}, 65536"); e(f"s_mov_b32 s{sNEG}, {hex((-98304) & 0xffffffff)}")
        for m, th, l, f in ((M_, TH_, L_, F_), (M5, TH5, L5, F5)):
            e(f"v_mov_b32 v{m}, {hex(f2u(-1e30))}"); e(f"v_mov_b32 v{th}, {hex(f2u(-3e38))}")
            e(f"v_mov_b32 v{l}, 0"); e(f"v_mov_b32 v{f}, 1.0")
        Q5X = SLOT(2) + 16384
        e(f"v_add_u32 v{T4}, s{sW4K}, v{LN16}"); e(f"v_add_u32 v{T3}, {SLOT(0)}, v{T4}")
        e(f"s_lshl_b32 s{sT0}, s{sW}, 11"); e(f"s_add_u32 s{sT0}, s{sT0}, {Q5X}"); e(f"v_add_u32 v{T2}, s{sT0}, v{LN16}")
        e(f"s_sub_u32 s{sDK}, {hex((SLOT(2) - SLOT(0)) & 0xffffffff)}, s{sH1}")
        e(f"s_mov_b32 s{sVS}, {SLOT(1)}")
        e(f"s_mov_b32 s{sCNT}, 14")
        e(f"s_add_u32 s{sAW}, s{sW4K}, {SLOT(0)}"); e(f"s_add_u32 s{sBW}, s{sW4K}, {SLOT(2)}")
        e(f"s_add_u32 s{sSO}, s{sW4K}, 65536"); e(f"s_mov_b32 s{sVO}, s{sSO}"); e(f"s_mov_b32 s{sGS}, 16384")
        e("@vmw c0"); e("s_barrier")
        for x in self.stamp(1) + self.stamp(1, 1): e(x)
        for x in self.qproj(kvq): e(x)
        for it in self.qconv(4):
            for x in it: e(x)
        e("@waitw"); e("s_barrier")
        for x in self.stamp(2): e(x)
        c1 = [x for it in self.qconv(1) for x in it]
        for q in range(4):
            e(f"v_xor_b32 v{T3}, {q*2048}, v{T2}")
            for hi in range(2):
                for t in range(2):
                    sg = 8 * hi + 2 * q + t
                    e(f"ds_read_b128 {ar(Q5+4*sg)}, v{T3} offset:{hi*8192 + t*1024}")
                    e(c1.pop(0))
        vmq = []
        head = vmpass(self.L[p0:], vmq)
        head, fifo0, _ = autowait(head)
        self.L[p0:] = head
        e(f"s_cmp_lt_u32 s{sW}, 2"); e("s_cbranch_scc1 L_pro_x")
        st3 = self.stamp(3)
        pn = self.step(False, None, fifo0=fifo0, vmq=vmq) + st3 + self.step(True, "X", first=True)
        px = self.step(False, "X", fifo0=fifo0, vmq=vmq) + st3 + self.step(True, "Y", first=True)
        sx = self.step(True, "X")
        sy = self.step(True, "Y")
        fn, op = self.final(False)
        fy, op2 = self.final(True)
        chk = lambda nm: [f"s_sub_u32 s{sCNT}, s{sCNT}, 1", f"s_cmp_le_u32 s{sCNT}, 1", f"s_cbranch_scc1 L_sp_{nm}"]
        for x in pn: e(x)
        e("s_branch L_y")
        e("L_pro_x:")
        for x in px: e(x)
        e("L_x:")
        for x in sx + chk("x"): e(x)
        e("L_y:")
        for x in sy + chk("y"): e(x)
        e("s_branch L_x")
        sw = [f"s_mul_i32 s{sT0}, s{sH}, 229376",
              f"s_add_u32 s{sV_}, s{sWO}, s{sT0}", f"s_addc_u32 s{sV_+1}, s{sWO+1}, 0", f"s_mov_b32 s{sV_+2}, 229376",
              f"s_mul_i32 s{sQB}, s{sW}, 28672", f"s_mov_b32 s{sVO}, s{sQB}", f"s_mov_b32 s{sGS}, 114688",
              f"v_lshrrev_b32 v{T2}, 7, v{LN16}", f"v_mul_u32_u24 v{T2}, 896, v{T2}",
              f"v_lshrrev_b32 v{T3}, 2, v{LN16}", f"v_and_b32 v{T3}, 64, v{T3}",
              f"v_and_b32 v{T4}, 112, v{LN16}", f"v_xor_b32 v{T3}, v{T3}, v{T4}", f"v_add_u32 v{OV}, v{T2}, v{T3}"]
        for u in range(1, 4): sw.append(f"v_add_u32 v{OV+u}, {6144*u}, v{OV}")
        for p in range(2):
            sw += [f"s_xor_b32 s{sT0}, s{sW}, {p}", f"s_lshl_b32 s{sT1}, s{sT0}, 11", f"s_add_u32 s{sPX+p}, s{sQB}, s{sT1}",
                   f"s_and_b32 s{sT2}, s{sT1}, 2048", f"s_add_u32 s{sPX+2+p}, s{sQB}, s{sT2}",
                   f"s_xor_b32 s{sT1}, s{sT1}, 4096", f"s_add_u32 s{sPX+4+p}, s{sQB}, s{sT1}"]
        sw += [f"s_cmp_lt_u32 s{sW}, 2", f"s_mov_b32 s{sT1}, {SLOT(3)}", f"s_cselect_b32 s{sB0}, s{sT1}, {SLOT(1)}"]
        if P.WARMO:
            sw += [f"s_mul_i32 s{sT0}, s{sB}, 28672", f"s_mul_i32 s{sT1}, s{sW}, 7168", f"s_add_u32 s{sT0}, s{sT0}, s{sT1}",
                   f"v_lshlrev_b32 v{T2}, 2, v{LN16}",
                   f"buffer_load_dword v{T5}, v{T2}, {srd(sV_)}, s{sT0} offen",
                   f"buffer_load_dword v{T5}, v{T2}, {srd(sV_)}, s{sT0} offen offset:3072"]
        fin = [f"s_lshl_b32 s{sT0}, s{sW}, 11", f"s_add_u32 s{sVO}, s{sT0}, {4*28672}",
               f"s_and_b32 s{sT0}, s{sT0}, 2048", f"s_add_u32 s{sVO2}, s{sT0}, {4*28672}"] + self.stamp(4)
        e("L_sp_x:"); e(f"s_cmp_eq_u32 s{sCNT}, 0"); e("s_cbranch_scc1 L_fin_y")
        for x in sw: e(x)
        e("s_branch L_y")
        e("L_sp_y:"); e(f"s_cmp_eq_u32 s{sCNT}, 0"); e("s_cbranch_scc1 L_fin_n")
        for x in sw: e(x)
        e("s_branch L_x")
        e("L_fin_n:")
        for x in fin + fn: e(x)
        e("s_branch L_op")
        e("L_fin_y:")
        for x in fin + fy: e(x)
        e("L_op:")
        for x in op: e(x)
        if P.STAMP:
            e("s_waitcnt vmcnt(0)")
            for x in self.stamp(9): e(x)
            e(f"s_lshl_b32 s{sT0}, s2, 2"); e(f"s_add_u32 s{sT0}, s{sT0}, s{sW}"); e(f"s_lshl_b32 s{sT0}, s{sT0}, 6")
            e(f"s_add_u32 s{sT0}, s{sT0}, {STAMP_OFF}")
            e("s_load_dwordx2 s[72:73], s[0:1], 96"); e("s_waitcnt lgkmcnt(0)")
            e(f"s_add_u32 s{sWS}, s72, s{sT0}"); e(f"s_addc_u32 s{sWS+1}, s73, 0"); e(f"s_mov_b32 s{sWS+2}, 64")
            e(f"s_getreg_b32 s{sT1}, hwreg(HW_REG_XCC_ID)")
            for k in range(12): e(f"v_mov_b32 v{k}, s{sST+2*k}" if k < 10 else f"v_mov_b32 v{k}, s{sT1}")
            e("v_mov_b32 v20, 0")
            for k in range(3): e(f"buffer_store_dwordx4 {vr(4*k)}, v20, {srd(sWS)}, 0 offen offset:{16*k}")
        e("L_attn_end:")
        e("s_endpgm")
        self.resc_subs()
        for x in self.R: e(x)
        self.R = []
        probs = []
        paths = {"head+pn+sy": head + pn + sy, "head+px+sx": head + px + sx, "sx+sy": sx + sy, "sy+sx": sy + sx,
                 "sx+sw+sy": sx + sw + sy, "sy+fn+op": sy + fin + fn + op, "sx+fy+op": sx + fin + fy + op}
        for nm, p in paths.items(): probs += check_hazards(p, nm)
        assert [x for x in op if "Lr" not in x] == [x for x in op2 if "Lr" not in x]
        self.sec = dict(head=head, pn=pn, px=px, sx=sx, sy=sy, fn=fn, fy=fy, op=op)
        return probs

    def reduce_kernel(self):
        e = self.e
        e(".globl reduce_kernel"); e(".p2align 8"); e(".type reduce_kernel,@function"); e("reduce_kernel:")
        p0 = len(self.L)
        e("s_cmp_ge_u32 s2, 560"); e("s_cbranch_scc1 L_red_end")
        e("s_load_dwordx2 s[4:5], s[0:1], 80"); e("s_load_dwordx2 s[6:7], s[0:1], 96")
        if P.STAMP: e("s_memrealtime s[40:41]")
        e("v_lshrrev_b32 v1, 6, v0"); e("v_lshlrev_b32 v2, 4, v0")
        e("s_mul_i32 s16, s2, 1873"); e("s_lshr_b32 s16, s16, 16"); e("s_mul_i32 s17, s16, 35"); e("s_sub_u32 s17, s2, s17")
        e("v_readfirstlane_b32 s18, v1")
        e(f"s_mul_i32 s19, s16, {16*PART}"); e("s_lshl_b32 s20, s17, 12")
        e("s_waitcnt lgkmcnt(0)")
        e("s_add_u32 s8, s6, s19"); e("s_addc_u32 s9, s7, 0"); e(f"s_mov_b32 s10, {16*PART}"); e("s_mov_b32 s11, 0x20000")
        for h in range(16):
            e(f"buffer_load_dwordx4 {vr(16+4*h)}, v2, s[8:11], s20 offen{P.RDMOD}")
            if h < 15: e(f"s_add_u32 s20, s20, {PART}")
        e("s_lshl_b32 s21, s17, 2"); e("s_add_u32 s21, s21, s18"); e("s_lshr_b32 s22, s21, 1"); e("s_and_b32 s21, s21, 1")
        e("s_mul_i32 s23, s22, 4682"); e("s_lshr_b32 s23, s23, 16"); e("s_mul_i32 s24, s23, 14"); e("s_sub_u32 s24, s22, s24")
        e("s_and_b32 s25, s16, 7"); e("s_lshr_b32 s26, s16, 3")
        e("s_mul_i32 s25, s25, 5"); e("s_add_u32 s25, s25, s23"); e(f"s_mul_i32 s25, s25, {32*1792}")
        e("s_mul_i32 s26, s26, 896"); e("s_add_u32 s25, s25, s26")
        e("s_lshl_b32 s24, s24, 6"); e("s_add_u32 s25, s25, s24"); e("s_lshl_b32 s21, s21, 5"); e("s_add_u32 s25, s25, s21")
        e("v_and_b32 v3, 31, v0"); e("v_mul_u32_u24 v3, 1792, v3"); e("v_bfe_u32 v4, v0, 5, 1"); e("v_lshl_add_u32 v3, v4, 4, v3")
        e("s_mov_b32 s12, s4"); e("s_mov_b32 s13, s5"); e(f"s_mov_b32 s14, {8*160*1792}"); e("s_mov_b32 s15, 0x20000")
        e("s_mov_b32 s27, 0xffff0000")
        for h in range(16):
            e(f"s_waitcnt vmcnt({15-h})")
            for d in range(4):
                r = 16 + 4 * h + d
                if h == 0:
                    e(f"v_lshlrev_b32 v{8+2*d}, 16, v{r}"); e(f"v_and_b32 v{9+2*d}, s27, v{r}")
                else:
                    e(f"v_lshlrev_b32 v{4+(d&1)*2}, 16, v{r}"); e(f"v_and_b32 v{5+(d&1)*2}, s27, v{r}")
                    e(f"v_pk_add_f32 {vr(8+2*d,2)}, {vr(8+2*d,2)}, {vr(4+(d&1)*2,2)}")
        for d in range(4): e(f"v_cvt_pk_bf16_f32 v{16+d}, v{8+2*d}, v{9+2*d}")
        e(f"buffer_store_dwordx4 {vr(16)}, v3, s[12:15], s25 offen")
        if P.STAMP:
            e("s_waitcnt vmcnt(0)"); e("s_memrealtime s[42:43]"); e("s_waitcnt lgkmcnt(0)")
            e("s_lshl_b32 s20, s2, 2"); e("s_add_u32 s20, s20, s18"); e("s_lshl_b32 s20, s20, 3"); e(f"s_add_u32 s20, s20, {STAMP_OFF + 65536}")
            e("s_add_u32 s8, s6, s20"); e("s_addc_u32 s9, s7, 0"); e("s_mov_b32 s10, 8")
            e("v_mov_b32 v4, s40"); e("v_mov_b32 v5, s42"); e("v_mov_b32 v6, 0")
            e("buffer_store_dwordx2 v[4:5], v6, s[8:11], 0 offen")
        e("L_red_end:")
        e("s_endpgm")
        return check_hazards(self.L[p0:], "reduce")

def desc(name, vg, acc):
    return [f".amdhsa_kernel {name}", f"  .amdhsa_next_free_vgpr {vg}", "  .amdhsa_next_free_sgpr 102",
            f"  .amdhsa_accum_offset {acc}", "  .amdhsa_group_segment_fixed_size 0", "  .amdhsa_kernarg_size 104",
            "  .amdhsa_user_sgpr_count 2", "  .amdhsa_user_sgpr_kernarg_segment_ptr 1",
            "  .amdhsa_system_sgpr_workgroup_id_x 1", ".end_amdhsa_kernel"]

def build(path, verbose=True):
    g = Gen()
    ref = open(f"cdna_kernels/{NAME}.s.ref").read().splitlines()
    hdr = [l for l in ref if l.startswith(";") and "@launch" not in l]
    g.L += hdr
    g.L += ["; @launch kernel=attn_kernel grid=(256,1,1) block=(256,1,1) lds=163840",
            "; @launch kernel=reduce_kernel grid=(560,1,1) block=(256,1,1) lds=0",
            '.amdgcn_target "amdgcn-amd-amdhsa--gfx950"', ".text"]
    probs = g.attn_kernel()
    probs += g.reduce_kernel()
    g.L += ['.section .rodata,"a"', ".p2align 6"] + desc("attn_kernel", 512, 256) + [".p2align 6"] + desc("reduce_kernel", 80, 80)
    open(path, "w").write("\n".join(g.L) + "\n")
    seen = set()
    for p in probs:
        k = p.split("]", 1)[1]
        if k not in seen: print(p); seen.add(k)
    if verbose:
        for k, v in g.sec.items():
            ins = [Ins(x) for x in v]
            print(k, "instr", sum(1 for i in ins if i.states), "mfma", sum(1 for i in ins if i.kind == "mfma"),
                  "cost", sum(i.cost for i in ins))
    return g

if __name__ == "__main__":
    out = sys.argv[1] if len(sys.argv) > 1 else "k.s"
    for kv in sys.argv[2:]:
        k, v = kv.split("=", 1)
        setattr(P, k, eval(v))
    build(out)
```

```python
import re

REG_RE = re.compile(r'^(-?)(abs\()?([vas])(\d+|\[(\d+):(\d+)\])\)?$')

def regs_of(tok):
    tok = tok.strip()
    if tok in ("vcc",): return {("s", "vcc")}
    if tok in ("exec",): return {("s", "exec")}
    if tok == "m0": return {("s", "m0")}
    if tok == "scc": return {("s", "scc")}
    m = REG_RE.match(tok)
    if not m: return set()
    k = m.group(3)
    if m.group(5) is not None:
        return {(k, i) for i in range(int(m.group(5)), int(m.group(6)) + 1)}
    return {(k, int(m.group(4)))}

def split_ops(s):
    out, depth, cur = [], 0, ""
    for ch in s:
        if ch in "[(": depth += 1
        if ch in "])": depth -= 1
        if ch == "," and depth == 0:
            out.append(cur.strip()); cur = ""
        else:
            cur += ch
    if cur.strip(): out.append(cur.strip())
    return out

TRANS = ("v_exp_f32", "v_log_f32", "v_rcp_f32", "v_rsq_f32", "v_sqrt_f32")

class Ins:
    __slots__ = ("text", "mn", "kind", "rd", "wr", "ops", "srcc", "states", "passes", "cost")
    def __init__(self, text):
        self.text = text
        t = text.split(";")[0].strip()
        self.rd, self.wr, self.srcc = set(), set(), set()
        self.states = 1; self.passes = 0; self.cost = 1
        if not t or t.endswith(":") or t.startswith("."):
            self.mn = ""; self.kind = "label" if t.endswith(":") else "none"; self.ops = []; self.states = 0; self.cost = 0
            return
        parts = t.split(None, 1)
        mn = parts[0]; self.mn = mn
        rest = parts[1] if len(parts) > 1 else ""
        ops = split_ops(rest)
        if ops:
            last = ops[-1].split()
            ops[-1] = last[0]; mods = last[1:]
        else:
            mods = []
        self.ops = ops
        R = lambda i: regs_of(ops[i]) if i < len(ops) else set()
        if mn.startswith("v_mfma"):
            self.kind = "mfma"
            self.wr = R(0); self.rd = R(1) | R(2) | R(3); self.srcc = R(3)
            self.passes = 8 if "32x32x16" in mn else 4
            self.cost = 2
        elif mn.startswith("ds_read") or mn.startswith("ds_bpermute") or "_rtn_" in mn:
            self.kind = "ds"; self.wr = R(0); self.rd = set().union(*[R(i) for i in range(1, len(ops))])
        elif mn.startswith("ds_write") or mn.startswith("ds_add") or mn.startswith("ds_or"):
            self.kind = "ds"; self.rd = set().union(*[R(i) for i in range(len(ops))])
        elif mn.startswith("buffer_load") or mn.startswith("global_load"):
            self.kind = "vmem"
            if "lds" in mods or "_lds_" in mn:
                self.rd = set().union(*[R(i) for i in range(len(ops))]) | {("s", "m0")}
                self.kind = "dma"
            else:
                self.wr = R(0); self.rd = set().union(*[R(i) for i in range(1, len(ops))])
        elif mn.startswith("buffer_store") or mn.startswith("global_store"):
            self.kind = "vstore"; self.rd = set().union(*[R(i) for i in range(len(ops))])
        elif mn.startswith("buffer_atomic") or mn.startswith("global_atomic"):
            self.kind = "vmem"; self.rd = set().union(*[R(i) for i in range(len(ops))])
            if "sc0" in mods: self.wr = R(0)
        elif mn.startswith("buffer_"):
            self.kind = "vmem"
        elif mn.startswith("v_cmp"):
            self.kind = "valu"; self.wr = R(0); self.rd = R(1) | R(2)
        elif mn.startswith("v_permlane") and "swap" in mn:
            self.kind = "valu"; self.wr = R(0) | R(1); self.rd = R(0) | R(1)
        elif mn.startswith("v_"):
            self.kind = "valu"
            self.wr = R(0); self.rd = set().union(*[R(i) for i in range(1, len(ops))]) if len(ops) > 1 else set()
            if mn.startswith("v_fmac") or mn.startswith("v_dot2c"): self.rd |= R(0)
            if mn.startswith("v_cndmask") and len(ops) == 3: self.rd |= {("s", "vcc")}
            if "_co_" in mn: self.wr |= R(1)
            if mn in TRANS or mn.replace("_e32", "").replace("_e64", "") in TRANS: self.cost = 2
        elif mn == "s_nop":
            self.kind = "nop"; self.states = int(ops[0], 0) + 1; self.cost = self.states
        elif mn.startswith("s_load") or mn.startswith("s_memtime") or mn.startswith("s_memrealtime"):
            self.kind = "smem"; self.wr = R(0); self.rd = R(1)
        elif mn.startswith("s_cbranch") or mn == "s_branch" or mn.startswith("s_setpc") or mn.startswith("s_call") or mn.startswith("s_swappc"):
            self.kind = "branch"
            if "vcc" in mn: self.rd = {("s", "vcc")}
        elif mn.startswith("s_waitcnt") or mn in ("s_barrier", "s_endpgm", "s_setprio", "s_sleep"):
            self.kind = "ctl"
        elif mn.startswith("s_cmp") or mn.startswith("s_bitcmp"):
            self.kind = "salu"; self.rd = R(0) | R(1)
        elif mn.startswith("s_"):
            self.kind = "salu"; self.wr = R(0); self.rd = set().union(*[R(i) for i in range(1, len(ops))]) if len(ops) > 1 else set()
        else:
            raise ValueError("unknown instruction: " + text)
    def is_trans(self):
        return self.mn.replace("_e32", "").replace("_e64", "") in TRANS

TIMEBASED = True
def fix_hazards(lines, pre=()):
    lines = list(lines); added = 0
    while True:
        pos = []
        check_hazards(list(pre) + lines, "", pos)
        pos = [(p - len(pre), k) for p, k in pos if p >= len(pre)]
        if not pos: return lines, added
        p = min(x[0] for x in pos); k = max(x[1] for x in pos if x[0] == p)
        lines.insert(p, f"s_nop {k-1}"); added += k

def check_hazards(lines, name="", pos=None):
    ins = [Ins(l) for l in lines]
    src = [k for k, i in enumerate(ins) if i.kind not in ("label", "none")]
    ins = [i for i in ins if i.kind not in ("label", "none")]
    probs = []
    W = 24
    tm = []; t = 0; lastm = None
    for i_ in ins:
        if i_.kind == "mfma" and lastm is not None and TIMEBASED: t = max(t, lastm[0] + lastm[1])
        tm.append(t)
        if i_.kind == "mfma": lastm = (t, i_.passes)
        t += i_.states
    for j, c in enumerate(ins):
        dist = 0
        for i in range(j - 1, max(-1, j - W - 1), -1):
            p = ins[i]
            if p.kind == "mfma": dist = max(dist, min(tm[j] - tm[i] - 1, dist + 8))
            need = 0; why = ""
            vec = lambda s: {r for r in s if r[0] in "va"}
            sg = lambda s: {r for r in s if r[0] == "s"}
            if p.kind == "mfma":
                n = {8: (12, 10, 7), 4: (8, 6, 3)}[p.passes]
                if c.kind == "mfma":
                    ab = c.rd - c.srcc if not (c.srcc & (regs_of(c.ops[1]) | regs_of(c.ops[2]))) else c.rd
                    ab = regs_of(c.ops[1]) | regs_of(c.ops[2])
                    if p.wr & ab: need, why = n[0], "mfma D -> mfma A/B"
                    elif p.wr & c.srcc and (p.wr != c.srcc or p.passes != c.passes): need, why = n[1], "mfma D -> overlapping C"
                    elif p.wr & c.wr and p.wr != c.srcc: need, why = n[1], "mfma D -> mfma D (WAW, non-chain)"
                elif c.kind in ("valu",):
                    if p.wr & (c.rd | c.wr): need, why = n[0], "mfma D -> valu"
                    elif p.srcc & c.wr: need, why = n[2], "mfma C read -> valu write"
                elif c.kind in ("ds", "vmem", "vstore", "dma"):
                    if p.wr & (c.rd | c.wr): need, why = n[0], "mfma D -> mem"
            elif p.kind == "valu":
                if c.kind == "mfma" and vec(p.wr) & c.rd: need, why = 2, "valu -> mfma"
                if c.kind == "valu":
                    if p.is_trans() and not c.is_trans() and p.wr & c.rd: need, why = max(need, 1), "trans -> valu"
                    if c.mn.startswith("v_permlane") and vec(p.wr) & c.rd: need, why = 2, "valu -> permlane"
                    if (c.mn.startswith("v_readfirstlane") or c.mn.startswith("v_readlane")) and vec(p.wr) & c.rd: need, why = max(need, 1), "valu -> readlane"
                    if sg(p.wr) & c.rd: need, why = max(need, 2), "valu sgpr -> valu read"
                    if "dpp" in c.mn and vec(p.wr) & c.rd: need, why = 2, "valu->dpp"
                if c.kind in ("vmem", "vstore", "dma") and sg(p.wr) & c.rd: need, why = 5, "valu sgpr -> vmem"
                if c.kind in ("ds", "vmem", "vstore", "dma") and p.is_trans() and p.wr & c.rd: need, why = max(need, 1), "trans -> mem"
            elif p.kind == "salu":
                if ("s", "m0") in p.wr and c.kind == "dma": need, why = 1, "m0 -> dma"
            elif p.kind == "vstore":
                if ("x4" in p.mn or "x3" in p.mn):
                    data = regs_of(p.ops[0]) if p.mn.startswith("buffer") else regs_of(p.ops[1])
                    if c.kind == "valu" and data & c.wr: need, why = 2, "store data WAR valu"
                    elif data & c.wr: need, why = 1, "store data WAR"
            if need > dist:
                probs.append(f"[{name}] need {need} have {dist}: {why}\n    {p.text}\n    {c.text}")
                if pos is not None: pos.append((src[j], need - dist))
            dist += p.states
            if dist >= 20: break
    return probs


WAIT_RE = re.compile(r'lgkmcnt\((\d+)\)')
def autowait(lines, fifo0=(), look=True, vm_since0=0):
    fifo = [Ins(t) for t in fifo0]
    out = []
    vm_since = vm_since0
    ins = [None if l.startswith("@") or "@vm" in l else Ins(l) for l in lines]
    def need_idx(i):
        regs = i.rd | i.wr
        idx = -1
        for k, f in enumerate(fifo):
            if f.wr & regs: idx = k
        return idx
    def wait_to(idx):
        n = len(fifo) - 1 - idx
        out.append(f"s_waitcnt lgkmcnt({n})")
        del fifo[:idx + 1]
    for p, l in enumerate(lines):
        if l == "@waitw":
            idx = -1
            for k, f in enumerate(fifo):
                if f.mn.startswith("ds_write"): idx = k
            if idx >= 0: wait_to(idx)
            continue
        if l.startswith("@waita") or l.startswith("@waitr"):
            reg = ("a", int(l.split()[1])) if l.startswith("@waita") else (l.split()[1][0], int(l.split()[1][1:]))
            idx = -1
            for k, f in enumerate(fifo):
                if reg in f.wr: idx = k
            if idx >= 0: wait_to(idx)
            continue
        if "@vm" in l:
            l = l.replace("@vm", str(vm_since)); ins[p] = Ins(l)
        i = ins[p]
        if i.kind in ("label", "none"):
            out.append(l); continue
        if i.mn.startswith("s_waitcnt"):
            m = WAIT_RE.search(l)
            if m:
                n = int(m.group(1))
                if len(fifo) > n: del fifo[:len(fifo) - n]
            out.append(l); continue
        if i.kind == "smem":
            assert not fifo or True
        idx = need_idx(i)
        if idx >= 0:
            if look and i.kind == "mfma":
                seen = 0
                for q in range(p + 1, len(lines)):
                    j = ins[q]
                    if j is None: break
                    if j.kind == "mfma":
                        seen += 1
                        k = need_idx(j)
                        if k > idx:
                            if len(fifo) - 1 - k >= 4: idx = k
                            break
                        if seen >= 2: break
            wait_to(idx)
        if i.kind == "ds":
            if len(fifo) >= 15: wait_to(len(fifo) - 15)
            fifo.append(i)
        if i.kind == "dma": vm_since = 0
        elif i.kind in ("vmem", "vstore"): vm_since += 1
        out.append(l)
    return out, [f.text for f in fifo], vm_since
```

```python
import math
from asmlib import Ins, regs_of

def icost(x):
    if x.startswith("@"): return 1
    return Ins(x.split(";")[0]).cost
def cost(it): return sum(icost(x) for x in it)

class Sch:
    def __init__(self, cap=2, lat=9, age=7, maxout=13, blat=7):
        self.cap, self.lat, self.age, self.maxout, self.blat = cap, lat, age, maxout, blat
        self.mf = []
        self.frag = {}
        self.queues = {}
        self.fixed = {}
        self.chains = []
        self.bars = {}
        self.init = []
    def n(self): return len(self.mf)
    def m(self, text, frags=()):
        self.mf.append((text, list(frags))); return len(self.mf) - 1
    def add_frag(self, f, buf, rds, pre=(), rel=None, due=None, q="f", use=None):
        assert f not in self.frag
        self.frag[f] = dict(buf=buf, rds=list(rds), pre=list(pre), rel=rel, due=due, use=use)
        self.queues.setdefault(q, []).append(f)
    def fix(self, g, item): self.fixed.setdefault(g, []).append(list(item))
    def chain(self, g0, g1, items, rels=None, after=None, hard=1.5):
        self.chains.append(dict(g0=g0, g1=g1, items=[list(i) for i in items], rels=rels, after=after, hard=hard))
    def bar(self, name, g, lines, clears=True):
        assert g not in self.bars
        self.bars[g] = (name, list(lines), clears)

    def run(self):
        n = len(self.mf)
        bg = {v[0]: g for g, v in self.bars.items()}
        first, last = {}, {}
        for i, (t, fs) in enumerate(self.mf):
            for f in fs:
                first.setdefault(f, i); last[f] = i
        Q = {}
        for q, fl in self.queues.items():
            it = []
            for f in fl:
                if f in self.init: continue
                d = self.frag[f]
                u = first.get(f, d["use"]); assert u is not None, f
                dl = u - 1 - self.lat
                hard = min(u - 1 - 3, n - 1)
                if d["due"] is not None:
                    dl = min(dl, bg[d["due"]] - self.blat); hard = min(hard, bg[d["due"]] - 2)
                for k, r in enumerate(d["rds"]):
                    it.append(dict(f=f, k=k, lines=(d["pre"] if k == 0 else []) + [r], rd=r, soft=dl, hard=hard))
            for k in range(len(it) - 2, -1, -1):
                it[k]["soft"] = min(it[k]["soft"], it[k + 1]["soft"] - 0.5)
                it[k]["hard"] = min(it[k]["hard"], it[k + 1]["hard"] - 0.34)
            Q[q] = it
        C = []
        for c in self.chains:
            tot = sum(cost(i) for i in c["items"]); w = c["g1"] - c["g0"] + 1
            assert w > 0, c
            rs = tot / w; rh = max(rs, c["hard"])
            rem = tot; it = []
            for k, i in enumerate(c["items"]):
                rem -= cost(i)
                it.append(dict(lines=i, soft=c["g1"] - rem / rs, hard=c["g1"] - rem / rh,
                               rel=max(c["g0"], c["rels"][k] if c["rels"] else -1), after=c["after"]))
            C.append(it)
        out = []
        bufuser = {}
        for k, f in enumerate(self.init):
            for r in self.frag[f]["rds"]: out.append((f, r, -8 + k))
            bufuser[self.frag[f]["buf"]] = f
        passed = set()
        L = []; self.gapcost = []
        issued = set(self.init)
        def fill(g, used, post):
            while True:
                cand = []
                for q, it in Q.items():
                    if not it: continue
                    x = it[0]; d = self.frag[x["f"]]
                    if d["rel"] is not None and d["rel"] not in passed: continue
                    pu = bufuser.get(d["buf"])
                    if x["k"] == 0 and pu is not None and last.get(pu, 10**9) > g: continue
                    if len(out) >= self.maxout and x["hard"] > g: continue
                    cand.append((x["soft"], 0, it))
                for it in C:
                    if not it: continue
                    x = it[0]
                    if x["rel"] > g or (x["after"] is not None and x["after"] not in passed): continue
                    cand.append((x["soft"], 1, it))
                cand.sort(key=lambda c: (c[0], c[1]))
                pick = None
                for c in cand:
                    x = c[2][0]; cx = cost(x["lines"])
                    if x["hard"] <= g or used + cx <= self.cap or (used == 0 and cx > self.cap) or g == n - 1:
                        pick = c; break
                if pick is None: return used
                x = pick[2].pop(0)
                L.extend(x["lines"]); used += cost(x["lines"])
                if pick[1] == 0:
                    out.append((x["f"], x["rd"], g)); bufuser[self.frag[x["f"]]["buf"]] = x["f"]
                    if x["k"] == len(self.frag[x["f"]]["rds"]) - 1: issued.add(x["f"])
        for g in range(-1, n):
            if g >= 0: L.append(self.mf[g][0])
            used = 0
            need = self.mf[g + 1][1] if g + 1 < n else []
            willwait = any(o[0] in need for o in out) or any(f not in issued for f in need)
            if g in self.bars and self.bars[g][2]: willwait = False
            if willwait: used += 1
            for it in self.fixed.get(g, []):
                L.extend(it); used += cost(it)
            if g in self.bars:
                name, lines, clears = self.bars[g]
                used = fill(g, used + self.cap, False) - self.cap
                for q, it in Q.items():
                    assert not any(self.frag[x["f"]]["due"] == name for x in it), f"reads due before {name} not issued"
                L.extend(lines); used += cost(lines)
                passed.add(name)
                if clears: out.clear()
                u2 = fill(g, 0, True); used += u2
            else:
                used = fill(g, used, False)
            for f in need: assert f in issued, f"frag {f} not issued before mfma {g+1}"
            idx = [k for k, o in enumerate(out) if o[0] in need]
            if idx:
                k = max(idx)
                while k + 1 < len(out) and out[k + 1][2] <= g - self.age: k += 1
                r = max(regs_of(Ins(out[k][1]).ops[0]))
                L.append(f"@waitr {r[0]}{r[1]}")
                if not willwait: used += 1
                del out[:k + 1]
            self.gapcost.append(used)
        assert not any(Q.values()) and not any(C)
        return L

def est_cycles(lines):
    t = 0; free = 0
    for l in lines:
        i = Ins(l)
        if not i.states: continue
        if i.kind == "mfma":
            t = max(t, free); free = t + 4 * i.passes; t += 8
        else: t += 4 * i.cost
    return max(t, free)
```

```python
import sys, math, struct
from asmlib import Ins, check_hazards, autowait, fix_hazards
from sched3 import Sch, cost, est_cycles

NAME = "concat_heads__mha_block_cached__mha_block_cached__near_ridge"
MF = "v_mfma_f32_16x16x32_bf16"
def f2u(x): return struct.unpack("<I", struct.pack("<f", x))[0]
def vr(b, n=4): return f"v[{b}:{b+n-1}]"
def ar(b, n=4): return f"a[{b}:{b+n-1}]"
def srd(b): return f"s[{b}:{b+3}]"
def u32(x): return hex(x & 0xffffffff)

class P:
    STAMP = False
    BB = 12
    NPK = 8
    NPV = 6
    SKIP = [8, 15]
    DQ = [0, 3, 6, 9, 12, 15, 18, 21]
    DP = [48, 51, 54, 57, 60, 63, 66, 69]
    KVNT = " nt"
    STMOD = " sc1"
    RDMOD = ""
    THR = 10.0
    HQ = [("c2", 0, 2), ("K0", 40, 2), ("c3", 130, 3), ("c4", 190, 3), ("V0", 250, 2), ("c5", 350, 3), ("c6", 400, 3),
          ("K1", 445, 3), ("V1", 500, 4), ("K2", 565, 4), ("V2", 640, 6)]
    CW2 = True
    ROT = True
    RW = 9

def OM(s, j): return 64 * s + 4 * j
def QM(s, i): return 128 + 32 * s + 4 * i
SB = 192
TL = {"b0": (0, 1, 2), "b1": (0, 1, 2), "a0": (0, 1), "a1": (0, 1)}
TB = {"b0": 0, "b1": 3, "a0": 6, "a1": 8}
def S(t, s): return SB + 4 * (TB[t] + s)
def PR(h, s): return S(h + "0", s)
def CI(s): return 232 + 4 * s
KA, VA, VO = 244, 245, 247
T0, T1, T2 = 251, 252, 253
STR, STC = 254, 255
def FB(k): return 4 * (k % 16)
def OX(j): return 64 + 4 * j
def QX(i): return 128 + 4 * i
def LS(s): return 160 + 4 * s
ONES = 172
STG = 176
def SLOT(n): return (n % 5) * 32768
sA, sB_, sX, sWQ, sWS = 8, 12, 16, 20, 24
sW, sW8K = 28, 29
sRET = 30
sTH, sH, sPH, sNH, sD, sHS = 32, 33, 34, 35, 36, 37
sMSP, sMWR, sMWD, sML2, sML3 = 38, 39, 40, 41, 42
sDP, sDN = 43, 44
sOA, sOB = 45, 46
sT0, sT1, sT2, sT3 = 47, 48, 49, 50
sBLK, sBt, sHd, sC, sSC, sHI = 51, 52, 53, 54, 55, 56
sCW, sCX = 57, 58
sWO = 60
sF = 62
sM0 = 63
sPT = 64
sCO = 64
sCS = 74
sST = 84
PART = 144384
STAMP_OFF = 48 << 20

def vmpass(lines, q):
    out = []; done = -1
    for l in lines:
        if l.startswith("@vmw"):
            p = l.split(None, 2)
            idx = max(k for k, t in enumerate(q) if t == p[1])
            n = min(63, len(q) - 1 - idx)
            if idx <= done:
                if len(p) > 2: out.append("s_waitcnt " + p[2])
                continue
            done = idx
            out.append(f"s_waitcnt vmcnt({n})" + (" " + p[2] if len(p) > 2 else ""))
            continue
        if l.startswith("buffer_"):
            q.append(l.split("@t:")[1].strip() if "@t:" in l else None)
            l = l.split(";")[0].strip()
        out.append(l)
    return out

class Gen:
    def __init__(self):
        self.L = []; self.R = []; self.R0 = []; self.uid = 0; self.sec = {}; self.sites = {}
    def e(self, s): self.L.append(s)
    def lab(self, p):
        self.uid += 1; return f"L{p}_{self.uid}"
    def stamp(self, k):
        if not P.STAMP: return []
        if k == "start": return [f"s_memrealtime s[{sST+4}:{sST+5}]", f"s_memtime s[{sST+6}:{sST+7}]"]
        o = ["s_waitcnt lgkmcnt(0)", f"s_memrealtime s[{sST}:{sST+1}]", f"s_memtime s[{sST+2}:{sST+3}]", "s_waitcnt lgkmcnt(0)"]
        if k == "loop":
            return o + [f"s_mov_b32 s{sM0}, m0", f"s_add_u32 m0, s{sHS}, 11", "s_nop 0", f"v_writelane_b32 v{STR}, s{sST}, m0",
                        f"v_writelane_b32 v{STC}, s{sST+2}, m0", f"s_mov_b32 m0, s{sM0}"]
        return o + [f"v_writelane_b32 v{STR}, s{sST}, {k}", f"v_writelane_b32 v{STC}, s{sST+2}, {k}"]

    def rowmax(self, r, t0=T0, t1=T1):
        return [f"v_max3_f32 v{t0}, v{r}, v{r+1}, v{r+2}", f"v_max_f32 v{t0}, v{t0}, v{r+3}", f"v_mov_b32 v{t1}, v{t0}",
                f"v_permlane32_swap_b32 v{t0}, v{t1}", f"v_max_f32 v{t0}, v{t0}, v{t1}", f"v_mov_b32 v{t1}, v{t0}",
                f"v_permlane16_swap_b32 v{t0}, v{t1}", f"v_max_f32 v{t0}, v{t0}, v{t1}"]
    def softmax(self, t, done, init=(), add=False, first=False, subs=None):
        subs = list(subs or TL[t])
        it = []
        for s in init:
            c = CI(s)
            it += [[x] for x in self.rowmax(S(t, s), c + 1, c + 2)]
            it += [[f"v_ceil_f32 v{c+1}, v{c+1}"], [f"v_sub_f32 v{c}, 0, v{c+1}"]]
        regs = [S(t, s) + k for s in subs for k in range(4)]
        if add:
            for s in subs:
                for k in range(4): it.append([f"v_add_f32 v{S(t,s)+k}, v{S(t,s)+k}, v{CI(s)}"])
        for s in init:
            for k in range(1, 4): it.append([f"v_mov_b32 v{CI(s)+k}, v{CI(s)}"])
        chk = [S(t, s) + k for s in subs if s not in init for k in range(4)]
        if chk:
            it.append([f"v_max3_f32 v{T0}, v{chk[0]}, v{chk[1]}, v{chk[2]}"])
            k = 3
            while k + 1 < len(chk):
                it.append([f"v_max3_f32 v{T0}, v{T0}, v{chk[k]}, v{chk[k+1]}"]); k += 2
            it.append([f"v_max_f32 v{T0}, v{T0}, v{chk[k]}"])
            fb, ret = self.lab("fb"), self.lab("fr")
            it.append([f"v_cmp_lt_f32 vcc, s{sTH}, v{T0}"])
            it.append([f"s_cbranch_vccnz {fb}", f"{ret}:"])
            self.sites[fb] = dict(t=t, subs=[s for s in subs if s not in init], done=list(done), ret=ret, first=first)
        h, o = t[0], 2 * int(t[1])
        pend = []
        for s in subs:
            for k in range(4):
                it.append([f"v_exp_f32 v{S(t,s)+k}, v{S(t,s)+k}"])
                if pend: it.append(pend.pop(0))
                if k % 2 == 1:
                    pend.append([f"v_cvt_pk_bf16_f32 v{PR(h,s)+o+k//2}, v{S(t,s)+k-1}, v{S(t,s)+k}"])
        it += pend
        return it

    def emit_fallbacks(self, lines, started0=(), pv0=True):
        started = set(started0); pv = pv0
        cmap = {f"{MF} {vr(S(t,s))}": (t, s) for t in TL for s in TL[t]}
        for l in lines:
            if l.startswith(MF):
                key = l.split(",")[0]
                if key in cmap:
                    t, s = cmap[key]
                    if l.strip().endswith(vr(CI(s))):
                        if t == "b0" and s == 0: started = set()
                        started.add((t, s))
                if any(l.split(",")[2].strip() == vr(PR(h, s)) for h in "ab" for s in TL[h + "0"]): pv = True
            if l.startswith("s_cbranch_vccnz"):
                fb = l.split()[1]; d = self.sites.pop(fb)
                R = ["s_nop 7", "s_nop 3"]
                order = list(TL)
                for s in d["subs"]:
                    R += self.rowmax(S(d["t"], s)) + [f"v_max_f32 v{T0}, 0, v{T0}", f"v_ceil_f32 v{T0}, v{T0}"]
                    tl = [d["t"]] + [t for (t, s2) in sorted(started) if s2 == s and t != d["t"] and t not in d["done"]]
                    for t in tl:
                        for k in range(4): R.append(f"v_sub_f32 v{S(t,s)+k}, v{S(t,s)+k}, v{T0}")
                    for k in range(4): R.append(f"v_sub_f32 v{CI(s)+k}, v{CI(s)+k}, v{T0}")
                    R += [f"v_exp_f32 v{T1}, -v{T0}", "s_nop 0"]
                    for t in d["done"]:
                        if s not in TL[t]: continue
                        for k in range(2):
                            r = PR(t[0], s) + 2 * int(t[1]) + k
                            R += [f"v_lshlrev_b32 v{T0}, 16, v{r}", f"v_and_b32 v{T2}, s{sHI}, v{r}", f"v_mul_f32 v{T0}, v{T0}, v{T1}",
                                  f"v_mul_f32 v{T2}, v{T2}, v{T1}", f"v_cvt_pk_bf16_f32 v{r}, v{T0}, v{T2}"]
                    if pv: R.append(f"s_call_b64 s[{sRET}:{sRET+1}], L_resc{s}")
                R, _ = fix_hazards(R)
                self.R += [f"{fb}:"] + R + ["s_nop 1", f"s_branch {d['ret']}"]
    def resc_subs(self):
        for s in range(3):
            R = [f"L_resc{s}:"]
            accs = [LS(s) + k for k in range(4)]
            if s < 2:
                for k in range(64): R.append(f"v_mul_f32 v{OM(s,0)+k}, v{OM(s,0)+k}, v{T1}")
            else: accs += [OX(0) + k for k in range(64)]
            for k in range(0, len(accs), 2):
                R += [f"v_accvgpr_read_b32 v{T0}, a{accs[k]}", f"v_accvgpr_read_b32 v{T2}, a{accs[k+1]}",
                      f"v_mul_f32 v{T0}, v{T0}, v{T1}", f"v_mul_f32 v{T2}, v{T2}, v{T1}",
                      f"v_accvgpr_write_b32 a{accs[k]}, v{T0}", f"v_accvgpr_write_b32 a{accs[k+1]}, v{T2}"]
            R.append(f"s_setpc_b64 s[{sRET}:{sRET+1}]")
            self.R += R

    def krd(self, k, kt, i): return [f"ds_read_b128 {ar(FB(k))}, v{KA} offset:{kt*2048 + (i>>2)*1024 + (i&3)*256}"]
    def trd(self, k, reg, j, base=0):
        off = base + (j >> 3) * 1024 + ((j >> 1) & 3) * 256
        return [f"ds_read_b64_tr_b16 {ar(FB(k),2)}, v{reg+(j&1)} offset:{off}",
                f"ds_read_b64_tr_b16 {ar(FB(k)+2,2)}, v{reg+(j&1)} offset:{off+2048}"]
    def kseq(self, first=False):
        if first: return [("a", kt, i) for i in range(8) for kt in range(2)] + [("b", kt, i) for kt in range(2) for i in range(8)]
        return [(h, kt, i) for h in "ba" for kt in range(2) for i in range(8)]
    def vseq(self, first=False): return [(h, j) for h in ("ab" if first else "ba") for j in range(16)]
    def kfrags(self, sc, tag, rel, due, d0, first=False, n=32, use=None):
        for k, (h, kt, i) in enumerate(self.kseq(first)[:n]):
            pre = []
            if k == 0 and d0: pre = [f"v_add_u32 v{KA}, {d0}, v{KA}"]
            if k == 16: pre = [f"v_subrev_u32 v{KA}, s{sH}, v{KA}" if first else f"v_add_u32 v{KA}, s{sH}, v{KA}"]
            sc.add_frag((tag, k), k % 16, self.krd(k, kt, i), pre, rel, due, use=None if use is None else use + 3 * k)
    def vfrags(self, sc, tag, rel, due, d0, first=False, n=32, use=None):
        for k, (h, j) in enumerate(self.vseq(first)[:n]):
            pre = []
            if k < 2 and d0: pre = [f"v_add_u32 v{VA+k}, {d0}, v{VA+k}"]
            if k in (16, 17): pre = [f"v_subrev_u32 v{VA+k-16}, s{sH}, v{VA+k-16}" if first else f"v_add_u32 v{VA+k-16}, s{sH}, v{VA+k-16}"]
            sc.add_frag((tag, k), k % 16, self.trd(k, VA, j), pre, rel, due, use=None if use is None else use + 3 * k)
    def kfifo(self): return [r for k, (h, kt, i) in enumerate(self.kseq()[:P.NPK]) for r in self.krd(k, kt, i)]
    def vfifo(self): return [r for k, (h, j) in enumerate(self.vseq()[:P.NPV]) for r in self.trd(k, VA, j)]

    def qk_mfmas(self, sc, tag, first=False):
        end = {}; use = {}
        for k, (h, kt, i) in enumerate(self.kseq(first)):
            t = h + str(kt)
            for s in TL[t]:
                c = ("0" if first else vr(CI(s))) if i == 0 else vr(S(t, s))
                q = vr(QM(s, i)) if s < 2 else ar(QX(i))
                fr = [(tag, k)] + ([("qx", i)] if (first and s == 2) else [])
                end[t] = sc.m(f"{MF} {vr(S(t,s))}, {ar(FB(k))}, {q}, {c}", fr)
                use.setdefault((s, i), end[t])
        return end, use
    def pv_mfmas(self, sc, tag, first=False):
        start = {}; fin = {}
        for k, (h, j) in enumerate(self.vseq(first)):
            if j == 0:
                start[h] = sc.n()
                for s in TL[h + "0"]:
                    z = first and (h == "a" or s == 2)
                    fin[("l", s)] = sc.m(f"{MF} {ar(LS(s))}, {ar(ONES)}, {vr(PR(h,s))}, {'0' if z else ar(LS(s))}")
            for s in TL[h + "0"]:
                o = vr(OM(s, j)) if s < 2 else ar(OX(j))
                z = first and (h == "a" or s == 2)
                fin[(s, j)] = sc.m(f"{MF} {o}, {ar(FB(k))}, {vr(PR(h,s))}, {'0' if z else o}", [(tag, k)])
        return start, fin

    def kv_loop_items(self, sr, so):
        ld = lambda g, u: f"buffer_load_dwordx4 v{VO+2*g+(u&1)}, {srd(sr)}, s{so} offen offset:{u*1024}{P.KVNT} lds"
        it = [[f"s_bitcmp1_b32 s{sMWD}, s{sHS}", f"s_cselect_b32 s{sT0}, s{sDN}, s{sDP}"]]
        it.append([f"s_add_u32 m0, m0, s{sT0}"])
        for u in range(4): it.append([ld(0, u)])
        it.append([f"s_add_u32 m0, m0, 4096"])
        for u in range(4): it.append([ld(1, u)])
        it.append([f"s_add_u32 s{so}, s{so}, 32768"])
        return it
    def place_dma(self, sc, it, pos):
        k = 0; pend = []; prev = max(-1, pos[0] - 2)
        for x in it:
            if x[0].startswith("buffer"):
                for j, y in enumerate(pend): sc.fix(max(prev, pos[k] - len(pend) + j), y)
                pend = []
                sc.fix(pos[k], x); prev = pos[k]; k += 1
            else: pend.append(x)
        for y in pend: sc.fix(pos[-1] + 1, y)
    def swap_items(self):
        it = []
        for a, b in ((sA, sB_), (sA + 1, sB_ + 1), (sOA, sOB)):
            it += [[f"s_mov_b32 s{sT0}, s{a}", f"s_mov_b32 s{a}, s{b}"], [f"s_mov_b32 s{b}, s{sT0}"]]
        return it
    def loop_bar(self, nm):
        w = self.lab("w"); r = self.lab("wr"); w3 = self.lab("w3")
        self.R0 += [f"{w}:", f"s_bitcmp1_b32 s{sML3}, s{sHS}", f"s_cbranch_scc1 {w3}", "s_waitcnt vmcnt(24) lgkmcnt(0)", f"s_branch {r}",
                   f"{w3}:", "s_waitcnt vmcnt(16) lgkmcnt(0)", f"s_branch {r}"]
        return [f"s_bitcmp1_b32 s{sML2}, s{sHS}", f"s_cbranch_scc0 {w}", "s_waitcnt vmcnt(8) lgkmcnt(0)", f"{r}:", "s_barrier"] + self.stamp("loop")
    def dsel(self): return [f"s_bitcmp1_b32 s{sMWR}, s{sHS}", f"s_cselect_b32 s{sD}, s{sNH}, s{sPH}"]
    def code_touch(self, sr, vt, first):
        lb = self.lab("cw")
        return [[f"s_getpc_b64 s[{sr}:{sr+1}]", f"{lb}:"], [f"s_mov_b32 s{sr+2}, L_code_end-{lb}"], [f"s_mov_b32 s{sr+3}, 0x20000"],
                [f"v_mbcnt_lo_u32_b32 v{vt}, -1, 0"], [f"v_mbcnt_hi_u32_b32 v{vt}, -1, v{vt}"], [f"v_lshlrev_b32 v{vt}, 14, v{vt}"],
                [f"s_lshr_b32 s{sT1}, s2, 3"], [f"s_lshl_b32 s{sT1}, s{sT1}, 9"]]
    def finish(self, L, fifo0, fifo1, name, vmq=None, pre=()):
        if vmq is not None: L = vmpass(L, vmq)
        L, fifo, _ = autowait(L, fifo0, look=False)
        L, added = fix_hazards(L, pre)
        if fifo1 is not None:
            ds = []
            for l in L:
                if "lgkmcnt(0)" in l: ds = []
                elif l.startswith("ds_"): ds.append(l)
            itr = iter(ds)
            assert all(x in itr for x in fifo1), (name, ds, fifo1)
        self.sec[name] = (L, added)
        return L

    def qk_body(self, dma):
        sc = Sch()
        self.kfrags(sc, "k", None, "B", None); sc.init = [("k", k) for k in range(P.NPK)]
        end, _ = self.qk_mfmas(sc, "k")
        n = sc.n(); bg = n - 1 - P.BB
        self.vfrags(sc, "v", "B", None, f"s{sD}", n=P.NPV, use=n + 3)
        sc.bar("B", bg, self.loop_bar("qk"))
        sc.fix(24, self.dsel())
        if dma: self.place_dma(sc, self.kv_loop_items(sA, sOA), P.DQ)
        else: sc.chain(0, 20, self.swap_items() + self.cw2())
        a = self.softmax("b0", []); b = self.softmax("b1", ["b0"])
        sc.chain(end["b0"] + 2, n - 2, a + b, rels=[0] * len(a) + [end["b1"] + 2] * len(b))
        sc.fix(n - 1, [f"s_add_u32 s{sHS}, s{sHS}, 1", f"s_bitcmp1_b32 s{sMSP}, s{sHS}"])
        L = self.finish(sc.run(), self.kfifo(), self.vfifo(), "qk" + ("" if dma else "_n"))
        self.emit_fallbacks(L)
        return L
    def cw2(self):
        if not P.CW2: return []
        it = self.code_touch(sX, T2, False)
        it.append([f"s_lshl_b32 s{sT2}, s{sW}, 7"]); it.append([f"s_add_u32 s{sT1}, s{sT1}, s{sT2}"]); it.append([f"v_add_u32 v{T2}, s{sT1}, v{T2}"])
        it.append([f"buffer_load_dword a{STG}, v{T2}, {srd(sX)}, 0 offen"])
        return it
    ALLST = [(t, s) for t in TL for s in TL[t]]
    def pv_body(self, dma):
        sc = Sch()
        self.vfrags(sc, "v", None, "B", None); sc.init = [("v", k) for k in range(P.NPV)]
        start, _ = self.pv_mfmas(sc, "v")
        n = sc.n(); bg = n - 1 - P.BB
        self.kfrags(sc, "k", "B", None, f"s{sD}", n=P.NPK, use=n)
        sc.bar("B", bg, self.loop_bar("pv"))
        sc.fix(bg - 2, self.dsel())
        if dma: self.place_dma(sc, self.kv_loop_items(sB_, sOB), P.DP)
        else: sc.chain(start["a"], bg - 3, self.swap_items() + self.cw2())
        a = self.softmax("a0", ["b0", "b1"]); b = self.softmax("a1", ["b0", "b1", "a0"])
        sc.chain(-1, start["a"] - 2, a + b, rels=[-1] * len(a) + [1] * len(b))
        sc.fix(n - 1, [f"s_add_u32 s{sHS}, s{sHS}, 1", f"s_bitcmp1_b32 s{sMSP}, s{sHS}"])
        L = self.finish(sc.run(), self.vfifo(), self.kfifo(), "pv" + ("" if dma else "_n"))
        self.emit_fallbacks(L, self.ALLST)
        return L

    HW, HX = 128, 136
    WA, XA, X5A = 232, 236, 238
    FL = 243
    def w_items(self, c):
        slot = [SLOT(1), SLOT(2), SLOT(0)][c % 3]
        it = []
        for g in range(2):
            it.append([f"s_add_u32 m0, s{sW8K}, {slot + g*4096}"])
            for u in range(4):
                it.append([f"buffer_load_dwordx4 v{self.HW+4*g+u}, {srd(sWQ)}, s{sCW} offen offset:{u*1024} lds ; @t:c{c}"])
        it.append([f"s_add_u32 s{sCW}, s{sCW}, 0x80000", f"s_cmp_eq_u32 s{sCW}, 0x380000"]); it[-1].append(f"s_cselect_b32 s{sCW}, 0, s{sCW}")
        return it
    XM = [SLOT(4), SLOT(3), SLOT(3) + 16384]
    def x_items(self, c):
        it = [[f"s_add_u32 m0, s{sT2}, {self.XM[c % 3]}"]]
        for k in range(4): it.append([f"buffer_load_dwordx4 v{self.HX+k}, {srd(sX)}, s{sCX} offen offset:{k*1024} lds ; @t:c{c}"])
        it.append([f"s_add_u32 m0, s{sT3}, {SLOT(4) + 16384 + 4096*(c % 3)}"])
        it.append([f"buffer_load_dwordx4 v{self.HX+4}, {srd(sX)}, s{sCX} offen lds ; @t:c{c}"])
        it.append([f"s_add_u32 s{sCX}, s{sCX}, 128", f"s_cmp_eq_u32 s{sCX}, 896", f"s_cselect_b32 s{sCX}, 0, s{sCX}"])
        return it
    def kv_head_items(self, n):
        sr, so = (sA, sOA) if n % 2 == 0 else (sB_, sOB)
        tag = "KV"[n % 2] + str(n // 2)
        it = []
        for g in range(2):
            if n >= 2: it.append([f"s_add_u32 m0, s{sW8K}, {SLOT(n) + g*4096}"])
            for u in range(4):
                dst = f"{ar(STG+32*n+16*g+4*u)}, " if n < 2 else ""
                it.append([f"buffer_load_dwordx4 {dst}v{VO+2*g+(u&1)}, {srd(sr)}, s{so} offen offset:{u*1024}{P.KVNT}{'' if n < 2 else ' lds'} ; @t:{tag}"])
        it.append([f"s_add_u32 s{so}, s{so}, 32768"])
        return it

    def head_sched(self):
        sc = Sch()
        FL, EXO, EXP = self.FL, T0, T1
        XF = lambda c, ks, s: 64 + 24 * (c % 2) + 12 * ks + 4 * s
        QXA = lambda i: SB + 4 * ((i + 6) % 8)
        fk = 0; done = {}
        for c in range(7):
            rel = f"p{c}" if c else None; due = f"p{c+1}"
            wreg, wb = (self.WA, [SLOT(1), 0, SLOT(0)][c % 3]) if c % 3 != 1 else (self.WA + 2, 0)
            for ks in range(2):
                for s in range(3):
                    a = f"v{self.XA+ks} offset:{self.XM[c%3] - SLOT(3) + 2048*s}" if s < 2 else f"v{self.X5A+ks} offset:{4096*(c%3)}"
                    sc.add_frag(("x", c, ks, s), ("x", c % 2, ks, s), [f"ds_read_b128 {ar(XF(c,ks,s))}, {a}"], rel=rel, due=due, q="x")
            seq = [(ks, j) for ks in range(2) for j in range(16)] if c < 6 else [(ks, j) for j in range(16) for ks in range(2)]
            for (ks, j) in seq:
                f = ("w", c, ks, j)
                sc.add_frag(f, fk % 16, self.trd(fk, wreg, j, wb + ks * 4096), rel=rel, due=due)
                z = c == 0 and ks == 0
                for s in range(3 if j % 2 == 0 else 2):
                    o = vr(OM(s, j)) if s < 2 else vr(QXA(j // 2))
                    done[j] = sc.m(f"{MF} {o}, {ar(FB(fk))}, {ar(XF(c,ks,s))}, {'0' if z else o}", [f, ("x", c, ks, s)])
                fk += 1
            lines = [f"@vmw c{c+1} lgkmcnt(0)" if c < 6 else "s_waitcnt lgkmcnt(0)", "s_barrier"] + self.stamp(4 + c)
            sc.bar(due, sc.n() - 1 - P.BB, lines)
        nq = sc.n(); p6 = nq - 80 - 1 - P.BB; p7 = nq - 1 - P.BB
        self.kfrags(sc, "k0", "p7", "B0", None, first=True)
        for i in range(8):
            sc.add_frag(("qx", i), ("qx", i), [f"ds_read_b128 {ar(QX(i))}, v{FL} offset:{SLOT(1) + i*1024}"], rel="BX", q="qx")
        end, use = self.qk_mfmas(sc, "k0", True)
        n0 = sc.n(); b0 = n0 - 1 - P.BB
        sc.bar("B0", b0, ["s_waitcnt lgkmcnt(0)", "s_barrier"] + self.stamp(11))
        self.vfrags(sc, "v0", "B0", "B1", None, first=True)
        start, _ = self.pv_mfmas(sc, "v0", True)
        n1 = sc.n(); b1 = n1 - 1 - P.BB
        sc.bar("B1", b1, ["@vmw K1 lgkmcnt(0)", "s_barrier"] + self.stamp(12))
        self.kfrags(sc, "k1", "B1", None, "0x10000", n=P.NPK, use=n1)
        mul = lambda r: [f"v_mul_f32 v{r}, s{sSC}, v{r}"]
        xl = []; xr = []
        for i in range(8):
            it = []
            for s in range(2):
                r = OM(s, 2 * i); q = QM(s, i)
                it += [mul(r + k) for k in range(8)]
                if s == 1: it += [[f"v_permlane16_swap_b32 v{QM(0,i)+k}, v{QM(0,i)+2+k}"] for k in range(2)]
                it += [[f"v_cvt_pk_bf16_f32 v{q+k}, v{r+2*k}, v{r+2*k+1}"] for k in (0, 2, 1, 3)]
            it += [[f"v_permlane16_swap_b32 v{QM(1,i)+k}, v{QM(1,i)+2+k}"] for k in range(2)]
            sc.chain(done[2 * i + 1] + 2, max(use[(0, i)] - 2, done[2 * i + 1] + 2), it, hard=2.5)
            r = QXA(i)
            x = [mul(r + k) for k in range(4)] + [[f"v_cvt_pk_bf16_f32 v{r+k}, v{r+2*k}, v{r+2*k+1}"] for k in range(2)]
            xl.append(x)
        wr = lambda i: [[f"ds_write_b64 v{EXO}, {vr(QXA(i),2)} offset:{i*1024}"], [f"ds_write_b64 v{EXP}, {vr(QXA(i),2)} offset:{i*1024}"]]
        bx = nq + 10
        def xch(seq, g1):
            it = []; rl = []
            for k, i in seq:
                x = xl[i] if k == "c" else wr(i)
                it += x; rl += [done[2 * i] + 2 if k == "c" else p7 + 1] * len(x)
            sc.chain(rl[0], g1, it, rels=rl, hard=2.5)
        xch([("c", 0), ("c", 1), ("w", 0), ("w", 1)], nq - 2)
        xch([("c", i) for i in range(2, 7)] + [("w", i) for i in range(2, 7)] + [("c", 7), ("w", 7)], bx)
        sc.bar("BX", bx + 1, ["@waitw", "s_barrier"], clears=False)
        fl = lambda n: [[f"ds_write_b128 v{FL}, {ar(STG+32*n+4*k)} offset:{SLOT(n) + k*1024}"] for k in range(8)]
        sc.chain(p6 + 10, p7 - 8, [["@vmw K0"]] + fl(0))
        sc.chain(use[(2, 7)], b0 - 4, [["@vmw V0"]] + fl(1))
        a0 = self.softmax("a0", [], init=(0, 1), add=True, first=True); a1 = self.softmax("a1", ["a0"], add=True, first=True)
        sc.chain(end["a1"] + 2, start["a"] - 2, a0 + a1)
        c0 = self.softmax("b0", ["a0", "a1"], init=(2,), add=True, first=True); c1 = self.softmax("b1", ["a0", "a1", "b0"], add=True, first=True)
        sc.chain(start["a"] - 1, start["b"] - 2, c0 + c1, rels=[0] * len(c0) + [end["b1"] + 2] * len(c1))
        free = {"c3": "p1", "c4": "p2", "c5": "p3", "c6": "p4", "K1": "p5", "V1": "p6", "K2": "p7", "V2": "B0"}
        bgap = {v[0]: g for g, v in sc.bars.items()}
        lastg = -10
        for (nm, g0, st) in P.HQ:
            if nm[0] == "c": it = self.w_items(int(nm[1])) + self.x_items(int(nm[1]))
            else: it = self.kv_head_items(2 * int(nm[1]) + (nm[0] == "V"))
            if nm in free: g0 = max(g0, bgap[free[nm]] + 2)
            g0 = max(g0, lastg + 3)
            nb = sum(1 for x in it if x[0].startswith("buffer"))
            pos = [g0 + k * st for k in range(nb)]
            self.place_dma(sc, it, pos); lastg = pos[-1]
            if nm[0] == "c": assert lastg < bgap[f"p{nm[1]}"], nm
        assert lastg < b1
        sc.fix(n1 - 1, [f"v_add_u32 v{VA}, s{sH}, v{VA}", f"v_add_u32 v{VA+1}, s{sH}, v{VA+1}"])
        return sc.run()

    def tail_sched(self):
        sc = Sch()
        WAr = lambda st, np_, rd: 128 + 4 * st + 2 * np_ + rd
        SO, SP_, SX_, MA = 140, 141, 142, 143
        MB, LN, FO, FP = CI(0), CI(0) + 1, CI(0) + 2, CI(0) + 3
        TT = [CI(1) + k for k in range(4)]
        units = [144 + 8 * k for k in range(6)] + [SB + 8 * k for k in range(5)]
        RV = lambda i: OM(0, 2 * i + 1)
        BX = lambda i: OM(1, 2 * i + 1)
        self.kfrags(sc, "k", None, "B30", None); sc.init = [("k", k) for k in range(P.NPK)]
        end, _ = self.qk_mfmas(sc, "k")
        n0 = sc.n(); b0 = n0 - 1 - P.BB
        def wo_items(j, slot):
            it = []
            for g in range(2):
                it.append([f"s_add_u32 m0, s{sW8K}, {SLOT(slot) + g*4096}"] + ([f"s_add_u32 s{sT0}, s{sCO+j}, 28672"] if g else []))
                for u in range(4):
                    it.append([f"buffer_load_dwordx4 v{VO+u}, {srd(sA)}, s{sT0 if g else sCO+j} offen offset:{u*1024} lds ; @t:o{j}"])
            return it
        sw = [f"s_mul_i32 s{sT0}, s{sHd}, 229376", f"s_add_u32 s{sA}, s{sWO}, s{sT0}", f"s_addc_u32 s{sA+1}, s{sWO+1}, 0", f"s_mov_b32 s{sA+2}, 229376",
              f"v_mbcnt_lo_u32_b32 v{T2}, -1, 0", f"v_mbcnt_hi_u32_b32 v{T2}, -1, v{T2}",
              f"v_bfe_u32 v{VO}, v{T2}, 2, 3", f"v_mul_u32_u24 v{VO}, 896, v{VO}", f"v_lshrrev_b32 v{VO+1}, 5, v{T2}",
              f"v_lshl_add_u32 v{VO}, v{VO+1}, 6, v{VO}", f"v_lshrrev_b32 v{VO+1}, 3, v{T2}", f"v_and_b32 v{VO+1}, 2, v{VO+1}",
              f"v_and_b32 v{VO+2}, 3, v{T2}", f"v_xor_b32 v{VO+1}, v{VO+1}, v{VO+2}", f"v_lshl_add_u32 v{VO}, v{VO+1}, 4, v{VO}",
              f"s_mul_i32 s{sT0}, s{sW}, 57344", f"v_add_u32 v{VO}, s{sT0}, v{VO}"]
        sw += [f"v_add_u32 v{VO+u}, {6144*u}, v{VO}" for u in range(1, 4)]
        sw = [[x] for x in sw]
        sw[1:3] = [sw[1] + sw[2]]
        for j in range(7):
            if j == 0: sw.append([f"s_lshl_b32 s{sCO}, s{sC}, 7"])
            else: sw.append([f"s_add_u32 s{sCO+j}, s{sCO+j-1}, 128", f"s_cmp_eq_u32 s{sCO+j}, 896", f"s_cselect_b32 s{sCO+j}, 0, s{sCO+j}"])
            sw.append([f"s_mul_i32 s{sCS+j}, s{sCO+j}, 160"])
        sc.chain(0, 24, sw)
        a = self.softmax("b0", []); b = self.softmax("b1", ["b0"])
        sc.chain(end["b0"] + 2, n0 - 2, a + b, rels=[0] * len(a) + [end["b1"] + 2] * len(b))
        self.place_dma(sc, wo_items(0, 2), [b0 - 9 + k for k in range(8)])
        sc.bar("B30", b0, ["s_waitcnt vmcnt(8) lgkmcnt(0)", "s_barrier"] + self.stamp(41))
        self.vfrags(sc, "v", "B30", "B31", f"s{sNH}")
        start, fin = self.pv_mfmas(sc, "v")
        n1 = sc.n(); b1 = n1 - 1 - P.BB
        a = self.softmax("a0", ["b0", "b1"]); b = self.softmax("a1", ["b0", "b1", "a0"])
        sc.chain(n0 - 1, start["a"] - 2, a + b, rels=[0] * len(a) + [n0 + 1] * len(b))
        self.place_dma(sc, wo_items(1, 3), [n0 + 4 + 5 * k for k in range(8)])
        L_, G_, R_ = units[0], units[0] + 1, units[0] + 2
        su = [f"v_mbcnt_lo_u32_b32 v{L_}, -1, 0", f"v_mbcnt_hi_u32_b32 v{L_}, -1, v{L_}",
              f"v_lshrrev_b32 v{G_}, 5, v{L_}", f"v_bfe_u32 v{R_}, v{L_}, 2, 3", f"v_lshlrev_b32 v{R_}, 6, v{R_}",
              f"v_lshl_add_u32 v{G_}, v{G_}, 10, v{R_}", f"v_and_b32 v{R_}, 3, v{L_}", f"v_lshl_add_u32 v{G_}, v{R_}, 3, v{G_}",
              f"v_and_b32 v{R_}, 16, v{L_}", f"v_lshl_add_u32 v{G_}, v{R_}, 1, v{G_}",
              f"s_and_b32 s{sT1}, s{sW}, 1", f"s_mul_i32 s{sT2}, s{sT1}, 2080", f"v_xor_b32 v{WAr(0,0,0)}, s{sT2}, v{G_}",
              f"v_xor_b32 v{WAr(0,0,1)}, 2048, v{WAr(0,0,0)}", f"v_xor_b32 v{WAr(0,1,0)}, 32, v{WAr(0,0,0)}", f"v_xor_b32 v{WAr(0,1,1)}, 2080, v{WAr(0,0,0)}"]
        su += [f"v_add_u32 v{WAr(1,0,0)+k}, 0x10000, v{WAr(0,0,0)+k}" for k in range(4)]
        su += [f"v_lshlrev_b32 v{L_}, 4, v{L_}", f"s_xor_b32 s{sT2}, s{sW8K}, 8192", f"v_add_u32 v{MA}, s{sT2}, v{L_}",
               f"s_lshl_b32 s{sT2}, s{sW}, 12", f"s_lshl_b32 s{sT1}, s{sT1}, 10", f"s_add_u32 s{sT2}, s{sT2}, s{sT1}",
               f"v_add_u32 v{SO}, s{sT2}, v{L_}", f"v_xor_b32 v{SP_}, 1024, v{SO}",
               f"s_lshl_b32 s{sT2}, s{sW}, 10", f"s_add_u32 s{sT2}, s{sT2}, 16384", f"v_add_u32 v{SX_}, s{sT2}, v{L_}",
               f"v_add_u32 v{G_}, {SLOT(4)}, v{MA}"]
        sc.chain(n0 + 3, start["a"] - 1, [[x] for x in su])
        w = [[f"v_accvgpr_read_b32 v{CI(2)+1}, a{LS(2)}"], [f"ds_write_b64 v{G_}, {vr(CI(2),2)}"]]
        w += [[f"ds_write_b128 v{MA}, {ar(OX(2*i+1))} offset:{i*1024}"] for i in range(8)]
        sc.chain(start["a"] + 2, b1 - 6, w)
        sc.bar("B31", b1, ["@vmw o0 lgkmcnt(0)", "s_barrier"] + self.stamp(42))
        fk = [0]; ui = [0]; buse = {}
        def nunit():
            r = units[(ui[0] + 1) % len(units)]; ui[0] += 1; return r
        SLW = [2, 3, 1, 4, 0, 2, 3]
        def group(j, np_, subs, rel, due):
            sl = SLW[j]
            acc = {s: nunit() for s in subs}
            for hi in range(2):
                for i in range(8):
                    f = ("o", fk[0]); k = fk[0]; fk[0] += 1
                    off = (sl & 1) * 32768 + i * 4096 + hi * 512
                    sc.add_frag(f, k % 16, [f"ds_read_b64_tr_b16 {ar(FB(k)+2*rd,2)}, v{WAr(sl>>1,np_,rd)} offset:{off}" for rd in range(2)], rel=rel, due=due)
                    for s in subs:
                        o = vr(acc[s] + 4 * hi)
                        bop = vr(OM(s, 2 * i)) if s < 2 else vr(BX(i))
                        g = sc.m(f"{MF} {o}, {ar(FB(k))}, {bop}, {'0' if i == 0 else o}", [f] + ([("bx", i)] if s == 2 else []))
                        buse.setdefault((s, i), g)
            it = []
            for s in subs:
                r = acc[s]
                it += [[f"v_cvt_pk_bf16_f32 v{r+k}, v{r+2*k}, v{r+2*k+1}"] for k in range(4)]
                vo = SX_ if s == 2 else (SO if np_ == 0 else SP_)
                it.append([f"buffer_store_dwordx4 {vr(r)}, v{vo}, {srd(sWS)}, s{sCS+j} offen offset:{2048*s if s < 2 else 0}{P.STMOD}"])
            return g, it
        pend = []
        def G(j, np_, subs, rel, due):
            g0 = sc.n()
            g, it = group(j, np_, subs, rel, due)
            if pend: sc.chain(g0 + 1, g - 2, pend.pop())
            pend.append(it)
            return g
        g0 = sc.n()
        G(0, 0, (0, 1), "B31", "Bc"); ga = G(0, 1, (0, 1), "B31", "Bc")
        sc.bar("Ba", ga - P.BB, ["@vmw o1", "s_barrier"] + self.stamp(43), clears=P.STAMP)
        G(1, 0, (0, 1), "Ba", "Bc"); gb = G(1, 1, (0, 1), "Ba", "Bc")
        sc.bar("Bb", gb - P.BB, ["@waitw", "@vmw o2", "s_barrier"] + self.stamp(44), clears=P.STAMP)
        for i in range(8):
            sc.add_frag(("bx", i), ("bx", i), [f"ds_read_b64 {vr(BX(i)+2,2)}, v{MA} offset:{i*1024}"], rel="Bb", due="Bc", q="bx")
        G(2, 1, (0, 1), "Bb", None)
        G(0, 0, (2,), "Bb", "Bc"); gc = G(1, 0, (2,), "Bb", "Bc")
        sc.bar("Bc", gc - 4, ["@vmw o3 lgkmcnt(0)", "s_barrier"] + self.stamp(45))
        G(2, 0, (0, 1, 2), "Bb", None)
        G(3, 0, (0, 1, 2), "Bc", None); gd = G(3, 1, (0, 1), "Bc", None)
        sc.bar("Bd", gd - P.BB, ["@vmw o4", "s_barrier"] + self.stamp(46), clears=P.STAMP)
        G(4, 0, (0, 1, 2), "Bd", None); ge = G(4, 1, (0, 1), "Bd", None)
        sc.bar("Be", ge - P.BB, ["@vmw o6", "s_barrier"] + self.stamp(47), clears=P.STAMP)
        for j in (5, 6):
            G(j, 0, (0, 1, 2), "Be", None); G(j, 1, (0, 1), "Be", None)
        for i in range(8):
            it = []
            for s in range(2):
                r = OM(s, 2 * i)
                it += [[f"v_cvt_pk_bf16_f32 v{r+k}, v{r+2*k}, v{r+2*k+1}"] for k in range(4)]
            r0 = fin[(1, 2 * i + 1)] + 2
            sc.chain(r0, max(r0, buse[(0, i)] - 2), it, hard=2.5)
        gm = buse[(0, 7)]
        m = [[f"v_xor_b32 v{MB}, 8192, v{MA}"], [f"v_add_u32 v{LN}, {SLOT(4)}, v{MB}"], [f"ds_read_b64 {vr(TT[0],2)}, v{LN}"]]
        m += [[f"ds_read_b128 {vr(RV(i))}, v{MB} offset:{i*1024}"] for i in range(8)]
        m += [[f"v_add_u32 v{WAr(2,0,0)+k}, 0x20000, v{WAr(0,0,0)+k}"] for k in range(4)]
        m += [[f"v_min_f32 v{T0}, v{CI(2)}, v{TT[0]}"], [f"v_sub_f32 v{FO}, v{T0}, v{CI(2)}"], [f"v_sub_f32 v{FP}, v{T0}, v{TT[0]}"],
              [f"v_exp_f32 v{FO}, v{FO}"], [f"v_exp_f32 v{FP}, v{FP}"], [f"v_accvgpr_read_b32 v{T0}, a{LS(0)}"],
              [f"v_accvgpr_read_b32 v{T1}, a{LS(1)}"], [f"v_mul_f32 v{T2}, v{FO}, v{CI(2)+1}"], [f"v_fmac_f32 v{T2}, v{FP}, v{TT[1]}"],
              [f"v_mov_b32_dpp v{T2}, v{T0} quad_perm:[0,1,2,3] row_mask:0x1 bank_mask:0xf"],
              [f"v_mov_b32_dpp v{T2}, v{T1} quad_perm:[0,1,2,3] row_mask:0x2 bank_mask:0xf"],
              [f"v_bfe_u32 v{T0}, v{MA}, 2, 7"], [f"s_lshl_b32 s{sT1}, s{sW}, 7"], [f"v_rcp_f32 v{T2}, v{T2}"],
              [f"v_and_b32 v{T1}, 60, v{T0}"], [f"v_add_u32 v{T0}, s{sT1}, v{T0}"], [f"s_lshr_b32 s{sT1}, s{sW}, 1"],
              [f"s_lshl_b32 s{sT1}, s{sT1}, 6"], [f"s_add_u32 s{sT1}, s{sT1}, 512"], [f"v_add_u32 v{T1}, s{sT1}, v{T1}"],
              [f"s_mov_b32 s{sT1}, 143360"],
              [f"v_mov_b32_dpp v{T0}, v{T1} quad_perm:[0,1,2,3] row_mask:0xc bank_mask:0xf"],
              [f"buffer_store_dword v{T2}, v{T0}, {srd(sWS)}, s{sT1} offen{P.STMOD}"]]
        nst = len(m)
        for i in range(8):
            m += [[f"v_accvgpr_read_b32 v{TT[k]}, a{OX(2*i)+k}"] for k in range(4)]
            m += [[f"v_mul_f32 v{RV(i)+k}, v{RV(i)+k}, v{FP}"] for k in range(4)]
            m += [[f"v_fmac_f32 v{RV(i)+k}, v{TT[k]}, v{FO}"] for k in range(4)]
            m += [[f"v_cvt_pk_bf16_f32 v{BX(i)+k}, v{RV(i)+2*k}, v{RV(i)+2*k+1}"] for k in range(2)]
            m += [[f"ds_write_b64 v{MB}, {vr(BX(i),2)} offset:{i*1024}"]]
        sc.chain(gm, gb - P.BB - 3, m)
        self.place_dma(sc, wo_items(2, 1), [g0 + 2 + 4 * k for k in range(8)])
        self.place_dma(sc, wo_items(3, 4), [ga + 4 + 5 * k for k in range(8)])
        p = gc - 4 + 3
        for j, st in ((4, 3), (5, 5), (6, 5)):
            self.place_dma(sc, wo_items(j, SLW[j]), [p + st * k for k in range(8)]); p += 8 * st + 1
        L = sc.run()
        i1 = next(k for k, l in enumerate(L) if l.startswith(f"v_min_f32 v{T0}"))
        i2 = next(k for k, l in enumerate(L) if "@t:o3" in l)
        assert i1 < i2
        L += ["s_nop 7"] + [x for it in pend.pop() for x in it]
        return L

    def attn_kernel(self):
        e = self.e
        e(".globl attn_kernel"); e(".p2align 8"); e(".type attn_kernel,@function"); e("attn_kernel:")
        p0 = len(self.L)
        e("s_cmp_ge_u32 s2, 256"); e("s_cbranch_scc1 L_attn_end")
        e(f"s_and_b32 s{sT0}, s2, 7"); e(f"s_lshr_b32 s{sBLK}, s{sT0}, 2"); e(f"s_mul_i32 s{sT1}, s{sBLK}, 40")
        e(f"s_add_u32 s4, s0, s{sT1}"); e("s_addc_u32 s5, s1, 0")
        e(f"s_load_dwordx8 s[{sPT}:{sPT+7}], s[4:5], 0")
        e(f"s_load_dwordx2 s[{sWO}:{sWO+1}], s[4:5], 32")
        e("s_load_dwordx2 s[72:73], s[0:1], 96")
        for x in self.stamp("start"): e(x)
        t = list(range(144, 160))
        ln, g, r4, x4, tq, tu, tv = t[:7]
        e(f"s_getpc_b64 s[{sWS}:{sWS+1}]"); e("L_cw0:"); e(f"s_mov_b32 s{sWS+2}, L_code_end-L_cw0"); e(f"s_mov_b32 s{sWS+3}, 0x20000")
        e(f"v_and_b32 v{ln}, 63, v0"); e(f"v_lshrrev_b32 v{tq}, 6, v0"); e(f"s_lshr_b32 s{sT1}, s2, 3"); e(f"s_lshl_b32 s{sT2}, s{sT1}, 9")
        e(f"v_lshlrev_b32 v{tu}, 14, v{ln}"); e(f"v_lshl_add_u32 v{tu}, v{tq}, 7, v{tu}"); e(f"v_add_u32 v{tu}, s{sT2}, v{tu}")
        e(f"buffer_load_dword a{STG+64}, v{tu}, {srd(sWS)}, 0 offen")
        e(f"v_readfirstlane_b32 s{sW}, v{tq}")
        e(f"s_and_b32 s{sHd}, s{sT0}, 3"); e(f"s_lshl_b32 s{sHd}, s{sHd}, 2"); e(f"s_and_b32 s{sT2}, s{sT1}, 3")
        e(f"s_add_u32 s{sHd}, s{sHd}, s{sT2}"); e(f"s_lshr_b32 s{sBt}, s{sT1}, 2")
        if P.ROT:
            e(f"s_lshl_b32 s{sC}, s{sT2}, 1"); e(f"s_add_u32 s{sC}, s{sC}, s{sBt}"); e(f"s_sub_u32 s{sT2}, s{sC}, 7")
            e(f"s_cmp_ge_u32 s{sC}, 7"); e(f"s_cselect_b32 s{sC}, s{sT2}, s{sC}")
        else: e(f"s_mov_b32 s{sC}, 0")
        e(f"s_lshl_b32 s{sCW}, s{sC}, 19"); e(f"s_lshl_b32 s{sCX}, s{sC}, 7")
        e(f"s_lshl_b32 s{sW8K}, s{sW}, 13"); e(f"s_movk_i32 s{sF}, 0x9c")
        e(f"s_lshl_b32 s{sT0}, s{sW}, 1"); e(f"s_lshr_b32 s{sT0}, s{sF}, s{sT0}"); e(f"s_and_b32 s{sT0}, s{sT0}, 3")
        e(f"v_lshrrev_b32 v{g}, 4, v{ln}"); e(f"v_bfe_u32 v{r4}, v{ln}, 2, 2"); e(f"v_and_b32 v{x4}, 3, v{ln}")
        e(f"v_xor_b32 v{tq}, s{sT0}, v{x4}"); e(f"v_lshlrev_b32 v{tq}, 4, v{tq}"); e(f"v_lshl_add_u32 v{tq}, v{g}, 6, v{tq}")
        HW, HX = self.HW, self.HX
        e(f"s_lshl_b32 s{sT0}, s{sW}, 17"); e(f"v_lshl_add_u32 v{tu}, v{r4}, 13, v{tq}"); e(f"v_add_u32 v{HW+1}, s{sT0}, v{tu}")
        for k in (0, 2, 3, 4, 5, 6, 7):
            gg, u = k >> 2, k & 3
            e(f"v_add_u32 v{HW+k}, {768 + (2*gg + (u>>1))*32768 + (u&1)*256 - u*1024}, v{HW+1}")
        e(f"v_bfe_u32 v{tu}, v{ln}, 2, 3"); e(f"v_mul_u32_u24 v{tu}, 896, v{tu}"); e(f"v_lshrrev_b32 v{tv}, 5, v{ln}")
        e(f"v_lshl_add_u32 v{tu}, v{tv}, 6, v{tu}")
        e(f"v_and_b32 v{tv}, 1, v{g}"); e(f"v_mul_u32_u24 v{tv}, 3, v{tv}"); e(f"v_xor_b32 v{tv}, v{tv}, v{x4}")
        e(f"v_lshl_add_u32 v{tu}, v{tv}, 4, v{tu}")
        e(f"s_mul_i32 s{sT0}, s{sW}, 28672"); e(f"v_add_u32 v{HX}, s{sT0}, v{tu}"); e(f"v_xor_b32 v{tv}, 16, v{HX}")
        e(f"v_add_u32 v{HX+1}, 6144, v{tv}"); e(f"v_add_u32 v{HX+2}, 12288, v{HX}"); e(f"v_add_u32 v{HX+3}, 18432, v{tv}")
        e(f"s_and_b32 s{sT1}, s{sW}, 1"); e(f"s_lshl_b32 s{sT1}, s{sT1}, 4"); e(f"v_xor_b32 v{tv}, s{sT1}, v{tu}")
        e(f"s_mul_i32 s{sT0}, s{sW}, 7168"); e(f"s_add_u32 s{sT0}, s{sT0}, {128*896}"); e(f"v_add_u32 v{HX+4}, s{sT0}, v{tv}")
        e(f"s_lshl_b32 s{sT2}, s{sW}, 12"); e(f"s_lshl_b32 s{sT3}, s{sW}, 10")
        e(f"s_mul_i32 s{sT0}, s{sBt}, 143360"); e(f"s_lshl_b32 s{sT1}, s{sHd}, 9")
        e(f"s_mov_b32 s{sX+2}, 143360"); e(f"s_mov_b32 s{sX+3}, 0x20000"); e(f"s_mov_b32 s{sWQ+3}, 0x20000")
        e(f"s_sub_u32 s{sWQ+2}, {448*8192+768}, s{sT1}")
        e("s_waitcnt lgkmcnt(0)")
        e(f"s_add_u32 s{sWQ}, s{sPT+6}, s{sT1}"); e(f"s_addc_u32 s{sWQ+1}, s{sPT+7}, 0")
        e(f"s_sub_u32 s{sWQ}, s{sWQ}, 768"); e(f"s_subb_u32 s{sWQ+1}, s{sWQ+1}, 0")
        e(f"s_add_u32 s{sX}, s{sPT}, s{sT0}"); e(f"s_addc_u32 s{sX+1}, s{sPT+1}, 0")
        for x in self.stamp(1): e(x)
        for it in self.w_items(0) + self.x_items(0):
            for x in it: e(x)
        for x in self.stamp(2): e(x)
        e(f"s_lshl_b32 s{sT0}, s{sBt}, 4"); e(f"s_add_u32 s{sT0}, s{sT0}, s{sHd}"); e(f"s_lshl_b32 s{sT1}, s{sT0}, 19")
        for s_, p in ((sA, sPT + 2), (sB_, sPT + 4)):
            e(f"s_add_u32 s{s_}, s{p}, s{sT1}"); e(f"s_addc_u32 s{s_+1}, s{p+1}, 0")
            e(f"s_sub_u32 s{s_}, s{s_}, 768"); e(f"s_subb_u32 s{s_+1}, s{s_+1}, 0")
            e(f"s_mov_b32 s{s_+2}, {524288+768}"); e(f"s_mov_b32 s{s_+3}, 0x20000")
        e(f"s_lshl_b32 s{sT1}, s{sBLK}, 7"); e(f"s_add_u32 s{sT0}, s{sT0}, s{sT1}"); e(f"s_mul_i32 s{sT0}, s{sT0}, {PART}")
        e(f"s_add_u32 s{sWS}, s72, s{sT0}"); e(f"s_addc_u32 s{sWS+1}, s73, 0"); e(f"s_mov_b32 s{sWS+2}, {PART}")
        e(f"v_lshl_add_u32 v{tu}, v{r4}, 9, v{tq}"); e(f"v_add_u32 v{VO+1}, s{sW8K}, v{tu}")
        e(f"v_add_u32 v{VO}, 768, v{VO+1}"); e(f"v_add_u32 v{VO+2}, {4096+768}, v{VO+1}"); e(f"v_add_u32 v{VO+3}, 4096, v{VO+1}")
        e(f"s_mov_b32 s{sOA}, 0"); e(f"s_mov_b32 s{sOB}, 0")
        e(f"s_and_b32 s{sT0}, s{sW}, 1"); e(f"s_lshl_b32 s{sT1}, s{sT0}, 13"); e(f"s_sub_u32 s{sH}, 4096, s{sT1}")
        e(f"s_sub_u32 s{sPH}, 0x10000, s{sH}"); e(f"s_sub_u32 s{sNH}, {u32(-98304)}, s{sH}")
        e(f"s_xor_b32 s{sT1}, s{sT0}, 1"); e(f"s_lshl_b32 s{sT1}, s{sT1}, 12")
        e(f"s_lshl_b32 s{sT0}, s{sT0}, 1")
        e(f"v_lshlrev_b32 v{tv}, 1, v{g}"); e(f"v_bfe_u32 v{tv}, s{sF}, v{tv}, 2"); e(f"v_lshrrev_b32 v{tu}, 1, v{x4}")
        e(f"v_xor_b32 v{tv}, v{tv}, v{tu}"); e(f"v_xor_b32 v{tv}, s{sT0}, v{tv}"); e(f"v_lshlrev_b32 v{tv}, 4, v{tv}")
        e(f"v_lshl_add_u32 v{tv}, v{g}, 13, v{tv}"); e(f"v_lshl_add_u32 v{tv}, v{r4}, 6, v{tv}")
        e(f"v_and_b32 v{tu}, 1, v{x4}"); e(f"v_lshl_add_u32 v{self.WA}, v{tu}, 3, v{tv}"); e(f"v_xor_b32 v{self.WA+1}, 32, v{self.WA}")
        e(f"v_add_u32 v{self.WA+2}, {SLOT(2)}, v{self.WA}"); e(f"v_add_u32 v{self.WA+3}, {SLOT(2)}, v{self.WA+1}")
        e(f"s_add_u32 s{sD}, s{sT1}, {SLOT(1)}"); e(f"v_add_u32 v{VA}, s{sD}, v{self.WA}"); e(f"v_add_u32 v{VA+1}, s{sD}, v{self.WA+1}")
        fj = t[7]
        e(f"v_lshlrev_b32 v{fj}, 1, v{r4}"); e(f"v_bfe_u32 v{fj}, s{sF}, v{fj}, 2")
        e(f"s_movk_i32 s{sD}, 0xd8"); e(f"v_lshlrev_b32 v{tv}, 1, v{g}"); e(f"v_bfe_u32 v{tv}, s{sD}, v{tv}, 2")
        e(f"v_xor_b32 v{tv}, v{tv}, v{fj}"); e(f"v_xor_b32 v{tv}, s{sT0}, v{tv}"); e(f"v_lshlrev_b32 v{tv}, 4, v{tv}")
        e(f"v_lshl_add_u32 v{tv}, v{r4}, 13, v{tv}"); e(f"v_lshl_add_u32 v{tv}, v{x4}, 6, v{tv}"); e(f"v_add_u32 v{KA}, s{sT1}, v{tv}")
        e(f"v_and_b32 v{tv}, 1, v{g}"); e(f"v_lshlrev_b32 v{tv}, 1, v{tv}"); e(f"v_xor_b32 v{tv}, v{tv}, v{fj}"); e(f"v_lshlrev_b32 v{tv}, 4, v{tv}")
        e(f"v_and_b32 v{tu}, 7, v{ln}"); e(f"v_lshl_add_u32 v{tv}, v{tu}, 6, v{tv}")
        e(f"v_lshrrev_b32 v{tu}, 5, v{ln}"); e(f"v_lshl_add_u32 v{tv}, v{tu}, 9, v{tv}")
        e(f"v_bfe_u32 v{tq}, v{ln}, 3, 1"); e(f"v_lshl_add_u32 v{tv}, v{tq}, 10, v{tv}")
        e(f"s_add_u32 s{sT0}, s{sT2}, {SLOT(3)}"); e(f"v_add_u32 v{self.XA}, s{sT0}, v{tv}"); e(f"v_xor_b32 v{self.XA+1}, 16, v{self.XA}")
        e(f"s_lshr_b32 s{sT0}, s{sW}, 1"); e(f"s_lshl_b32 s{sT0}, s{sT0}, 11"); e(f"s_add_u32 s{sT0}, s{sT0}, {SLOT(4)+16384}")
        e(f"v_add_u32 v{self.X5A}, s{sT0}, v{tv}"); e(f"v_xor_b32 v{self.X5A+1}, 16, v{self.X5A}")
        e(f"v_lshlrev_b32 v{tv}, 4, v{ln}"); e(f"v_add_u32 v{self.FL}, s{sW8K}, v{tv}")
        e(f"v_and_b32 v{tv}, 0xf0, v{tv}"); e(f"v_lshl_add_u32 v{tv}, v{tu}, 9, v{tv}"); e(f"v_and_b32 v{tu}, 1, v{g}")
        e(f"v_lshl_add_u32 v{tv}, v{tu}, 3, v{tv}"); e(f"s_add_u32 s{sT0}, s{sW8K}, {SLOT(1)}"); e(f"v_add_u32 v{T0}, s{sT0}, v{tv}")
        e(f"v_xor_b32 v{T1}, {8192+256}, v{T0}")
        e(f"s_mov_b32 s{sSC}, {hex(f2u(math.log2(math.e) / 16.0))}"); e(f"s_mov_b32 s{sTH}, {hex(f2u(P.THR))}"); e(f"s_mov_b32 s{sHI}, 0xffff0000")
        e(f"s_mov_b32 s{sT0}, 0x3f803f80")
        for k in range(4): e(f"v_accvgpr_write_b32 a{ONES+k}, s{sT0}")
        la = 4; nxt = 6; msp = mwr = mwd = ml2 = ml3 = 0
        for hs in range(2, 30):
            if hs in P.SKIP: la -= 1; msp |= 1 << hs
            else:
                assert nxt == hs + la
                if nxt % 5 == 0: mwd |= 1 << hs
                nxt += 1
            if (hs - 1) % 5 >= 3: mwr |= 1 << hs
            if la == 2: ml2 |= 1 << hs
            if la == 3: ml3 |= 1 << hs
        assert nxt == 32 and la == 2
        msp |= 1 << 30
        for s_, v in ((sMSP, msp), (sMWR, mwr), (sMWD, mwd), (sML2, ml2), (sML3, ml3), (sDP, 28672), (sDN, -(131072 + 4096)), (sHS, 2)):
            e(f"s_mov_b32 s{s_}, {u32(v)}")
        for it in self.x_items(1) + self.w_items(1):
            for x in it: e(x)
        e("@vmw c0"); e("s_barrier")
        for x in self.stamp(3): e(x)
        for x in self.head_sched(): e(x)
        head = self.finish(self.L[p0:], [], self.kfifo(), "head", vmq=[])
        self.L[p0:] = head
        self.emit_fallbacks(head, pv0=False)
        qk, qkn, pv, pvn = self.qk_body(True), self.qk_body(False), self.pv_body(True), self.pv_body(False)
        tail = self.finish(self.tail_sched(), self.kfifo(), None, "tail", vmq=[])
        self.emit_fallbacks(tail)
        assert 2 not in P.SKIP
        e("L_qk:")
        for x in qk: e(x)
        e("s_cbranch_scc1 L_pvn")
        e("L_pv:")
        for x in pv: e(x)
        e("s_cbranch_scc0 L_qk")
        e("L_sp:"); e(f"s_cmp_eq_u32 s{sHS}, 30"); e("s_cbranch_scc1 L_tail")
        for x in qkn: e(x)
        e("s_cbranch_scc0 L_pv")
        e("L_pvn:")
        for x in pvn: e(x)
        e("s_cbranch_scc0 L_qk"); e("s_branch L_sp")
        for x in self.R0: e(x)
        e("L_tail:")
        for x in tail: e(x)
        if P.STAMP:
            e("s_waitcnt vmcnt(0)")
            for x in self.stamp(63): e(x)
            e(f"v_writelane_b32 v{STR}, s{sST+4}, 0"); e(f"v_writelane_b32 v{STC}, s{sST+6}, 0")
            e(f"s_lshl_b32 s{sT0}, s2, 2"); e(f"s_add_u32 s{sT0}, s{sT0}, s{sW}"); e(f"s_lshl_b32 s{sT0}, s{sT0}, 9")
            e(f"s_add_u32 s{sT0}, s{sT0}, {STAMP_OFF}")
            e(f"s_add_u32 s{sWS}, s72, s{sT0}"); e(f"s_addc_u32 s{sWS+1}, s73, 0"); e(f"s_mov_b32 s{sWS+2}, 512")
            e("v_mbcnt_lo_u32_b32 v20, -1, 0"); e("v_mbcnt_hi_u32_b32 v20, -1, v20"); e("v_lshlrev_b32 v20, 2, v20")
            e(f"buffer_store_dword v{STR}, v20, {srd(sWS)}, 0 offen"); e(f"buffer_store_dword v{STC}, v20, {srd(sWS)}, 0 offen offset:256")
        e("L_attn_end:")
        e("s_endpgm")
        e("L_code_end:")
        self.resc_subs()
        for x in self.R: e(x)
        self.R = []
        assert not self.sites
        probs = []
        br = ["s_cbranch_scc0 L_x"]
        paths = {"head+qk": head + qk, "pv+tail": pv + br + tail, "pvn+tail": pvn + br + tail}
        for a, A in (("qk", qk), ("qkn", qkn)):
            for b, B in (("pv", pv), ("pvn", pvn)):
                paths[a + b] = A + br + B; paths[b + a] = B + br + A
        for nm, p in paths.items(): probs += check_hazards(p, nm)
        return probs

    def reduce_kernel(self):
        e = self.e
        e(".globl reduce_kernel"); e(".p2align 8"); e(".type reduce_kernel,@function"); e("reduce_kernel:")
        p0 = len(self.L)
        e("s_cmp_ge_u32 s2, 256"); e("s_cbranch_scc1 L_red_end")
        e("s_load_dwordx2 s[4:5], s[0:1], 80"); e("s_load_dwordx2 s[6:7], s[0:1], 96")
        if P.STAMP: e("s_memrealtime s[40:41]")
        e("v_lshrrev_b32 v1, 6, v0"); e("v_and_b32 v0, 63, v0"); e("v_lshlrev_b32 v2, 4, v0")
        e("v_readfirstlane_b32 s18, v1")
        e("s_and_b32 s16, s2, 15"); e("s_lshr_b32 s17, s2, 4")
        e(f"s_mul_i32 s17, s17, {P.RW}"); e("s_add_u32 s17, s17, s18")
        e("s_cmp_ge_u32 s17, 140"); e("s_cbranch_scc1 L_red_end")
        e(f"s_mul_i32 s19, s16, {16*PART}"); e("s_lshl_b32 s20, s17, 10")
        e("s_mul_i32 s22, s17, 3277"); e("s_lshr_b32 s22, s22, 16"); e("s_mul_i32 s23, s22, 20"); e("s_sub_u32 s23, s17, s23")
        e("s_lshr_b32 s23, s23, 1"); e("s_and_b32 s24, s17, 1")
        e("s_lshl_b32 s21, s23, 6"); e("s_add_u32 s21, s21, 143360")
        e("v_and_b32 v3, 15, v0"); e("v_lshlrev_b32 v4, 2, v3")
        e("s_waitcnt lgkmcnt(0)")
        e("s_add_u32 s8, s6, s19"); e("s_addc_u32 s9, s7, 0"); e(f"s_mov_b32 s10, {16*PART}"); e("s_mov_b32 s11, 0x20000")
        for h in range(16):
            e(f"buffer_load_dwordx4 {vr(32+4*h)}, v2, s[8:11], s20 offen{P.RDMOD}")
            e(f"buffer_load_dword v{16+h}, v4, s[8:11], s21 offen{P.RDMOD}")
            if h < 15: e(f"s_add_u32 s20, s20, {PART}"); e(f"s_add_u32 s21, s21, {PART}")
        e("s_and_b32 s25, s16, 7"); e("s_lshr_b32 s26, s16, 3")
        e("s_mul_i32 s25, s25, 10"); e("s_add_u32 s25, s25, s23"); e(f"s_mul_i32 s25, s25, {16*1792}")
        e("s_mul_i32 s26, s26, 896"); e("s_add_u32 s25, s25, s26")
        e("s_lshl_b32 s22, s22, 7"); e("s_add_u32 s25, s25, s22"); e("s_lshl_b32 s24, s24, 5"); e("s_add_u32 s25, s25, s24")
        e("v_mul_u32_u24 v3, 1792, v3"); e("v_bfe_u32 v5, v0, 4, 1"); e("v_lshl_add_u32 v3, v5, 6, v3")
        e("v_lshrrev_b32 v5, 5, v0"); e("v_lshl_add_u32 v3, v5, 4, v3")
        e("s_mov_b32 s12, s4"); e("s_mov_b32 s13, s5"); e(f"s_mov_b32 s14, {8*160*1792}"); e("s_mov_b32 s15, 0x20000")
        e("s_mov_b32 s27, 0xffff0000")
        for h in range(16):
            e(f"s_waitcnt vmcnt({2*(15-h)})")
            for d in range(4):
                r = 32 + 4 * h + d
                e(f"v_lshlrev_b32 v{4+(d&1)*2}, 16, v{r}"); e(f"v_and_b32 v{5+(d&1)*2}, s27, v{r}")
                for k in range(2):
                    if h == 0: e(f"v_mul_f32 v{8+2*d+k}, v{4+(d&1)*2+k}, v{16+h}")
                    else: e(f"v_fmac_f32 v{8+2*d+k}, v{4+(d&1)*2+k}, v{16+h}")
        for d in range(4): e(f"v_cvt_pk_bf16_f32 v{32+d}, v{8+2*d}, v{9+2*d}")
        e("s_nop 1"); e("v_permlane16_swap_b32 v32, v34"); e("v_permlane16_swap_b32 v33, v35")
        e(f"buffer_store_dwordx4 {vr(32)}, v3, s[12:15], s25 offen")
        if P.STAMP:
            e("s_waitcnt vmcnt(0)"); e("s_memrealtime s[42:43]"); e("s_waitcnt lgkmcnt(0)")
            e("s_mul_i32 s20, s16, 140"); e("s_add_u32 s20, s20, s17"); e("s_lshl_b32 s20, s20, 3"); e(f"s_add_u32 s20, s20, {STAMP_OFF + 524288}")
            e("s_add_u32 s8, s6, s20"); e("s_addc_u32 s9, s7, 0"); e("s_mov_b32 s10, 8")
            e("v_mov_b32 v4, s40"); e("v_mov_b32 v5, s42"); e("v_mov_b32 v6, 0")
            e("buffer_store_dwordx2 v[4:5], v6, s[8:11], 0 offen")
        e("L_red_end:")
        e("s_endpgm")
        return check_hazards(self.L[p0:], "reduce")

def desc(name, vg, acc):
    return [f".amdhsa_kernel {name}", f"  .amdhsa_next_free_vgpr {vg}", "  .amdhsa_next_free_sgpr 102",
            f"  .amdhsa_accum_offset {acc}", "  .amdhsa_group_segment_fixed_size 0", "  .amdhsa_kernarg_size 104",
            "  .amdhsa_user_sgpr_count 2", "  .amdhsa_user_sgpr_kernarg_segment_ptr 1",
            "  .amdhsa_system_sgpr_workgroup_id_x 1", ".end_amdhsa_kernel"]

def build(path, verbose=True):
    g = Gen()
    ref = open(f"cdna_kernels/{NAME}.s.ref").read().splitlines()
    g.L += [l for l in ref if l.startswith(";") and "@launch" not in l]
    g.L += ["; @launch kernel=attn_kernel grid=(256,1,1) block=(256,1,1) lds=163840",
            f"; @launch kernel=reduce_kernel grid=(256,1,1) block=({64*P.RW},1,1) lds=98304",
            '.amdgcn_target "amdgcn-amd-amdhsa--gfx950"', ".text"]
    probs = g.attn_kernel()
    probs += g.reduce_kernel()
    g.L += ['.section .rodata,"a"', ".p2align 6"] + desc("attn_kernel", 512, 256) + [".p2align 6"] + desc("reduce_kernel", 96, 96)
    open(path, "w").write("\n".join(g.L) + "\n")
    seen = set()
    for p in probs:
        k = p.split("]", 1)[1]
        if k not in seen: print(p); seen.add(k)
    if verbose:
        for k, (v, added) in g.sec.items():
            ins = [Ins(x) for x in v]
            nm = sum(1 for i in ins if i.kind == "mfma")
            print(f"{k}: instr {sum(1 for i in ins if i.states)} mfma {nm} ({nm*16} cyc) est {est_cycles(v)} nops {added} waits {sum(1 for i in ins if i.mn=='s_waitcnt')}")
    return g

if __name__ == "__main__":
    out = sys.argv[1] if len(sys.argv) > 1 else "k3.s"
    for kv in sys.argv[2:]:
        k, v = kv.split("=", 1)
        setattr(P, k, eval(v))
    build(out)
```

```python
import sys, math, struct
from asmlib import Ins, check_hazards, autowait, fix_hazards
from sched3 import Sch, cost, est_cycles

NAME = "concat_heads__mha_block_cached__mha_block_cached__near_ridge"
MF = "v_mfma_f32_16x16x32_bf16"
def f2u(x): return struct.unpack("<I", struct.pack("<f", x))[0]
def vr(b, n=4): return f"v[{b}:{b+n-1}]"
def ar(b, n=4): return f"a[{b}:{b+n-1}]"
def srd(b): return f"s[{b}:{b+3}]"
def u32(x): return hex(x & 0xffffffff)

class P:
    STAMP = False
    BB = 12
    NPK = 8
    NPV = 6
    SKIP = [8, 15]
    DQ = [0, 3, 6, 9, 12, 15, 18, 21]
    DP = [48, 51, 54, 57, 60, 63, 66, 69]
    KVNT = " nt"
    STMOD = " sc1"
    RDMOD = ""
    THR = 10.0
    HQ = [("c2", 0, 2), ("K0", 40, 2), ("c3", 130, 3), ("c4", 190, 3), ("V0", 250, 2), ("c5", 350, 3), ("c6", 400, 3),
          ("K1", 445, 3), ("V1", 500, 4), ("K2", 565, 4), ("V2", 640, 6)]
    CW2 = True
    ROT = True
    RW = 9
    KVINC = 32768
    INRED = True
    LV = [(0, 3), (3, 3), (6, 3), (9, 2), (11, 2), (13, 1)]
    SPIN = 20000
    SLEEP = 0
    FS = {3: 4, 2: 6, 1: 8}
    WNT = ""
    TCH = []
    STRIP = []
    NODMA = False

def OM(s, j): return 64 * s + 4 * j
def QM(s, i): return 128 + 32 * s + 4 * i
SB = 192
TL = {"b0": (0, 1, 2), "b1": (0, 1, 2), "a0": (0, 1), "a1": (0, 1)}
TB = {"b0": 0, "b1": 3, "a0": 6, "a1": 8}
def S(t, s): return SB + 4 * (TB[t] + s)
def PR(h, s): return S(h + "0", s)
def CI(s): return 232 + 4 * s
KA, VA, VO = 244, 245, 247
T0, T1, T2 = 251, 252, 253
STR, STC = 254, 255
def FB(k): return 4 * (k % 16)
def OX(j): return 64 + 4 * j
def QX(i): return 128 + 4 * i
def LS(s): return 160 + 4 * s
ONES = 172
STG = 176
def SLOT(n): return (n % 5) * 32768
sA, sB_, sX, sWQ, sWS = 8, 12, 16, 20, 24
sW, sW8K = 28, 29
sRET = 30
sTH, sH, sPH, sNH, sD, sHS = 32, 33, 34, 35, 36, 37
sMSP, sMWR, sMWD, sML2, sML3 = 38, 39, 40, 41, 42
sDP, sDN = 43, 44
sOA, sOB = 45, 46
sT0, sT1, sT2, sT3 = 47, 48, 49, 50
sBLK, sBt, sHd, sC, sSC, sHI = 51, 52, 53, 54, 55, 56
sCW, sCX = 57, 58
sWO = 60
sF = 62
sM0 = 63
sPT = 64
sCO = 64
sCS = 74
sST = 84
PART = 144384
MBOX = 143360 + 768
STAMP_OFF = 48 << 20

def vmpass(lines, q):
    out = []; done = -1
    for l in lines:
        if l.startswith("@vmw"):
            p = l.split(None, 2)
            idx = max(k for k, t in enumerate(q) if t == p[1])
            n = min(63, len(q) - 1 - idx)
            if idx <= done:
                if len(p) > 2: out.append("s_waitcnt " + p[2])
                continue
            done = idx
            out.append(f"s_waitcnt vmcnt({n})" + (" " + p[2] if len(p) > 2 else ""))
            continue
        if l.startswith("buffer_"):
            q.append(l.split("@t:")[1].strip() if "@t:" in l else None)
            l = l.split(";")[0].strip()
        out.append(l)
    return out

class Gen:
    def __init__(self):
        self.L = []; self.R = []; self.R0 = []; self.uid = 0; self.sec = {}; self.sites = {}
    def e(self, s): self.L.append(s)
    def lab(self, p):
        self.uid += 1; return f"L{p}_{self.uid}"
    def stamp(self, k):
        if not P.STAMP: return []
        if k == "start": return [f"s_memrealtime s[{sST+4}:{sST+5}]", f"s_memtime s[{sST+6}:{sST+7}]"]
        o = ["s_waitcnt lgkmcnt(0)", f"s_memrealtime s[{sST}:{sST+1}]", f"s_memtime s[{sST+2}:{sST+3}]", "s_waitcnt lgkmcnt(0)"]
        if P.STAMP == 2 and (k == "loop" or k in (5, 6, 7, 8, 9, 43, 44, 46, 47)): return []
        if k == "loop":
            return o + [f"s_mov_b32 s{sM0}, m0", f"s_add_u32 m0, s{sHS}, 11", "s_nop 0", f"v_writelane_b32 v{STR}, s{sST}, m0",
                        f"v_writelane_b32 v{STC}, s{sST+2}, m0", f"s_mov_b32 m0, s{sM0}"]
        return o + [f"v_writelane_b32 v{STR}, s{sST}, {k}", f"v_writelane_b32 v{STC}, s{sST+2}, {k}"]

    def rowmax(self, r, t0=T0, t1=T1):
        return [f"v_max3_f32 v{t0}, v{r}, v{r+1}, v{r+2}", f"v_max_f32 v{t0}, v{t0}, v{r+3}", f"v_mov_b32 v{t1}, v{t0}",
                f"v_permlane32_swap_b32 v{t0}, v{t1}", f"v_max_f32 v{t0}, v{t0}, v{t1}", f"v_mov_b32 v{t1}, v{t0}",
                f"v_permlane16_swap_b32 v{t0}, v{t1}", f"v_max_f32 v{t0}, v{t0}, v{t1}"]
    def softmax(self, t, done, init=(), add=False, first=False, subs=None):
        subs = list(subs or TL[t])
        it = []
        for s in init:
            c = CI(s)
            it += [[x] for x in self.rowmax(S(t, s), c + 1, c + 2)]
            it += [[f"v_ceil_f32 v{c+1}, v{c+1}"], [f"v_sub_f32 v{c}, 0, v{c+1}"]]
        regs = [S(t, s) + k for s in subs for k in range(4)]
        if add:
            for s in subs:
                for k in range(4): it.append([f"v_add_f32 v{S(t,s)+k}, v{S(t,s)+k}, v{CI(s)}"])
        for s in init:
            for k in range(1, 4): it.append([f"v_mov_b32 v{CI(s)+k}, v{CI(s)}"])
        chk = [S(t, s) + k for s in subs if s not in init for k in range(4)]
        if chk:
            it.append([f"v_max3_f32 v{T0}, v{chk[0]}, v{chk[1]}, v{chk[2]}"])
            k = 3
            while k + 1 < len(chk):
                it.append([f"v_max3_f32 v{T0}, v{T0}, v{chk[k]}, v{chk[k+1]}"]); k += 2
            it.append([f"v_max_f32 v{T0}, v{T0}, v{chk[k]}"])
            fb, ret = self.lab("fb"), self.lab("fr")
            it.append([f"v_cmp_lt_f32 vcc, s{sTH}, v{T0}"])
            it.append([f"s_cbranch_vccnz {fb}", f"{ret}:"])
            self.sites[fb] = dict(t=t, subs=[s for s in subs if s not in init], done=list(done), ret=ret, first=first)
        h, o = t[0], 2 * int(t[1])
        pend = []
        for s in subs:
            for k in range(4):
                it.append([f"v_exp_f32 v{S(t,s)+k}, v{S(t,s)+k}"])
                if pend: it.append(pend.pop(0))
                if k % 2 == 1:
                    pend.append([f"v_cvt_pk_bf16_f32 v{PR(h,s)+o+k//2}, v{S(t,s)+k-1}, v{S(t,s)+k}"])
        it += pend
        return it

    def emit_fallbacks(self, lines, started0=(), pv0=True):
        started = set(started0); pv = pv0
        cmap = {f"{MF} {vr(S(t,s))}": (t, s) for t in TL for s in TL[t]}
        for l in lines:
            if l.startswith(MF):
                key = l.split(",")[0]
                if key in cmap:
                    t, s = cmap[key]
                    if l.strip().endswith(vr(CI(s))):
                        if t == "b0" and s == 0: started = set()
                        started.add((t, s))
                if any(l.split(",")[2].strip() == vr(PR(h, s)) for h in "ab" for s in TL[h + "0"]): pv = True
            if l.startswith("s_cbranch_vccnz"):
                fb = l.split()[1]; d = self.sites.pop(fb)
                R = ["s_nop 7", "s_nop 3"]
                order = list(TL)
                for s in d["subs"]:
                    R += self.rowmax(S(d["t"], s)) + [f"v_max_f32 v{T0}, 0, v{T0}", f"v_ceil_f32 v{T0}, v{T0}"]
                    tl = [d["t"]] + [t for (t, s2) in sorted(started) if s2 == s and t != d["t"] and t not in d["done"]]
                    for t in tl:
                        for k in range(4): R.append(f"v_sub_f32 v{S(t,s)+k}, v{S(t,s)+k}, v{T0}")
                    for k in range(4): R.append(f"v_sub_f32 v{CI(s)+k}, v{CI(s)+k}, v{T0}")
                    R += [f"v_exp_f32 v{T1}, -v{T0}", "s_nop 0"]
                    for t in d["done"]:
                        if s not in TL[t]: continue
                        for k in range(2):
                            r = PR(t[0], s) + 2 * int(t[1]) + k
                            R += [f"v_lshlrev_b32 v{T0}, 16, v{r}", f"v_and_b32 v{T2}, s{sHI}, v{r}", f"v_mul_f32 v{T0}, v{T0}, v{T1}",
                                  f"v_mul_f32 v{T2}, v{T2}, v{T1}", f"v_cvt_pk_bf16_f32 v{r}, v{T0}, v{T2}"]
                    if pv: R.append(f"s_call_b64 s[{sRET}:{sRET+1}], L_resc{s}")
                R, _ = fix_hazards(R)
                self.R += [f"{fb}:"] + R + ["s_nop 1", f"s_branch {d['ret']}"]
    def resc_subs(self):
        for s in range(3):
            R = [f"L_resc{s}:"]
            accs = [LS(s) + k for k in range(4)]
            if s < 2:
                for k in range(64): R.append(f"v_mul_f32 v{OM(s,0)+k}, v{OM(s,0)+k}, v{T1}")
            else: accs += [OX(0) + k for k in range(64)]
            for k in range(0, len(accs), 2):
                R += [f"v_accvgpr_read_b32 v{T0}, a{accs[k]}", f"v_accvgpr_read_b32 v{T2}, a{accs[k+1]}",
                      f"v_mul_f32 v{T0}, v{T0}, v{T1}", f"v_mul_f32 v{T2}, v{T2}, v{T1}",
                      f"v_accvgpr_write_b32 a{accs[k]}, v{T0}", f"v_accvgpr_write_b32 a{accs[k+1]}, v{T2}"]
            R.append(f"s_setpc_b64 s[{sRET}:{sRET+1}]")
            self.R += R

    def krd(self, k, kt, i): return [f"ds_read_b128 {ar(FB(k))}, v{KA} offset:{kt*2048 + (i>>2)*1024 + (i&3)*256}"]
    def trd(self, k, reg, j, base=0):
        off = base + (j >> 3) * 1024 + ((j >> 1) & 3) * 256
        return [f"ds_read_b64_tr_b16 {ar(FB(k),2)}, v{reg+(j&1)} offset:{off}",
                f"ds_read_b64_tr_b16 {ar(FB(k)+2,2)}, v{reg+(j&1)} offset:{off+2048}"]
    def kseq(self, first=False):
        if first: return [("a", kt, i) for i in range(8) for kt in range(2)] + [("b", kt, i) for kt in range(2) for i in range(8)]
        return [(h, kt, i) for h in "ba" for kt in range(2) for i in range(8)]
    def vseq(self, first=False): return [(h, j) for h in ("ab" if first else "ba") for j in range(16)]
    def kfrags(self, sc, tag, rel, due, d0, first=False, n=32, use=None):
        for k, (h, kt, i) in enumerate(self.kseq(first)[:n]):
            pre = []
            if k == 0 and d0: pre = [f"v_add_u32 v{KA}, {d0}, v{KA}"]
            if k == 16: pre = [f"v_subrev_u32 v{KA}, s{sH}, v{KA}" if first else f"v_add_u32 v{KA}, s{sH}, v{KA}"]
            sc.add_frag((tag, k), k % 16, self.krd(k, kt, i), pre, rel, due, use=None if use is None else use + 3 * k)
    def vfrags(self, sc, tag, rel, due, d0, first=False, n=32, use=None):
        for k, (h, j) in enumerate(self.vseq(first)[:n]):
            pre = []
            if k < 2 and d0: pre = [f"v_add_u32 v{VA+k}, {d0}, v{VA+k}"]
            if k in (16, 17): pre = [f"v_subrev_u32 v{VA+k-16}, s{sH}, v{VA+k-16}" if first else f"v_add_u32 v{VA+k-16}, s{sH}, v{VA+k-16}"]
            sc.add_frag((tag, k), k % 16, self.trd(k, VA, j), pre, rel, due, use=None if use is None else use + 3 * k)
    def kfifo(self): return [r for k, (h, kt, i) in enumerate(self.kseq()[:P.NPK]) for r in self.krd(k, kt, i)]
    def vfifo(self): return [r for k, (h, j) in enumerate(self.vseq()[:P.NPV]) for r in self.trd(k, VA, j)]

    def qk_mfmas(self, sc, tag, first=False):
        end = {}; use = {}
        for k, (h, kt, i) in enumerate(self.kseq(first)):
            t = h + str(kt)
            for s in TL[t]:
                c = ("0" if first else vr(CI(s))) if i == 0 else vr(S(t, s))
                q = vr(QM(s, i)) if s < 2 else ar(QX(i))
                fr = [(tag, k)] + ([("qx", i)] if (first and s == 2) else [])
                end[t] = sc.m(f"{MF} {vr(S(t,s))}, {ar(FB(k))}, {q}, {c}", fr)
                use.setdefault((s, i), end[t])
        return end, use
    def pv_mfmas(self, sc, tag, first=False):
        start = {}; fin = {}
        for k, (h, j) in enumerate(self.vseq(first)):
            if j == 0:
                start[h] = sc.n()
                for s in TL[h + "0"]:
                    z = first and (h == "a" or s == 2)
                    fin[("l", s)] = sc.m(f"{MF} {ar(LS(s))}, {ar(ONES)}, {vr(PR(h,s))}, {'0' if z else ar(LS(s))}")
            for s in TL[h + "0"]:
                o = vr(OM(s, j)) if s < 2 else ar(OX(j))
                z = first and (h == "a" or s == 2)
                fin[(s, j)] = sc.m(f"{MF} {o}, {ar(FB(k))}, {vr(PR(h,s))}, {'0' if z else o}", [(tag, k)])
        return start, fin

    def kv_loop_items(self, sr, so):
        ld = lambda g, u: f"buffer_load_dwordx4 v{VO+2*g+(u&1)}, {srd(sr)}, s{so} offen offset:{u*1024}{P.KVNT} lds"
        it = [[f"s_bitcmp1_b32 s{sMWD}, s{sHS}", f"s_cselect_b32 s{sT0}, s{sDN}, s{sDP}"]]
        it.append([f"s_add_u32 m0, m0, s{sT0}"])
        for u in range(4): it.append([ld(0, u)])
        it.append([f"s_add_u32 m0, m0, 4096"])
        for u in range(4): it.append([ld(1, u)])
        it.append([f"s_add_u32 s{so}, s{so}, {P.KVINC}"])
        if P.NODMA: it = [[x.replace("buffer_load_dwordx4", "buffer_nop") for x in i] for i in it]
        return it
    def place_dma(self, sc, it, pos):
        k = 0; pend = []; prev = max(-1, pos[0] - 2)
        for x in it:
            if x[0].startswith("buffer"):
                for j, y in enumerate(pend): sc.fix(max(prev, pos[k] - len(pend) + j), y)
                pend = []
                sc.fix(pos[k], x); prev = pos[k]; k += 1
            else: pend.append(x)
        for y in pend: sc.fix(pos[-1] + 1, y)
    def swap_items(self):
        it = []
        for a, b in ((sA, sB_), (sA + 1, sB_ + 1), (sOA, sOB)):
            it += [[f"s_mov_b32 s{sT0}, s{a}", f"s_mov_b32 s{a}, s{b}"], [f"s_mov_b32 s{b}, s{sT0}"]]
        return it
    def loop_bar(self, nm):
        w = self.lab("w"); r = self.lab("wr"); w3 = self.lab("w3")
        self.R0 += [f"{w}:", f"s_bitcmp1_b32 s{sML3}, s{sHS}", f"s_cbranch_scc1 {w3}", "s_waitcnt vmcnt(24) lgkmcnt(0)", f"s_branch {r}",
                   f"{w3}:", "s_waitcnt vmcnt(16) lgkmcnt(0)", f"s_branch {r}"]
        return [f"s_bitcmp1_b32 s{sML2}, s{sHS}", f"s_cbranch_scc0 {w}", "s_waitcnt vmcnt(8) lgkmcnt(0)", f"{r}:", "s_barrier"] + self.stamp("loop")
    def dsel(self): return [f"s_bitcmp1_b32 s{sMWR}, s{sHS}", f"s_cselect_b32 s{sD}, s{sNH}, s{sPH}"]
    def code_touch(self, sr, vt, first):
        lb = self.lab("cw")
        return [[f"s_getpc_b64 s[{sr}:{sr+1}]", f"{lb}:"], [f"s_mov_b32 s{sr+2}, L_code_end-{lb}"], [f"s_mov_b32 s{sr+3}, 0x20000"],
                [f"v_mbcnt_lo_u32_b32 v{vt}, -1, 0"], [f"v_mbcnt_hi_u32_b32 v{vt}, -1, v{vt}"], [f"v_lshlrev_b32 v{vt}, 14, v{vt}"],
                [f"s_lshr_b32 s{sT1}, s2, 3"], [f"s_lshl_b32 s{sT1}, s{sT1}, 9"]]
    def finish(self, L, fifo0, fifo1, name, vmq=None, pre=()):
        if vmq is not None: L = vmpass(L, vmq)
        L, fifo, _ = autowait(L, fifo0, look=False)
        L, added = fix_hazards(L, pre)
        if fifo1 is not None:
            ds = []
            for l in L:
                if "lgkmcnt(0)" in l: ds = []
                elif l.startswith("ds_"): ds.append(l)
            itr = iter(ds)
            assert all(x in itr for x in fifo1), (name, ds, fifo1)
        L = [l for l in L if not l.startswith("buffer_nop")]
        if name[:2] in ("qk", "pv"):
            for pat in P.STRIP: L = [l for l in L if not l.startswith(pat)]
        self.sec[name] = (L, added)
        return L

    def qk_body(self, dma):
        sc = Sch()
        self.kfrags(sc, "k", None, "B", None); sc.init = [("k", k) for k in range(P.NPK)]
        end, _ = self.qk_mfmas(sc, "k")
        n = sc.n(); bg = n - 1 - P.BB
        self.vfrags(sc, "v", "B", None, f"s{sD}", n=P.NPV, use=n + 3)
        sc.bar("B", bg, self.loop_bar("qk"))
        sc.fix(24, self.dsel())
        if dma: self.place_dma(sc, self.kv_loop_items(sA, sOA), P.DQ)
        else: sc.chain(0, 20, self.swap_items() + self.cw2())
        a = self.softmax("b0", []); b = self.softmax("b1", ["b0"])
        sc.chain(end["b0"] + 2, n - 2, a + b, rels=[0] * len(a) + [end["b1"] + 2] * len(b))
        sc.fix(n - 1, [f"s_add_u32 s{sHS}, s{sHS}, 1", f"s_bitcmp1_b32 s{sMSP}, s{sHS}"])
        L = self.finish(sc.run(), self.kfifo(), self.vfifo(), "qk" + ("" if dma else "_n"))
        self.emit_fallbacks(L)
        return L
    def cw2(self):
        if not P.CW2: return []
        it = self.code_touch(sX, T2, False)
        it.append([f"s_lshl_b32 s{sT2}, s{sW}, 7"]); it.append([f"s_add_u32 s{sT1}, s{sT1}, s{sT2}"]); it.append([f"v_add_u32 v{T2}, s{sT1}, v{T2}"])
        it.append([f"buffer_load_dword a{STG}, v{T2}, {srd(sX)}, 0 offen"])
        return it
    ALLST = [(t, s) for t in TL for s in TL[t]]
    def pv_body(self, dma):
        sc = Sch()
        self.vfrags(sc, "v", None, "B", None); sc.init = [("v", k) for k in range(P.NPV)]
        start, _ = self.pv_mfmas(sc, "v")
        n = sc.n(); bg = n - 1 - P.BB
        self.kfrags(sc, "k", "B", None, f"s{sD}", n=P.NPK, use=n)
        sc.bar("B", bg, self.loop_bar("pv"))
        sc.fix(bg - 2, self.dsel())
        if dma: self.place_dma(sc, self.kv_loop_items(sB_, sOB), P.DP)
        else: sc.chain(start["a"], bg - 3, self.swap_items() + self.cw2())
        a = self.softmax("a0", ["b0", "b1"]); b = self.softmax("a1", ["b0", "b1", "a0"])
        sc.chain(-1, start["a"] - 2, a + b, rels=[-1] * len(a) + [1] * len(b))
        sc.fix(n - 1, [f"s_add_u32 s{sHS}, s{sHS}, 1", f"s_bitcmp1_b32 s{sMSP}, s{sHS}"])
        L = self.finish(sc.run(), self.vfifo(), self.kfifo(), "pv" + ("" if dma else "_n"))
        self.emit_fallbacks(L, self.ALLST)
        return L

    HW, HX = 128, 136
    WA, XA, X5A = 232, 236, 238
    FL = 243
    def w_items(self, c):
        slot = [SLOT(1), SLOT(2), SLOT(0)][c % 3]
        it = []
        for g in range(2):
            it.append([f"s_add_u32 m0, s{sW8K}, {slot + g*4096}"])
            for u in range(4):
                it.append([f"buffer_load_dwordx4 v{self.HW+4*g+u}, {srd(sWQ)}, s{sCW} offen offset:{u*1024}{P.WNT} lds ; @t:c{c}"])
        it.append([f"s_add_u32 s{sCW}, s{sCW}, 0x80000", f"s_cmp_eq_u32 s{sCW}, 0x380000"]); it[-1].append(f"s_cselect_b32 s{sCW}, 0, s{sCW}")
        return it
    XM = [SLOT(4), SLOT(3), SLOT(3) + 16384]
    def x_items(self, c):
        it = [[f"s_add_u32 m0, s{sT2}, {self.XM[c % 3]}"]]
        for k in range(4): it.append([f"buffer_load_dwordx4 v{self.HX+k}, {srd(sX)}, s{sCX} offen offset:{k*1024}{P.WNT} lds ; @t:c{c}"])
        it.append([f"s_add_u32 m0, s{sT3}, {SLOT(4) + 16384 + 4096*(c % 3)}"])
        it.append([f"buffer_load_dwordx4 v{self.HX+4}, {srd(sX)}, s{sCX} offen{P.WNT} lds ; @t:c{c}"])
        it.append([f"s_add_u32 s{sCX}, s{sCX}, 128", f"s_cmp_eq_u32 s{sCX}, 896", f"s_cselect_b32 s{sCX}, 0, s{sCX}"])
        return it
    def kv_head_items(self, n):
        sr, so = (sA, sOA) if n % 2 == 0 else (sB_, sOB)
        tag = "KV"[n % 2] + str(n // 2)
        it = []
        for g in range(2):
            if n >= 2: it.append([f"s_add_u32 m0, s{sW8K}, {SLOT(n) + g*4096}"])
            for u in range(4):
                dst = f"{ar(STG+32*n+16*g+4*u)}, " if n < 2 else ""
                it.append([f"buffer_load_dwordx4 {dst}v{VO+2*g+(u&1)}, {srd(sr)}, s{so} offen offset:{u*1024}{P.KVNT}{'' if n < 2 else ' lds'} ; @t:{tag}"])
        it.append([f"s_add_u32 s{so}, s{so}, 32768"])
        return it

    TV = 141
    def touch(self, n):
        return [f"s_mov_b32 s{sT1}, {(n//2)*32768}", f"buffer_load_dword a{STG+65}, v{self.TV}, {srd(sA if n % 2 == 0 else sB_)}, s{sT1} offen offset:768 nt"]
    def head_sched(self):
        sc = Sch()
        FL, EXO, EXP = self.FL, T0, T1
        XF = lambda c, ks, s: 64 + 24 * (c % 2) + 12 * ks + 4 * s
        QXA = lambda i: SB + 4 * ((i + 6) % 8)
        fk = 0; done = {}
        for c in range(7):
            rel = f"p{c}" if c else None; due = f"p{c+1}"
            wreg, wb = (self.WA, [SLOT(1), 0, SLOT(0)][c % 3]) if c % 3 != 1 else (self.WA + 2, 0)
            for ks in range(2):
                for s in range(3):
                    a = f"v{self.XA+ks} offset:{self.XM[c%3] - SLOT(3) + 2048*s}" if s < 2 else f"v{self.X5A+ks} offset:{4096*(c%3)}"
                    sc.add_frag(("x", c, ks, s), ("x", c % 2, ks, s), [f"ds_read_b128 {ar(XF(c,ks,s))}, {a}"], rel=rel, due=due, q="x")
            seq = [(ks, j) for ks in range(2) for j in range(16)] if c < 6 else [(ks, j) for j in range(16) for ks in range(2)]
            for (ks, j) in seq:
                f = ("w", c, ks, j)
                sc.add_frag(f, fk % 16, self.trd(fk, wreg, j, wb + ks * 4096), rel=rel, due=due)
                z = c == 0 and ks == 0
                for s in range(3 if j % 2 == 0 else 2):
                    o = vr(OM(s, j)) if s < 2 else vr(QXA(j // 2))
                    done[j] = sc.m(f"{MF} {o}, {ar(FB(fk))}, {ar(XF(c,ks,s))}, {'0' if z else o}", [f, ("x", c, ks, s)])
                fk += 1
            lines = [f"@vmw c{c+1} lgkmcnt(0)" if c < 6 else "s_waitcnt lgkmcnt(0)", "s_barrier"] + self.stamp(4 + c)
            sc.bar(due, sc.n() - 1 - P.BB, lines)
        nq = sc.n(); p6 = nq - 80 - 1 - P.BB; p7 = nq - 1 - P.BB
        self.kfrags(sc, "k0", "p7", "B0", None, first=True)
        for i in range(8):
            sc.add_frag(("qx", i), ("qx", i), [f"ds_read_b128 {ar(QX(i))}, v{FL} offset:{SLOT(1) + i*1024}"], rel="BX", q="qx")
        end, use = self.qk_mfmas(sc, "k0", True)
        n0 = sc.n(); b0 = n0 - 1 - P.BB
        sc.bar("B0", b0, ["s_waitcnt lgkmcnt(0)", "s_barrier"] + self.stamp(11))
        self.vfrags(sc, "v0", "B0", "B1", None, first=True)
        start, _ = self.pv_mfmas(sc, "v0", True)
        n1 = sc.n(); b1 = n1 - 1 - P.BB
        sc.bar("B1", b1, ["@vmw K1 lgkmcnt(0)", "s_barrier"] + self.stamp(12))
        self.kfrags(sc, "k1", "B1", None, "0x10000", n=P.NPK, use=n1)
        mul = lambda r: [f"v_mul_f32 v{r}, s{sSC}, v{r}"]
        xl = []; xr = []
        for i in range(8):
            it = []
            for s in range(2):
                r = OM(s, 2 * i); q = QM(s, i)
                it += [mul(r + k) for k in range(8)]
                if s == 1: it += [[f"v_permlane16_swap_b32 v{QM(0,i)+k}, v{QM(0,i)+2+k}"] for k in range(2)]
                it += [[f"v_cvt_pk_bf16_f32 v{q+k}, v{r+2*k}, v{r+2*k+1}"] for k in (0, 2, 1, 3)]
            it += [[f"v_permlane16_swap_b32 v{QM(1,i)+k}, v{QM(1,i)+2+k}"] for k in range(2)]
            sc.chain(done[2 * i + 1] + 2, max(use[(0, i)] - 2, done[2 * i + 1] + 2), it, hard=2.5)
            r = QXA(i)
            x = [mul(r + k) for k in range(4)] + [[f"v_cvt_pk_bf16_f32 v{r+k}, v{r+2*k}, v{r+2*k+1}"] for k in range(2)]
            xl.append(x)
        wr = lambda i: [[f"ds_write_b64 v{EXO}, {vr(QXA(i),2)} offset:{i*1024}"], [f"ds_write_b64 v{EXP}, {vr(QXA(i),2)} offset:{i*1024}"]]
        bx = nq + 10
        def xch(seq, g1):
            it = []; rl = []
            for k, i in seq:
                x = xl[i] if k == "c" else wr(i)
                it += x; rl += [done[2 * i] + 2 if k == "c" else p7 + 1] * len(x)
            sc.chain(rl[0], g1, it, rels=rl, hard=2.5)
        xch([("c", 0), ("c", 1), ("w", 0), ("w", 1)], nq - 2)
        xch([("c", i) for i in range(2, 7)] + [("w", i) for i in range(2, 7)] + [("c", 7), ("w", 7)], bx)
        sc.bar("BX", bx + 1, ["@waitw", "s_barrier"], clears=False)
        fl = lambda n: [[f"ds_write_b128 v{FL}, {ar(STG+32*n+4*k)} offset:{SLOT(n) + k*1024}"] for k in range(8)]
        sc.chain(p6 + 10, p7 - 8, [["@vmw K0"]] + fl(0))
        sc.chain(use[(2, 7)], b0 - 4, [["@vmw V0"]] + fl(1))
        a0 = self.softmax("a0", [], init=(0, 1), add=True, first=True); a1 = self.softmax("a1", ["a0"], add=True, first=True)
        sc.chain(end["a1"] + 2, start["a"] - 2, a0 + a1)
        c0 = self.softmax("b0", ["a0", "a1"], init=(2,), add=True, first=True); c1 = self.softmax("b1", ["a0", "a1", "b0"], add=True, first=True)
        sc.chain(start["a"] - 1, start["b"] - 2, c0 + c1, rels=[0] * len(c0) + [end["b1"] + 2] * len(c1))
        free = {"c3": "p1", "c4": "p2", "c5": "p3", "c6": "p4", "K1": "p5", "V1": "p6", "K2": "p7", "V2": "B0"}
        bgap = {v[0]: g for g, v in sc.bars.items()}
        lastg = -10
        for (nm, g0, st) in P.HQ:
            if nm[0] == "c": it = self.w_items(int(nm[1])) + self.x_items(int(nm[1]))
            else: it = self.kv_head_items(2 * int(nm[1]) + (nm[0] == "V"))
            if nm in free: g0 = max(g0, bgap[free[nm]] + 2)
            g0 = max(g0, lastg + 3)
            nb = sum(1 for x in it if x[0].startswith("buffer"))
            pos = [g0 + k * st for k in range(nb)]
            self.place_dma(sc, it, pos); lastg = pos[-1]
            if nm[0] == "c": assert lastg < bgap[f"p{nm[1]}"], nm
        assert lastg < b1
        for (n, g) in P.TCH:
            if g >= 0: sc.fix(g, self.touch(n))
        sc.fix(n1 - 1, [f"v_add_u32 v{VA}, s{sH}, v{VA}", f"v_add_u32 v{VA+1}, s{sH}, v{VA+1}"])
        return sc.run()

    def tail_sched(self):
        sc = Sch()
        WAr = lambda st, np_, rd: 128 + 4 * st + 2 * np_ + rd
        SO, SP_, SX_, MA = 140, 141, 142, 143
        MB, LN, FO, FP = CI(0), CI(0) + 1, CI(0) + 2, CI(0) + 3
        TT = [CI(1) + k for k in range(4)]
        units = [144 + 8 * k for k in range(6)] + [SB + 8 * k for k in range(5)]
        RV = lambda i: OM(0, 2 * i + 1)
        BX = lambda i: OM(1, 2 * i + 1)
        self.kfrags(sc, "k", None, "B30", None); sc.init = [("k", k) for k in range(P.NPK)]
        end, _ = self.qk_mfmas(sc, "k")
        n0 = sc.n(); b0 = n0 - 1 - P.BB
        def wo_items(j, slot):
            it = []
            for g in range(2):
                it.append([f"s_add_u32 m0, s{sW8K}, {SLOT(slot) + g*4096}"] + ([f"s_add_u32 s{sT0}, s{sCO+j}, 28672"] if g else []))
                for u in range(4):
                    it.append([f"buffer_load_dwordx4 v{VO+u}, {srd(sA)}, s{sT0 if g else sCO+j} offen offset:{u*1024} lds ; @t:o{j}"])
            return it
        sw = [f"s_mul_i32 s{sT0}, s{sHd}, 229376", f"s_add_u32 s{sA}, s{sWO}, s{sT0}", f"s_addc_u32 s{sA+1}, s{sWO+1}, 0", f"s_mov_b32 s{sA+2}, 229376",
              f"v_mbcnt_lo_u32_b32 v{T2}, -1, 0", f"v_mbcnt_hi_u32_b32 v{T2}, -1, v{T2}",
              f"v_bfe_u32 v{VO}, v{T2}, 2, 3", f"v_mul_u32_u24 v{VO}, 896, v{VO}", f"v_lshrrev_b32 v{VO+1}, 5, v{T2}",
              f"v_lshl_add_u32 v{VO}, v{VO+1}, 6, v{VO}", f"v_lshrrev_b32 v{VO+1}, 3, v{T2}", f"v_and_b32 v{VO+1}, 2, v{VO+1}",
              f"v_and_b32 v{VO+2}, 3, v{T2}", f"v_xor_b32 v{VO+1}, v{VO+1}, v{VO+2}", f"v_lshl_add_u32 v{VO}, v{VO+1}, 4, v{VO}",
              f"s_mul_i32 s{sT0}, s{sW}, 57344", f"v_add_u32 v{VO}, s{sT0}, v{VO}"]
        sw += [f"v_add_u32 v{VO+u}, {6144*u}, v{VO}" for u in range(1, 4)]
        sw = [[x] for x in sw]
        sw[1:3] = [sw[1] + sw[2]]
        for j in range(7):
            if j == 0: sw.append([f"s_lshl_b32 s{sCO}, s{sC}, 7"])
            else: sw.append([f"s_add_u32 s{sCO+j}, s{sCO+j-1}, 128", f"s_cmp_eq_u32 s{sCO+j}, 896", f"s_cselect_b32 s{sCO+j}, 0, s{sCO+j}"])
            sw.append([f"s_mul_i32 s{sCS+j}, s{sCO+j}, 160"])
        sc.chain(0, 24, sw)
        a = self.softmax("b0", []); b = self.softmax("b1", ["b0"])
        sc.chain(end["b0"] + 2, n0 - 2, a + b, rels=[0] * len(a) + [end["b1"] + 2] * len(b))
        self.place_dma(sc, wo_items(0, 2), [b0 - 9 + k for k in range(8)])
        sc.bar("B30", b0, ["s_waitcnt vmcnt(8) lgkmcnt(0)", "s_barrier"] + self.stamp(41))
        self.vfrags(sc, "v", "B30", "B31", f"s{sNH}")
        start, fin = self.pv_mfmas(sc, "v")
        n1 = sc.n(); b1 = n1 - 1 - P.BB
        a = self.softmax("a0", ["b0", "b1"]); b = self.softmax("a1", ["b0", "b1", "a0"])
        sc.chain(n0 - 1, start["a"] - 2, a + b, rels=[0] * len(a) + [n0 + 1] * len(b))
        self.place_dma(sc, wo_items(1, 3), [n0 + 4 + 5 * k for k in range(8)])
        L_, G_, R_ = units[0], units[0] + 1, units[0] + 2
        su = [f"v_mbcnt_lo_u32_b32 v{L_}, -1, 0", f"v_mbcnt_hi_u32_b32 v{L_}, -1, v{L_}",
              f"v_lshrrev_b32 v{G_}, 5, v{L_}", f"v_bfe_u32 v{R_}, v{L_}, 2, 3", f"v_lshlrev_b32 v{R_}, 6, v{R_}",
              f"v_lshl_add_u32 v{G_}, v{G_}, 10, v{R_}", f"v_and_b32 v{R_}, 3, v{L_}", f"v_lshl_add_u32 v{G_}, v{R_}, 3, v{G_}",
              f"v_and_b32 v{R_}, 16, v{L_}", f"v_lshl_add_u32 v{G_}, v{R_}, 1, v{G_}",
              f"s_and_b32 s{sT1}, s{sW}, 1", f"s_mul_i32 s{sT2}, s{sT1}, 2080", f"v_xor_b32 v{WAr(0,0,0)}, s{sT2}, v{G_}",
              f"v_xor_b32 v{WAr(0,0,1)}, 2048, v{WAr(0,0,0)}", f"v_xor_b32 v{WAr(0,1,0)}, 32, v{WAr(0,0,0)}", f"v_xor_b32 v{WAr(0,1,1)}, 2080, v{WAr(0,0,0)}"]
        su += [f"v_add_u32 v{WAr(1,0,0)+k}, 0x10000, v{WAr(0,0,0)+k}" for k in range(4)]
        su += [f"v_lshlrev_b32 v{L_}, 4, v{L_}", f"s_xor_b32 s{sT2}, s{sW8K}, 8192", f"v_add_u32 v{MA}, s{sT2}, v{L_}",
               f"s_lshl_b32 s{sT2}, s{sW}, 12", f"s_lshl_b32 s{sT1}, s{sT1}, 10", f"s_add_u32 s{sT2}, s{sT2}, s{sT1}",
               f"v_add_u32 v{SO}, s{sT2}, v{L_}", f"v_xor_b32 v{SP_}, 1024, v{SO}",
               f"s_lshl_b32 s{sT2}, s{sW}, 10", f"s_add_u32 s{sT2}, s{sT2}, 16384", f"v_add_u32 v{SX_}, s{sT2}, v{L_}",
               f"v_add_u32 v{G_}, {SLOT(4)}, v{MA}"]
        sc.chain(n0 + 3, start["a"] - 1, [[x] for x in su])
        w = [[f"v_accvgpr_read_b32 v{CI(2)+1}, a{LS(2)}"], [f"ds_write_b64 v{G_}, {vr(CI(2),2)}"]]
        w += [[f"ds_write_b128 v{MA}, {ar(OX(2*i+1))} offset:{i*1024}"] for i in range(8)]
        sc.chain(start["a"] + 2, b1 - 6, w)
        sc.bar("B31", b1, ["@vmw o0 lgkmcnt(0)", "s_barrier"] + self.stamp(42))
        fk = [0]; ui = [0]; buse = {}
        def nunit():
            r = units[(ui[0] + 1) % len(units)]; ui[0] += 1; return r
        SLW = [2, 3, 1, 4, 0, 2, 3]
        def group(j, np_, subs, rel, due):
            sl = SLW[j]
            acc = {s: nunit() for s in subs}
            for hi in range(2):
                for i in range(8):
                    f = ("o", fk[0]); k = fk[0]; fk[0] += 1
                    off = (sl & 1) * 32768 + i * 4096 + hi * 512
                    sc.add_frag(f, k % 16, [f"ds_read_b64_tr_b16 {ar(FB(k)+2*rd,2)}, v{WAr(sl>>1,np_,rd)} offset:{off}" for rd in range(2)], rel=rel, due=due)
                    for s in subs:
                        o = vr(acc[s] + 4 * hi)
                        bop = vr(OM(s, 2 * i)) if s < 2 else vr(BX(i))
                        g = sc.m(f"{MF} {o}, {ar(FB(k))}, {bop}, {'0' if i == 0 else o}", [f] + ([("bx", i)] if s == 2 else []))
                        buse.setdefault((s, i), g)
            it = []
            for s in subs:
                r = acc[s]
                if s < 2 and P.INRED:
                    mu = lambda k: [[f"v_mul_f32 v{r+k}, v{r+k}, v{T0+s}"]]
                    cv = lambda k: [[f"v_cvt_pk_bf16_f32 v{r+k}, v{r+2*k}, v{r+2*k+1}"]]
                    it += mu(0) + mu(1) + mu(2) + mu(3) + cv(0) + mu(4) + mu(5) + cv(1) + mu(6) + mu(7) + cv(2) + cv(3)
                else: it += [[f"v_cvt_pk_bf16_f32 v{r+k}, v{r+2*k}, v{r+2*k+1}"] for k in range(4)]
                vo = SX_ if s == 2 else (SO if np_ == 0 else SP_)
                it.append([f"buffer_store_dwordx4 {vr(r)}, v{vo}, {srd(sWS)}, s{sCS+j} offen offset:{2048*s if s < 2 else 0}{P.STMOD}"])
            return g, it
        pend = []
        def G(j, np_, subs, rel, due):
            g0 = sc.n()
            g, it = group(j, np_, subs, rel, due)
            if pend: sc.chain(g0 + 1, g - 2, pend.pop())
            pend.append(it)
            return g
        g0 = sc.n()
        G(0, 0, (0, 1), "B31", "Bc"); ga = G(0, 1, (0, 1), "B31", "Bc")
        sc.bar("Ba", ga - P.BB, ["@vmw o1", "s_barrier"] + self.stamp(43), clears=P.STAMP==1)
        G(1, 0, (0, 1), "Ba", "Bc"); gb = G(1, 1, (0, 1), "Ba", "Bc")
        sc.bar("Bb", gb - P.BB, ["@waitw", "@vmw o2", "s_barrier"] + self.stamp(44), clears=P.STAMP==1)
        for i in range(8):
            sc.add_frag(("bx", i), ("bx", i), [f"ds_read_b64 {vr(BX(i)+2,2)}, v{MA} offset:{i*1024}"], rel="Bb", due="Bc", q="bx")
        G(2, 1, (0, 1), "Bb", None)
        G(0, 0, (2,), "Bb", "Bc"); gc = G(1, 0, (2,), "Bb", "Bc")
        sc.bar("Bc", gc - 4, ["@vmw o3 lgkmcnt(0)", "s_barrier"] + self.stamp(45))
        G(2, 0, (0, 1, 2), "Bb", None)
        G(3, 0, (0, 1, 2), "Bc", None); gd = G(3, 1, (0, 1), "Bc", None)
        sc.bar("Bd", gd - P.BB, ["@vmw o4", "s_barrier"] + self.stamp(46), clears=P.STAMP==1)
        G(4, 0, (0, 1, 2), "Bd", None); ge = G(4, 1, (0, 1), "Bd", None)
        sc.bar("Be", ge - P.BB, ["@vmw o6", "s_barrier"] + self.stamp(47), clears=P.STAMP==1)
        for j in (5, 6):
            G(j, 0, (0, 1, 2), "Be", None); G(j, 1, (0, 1), "Be", None)
        for i in range(8):
            it = []
            for s in range(2):
                r = OM(s, 2 * i)
                it += [[f"v_cvt_pk_bf16_f32 v{r+k}, v{r+2*k}, v{r+2*k+1}"] for k in range(4)]
            r0 = fin[(1, 2 * i + 1)] + 2
            sc.chain(r0, max(r0, buse[(0, i)] - 2), it, hard=2.5)
        gm = buse[(0, 7)]
        m = [[f"v_xor_b32 v{MB}, 8192, v{MA}"], [f"v_add_u32 v{LN}, {SLOT(4)}, v{MB}"], [f"ds_read_b64 {vr(TT[0],2)}, v{LN}"]]
        m += [[f"ds_read_b128 {vr(RV(i))}, v{MB} offset:{i*1024}"] for i in range(8)]
        m += [[f"v_add_u32 v{WAr(2,0,0)+k}, 0x20000, v{WAr(0,0,0)+k}"] for k in range(4)]
        if P.INRED:
            m = [[f"v_accvgpr_read_b32 v{T0}, a{LS(0)}"], [f"v_accvgpr_read_b32 v{T1}, a{LS(1)}"], [f"v_rcp_f32 v{T0}, v{T0}"], [f"v_rcp_f32 v{T1}, v{T1}"]] + m
            m += [[f"v_min_f32 v{T2}, v{CI(2)}, v{TT[0]}"], [f"v_sub_f32 v{FO}, v{T2}, v{CI(2)}"], [f"v_sub_f32 v{FP}, v{T2}, v{TT[0]}"],
                  [f"v_exp_f32 v{FO}, v{FO}"], [f"v_exp_f32 v{FP}, v{FP}"], [f"v_mul_f32 v{T2}, v{FO}, v{CI(2)+1}"], [f"v_fmac_f32 v{T2}, v{FP}, v{TT[1]}"],
                  [f"v_rcp_f32 v{T2}, v{T2}", "s_nop 0"], [f"v_mul_f32 v{FO}, v{FO}, v{T2}"], [f"v_mul_f32 v{FP}, v{FP}, v{T2}"]]
        else:
            m += [[f"v_min_f32 v{T0}, v{CI(2)}, v{TT[0]}"], [f"v_sub_f32 v{FO}, v{T0}, v{CI(2)}"], [f"v_sub_f32 v{FP}, v{T0}, v{TT[0]}"],
                  [f"v_exp_f32 v{FO}, v{FO}"], [f"v_exp_f32 v{FP}, v{FP}"], [f"v_accvgpr_read_b32 v{T0}, a{LS(0)}"],
                  [f"v_accvgpr_read_b32 v{T1}, a{LS(1)}"], [f"v_mul_f32 v{T2}, v{FO}, v{CI(2)+1}"], [f"v_fmac_f32 v{T2}, v{FP}, v{TT[1]}"],
                  [f"v_mov_b32_dpp v{T2}, v{T0} quad_perm:[0,1,2,3] row_mask:0x1 bank_mask:0xf"],
                  [f"v_mov_b32_dpp v{T2}, v{T1} quad_perm:[0,1,2,3] row_mask:0x2 bank_mask:0xf"],
                  [f"v_bfe_u32 v{T0}, v{MA}, 2, 7"], [f"s_lshl_b32 s{sT1}, s{sW}, 7"], [f"v_rcp_f32 v{T2}, v{T2}"],
                  [f"v_and_b32 v{T1}, 60, v{T0}"], [f"v_add_u32 v{T0}, s{sT1}, v{T0}"], [f"s_lshr_b32 s{sT1}, s{sW}, 1"],
                  [f"s_lshl_b32 s{sT1}, s{sT1}, 6"], [f"s_add_u32 s{sT1}, s{sT1}, 512"], [f"v_add_u32 v{T1}, s{sT1}, v{T1}"],
                  [f"s_mov_b32 s{sT1}, 143360"],
                  [f"v_mov_b32_dpp v{T0}, v{T1} quad_perm:[0,1,2,3] row_mask:0xc bank_mask:0xf"],
                  [f"buffer_store_dword v{T2}, v{T0}, {srd(sWS)}, s{sT1} offen{P.STMOD}"]]
        nst = len(m)
        for i in range(8):
            m += [[f"v_accvgpr_read_b32 v{TT[k]}, a{OX(2*i)+k}"] for k in range(4)]
            m += [[f"v_mul_f32 v{RV(i)+k}, v{RV(i)+k}, v{FP}"] for k in range(4)]
            m += [[f"v_fmac_f32 v{RV(i)+k}, v{TT[k]}, v{FO}"] for k in range(4)]
            m += [[f"v_cvt_pk_bf16_f32 v{BX(i)+k}, v{RV(i)+2*k}, v{RV(i)+2*k+1}"] for k in range(2)]
            m += [[f"ds_write_b64 v{MB}, {vr(BX(i),2)} offset:{i*1024}"]]
        sc.chain(gm, gb - P.BB - 3, m)
        self.place_dma(sc, wo_items(2, 1), [g0 + 2 + 4 * k for k in range(8)])
        self.place_dma(sc, wo_items(3, 4), [ga + 4 + 5 * k for k in range(8)])
        p = gc - 4 + 3
        for j, st in ((4, 3), (5, 5), (6, 5)):
            self.place_dma(sc, wo_items(j, SLW[j]), [p + st * k for k in range(8)]); p += 8 * st + 1
        L = sc.run()
        i1 = next(k for k, l in enumerate(L) if l.startswith("v_min_f32"))
        i2 = next(k for k, l in enumerate(L) if "@t:o3" in l)
        assert i1 < i2
        if P.INRED:
            i1 = next(k for k, l in enumerate(L) if l.startswith(f"v_rcp_f32 v{T1},")); i2 = next(k for k, l in enumerate(L) if l.startswith("v_mul_f32") and l.endswith(f"v{T0}"))
            assert i1 < i2
        L += ["s_nop 7"] + [x for it in pend.pop() for x in it]
        return L

    def fin(self):
        L = []; e = L.append
        sDB, sPR, sOU = sA, sB_, sX
        sOLD, sIDX, sMASK, sSEEN, sNEW, sPEND, sCNT, sPAR, sOWN, sSZ, sHO = 32, 33, 34, 35, 36, 37, 38, 39, 40, 41, 42
        ACC = lambda h, k, d: 24 * (h >> 1) + 8 * k + 2 * d
        LN, L4, LO, SOF, TV = 236, 237, 238, 239, 240
        PO = [241, 242, 243]; OO = [244, 245, 246]
        zero = [f"v_mov_b64 v[{r}:{r+1}], 0" for r in range(0, 192, 2)]
        e(f"s_lshl_b32 s{sT0}, s{sBLK}, 3"); e(f"s_add_u32 s{sT0}, s{sT0}, s{sBt}")
        e(f"s_lshl_b32 s{sT1}, s{sT0}, 4"); e(f"s_add_u32 s{sDB}, s94, s{sT1}"); e(f"s_addc_u32 s{sDB+1}, s95, 0"); e(f"s_mov_b32 s{sDB+2}, 4")
        e(f"s_mov_b32 s{sSZ}, {16*PART}"); e(f"s_mul_i32 s{sT0}, s{sT0}, s{sSZ}")
        e(f"s_add_u32 s{sPR}, s72, s{sT0}"); e(f"s_addc_u32 s{sPR+1}, s73, 0")
        e(f"s_mov_b32 s{sOU}, s92"); e(f"s_mov_b32 s{sOU+1}, s93"); e(f"s_mov_b32 s{sOU+2}, {8*160*1792}"); e(f"s_mov_b32 s{sOU+3}, 0x20000")
        e(f"s_lshl_b32 s{sOWN}, 1, s{sHd}"); e(f"s_mov_b32 s{sCNT}, {P.SPIN}"); e(f"s_mov_b32 s{sPEND}, 0")
        e(f"v_mbcnt_lo_u32_b32 v{LN}, -1, 0"); e(f"v_mbcnt_hi_u32_b32 v{LN}, -1, v{LN}"); e(f"v_lshlrev_b32 v{L4}, 2, v{LN}")
        e(f"v_and_b32 v{TV}, 15, v{LN}"); e(f"v_mul_u32_u24 v{LO}, 1792, v{TV}"); e(f"v_bfe_u32 v{TV}, v{LN}, 4, 1")
        e(f"v_lshl_add_u32 v{LO}, v{TV}, 6, v{LO}"); e(f"v_lshrrev_b32 v{TV}, 5, v{LN}"); e(f"v_lshl_add_u32 v{LO}, v{TV}, 4, v{LO}")
        MA_, MP_, TW = 247, 248, 249
        e(f"v_mov_b32 v{TV}, s{sOWN}"); e(f"v_mov_b32 v{TW}, s{sOWN}"); e(f"s_mov_b32 s{sPR+2}, s{sSZ}")
        e(f"v_mul_u32_u24 v{MA_}, {PART}, v{LN}"); e(f"v_add_u32 v{MA_}, {MBOX}, v{MA_}")
        e(f"v_lshlrev_b32 v{MP_}, 8, v{LN}"); e(f"v_add_u32 v{MP_}, {MBOX}, v{MP_}")
        IDN = 232
        e(f"v_and_b32 v{IDN}, 1, v{LN}"); e(f"v_lshlrev_b32 v{IDN}, 4, v{IDN}"); e(f"s_movk_i32 s{sT0}, 0x3f80"); e(f"v_lshlrev_b32 v{IDN}, v{IDN}, s{sT0}")
        e(f"v_bfe_i32 v{SOF}, v{LN}, 1, 1"); e(f"v_and_b32 v{IDN+1}, v{IDN}, v{SOF}"); e(f"v_xor_b32 v{IDN}, v{IDN}, v{IDN+1}")
        e("s_waitcnt vmcnt(0)")
        L += self.stamp(48)
        e("s_barrier")
        e(f"s_cmp_lg_u32 s{sW}, 0"); e("s_cbranch_scc1 L_f_b0")
        e(f"buffer_atomic_add v{TV}, v{L4}, {srd(sDB)}, 0 offen sc0")
        e(f"buffer_atomic_add v{TW}, v{MA_}, {srd(sPR)}, 0 offen"); e("s_waitcnt vmcnt(1)")
        e(f"ds_write_b32 v{L4}, v{TV}"); e("s_waitcnt lgkmcnt(0)")
        e("L_f_b0:"); e("s_barrier")
        e(f"ds_read_b32 v{TV}, v{L4}"); e("s_waitcnt lgkmcnt(0)"); e(f"v_readfirstlane_b32 s{sOLD}, v{TV}")
        L += self.stamp(49)
        e(f"s_and_b32 s{sMASK}, s{sOLD}, 0xffff"); e(f"s_bcnt1_i32_b32 s{sIDX}, s{sMASK}"); e(f"s_or_b32 s{sMASK}, s{sMASK}, s{sOWN}")
        if P.STAMP: e(f"v_writelane_b32 v{STR}, s{sIDX}, 60"); e(f"v_writelane_b32 v{STR}, 16, 61")
        e(f"s_cmp_lg_u32 s{sIDX}, 15"); e("s_cbranch_scc1 L_f_share")
        e(f"s_lshr_b32 s{sPEND}, s{sOLD}, 16")
        e("L_f_next:")
        e(f"s_cmp_eq_u32 s{sPEND}, 0"); e("s_cbranch_scc1 L_f_end")
        e(f"s_ff1_i32_b32 s{sIDX}, s{sPEND}"); e(f"s_bitset0_b32 s{sPEND}, s{sIDX}")
        e("L_f_share:")
        lv = list(P.LV) + [(0, 0)] * (7 - len(P.LV))
        tu = sum(u << (4 * k) for k, (u, c) in enumerate(lv)); tc = sum(c << (4 * k) for k, (u, c) in enumerate(lv))
        e(f"s_lshl_b32 s{sT0}, s{sIDX}, 2"); e(f"s_add_u32 s{sT0}, s{sT0}, s{sW}")
        e(f"s_mul_i32 s{sT1}, s{sT0}, 26"); e(f"s_lshr_b32 s{sT1}, s{sT1}, 8")
        e(f"s_mul_i32 s{sT2}, s{sT1}, 10"); e(f"s_sub_u32 s{sT0}, s{sT0}, s{sT2}")
        e(f"s_lshl_b32 s{sT1}, s{sT1}, 2")
        e(f"s_lshr_b32 s{sT2}, {hex(tu)}, s{sT1}"); e(f"s_and_b32 s{sT2}, s{sT2}, 15")
        e(f"s_lshr_b32 s{sT3}, {hex(tc)}, s{sT1}"); e(f"s_and_b32 s{sT3}, s{sT3}, 15")
        e("s_cbranch_scc0 L_f_next")
        e(f"s_mul_i32 s{sHO}, s{sBt}, 10"); e(f"s_add_u32 s{sHO}, s{sHO}, s{sT0}"); e(f"s_mul_i32 s{sHO}, s{sHO}, {16*1792}")
        e(f"s_mul_i32 s{sT1}, s{sBLK}, 896"); e(f"s_add_u32 s{sHO}, s{sHO}, s{sT1}")
        e(f"s_lshl_b32 s{sT0}, s{sT0}, 11")
        a, b, c = sNEW, sSEEN, sOLD
        for k in range(3):
            e(f"s_lshr_b32 s{a}, s{sT2}, 1"); e(f"s_and_b32 s{b}, s{sT2}, 1")
            e(f"s_mul_i32 s{c}, s{a}, 20"); e(f"s_add_u32 s{c}, s{c}, s{b}"); e(f"s_lshl_b32 s{c}, s{c}, 10"); e(f"s_add_u32 s{c}, s{c}, s{sT0}")
            e(f"s_lshl_b32 s{a}, s{a}, 2"); e(f"s_add_u32 s{a}, s{a}, s{b}"); e(f"s_lshl_b32 s{a}, s{a}, 5"); e(f"s_add_u32 s{a}, s{a}, s{sHO}")
            e(f"v_lshl_add_u32 v{PO[k]}, v{LN}, 4, s{c}"); e(f"v_add_u32 v{OO[k]}, s{a}, v{LO}")
            e(f"s_add_u32 s{sT2}, s{sT2}, 1")
        e(f"s_mov_b32 s{sNEW}, s{sMASK}"); e(f"s_mov_b32 s{sSEEN}, s{sMASK}")
        L += self.stamp(50)
        if P.STAMP: e("s_mov_b32 s44, 16")
        e(f"s_cmp_eq_u32 s{sT3}, 2"); e("s_cbranch_scc1 L_f2_i"); e(f"s_cmp_eq_u32 s{sT3}, 1"); e("s_cbranch_scc1 L_f1_i")
        for U in (3, 2, 1):
            e(f"L_f{U}_i:")
            for q in range(4):
                e(f"s_and_b32 s{sT0}, s{sNEW}, {15 << (4*q)}"); e(f"s_cbranch_scc0 L_f{U}_h{4*q+3}")
                for h in range(4 * q, 4 * q + 4):
                    e(f"s_bitcmp1_b32 s{sNEW}, {h}"); e(f"s_cbranch_scc0 L_f{U}_h{h}")
                    e(f"s_mov_b32 s{sHO}, {h*PART}")
                    for k in range(U): e(f"buffer_load_dwordx4 {ar(12*h+4*k)}, v{PO[k]}, {srd(sPR)}, s{sHO} offen sc1")
                    e(f"L_f{U}_h{h}:")
            e(f"s_cmp_eq_u32 s{sSEEN}, 0xffff"); e(f"s_cbranch_scc1 L_f{U}_sum")
            e(f"L_f{U}_spin:")
            e(f"buffer_load_dword v{TV}, v{MP_}, {srd(sWS)}, 0 offen sc1"); e("s_waitcnt vmcnt(0)")
            e(f"v_readfirstlane_b32 s{sMASK}, v{TV}"); e(f"s_and_b32 s{sMASK}, s{sMASK}, 0xffff")
            e(f"s_andn2_b32 s{sNEW}, s{sMASK}, s{sSEEN}"); e(f"s_cbranch_scc1 L_f{U}_got")
            if P.SLEEP: e(f"s_sleep {P.SLEEP}")
            e(f"s_sub_u32 s{sCNT}, s{sCNT}, 1"); e(f"s_cbranch_scc0 L_f{U}_spin")
            e(f"s_lshl_b32 s{sT0}, 0x10000, s{sIDX}"); e(f"v_mov_b32 v{TV}, s{sT0}")
            e(f"buffer_atomic_or v{TV}, v{L4}, {srd(sDB)}, 0 offen sc0"); e("s_waitcnt vmcnt(0)")
            e(f"v_readfirstlane_b32 s{sMASK}, v{TV}"); e(f"s_and_b32 s{sMASK}, s{sMASK}, 0xffff")
            e(f"s_cmp_lg_u32 s{sMASK}, 0xffff"); e("s_cbranch_scc1 L_f_end")
            e(f"s_andn2_b32 s{sNEW}, s{sMASK}, s{sSEEN}")
            e(f"L_f{U}_got:")
            e(f"s_or_b32 s{sSEEN}, s{sSEEN}, s{sNEW}")
            if P.STAMP: L += ["s_memrealtime s[84:85]", "s_waitcnt lgkmcnt(0)", "s_mov_b32 m0, s44", f"s_bcnt1_i32_b32 s45, s{sSEEN}", f"v_writelane_b32 v{STR}, s84, m0",
                              f"v_writelane_b32 v{STC}, s45, m0", "s_add_u32 s44, s44, 1", f"v_writelane_b32 v{STR}, s44, 61"]
            e(f"s_branch L_f{U}_i")
            e(f"L_f{U}_sum:")
            e("s_waitcnt vmcnt(0)")
            L += self.stamp(51)
            for h in range(16):
                for k in range(U):
                    for d in range(2):
                        o = vr(8 * k + 4 * d)
                        e(f"v_mfma_f32_4x4x4_16b_bf16 {o}, {vr(IDN,2)}, {ar(12*h+4*k+2*d,2)}, {o if h else 0}")
                if U == 1: e("s_nop 0")
            e("s_nop 4")
            for k in range(U):
                r = 32 + 4 * k
                for d in range(4): e(f"v_cvt_pk_bf16_f32 v{r+d}, v{8*k+2*d}, v{8*k+2*d+1}")
                e(f"v_permlane16_swap_b32 v{r}, v{r+2}"); e(f"v_permlane16_swap_b32 v{r+1}, v{r+3}")
                e(f"buffer_store_dwordx4 {vr(r)}, v{OO[k]}, {srd(sOU)}, 0 offen")
            e(f"s_mov_b32 s{sMASK}, 0xffff"); e("s_branch L_f_next")
        e("L_f_end:")
        return L

    def attn_kernel(self):
        e = self.e
        kn = NAME + "_kernel" if P.INRED else "attn_kernel"
        e(f".globl {kn}"); e(".p2align 8"); e(f".type {kn},@function"); e(f"{kn}:")
        p0 = len(self.L)
        e("s_cmp_ge_u32 s2, 256"); e("s_cbranch_scc1 L_attn_end")
        e(f"s_and_b32 s{sT0}, s2, 7"); e(f"s_lshr_b32 s{sBLK}, s{sT0}, 2"); e(f"s_mul_i32 s{sT1}, s{sBLK}, 40")
        e(f"s_add_u32 s4, s0, s{sT1}"); e("s_addc_u32 s5, s1, 0")
        e(f"s_load_dwordx8 s[{sPT}:{sPT+7}], s[4:5], 0")
        e(f"s_load_dwordx2 s[{sWO}:{sWO+1}], s[4:5], 32")
        e("s_load_dwordx2 s[72:73], s[0:1], 96")
        if P.INRED: e("s_load_dwordx4 s[92:95], s[0:1], 80")
        for x in self.stamp("start"): e(x)
        t = list(range(144, 160))
        ln, g, r4, x4, tq, tu, tv = t[:7]
        e(f"s_getpc_b64 s[{sWS}:{sWS+1}]"); e("L_cw0:"); e(f"s_mov_b32 s{sWS+2}, L_code_end-L_cw0"); e(f"s_mov_b32 s{sWS+3}, 0x20000")
        e(f"v_and_b32 v{ln}, 63, v0"); e(f"v_lshrrev_b32 v{tq}, 6, v0"); e(f"s_lshr_b32 s{sT1}, s2, 3"); e(f"s_lshl_b32 s{sT2}, s{sT1}, 9")
        e(f"v_lshlrev_b32 v{tu}, 14, v{ln}"); e(f"v_lshl_add_u32 v{tu}, v{tq}, 7, v{tu}"); e(f"v_add_u32 v{tu}, s{sT2}, v{tu}")
        e(f"buffer_load_dword a{STG+64}, v{tu}, {srd(sWS)}, 0 offen")
        e(f"v_readfirstlane_b32 s{sW}, v{tq}")
        e(f"s_and_b32 s{sHd}, s{sT0}, 3"); e(f"s_lshl_b32 s{sHd}, s{sHd}, 2"); e(f"s_and_b32 s{sT2}, s{sT1}, 3")
        e(f"s_add_u32 s{sHd}, s{sHd}, s{sT2}"); e(f"s_lshr_b32 s{sBt}, s{sT1}, 2")
        if P.ROT:
            e(f"s_lshl_b32 s{sC}, s{sT2}, 1"); e(f"s_add_u32 s{sC}, s{sC}, s{sBt}"); e(f"s_sub_u32 s{sT2}, s{sC}, 7")
            e(f"s_cmp_ge_u32 s{sC}, 7"); e(f"s_cselect_b32 s{sC}, s{sT2}, s{sC}")
        else: e(f"s_mov_b32 s{sC}, 0")
        e(f"s_lshl_b32 s{sCW}, s{sC}, 19"); e(f"s_lshl_b32 s{sCX}, s{sC}, 7")
        e(f"s_lshl_b32 s{sW8K}, s{sW}, 13"); e(f"s_movk_i32 s{sF}, 0x9c")
        e(f"s_lshl_b32 s{sT0}, s{sW}, 1"); e(f"s_lshr_b32 s{sT0}, s{sF}, s{sT0}"); e(f"s_and_b32 s{sT0}, s{sT0}, 3")
        e(f"v_lshrrev_b32 v{g}, 4, v{ln}"); e(f"v_bfe_u32 v{r4}, v{ln}, 2, 2"); e(f"v_and_b32 v{x4}, 3, v{ln}")
        e(f"v_xor_b32 v{tq}, s{sT0}, v{x4}"); e(f"v_lshlrev_b32 v{tq}, 4, v{tq}"); e(f"v_lshl_add_u32 v{tq}, v{g}, 6, v{tq}")
        HW, HX = self.HW, self.HX
        e(f"s_lshl_b32 s{sT0}, s{sW}, 17"); e(f"v_lshl_add_u32 v{tu}, v{r4}, 13, v{tq}"); e(f"v_add_u32 v{HW+1}, s{sT0}, v{tu}")
        for k in (0, 2, 3, 4, 5, 6, 7):
            gg, u = k >> 2, k & 3
            e(f"v_add_u32 v{HW+k}, {768 + (2*gg + (u>>1))*32768 + (u&1)*256 - u*1024}, v{HW+1}")
        e(f"v_bfe_u32 v{tu}, v{ln}, 2, 3"); e(f"v_mul_u32_u24 v{tu}, 896, v{tu}"); e(f"v_lshrrev_b32 v{tv}, 5, v{ln}")
        e(f"v_lshl_add_u32 v{tu}, v{tv}, 6, v{tu}")
        e(f"v_and_b32 v{tv}, 1, v{g}"); e(f"v_mul_u32_u24 v{tv}, 3, v{tv}"); e(f"v_xor_b32 v{tv}, v{tv}, v{x4}")
        e(f"v_lshl_add_u32 v{tu}, v{tv}, 4, v{tu}")
        e(f"s_mul_i32 s{sT0}, s{sW}, 28672"); e(f"v_add_u32 v{HX}, s{sT0}, v{tu}"); e(f"v_xor_b32 v{tv}, 16, v{HX}")
        e(f"v_add_u32 v{HX+1}, 6144, v{tv}"); e(f"v_add_u32 v{HX+2}, 12288, v{HX}"); e(f"v_add_u32 v{HX+3}, 18432, v{tv}")
        e(f"s_and_b32 s{sT1}, s{sW}, 1"); e(f"s_lshl_b32 s{sT1}, s{sT1}, 4"); e(f"v_xor_b32 v{tv}, s{sT1}, v{tu}")
        e(f"s_mul_i32 s{sT0}, s{sW}, 7168"); e(f"s_add_u32 s{sT0}, s{sT0}, {128*896}"); e(f"v_add_u32 v{HX+4}, s{sT0}, v{tv}")
        e(f"s_lshl_b32 s{sT2}, s{sW}, 12"); e(f"s_lshl_b32 s{sT3}, s{sW}, 10")
        e(f"s_mul_i32 s{sT0}, s{sBt}, 143360"); e(f"s_lshl_b32 s{sT1}, s{sHd}, 9")
        e(f"s_mov_b32 s{sX+2}, 143360"); e(f"s_mov_b32 s{sX+3}, 0x20000"); e(f"s_mov_b32 s{sWQ+3}, 0x20000")
        e(f"s_sub_u32 s{sWQ+2}, {448*8192+768}, s{sT1}")
        e("s_waitcnt lgkmcnt(0)")
        e(f"s_add_u32 s{sWQ}, s{sPT+6}, s{sT1}"); e(f"s_addc_u32 s{sWQ+1}, s{sPT+7}, 0")
        e(f"s_sub_u32 s{sWQ}, s{sWQ}, 768"); e(f"s_subb_u32 s{sWQ+1}, s{sWQ+1}, 0")
        e(f"s_add_u32 s{sX}, s{sPT}, s{sT0}"); e(f"s_addc_u32 s{sX+1}, s{sPT+1}, 0")
        for x in self.stamp(1): e(x)
        for it in self.w_items(0) + self.x_items(0):
            for x in it: e(x)
        for x in self.stamp(2): e(x)
        e(f"s_lshl_b32 s{sT0}, s{sBt}, 4"); e(f"s_add_u32 s{sT0}, s{sT0}, s{sHd}"); e(f"s_lshl_b32 s{sT1}, s{sT0}, 19")
        for s_, p in ((sA, sPT + 2), (sB_, sPT + 4)):
            e(f"s_add_u32 s{s_}, s{p}, s{sT1}"); e(f"s_addc_u32 s{s_+1}, s{p+1}, 0")
            e(f"s_sub_u32 s{s_}, s{s_}, 768"); e(f"s_subb_u32 s{s_+1}, s{s_+1}, 0")
            e(f"s_mov_b32 s{s_+2}, {524288+768}"); e(f"s_mov_b32 s{s_+3}, 0x20000")
        e(f"s_lshl_b32 s{sT1}, s{sBLK}, 7"); e(f"s_add_u32 s{sT0}, s{sT0}, s{sT1}"); e(f"s_mul_i32 s{sT0}, s{sT0}, {PART}")
        e(f"s_add_u32 s{sWS}, s72, s{sT0}"); e(f"s_addc_u32 s{sWS+1}, s73, 0"); e(f"s_mov_b32 s{sWS+2}, {PART}")
        e(f"v_lshl_add_u32 v{tu}, v{r4}, 9, v{tq}"); e(f"v_add_u32 v{VO+1}, s{sW8K}, v{tu}")
        e(f"v_add_u32 v{VO}, 768, v{VO+1}"); e(f"v_add_u32 v{VO+2}, {4096+768}, v{VO+1}"); e(f"v_add_u32 v{VO+3}, 4096, v{VO+1}")
        e(f"s_mov_b32 s{sOA}, 0"); e(f"s_mov_b32 s{sOB}, 0")
        e(f"s_and_b32 s{sT0}, s{sW}, 1"); e(f"s_lshl_b32 s{sT1}, s{sT0}, 13"); e(f"s_sub_u32 s{sH}, 4096, s{sT1}")
        e(f"s_sub_u32 s{sPH}, 0x10000, s{sH}"); e(f"s_sub_u32 s{sNH}, {u32(-98304)}, s{sH}")
        e(f"s_xor_b32 s{sT1}, s{sT0}, 1"); e(f"s_lshl_b32 s{sT1}, s{sT1}, 12")
        e(f"s_lshl_b32 s{sT0}, s{sT0}, 1")
        e(f"v_lshlrev_b32 v{tv}, 1, v{g}"); e(f"v_bfe_u32 v{tv}, s{sF}, v{tv}, 2"); e(f"v_lshrrev_b32 v{tu}, 1, v{x4}")
        e(f"v_xor_b32 v{tv}, v{tv}, v{tu}"); e(f"v_xor_b32 v{tv}, s{sT0}, v{tv}"); e(f"v_lshlrev_b32 v{tv}, 4, v{tv}")
        e(f"v_lshl_add_u32 v{tv}, v{g}, 13, v{tv}"); e(f"v_lshl_add_u32 v{tv}, v{r4}, 6, v{tv}")
        e(f"v_and_b32 v{tu}, 1, v{x4}"); e(f"v_lshl_add_u32 v{self.WA}, v{tu}, 3, v{tv}"); e(f"v_xor_b32 v{self.WA+1}, 32, v{self.WA}")
        e(f"v_add_u32 v{self.WA+2}, {SLOT(2)}, v{self.WA}"); e(f"v_add_u32 v{self.WA+3}, {SLOT(2)}, v{self.WA+1}")
        e(f"s_add_u32 s{sD}, s{sT1}, {SLOT(1)}"); e(f"v_add_u32 v{VA}, s{sD}, v{self.WA}"); e(f"v_add_u32 v{VA+1}, s{sD}, v{self.WA+1}")
        fj = t[7]
        e(f"v_lshlrev_b32 v{fj}, 1, v{r4}"); e(f"v_bfe_u32 v{fj}, s{sF}, v{fj}, 2")
        e(f"s_movk_i32 s{sD}, 0xd8"); e(f"v_lshlrev_b32 v{tv}, 1, v{g}"); e(f"v_bfe_u32 v{tv}, s{sD}, v{tv}, 2")
        e(f"v_xor_b32 v{tv}, v{tv}, v{fj}"); e(f"v_xor_b32 v{tv}, s{sT0}, v{tv}"); e(f"v_lshlrev_b32 v{tv}, 4, v{tv}")
        e(f"v_lshl_add_u32 v{tv}, v{r4}, 13, v{tv}"); e(f"v_lshl_add_u32 v{tv}, v{x4}, 6, v{tv}"); e(f"v_add_u32 v{KA}, s{sT1}, v{tv}")
        e(f"v_and_b32 v{tv}, 1, v{g}"); e(f"v_lshlrev_b32 v{tv}, 1, v{tv}"); e(f"v_xor_b32 v{tv}, v{tv}, v{fj}"); e(f"v_lshlrev_b32 v{tv}, 4, v{tv}")
        e(f"v_and_b32 v{tu}, 7, v{ln}"); e(f"v_lshl_add_u32 v{tv}, v{tu}, 6, v{tv}")
        e(f"v_lshrrev_b32 v{tu}, 5, v{ln}"); e(f"v_lshl_add_u32 v{tv}, v{tu}, 9, v{tv}")
        e(f"v_bfe_u32 v{tq}, v{ln}, 3, 1"); e(f"v_lshl_add_u32 v{tv}, v{tq}, 10, v{tv}")
        e(f"s_add_u32 s{sT0}, s{sT2}, {SLOT(3)}"); e(f"v_add_u32 v{self.XA}, s{sT0}, v{tv}"); e(f"v_xor_b32 v{self.XA+1}, 16, v{self.XA}")
        e(f"s_lshr_b32 s{sT0}, s{sW}, 1"); e(f"s_lshl_b32 s{sT0}, s{sT0}, 11"); e(f"s_add_u32 s{sT0}, s{sT0}, {SLOT(4)+16384}")
        e(f"v_add_u32 v{self.X5A}, s{sT0}, v{tv}"); e(f"v_xor_b32 v{self.X5A+1}, 16, v{self.X5A}")
        e(f"v_lshlrev_b32 v{tv}, 4, v{ln}"); e(f"v_add_u32 v{self.FL}, s{sW8K}, v{tv}")
        e(f"v_and_b32 v{tv}, 0xf0, v{tv}"); e(f"v_lshl_add_u32 v{tv}, v{tu}, 9, v{tv}"); e(f"v_and_b32 v{tu}, 1, v{g}")
        e(f"v_lshl_add_u32 v{tv}, v{tu}, 3, v{tv}"); e(f"s_add_u32 s{sT0}, s{sW8K}, {SLOT(1)}"); e(f"v_add_u32 v{T0}, s{sT0}, v{tv}")
        e(f"v_xor_b32 v{T1}, {8192+256}, v{T0}")
        e(f"s_mov_b32 s{sSC}, {hex(f2u(math.log2(math.e) / 16.0))}"); e(f"s_mov_b32 s{sTH}, {hex(f2u(P.THR))}"); e(f"s_mov_b32 s{sHI}, 0xffff0000")
        e(f"s_mov_b32 s{sT0}, 0x3f803f80")
        for k in range(4): e(f"v_accvgpr_write_b32 a{ONES+k}, s{sT0}")
        la = 4; nxt = 6; msp = mwr = mwd = ml2 = ml3 = 0
        for hs in range(2, 30):
            if hs in P.SKIP: la -= 1; msp |= 1 << hs
            else:
                assert nxt == hs + la
                if nxt % 5 == 0: mwd |= 1 << hs
                nxt += 1
            if (hs - 1) % 5 >= 3: mwr |= 1 << hs
            if la == 2: ml2 |= 1 << hs
            if la == 3: ml3 |= 1 << hs
        assert nxt == 32 and la == 2
        msp |= 1 << 30
        for s_, v in ((sMSP, msp), (sMWR, mwr), (sMWD, mwd), (sML2, ml2), (sML3, ml3), (sDP, 28672), (sDN, -(131072 + 4096)), (sHS, 2)):
            e(f"s_mov_b32 s{s_}, {u32(v)}")
        for it in self.x_items(1) + self.w_items(1):
            for x in it: e(x)
        if P.INRED:
            e(f"v_lshlrev_b32 v{tu}, 8, v{ln}"); e(f"v_add_u32 v{tu}, {MBOX}, v{tu}"); e(f"v_mov_b32 v{tv}, 0")
            e(f"buffer_store_dword v{tv}, v{tu}, {srd(sWS)}, 0 offen sc1")
        e(f"v_lshlrev_b32 v{self.TV}, 7, v{ln}"); e(f"v_add_u32 v{self.TV}, s{sW8K}, v{self.TV}")
        for (n, g) in P.TCH:
            if g < 0:
                for x in self.touch(n): e(x)
        e("@vmw c0"); e("s_barrier")
        for x in self.stamp(3): e(x)
        for x in self.head_sched(): e(x)
        head = self.finish(self.L[p0:], [], self.kfifo(), "head", vmq=[])
        self.L[p0:] = head
        self.emit_fallbacks(head, pv0=False)
        qk, qkn, pv, pvn = self.qk_body(True), self.qk_body(False), self.pv_body(True), self.pv_body(False)
        tail = self.finish(self.tail_sched(), self.kfifo(), None, "tail", vmq=[])
        self.emit_fallbacks(tail)
        assert 2 not in P.SKIP
        e("L_qk:")
        for x in qk: e(x)
        e("s_cbranch_scc1 L_pvn")
        e("L_pv:")
        for x in pv: e(x)
        e("s_cbranch_scc0 L_qk")
        e("L_sp:"); e(f"s_cmp_eq_u32 s{sHS}, 30"); e("s_cbranch_scc1 L_tail")
        for x in qkn: e(x)
        e("s_cbranch_scc0 L_pv")
        e("L_pvn:")
        for x in pvn: e(x)
        e("s_cbranch_scc0 L_qk"); e("s_branch L_sp")
        for x in self.R0: e(x)
        e("L_tail:")
        for x in tail: e(x)
        if P.INRED:
            fin, _ = fix_hazards(self.fin(), tail[-30:])
            for x in fin: e(x)
        if P.STAMP:
            e("s_waitcnt vmcnt(0)")
            for x in self.stamp(63): e(x)
            e(f"v_writelane_b32 v{STR}, s{sST+4}, 0"); e(f"v_writelane_b32 v{STC}, s{sST+6}, 0")
            e(f"s_lshl_b32 s{sT0}, s2, 2"); e(f"s_add_u32 s{sT0}, s{sT0}, s{sW}"); e(f"s_lshl_b32 s{sT0}, s{sT0}, 9")
            e(f"s_add_u32 s{sT0}, s{sT0}, {STAMP_OFF}")
            e(f"s_add_u32 s{sWS}, s72, s{sT0}"); e(f"s_addc_u32 s{sWS+1}, s73, 0"); e(f"s_mov_b32 s{sWS+2}, 512")
            e("v_mbcnt_lo_u32_b32 v20, -1, 0"); e("v_mbcnt_hi_u32_b32 v20, -1, v20"); e("v_lshlrev_b32 v20, 2, v20")
            e(f"buffer_store_dword v{STR}, v20, {srd(sWS)}, 0 offen"); e(f"buffer_store_dword v{STC}, v20, {srd(sWS)}, 0 offen offset:256")
        e("L_attn_end:")
        e("s_endpgm")
        e("L_code_end:")
        self.resc_subs()
        for x in self.R: e(x)
        self.R = []
        assert not self.sites
        probs = []
        br = ["s_cbranch_scc0 L_x"]
        paths = {"head+qk": head + qk, "pv+tail": pv + br + tail, "pvn+tail": pvn + br + tail}
        for a, A in (("qk", qk), ("qkn", qkn)):
            for b, B in (("pv", pv), ("pvn", pvn)):
                paths[a + b] = A + br + B; paths[b + a] = B + br + A
        for nm, p in paths.items(): probs += check_hazards(p, nm)
        return probs

    def reduce_kernel(self):
        e = self.e
        e(".globl reduce_kernel"); e(".p2align 8"); e(".type reduce_kernel,@function"); e("reduce_kernel:")
        p0 = len(self.L)
        e("s_cmp_ge_u32 s2, 256"); e("s_cbranch_scc1 L_red_end")
        e("s_load_dwordx2 s[4:5], s[0:1], 80"); e("s_load_dwordx2 s[6:7], s[0:1], 96")
        if P.STAMP: e("s_memrealtime s[40:41]")
        e("v_lshrrev_b32 v1, 6, v0"); e("v_and_b32 v0, 63, v0"); e("v_lshlrev_b32 v2, 4, v0")
        e("v_readfirstlane_b32 s18, v1")
        e("s_and_b32 s16, s2, 15"); e("s_lshr_b32 s17, s2, 4")
        e(f"s_mul_i32 s17, s17, {P.RW}"); e("s_add_u32 s17, s17, s18")
        e("s_cmp_ge_u32 s17, 140"); e("s_cbranch_scc1 L_red_end")
        e(f"s_mul_i32 s19, s16, {16*PART}"); e("s_lshl_b32 s20, s17, 10")
        e("s_mul_i32 s22, s17, 3277"); e("s_lshr_b32 s22, s22, 16"); e("s_mul_i32 s23, s22, 20"); e("s_sub_u32 s23, s17, s23")
        e("s_lshr_b32 s23, s23, 1"); e("s_and_b32 s24, s17, 1")
        e("s_lshl_b32 s21, s23, 6"); e("s_add_u32 s21, s21, 143360")
        e("v_and_b32 v3, 15, v0"); e("v_lshlrev_b32 v4, 2, v3")
        e("s_waitcnt lgkmcnt(0)")
        e("s_add_u32 s8, s6, s19"); e("s_addc_u32 s9, s7, 0"); e(f"s_mov_b32 s10, {16*PART}"); e("s_mov_b32 s11, 0x20000")
        for h in range(16):
            e(f"buffer_load_dwordx4 {vr(32+4*h)}, v2, s[8:11], s20 offen{P.RDMOD}")
            e(f"buffer_load_dword v{16+h}, v4, s[8:11], s21 offen{P.RDMOD}")
            if h < 15: e(f"s_add_u32 s20, s20, {PART}"); e(f"s_add_u32 s21, s21, {PART}")
        e("s_and_b32 s25, s16, 7"); e("s_lshr_b32 s26, s16, 3")
        e("s_mul_i32 s25, s25, 10"); e("s_add_u32 s25, s25, s23"); e(f"s_mul_i32 s25, s25, {16*1792}")
        e("s_mul_i32 s26, s26, 896"); e("s_add_u32 s25, s25, s26")
        e("s_lshl_b32 s22, s22, 7"); e("s_add_u32 s25, s25, s22"); e("s_lshl_b32 s24, s24, 5"); e("s_add_u32 s25, s25, s24")
        e("v_mul_u32_u24 v3, 1792, v3"); e("v_bfe_u32 v5, v0, 4, 1"); e("v_lshl_add_u32 v3, v5, 6, v3")
        e("v_lshrrev_b32 v5, 5, v0"); e("v_lshl_add_u32 v3, v5, 4, v3")
        e("s_mov_b32 s12, s4"); e("s_mov_b32 s13, s5"); e(f"s_mov_b32 s14, {8*160*1792}"); e("s_mov_b32 s15, 0x20000")
        e("s_mov_b32 s27, 0xffff0000")
        for h in range(16):
            e(f"s_waitcnt vmcnt({2*(15-h)})")
            for d in range(4):
                r = 32 + 4 * h + d
                e(f"v_lshlrev_b32 v{4+(d&1)*2}, 16, v{r}"); e(f"v_and_b32 v{5+(d&1)*2}, s27, v{r}")
                for k in range(2):
                    if h == 0: e(f"v_mul_f32 v{8+2*d+k}, v{4+(d&1)*2+k}, v{16+h}")
                    else: e(f"v_fmac_f32 v{8+2*d+k}, v{4+(d&1)*2+k}, v{16+h}")
        for d in range(4): e(f"v_cvt_pk_bf16_f32 v{32+d}, v{8+2*d}, v{9+2*d}")
        e("s_nop 1"); e("v_permlane16_swap_b32 v32, v34"); e("v_permlane16_swap_b32 v33, v35")
        e(f"buffer_store_dwordx4 {vr(32)}, v3, s[12:15], s25 offen")
        if P.STAMP:
            e("s_waitcnt vmcnt(0)"); e("s_memrealtime s[42:43]"); e("s_waitcnt lgkmcnt(0)")
            e("s_mul_i32 s20, s16, 140"); e("s_add_u32 s20, s20, s17"); e("s_lshl_b32 s20, s20, 3"); e(f"s_add_u32 s20, s20, {STAMP_OFF + 524288}")
            e("s_add_u32 s8, s6, s20"); e("s_addc_u32 s9, s7, 0"); e("s_mov_b32 s10, 8")
            e("v_mov_b32 v4, s40"); e("v_mov_b32 v5, s42"); e("v_mov_b32 v6, 0")
            e("buffer_store_dwordx2 v[4:5], v6, s[8:11], 0 offen")
        e("L_red_end:")
        e("s_endpgm")
        return check_hazards(self.L[p0:], "reduce")

def desc(name, vg, acc):
    return [f".amdhsa_kernel {name}", f"  .amdhsa_next_free_vgpr {vg}", "  .amdhsa_next_free_sgpr 102",
            f"  .amdhsa_accum_offset {acc}", "  .amdhsa_group_segment_fixed_size 0", "  .amdhsa_kernarg_size 104",
            "  .amdhsa_user_sgpr_count 2", "  .amdhsa_user_sgpr_kernarg_segment_ptr 1",
            "  .amdhsa_system_sgpr_workgroup_id_x 1", ".end_amdhsa_kernel"]

def build(path, verbose=True):
    g = Gen()
    ref = open(f"cdna_kernels/{NAME}.s.ref").read().splitlines()
    g.L += [l for l in ref if l.startswith(";") and "@launch" not in l]
    if P.INRED: g.L += ["; @launch grid=(256,1,1) block=(256,1,1) lds=163840"]
    else: g.L += ["; @launch kernel=attn_kernel grid=(256,1,1) block=(256,1,1) lds=163840",
                  f"; @launch kernel=reduce_kernel grid=(256,1,1) block=({64*P.RW},1,1) lds=98304"]
    g.L += ['.amdgcn_target "amdgcn-amd-amdhsa--gfx950"', ".text"]
    probs = g.attn_kernel()
    if P.INRED: g.L += ['.section .rodata,"a"', ".p2align 6"] + desc(NAME + "_kernel", 512, 256)
    else:
        probs += g.reduce_kernel()
        g.L += ['.section .rodata,"a"', ".p2align 6"] + desc("attn_kernel", 512, 256) + [".p2align 6"] + desc("reduce_kernel", 96, 96)
    open(path, "w").write("\n".join(g.L) + "\n")
    seen = set()
    for p in probs:
        k = p.split("]", 1)[1]
        if k not in seen: print(p); seen.add(k)
    if verbose:
        for k, (v, added) in g.sec.items():
            ins = [Ins(x) for x in v]
            nm = sum(1 for i in ins if i.kind == "mfma")
            print(f"{k}: instr {sum(1 for i in ins if i.states)} mfma {nm} ({nm*16} cyc) est {est_cycles(v)} nops {added} waits {sum(1 for i in ins if i.mn=='s_waitcnt')}")
    return g

if __name__ == "__main__":
    out = sys.argv[1] if len(sys.argv) > 1 else "k3.s"
    for kv in sys.argv[2:]:
        k, v = kv.split("=", 1)
        setattr(P, k, eval(v))
    build(out)
```

```python
import re

REG_RE = re.compile(r'^(-?)(abs\()?([vas])(\d+|\[(\d+):(\d+)\])\)?$')

def regs_of(tok):
    tok = tok.strip()
    if tok in ("vcc",): return {("s", "vcc")}
    if tok in ("exec",): return {("s", "exec")}
    if tok == "m0": return {("s", "m0")}
    if tok == "scc": return {("s", "scc")}
    m = REG_RE.match(tok)
    if not m: return set()
    k = m.group(3)
    if m.group(5) is not None:
        return {(k, i) for i in range(int(m.group(5)), int(m.group(6)) + 1)}
    return {(k, int(m.group(4)))}

def split_ops(s):
    out, depth, cur = [], 0, ""
    for ch in s:
        if ch in "[(": depth += 1
        if ch in "])": depth -= 1
        if ch == "," and depth == 0:
            out.append(cur.strip()); cur = ""
        else:
            cur += ch
    if cur.strip(): out.append(cur.strip())
    return out

TRANS = ("v_exp_f32", "v_log_f32", "v_rcp_f32", "v_rsq_f32", "v_sqrt_f32")

class Ins:
    __slots__ = ("text", "mn", "kind", "rd", "wr", "ops", "srcc", "states", "passes", "cost")
    def __init__(self, text):
        self.text = text
        t = text.split(";")[0].strip()
        self.rd, self.wr, self.srcc = set(), set(), set()
        self.states = 1; self.passes = 0; self.cost = 1
        if not t or t.endswith(":") or t.startswith("."):
            self.mn = ""; self.kind = "label" if t.endswith(":") else "none"; self.ops = []; self.states = 0; self.cost = 0
            return
        parts = t.split(None, 1)
        mn = parts[0]; self.mn = mn
        rest = parts[1] if len(parts) > 1 else ""
        ops = split_ops(rest)
        if ops:
            last = ops[-1].split()
            ops[-1] = last[0]; mods = last[1:]
        else:
            mods = []
        self.ops = ops
        R = lambda i: regs_of(ops[i]) if i < len(ops) else set()
        if mn.startswith("v_mfma"):
            self.kind = "mfma"
            self.wr = R(0); self.rd = R(1) | R(2) | R(3); self.srcc = R(3)
            self.passes = 8 if "32x32x16" in mn else 4
            self.cost = 2
        elif mn.startswith("ds_read") or mn.startswith("ds_bpermute") or "_rtn_" in mn:
            self.kind = "ds"; self.wr = R(0); self.rd = set().union(*[R(i) for i in range(1, len(ops))])
        elif mn.startswith("ds_write") or mn.startswith("ds_add") or mn.startswith("ds_or") or mn == "ds_min_f32":
            self.kind = "ds"; self.rd = set().union(*[R(i) for i in range(len(ops))])
        elif mn.startswith("buffer_load") or mn.startswith("global_load"):
            self.kind = "vmem"
            if "lds" in mods or "_lds_" in mn:
                self.rd = set().union(*[R(i) for i in range(len(ops))]) | {("s", "m0")}
                self.kind = "dma"
            else:
                self.wr = R(0); self.rd = set().union(*[R(i) for i in range(1, len(ops))])
        elif mn.startswith("buffer_store") or mn.startswith("global_store"):
            self.kind = "vstore"; self.rd = set().union(*[R(i) for i in range(len(ops))])
        elif mn.startswith("buffer_atomic") or mn.startswith("global_atomic"):
            self.kind = "vmem"; self.rd = set().union(*[R(i) for i in range(len(ops))])
            if "sc0" in mods: self.wr = R(0)
        elif mn.startswith("buffer_"):
            self.kind = "vmem"
        elif mn.startswith("v_cmp"):
            self.kind = "valu"; self.wr = R(0); self.rd = R(1) | R(2)
        elif mn.startswith("v_permlane") and "swap" in mn:
            self.kind = "valu"; self.wr = R(0) | R(1); self.rd = R(0) | R(1)
        elif mn.startswith("v_"):
            self.kind = "valu"
            self.wr = R(0); self.rd = set().union(*[R(i) for i in range(1, len(ops))]) if len(ops) > 1 else set()
            if mn.startswith("v_fmac") or mn.startswith("v_dot2c"): self.rd |= R(0)
            if mn.startswith("v_cndmask") and len(ops) == 3: self.rd |= {("s", "vcc")}
            if "_co_" in mn: self.wr |= R(1)
            if mn in TRANS or mn.replace("_e32", "").replace("_e64", "") in TRANS: self.cost = 2
        elif mn == "s_nop":
            self.kind = "nop"; self.states = int(ops[0], 0) + 1; self.cost = self.states
        elif mn.startswith("s_load") or mn.startswith("s_memtime") or mn.startswith("s_memrealtime"):
            self.kind = "smem"; self.wr = R(0); self.rd = R(1)
        elif mn.startswith("s_cbranch") or mn == "s_branch" or mn.startswith("s_setpc") or mn.startswith("s_call") or mn.startswith("s_swappc"):
            self.kind = "branch"
            if "vcc" in mn: self.rd = {("s", "vcc")}
        elif mn.startswith("s_waitcnt") or mn in ("s_barrier", "s_endpgm", "s_setprio", "s_sleep"):
            self.kind = "ctl"
        elif mn.startswith("s_cmp") or mn.startswith("s_bitcmp"):
            self.kind = "salu"; self.rd = R(0) | R(1)
        elif mn.startswith("s_"):
            self.kind = "salu"; self.wr = R(0); self.rd = set().union(*[R(i) for i in range(1, len(ops))]) if len(ops) > 1 else set()
        else:
            raise ValueError("unknown instruction: " + text)
    def is_trans(self):
        return self.mn.replace("_e32", "").replace("_e64", "") in TRANS

TIMEBASED = True
def fix_hazards(lines, pre=()):
    lines = list(lines); added = 0
    while True:
        pos = []
        check_hazards(list(pre) + lines, "", pos)
        pos = [(p - len(pre), k) for p, k in pos if p >= len(pre)]
        if not pos: return lines, added
        p = min(x[0] for x in pos); k = max(x[1] for x in pos if x[0] == p)
        lines.insert(p, f"s_nop {k-1}"); added += k

def check_hazards(lines, name="", pos=None):
    ins = [Ins(l) for l in lines]
    src = [k for k, i in enumerate(ins) if i.kind not in ("label", "none")]
    ins = [i for i in ins if i.kind not in ("label", "none")]
    probs = []
    W = 24
    tm = []; t = 0; lastm = None
    for i_ in ins:
        if i_.kind == "mfma" and lastm is not None and TIMEBASED: t = max(t, lastm[0] + lastm[1])
        tm.append(t)
        if i_.kind == "mfma": lastm = (t, i_.passes)
        t += i_.states
    for j, c in enumerate(ins):
        dist = 0
        for i in range(j - 1, max(-1, j - W - 1), -1):
            p = ins[i]
            if p.kind == "mfma": dist = max(dist, min(tm[j] - tm[i] - 1, dist + 8))
            need = 0; why = ""
            vec = lambda s: {r for r in s if r[0] in "va"}
            sg = lambda s: {r for r in s if r[0] == "s"}
            if p.kind == "mfma":
                n = {8: (12, 10, 7), 4: (8, 6, 3)}[p.passes]
                if c.kind == "mfma":
                    ab = c.rd - c.srcc if not (c.srcc & (regs_of(c.ops[1]) | regs_of(c.ops[2]))) else c.rd
                    ab = regs_of(c.ops[1]) | regs_of(c.ops[2])
                    if p.wr & ab: need, why = n[0], "mfma D -> mfma A/B"
                    elif p.wr & c.srcc and (p.wr != c.srcc or p.passes != c.passes): need, why = n[1], "mfma D -> overlapping C"
                    elif p.wr & c.wr and p.wr != c.srcc: need, why = n[1], "mfma D -> mfma D (WAW, non-chain)"
                elif c.kind in ("valu",):
                    if p.wr & (c.rd | c.wr): need, why = n[0], "mfma D -> valu"
                    elif p.srcc & c.wr: need, why = n[2], "mfma C read -> valu write"
                elif c.kind in ("ds", "vmem", "vstore", "dma"):
                    if p.wr & (c.rd | c.wr): need, why = n[0], "mfma D -> mem"
            elif p.kind == "valu":
                if c.kind == "mfma" and vec(p.wr) & c.rd: need, why = 2, "valu -> mfma"
                if c.kind == "valu":
                    if p.is_trans() and not c.is_trans() and p.wr & c.rd: need, why = max(need, 1), "trans -> valu"
                    if c.mn.startswith("v_permlane") and vec(p.wr) & c.rd: need, why = 2, "valu -> permlane"
                    if (c.mn.startswith("v_readfirstlane") or c.mn.startswith("v_readlane")) and vec(p.wr) & c.rd: need, why = max(need, 1), "valu -> readlane"
                    if sg(p.wr) & c.rd: need, why = max(need, 2), "valu sgpr -> valu read"
                    if "dpp" in c.mn and vec(p.wr) & c.rd: need, why = 2, "valu->dpp"
                if c.kind in ("vmem", "vstore", "dma") and sg(p.wr) & c.rd: need, why = 5, "valu sgpr -> vmem"
                if c.kind in ("ds", "vmem", "vstore", "dma") and p.is_trans() and p.wr & c.rd: need, why = max(need, 1), "trans -> mem"
            elif p.kind == "salu":
                if ("s", "m0") in p.wr and c.kind == "dma": need, why = 1, "m0 -> dma"
            elif p.kind == "vstore":
                if ("x4" in p.mn or "x3" in p.mn):
                    data = regs_of(p.ops[0]) if p.mn.startswith("buffer") else regs_of(p.ops[1])
                    if c.kind == "valu" and data & c.wr: need, why = 2, "store data WAR valu"
                    elif data & c.wr: need, why = 1, "store data WAR"
            if need > dist:
                probs.append(f"[{name}] need {need} have {dist}: {why}\n    {p.text}\n    {c.text}")
                if pos is not None: pos.append((src[j], need - dist))
            dist += p.states
            if dist >= 20: break
    return probs


WAIT_RE = re.compile(r'lgkmcnt\((\d+)\)')
def autowait(lines, fifo0=(), look=True, vm_since0=0):
    fifo = [Ins(t) for t in fifo0]
    out = []
    vm_since = vm_since0
    ins = [None if l.startswith("@") or "@vm" in l else Ins(l) for l in lines]
    def need_idx(i):
        regs = i.rd | i.wr
        idx = -1
        for k, f in enumerate(fifo):
            if f.wr & regs: idx = k
        return idx
    def wait_to(idx):
        n = len(fifo) - 1 - idx
        out.append(f"s_waitcnt lgkmcnt({n})")
        del fifo[:idx + 1]
    for p, l in enumerate(lines):
        if l == "@waitw":
            idx = -1
            for k, f in enumerate(fifo):
                if f.mn.startswith("ds_write"): idx = k
            if idx >= 0: wait_to(idx)
            continue
        if l.startswith("@waitt"):
            idx = -1
            for k, f in enumerate(fifo):
                if f.text == l[7:]: idx = k
            if idx >= 0: wait_to(idx)
            continue
        if l.startswith("@waita") or l.startswith("@waitr"):
            reg = ("a", int(l.split()[1])) if l.startswith("@waita") else (l.split()[1][0], int(l.split()[1][1:]))
            idx = -1
            for k, f in enumerate(fifo):
                if reg in f.wr: idx = k
            if idx >= 0: wait_to(idx)
            continue
        if "@vm" in l:
            l = l.replace("@vm", str(vm_since)); ins[p] = Ins(l)
        i = ins[p]
        if i.kind in ("label", "none"):
            out.append(l); continue
        if i.mn.startswith("s_waitcnt"):
            m = WAIT_RE.search(l)
            if m:
                n = int(m.group(1))
                if len(fifo) > n: del fifo[:len(fifo) - n]
            out.append(l); continue
        if i.kind == "smem":
            assert not fifo or True
        idx = need_idx(i)
        if idx >= 0:
            if look and i.kind == "mfma":
                seen = 0
                for q in range(p + 1, len(lines)):
                    j = ins[q]
                    if j is None: break
                    if j.kind == "mfma":
                        seen += 1
                        k = need_idx(j)
                        if k > idx:
                            if len(fifo) - 1 - k >= 4: idx = k
                            break
                        if seen >= 2: break
            wait_to(idx)
        if i.kind == "ds":
            if len(fifo) >= 15: wait_to(len(fifo) - 15)
            fifo.append(i)
        if i.kind == "dma": vm_since = 0
        elif i.kind in ("vmem", "vstore"): vm_since += 1
        out.append(l)
    return out, [f.text for f in fifo], vm_since
```

```python
import math
from asmlib import Ins, regs_of

def icost(x):
    if x.startswith("@"): return 1
    return Ins(x.split(";")[0]).cost
def cost(it): return sum(icost(x) for x in it)

class Sch:
    def __init__(self, cap=2, lat=9, age=7, maxout=13, blat=7):
        self.cap, self.lat, self.age, self.maxout, self.blat = cap, lat, age, maxout, blat
        self.mf = []
        self.frag = {}
        self.queues = {}
        self.fixed = {}
        self.chains = []
        self.bars = {}
        self.init = []
    def n(self): return len(self.mf)
    def m(self, text, frags=()):
        self.mf.append((text, list(frags))); return len(self.mf) - 1
    def add_frag(self, f, buf, rds, pre=(), rel=None, due=None, q="f", use=None):
        assert f not in self.frag
        self.frag[f] = dict(buf=buf, rds=list(rds), pre=list(pre), rel=rel, due=due, use=use)
        self.queues.setdefault(q, []).append(f)
    def fix(self, g, item): self.fixed.setdefault(g, []).append(list(item))
    def chain(self, g0, g1, items, rels=None, after=None, hard=1.5):
        self.chains.append(dict(g0=g0, g1=g1, items=[list(i) for i in items], rels=rels, after=after, hard=hard))
    def bar(self, name, g, lines, clears=True):
        assert g not in self.bars
        self.bars[g] = (name, list(lines), clears)

    def run(self):
        n = len(self.mf)
        bg = {v[0]: g for g, v in self.bars.items()}
        first, last = {}, {}
        for i, (t, fs) in enumerate(self.mf):
            for f in fs:
                first.setdefault(f, i); last[f] = i
        Q = {}
        for q, fl in self.queues.items():
            it = []
            for f in fl:
                if f in self.init: continue
                d = self.frag[f]
                u = first.get(f, d["use"]); assert u is not None, f
                dl = u - 1 - self.lat
                hard = min(u - 1 - 3, n - 1)
                if d["due"] is not None:
                    dl = min(dl, bg[d["due"]] - self.blat); hard = min(hard, bg[d["due"]] - 2)
                for k, r in enumerate(d["rds"]):
                    it.append(dict(f=f, k=k, lines=(d["pre"] if k == 0 else []) + [r], rd=r, soft=dl, hard=hard))
            for k in range(len(it) - 2, -1, -1):
                it[k]["soft"] = min(it[k]["soft"], it[k + 1]["soft"] - 0.5)
                it[k]["hard"] = min(it[k]["hard"], it[k + 1]["hard"] - 0.34)
            Q[q] = it
        C = []
        for c in self.chains:
            tot = sum(cost(i) for i in c["items"]); w = c["g1"] - c["g0"] + 1
            assert w > 0, c
            rs = tot / w; rh = max(rs, c["hard"])
            rem = tot; it = []
            for k, i in enumerate(c["items"]):
                rem -= cost(i)
                it.append(dict(lines=i, soft=c["g1"] - rem / rs, hard=c["g1"] - rem / rh,
                               rel=max(c["g0"], c["rels"][k] if c["rels"] else -1), after=c["after"]))
            C.append(it)
        out = []
        bufuser = {}
        for k, f in enumerate(self.init):
            for r in self.frag[f]["rds"]: out.append((f, r, -8 + k))
            bufuser[self.frag[f]["buf"]] = f
        passed = set()
        L = []; self.gapcost = []
        issued = set(self.init)
        def fill(g, used, post):
            while True:
                cand = []
                for q, it in Q.items():
                    if not it: continue
                    x = it[0]; d = self.frag[x["f"]]
                    if d["rel"] is not None and d["rel"] not in passed: continue
                    pu = bufuser.get(d["buf"])
                    if x["k"] == 0 and pu is not None and last.get(pu, 10**9) > g: continue
                    if len(out) >= self.maxout and x["hard"] > g: continue
                    cand.append((x["soft"], 0, it))
                for it in C:
                    if not it: continue
                    x = it[0]
                    if x["rel"] > g or (x["after"] is not None and x["after"] not in passed): continue
                    if x["lines"][0].startswith("ds_") and len(out) >= self.maxout + 1 and x["hard"] > g: continue
                    cand.append((x["soft"], 1, it))
                cand.sort(key=lambda c: (c[0], c[1]))
                pick = None
                for c in cand:
                    x = c[2][0]; cx = cost(x["lines"])
                    if x["hard"] <= g or used + cx <= self.cap or (used == 0 and cx > self.cap) or g == n - 1:
                        pick = c; break
                if pick is None: return used
                x = pick[2].pop(0)
                L.extend(x["lines"]); used += cost(x["lines"])
                if pick[1] == 0:
                    out.append((x["f"], x["rd"], g)); bufuser[self.frag[x["f"]]["buf"]] = x["f"]
                    if x["k"] == len(self.frag[x["f"]]["rds"]) - 1: issued.add(x["f"])
                else:
                    for y in x["lines"]:
                        if y.startswith("ds_"): out.append((None, y, g))
        for g in range(-1, n):
            if g >= 0: L.append(self.mf[g][0])
            used = 0
            need = self.mf[g + 1][1] if g + 1 < n else []
            willwait = any(o[0] in need for o in out) or any(f not in issued for f in need)
            if g in self.bars and self.bars[g][2]: willwait = False
            if willwait: used += 1
            for it in self.fixed.get(g, []):
                L.extend(it); used += cost(it)
                for y in it:
                    if y.startswith("ds_"): out.append((None, y, g))
            if g in self.bars:
                name, lines, clears = self.bars[g]
                used = fill(g, used + self.cap, False) - self.cap
                for q, it in Q.items():
                    assert not any(self.frag[x["f"]]["due"] == name for x in it), f"reads due before {name} not issued"
                L.extend(lines); used += cost(lines)
                passed.add(name)
                if clears: out.clear()
                u2 = fill(g, 0, True); used += u2
            else:
                used = fill(g, used, False)
            for f in need: assert f in issued, f"frag {f} not issued before mfma {g+1}"
            idx = [k for k, o in enumerate(out) if o[0] in need]
            if idx:
                k = max(idx)
                while k + 1 < len(out) and out[k + 1][2] <= g - self.age: k += 1
                L.append("@waitt " + out[k][1])
                if not willwait: used += 1
                del out[:k + 1]
            self.gapcost.append(used)
        assert not any(Q.values()) and not any(C)
        return L

def est_cycles(lines):
    t = 0; free = 0
    for l in lines:
        i = Ins(l)
        if not i.states: continue
        if i.kind == "mfma":
            t = max(t, free); free = t + 4 * i.passes; t += 8
        else: t += 4 * i.cost
    return max(t, free)
```

```python
import sys, math, struct
from asmlib import Ins, check_hazards, autowait, fix_hazards
from sched3 import Sch, cost, est_cycles

NAME = "concat_heads__mha_block_cached__mha_block_cached__near_ridge"
MF = "v_mfma_f32_16x16x32_bf16"
def f2u(x): return struct.unpack("<I", struct.pack("<f", x))[0]
def vr(b, n=4): return f"v[{b}:{b+n-1}]"
def ar(b, n=4): return f"a[{b}:{b+n-1}]"
def srd(b): return f"s[{b}:{b+3}]"
def u32(x): return hex(x & 0xffffffff)

class P:
    STAMP = False
    BB = 12
    NPK = 8
    NPV = 6
    SKIP = [16, 21]
    DQ = [0, 3, 6, 9, 12, 15, 18, 21]
    DP = [48, 51, 54, 57, 60, 63, 66, 69]
    KVNT = " nt"
    STMOD = " sc1"
    RDMOD = ""
    THR = 10.0
    HQ = [("c2", 0, 2), ("K0", 28, 2), ("c3", 100, 3), ("c4", 150, 2), ("V0", 180, 2), ("c5", 255, 3), ("c6", 310, 2),
          ("K3", 340, 8), ("K1", 410, 10), ("V1", 490, 8), ("K2", 555, 5), ("V3", 596, 5), ("V2", 640, 9)]
    CW2 = True
    ROT = True
    RW = 9
    KVINC = 32768
    INRED = True
    LV = [(0, 3), (3, 3), (6, 3), (9, 2), (11, 2), (13, 1)]
    SPIN = 20000
    SLEEP = 0
    FS = {3: 4, 2: 6, 1: 8}
    WNT = ""
    TCH = []
    STRIP = []
    STRIPT = []
    STRIPH = []
    NODMA = False
    PH = None
    WNT0 = [0]
    ROTH = 1
    WOT = False
    NRM = False
    WO0 = [58, 59, 60, 61, 62, 63, 64, 65]
    WO1 = None
    NH = 2.5
    SH = {}
    ST = {}
    EV = ["FL", "FL", "FL", "FL", "FL", "F", "LF", "LF", "LF", "T", "DF", "D"]
    PQ = {"FL": [(0, 9), (14, 2)], "F": [(8, 22)], "LF": [(0, 2), (16, 26)], "DF": [(0, 2), (16, 26)], "D": [(0, 3)]}
    PP = {"FL": [(40, 52), (56, 2)], "F": [(50, 66)], "LF": [(44, 2), (60, 69)], "DF": [(44, 2), (60, 69)], "D": [(48, 3)]}
    UNI = True
    UG = (2, 2240)
    UP = 1.0
    UF = 9
    UT = [12, 22]
    UW = 1
    XMAP = 0

def OM(s, j): return 64 * s + 4 * j
def QM(s, i): return 128 + 32 * s + 4 * i
SB = 192
TL = {"b0": (0, 1, 2), "b1": (0, 1, 2), "a0": (0, 1), "a1": (0, 1)}
TB = {"b0": 0, "b1": 3, "a0": 6, "a1": 8}
def S(t, s): return SB + 4 * (TB[t] + s)
def PR(h, s): return S(h + "0", s)
def CI(s): return 232 + 4 * s
KA, VA, VO = 244, 245, 247
T0, T1, T2 = 251, 252, 253
STR, STC = 254, 255
def FB(k): return 4 * (k % 16)
def OX(j): return 64 + 4 * j
def QX(i): return 128 + 4 * i
def LS(s): return 160 + 4 * s
ONES = 172
STG = 176
FLP = 249
DUM = 240
def STR_(n, k):
    if n == 0: return vr(144 + 4 * k + (16 if k >= 4 else 0))
    if n == 1: return ar(112 + 4 * k + (112 if k >= 4 else 0))
    return ar(STG + 32 * (n & 1) + 4 * k)
def SLOT(n): return (n % 5) * 32768
sA, sB_, sX, sWQ, sWS = 8, 12, 16, 20, 24
sW, sW8K = 28, 29
sRET = 30
sTH, sH, sPH, sNH, sD, sHS = 32, 33, 34, 35, 36, 37
sMSP, sMWR, sMWD, sML2, sML3 = 38, 39, 40, 41, 42
sDP, sDN = 43, 44
sOA, sOB = 45, 46
sT0, sT1, sT2, sT3 = 47, 48, 49, 50
sBLK, sBt, sHd, sC, sSC, sHI = 51, 52, 53, 54, 55, 56
sCW, sCX = 57, 58
sWO = 60
sF = 62
sM0 = 63
sPT = 64
sCO = 64
sCS = 74
sRT2 = 96
sST = 84
PART = 144384
MBOX = 143360 + 768
STAMP_OFF = 48 << 20

def vmpass(lines, q):
    out = []; done = q[0]
    for l in lines:
        if l.startswith("@vmw"):
            p = l.split(None, 2)
            idx = max(k for k, t in enumerate(q) if t == p[1])
            n = min(63, len(q) - 1 - idx)
            if idx <= done:
                if len(p) > 2: out.append("s_waitcnt " + p[2])
                continue
            done = q[0] = idx
            out.append(f"s_waitcnt vmcnt({n})" + (" " + p[2] if len(p) > 2 else ""))
            continue
        if l.startswith("buffer_"):
            q.append(l.split("@t:")[1].strip() if "@t:" in l else None)
            l = l.split(";")[0].strip()
        out.append(l)
    return out

class Gen:
    def __init__(self):
        self.L = []; self.R = []; self.R0 = []; self.uid = 0; self.sec = {}; self.sites = {}; self.fbc = {}; self.R1 = []
    def e(self, s): self.L.append(s)
    def lab(self, p):
        self.uid += 1; return f"L{p}_{self.uid}"
    def stamp(self, k):
        if not P.STAMP: return []
        if k == "start": return [f"s_memrealtime s[{sST+4}:{sST+5}]", f"s_memtime s[{sST+6}:{sST+7}]"]
        o = ["s_waitcnt lgkmcnt(0)", f"s_memrealtime s[{sST}:{sST+1}]", f"s_memtime s[{sST+2}:{sST+3}]", "s_waitcnt lgkmcnt(0)"]
        if P.STAMP == 2 and (k == "loop" or k in (5, 6, 7, 8, 9, 43, 44, 46, 47)): return []
        if P.STAMP == 3 and k == "loop": return []
        if k == "loop":
            return o + [f"s_mov_b32 s{sM0}, m0", f"s_add_u32 m0, s{sHS}, 11", "s_nop 0", f"v_writelane_b32 v{STR}, s{sST}, m0",
                        f"v_writelane_b32 v{STC}, s{sST+2}, m0", f"s_mov_b32 m0, s{sM0}"]
        return o + [f"v_writelane_b32 v{STR}, s{sST}, {k}", f"v_writelane_b32 v{STC}, s{sST+2}, {k}"]

    def rowmax(self, r, t0=T0, t1=T1):
        return [f"v_max3_f32 v{t0}, v{r}, v{r+1}, v{r+2}", f"v_max_f32 v{t0}, v{t0}, v{r+3}", f"v_mov_b32 v{t1}, v{t0}",
                f"v_permlane32_swap_b32 v{t0}, v{t1}", f"v_max_f32 v{t0}, v{t0}, v{t1}", f"v_mov_b32 v{t1}, v{t0}",
                f"v_permlane16_swap_b32 v{t0}, v{t1}", f"v_max_f32 v{t0}, v{t0}, v{t1}"]
    def softmax(self, t, done, init=(), add=False, first=False, subs=None):
        subs = list(subs or TL[t])
        it = []
        for s in init:
            c = CI(s)
            it += [[x] for x in self.rowmax(S(t, s), c + 1, c + 2)]
            it += [[f"v_ceil_f32 v{c+1}, v{c+1}"], [f"v_sub_f32 v{c}, 0, v{c+1}"]]
        regs = [S(t, s) + k for s in subs for k in range(4)]
        if add:
            for s in subs:
                for k in range(4): it.append([f"v_add_f32 v{S(t,s)+k}, v{S(t,s)+k}, v{CI(s)}"])
        for s in init:
            for k in range(1, 4): it.append([f"v_mov_b32 v{CI(s)+k}, v{CI(s)}"])
        chk = [S(t, s) + k for s in subs if s not in init for k in range(4)]
        if chk:
            it.append([f"v_max3_f32 v{T0}, v{chk[0]}, v{chk[1]}, v{chk[2]}"])
            k = 3
            while k + 1 < len(chk):
                it.append([f"v_max3_f32 v{T0}, v{T0}, v{chk[k]}, v{chk[k+1]}"]); k += 2
            it.append([f"v_max_f32 v{T0}, v{T0}, v{chk[k]}"])
            fb, ret = self.lab("fb"), self.lab("fr")
            it.append([f"v_cmp_lt_f32 vcc, s{sTH}, v{T0}"])
            it.append([f"s_cbranch_vccnz {fb}", f"{ret}:"])
            self.sites[fb] = dict(t=t, subs=[s for s in subs if s not in init], done=list(done), ret=ret, first=first)
        h, o = t[0], 2 * int(t[1])
        pend = []
        for s in subs:
            for k in range(4):
                it.append([f"v_exp_f32 v{S(t,s)+k}, v{S(t,s)+k}"])
                if pend: it.append(pend.pop(0))
                if k % 2 == 1:
                    pend.append([f"v_cvt_pk_bf16_f32 v{PR(h,s)+o+k//2}, v{S(t,s)+k-1}, v{S(t,s)+k}"])
        it += pend
        return it

    def emit_fallbacks(self, lines, started0=(), pv0=True):
        started = set(started0); pv = pv0
        cmap = {f"{MF} {vr(S(t,s))}": (t, s) for t in TL for s in TL[t]}
        for l in lines:
            if l.startswith(MF):
                key = l.split(",")[0]
                if key in cmap:
                    t, s = cmap[key]
                    if l.strip().endswith(vr(CI(s))):
                        if t == "b0" and s == 0: started = set()
                        started.add((t, s))
                if any(l.split(",")[2].strip() == vr(PR(h, s)) for h in "ab" for s in TL[h + "0"]): pv = True
            if l.startswith("s_cbranch_vccnz"):
                fb = l.split()[1]; d = self.sites.pop(fb)
                R = ["s_nop 7", "s_nop 3"]
                order = list(TL)
                for s in d["subs"]:
                    R += self.rowmax(S(d["t"], s)) + [f"v_max_f32 v{T0}, 0, v{T0}", f"v_ceil_f32 v{T0}, v{T0}"]
                    tl = [d["t"]] + [t for (t, s2) in sorted(started) if s2 == s and t != d["t"] and t not in d["done"]]
                    for t in tl:
                        for k in range(4): R.append(f"v_sub_f32 v{S(t,s)+k}, v{S(t,s)+k}, v{T0}")
                    for k in range(4): R.append(f"v_sub_f32 v{CI(s)+k}, v{CI(s)+k}, v{T0}")
                    R += [f"v_exp_f32 v{T1}, -v{T0}", "s_nop 0"]
                    for t in d["done"]:
                        if s not in TL[t]: continue
                        for k in range(2):
                            r = PR(t[0], s) + 2 * int(t[1]) + k
                            R += [f"v_lshlrev_b32 v{T0}, 16, v{r}", f"v_and_b32 v{T2}, s{sHI}, v{r}", f"v_mul_f32 v{T0}, v{T0}, v{T1}",
                                  f"v_mul_f32 v{T2}, v{T2}, v{T1}", f"v_cvt_pk_bf16_f32 v{r}, v{T0}, v{T2}"]
                    if pv: R.append(f"s_call_b64 s[{sRET}:{sRET+1}], L_resc{s}")
                R, _ = fix_hazards(R)
                key = tuple(R)
                if key not in self.fbc:
                    self.fbc[key] = self.lab("fc")
                    self.R += [f"{self.fbc[key]}:"] + R + ["s_nop 1", f"s_setpc_b64 s[{sRT2}:{sRT2+1}]"]
                self.R1 += [f"{fb}:", f"s_call_b64 s[{sRT2}:{sRT2+1}], {self.fbc[key]}", f"s_branch {d['ret']}"]
    def resc_subs(self):
        for s in range(3):
            R = [f"L_resc{s}:"]
            accs = [LS(s) + k for k in range(4)]
            if s < 2:
                for k in range(64): R.append(f"v_mul_f32 v{OM(s,0)+k}, v{OM(s,0)+k}, v{T1}")
            else: accs += [OX(0) + k for k in range(64)]
            for k in range(0, len(accs), 2):
                R += [f"v_accvgpr_read_b32 v{T0}, a{accs[k]}", f"v_accvgpr_read_b32 v{T2}, a{accs[k+1]}",
                      f"v_mul_f32 v{T0}, v{T0}, v{T1}", f"v_mul_f32 v{T2}, v{T2}, v{T1}",
                      f"v_accvgpr_write_b32 a{accs[k]}, v{T0}", f"v_accvgpr_write_b32 a{accs[k+1]}, v{T2}"]
            R.append(f"s_setpc_b64 s[{sRET}:{sRET+1}]")
            self.R += R

    def krd(self, k, kt, i): return [f"ds_read_b128 {ar(FB(k))}, v{KA} offset:{kt*2048 + (i>>2)*1024 + (i&3)*256}"]
    def trd(self, k, reg, j, base=0):
        off = base + (j >> 3) * 1024 + ((j >> 1) & 3) * 256
        return [f"ds_read_b64_tr_b16 {ar(FB(k),2)}, v{reg+(j&1)} offset:{off}",
                f"ds_read_b64_tr_b16 {ar(FB(k)+2,2)}, v{reg+(j&1)} offset:{off+2048}"]
    def kseq(self, first=False):
        if first: return [("a", kt, i) for i in range(8) for kt in range(2)] + [("b", kt, i) for kt in range(2) for i in range(8)]
        return [(h, kt, i) for h in "ba" for kt in range(2) for i in range(8)]
    def vseq(self, first=False): return [(h, j) for h in ("ab" if first else "ba") for j in range(16)]
    def kfrags(self, sc, tag, rel, due, d0, first=False, n=32, use=None):
        for k, (h, kt, i) in enumerate(self.kseq(first)[:n]):
            pre = []
            if k == 0 and d0: pre = [f"v_add_u32 v{KA}, {d0}, v{KA}"]
            if k == 16: pre = [f"v_subrev_u32 v{KA}, s{sH}, v{KA}" if first else f"v_add_u32 v{KA}, s{sH}, v{KA}"]
            sc.add_frag((tag, k), k % 16, self.krd(k, kt, i), pre, rel, due, use=None if use is None else use + 3 * k)
    def vfrags(self, sc, tag, rel, due, d0, first=False, n=32, use=None):
        for k, (h, j) in enumerate(self.vseq(first)[:n]):
            pre = []
            if k < 2 and d0: pre = [f"v_add_u32 v{VA+k}, {d0}, v{VA+k}"]
            if k in (16, 17): pre = [f"v_subrev_u32 v{VA+k-16}, s{sH}, v{VA+k-16}" if first else f"v_add_u32 v{VA+k-16}, s{sH}, v{VA+k-16}"]
            sc.add_frag((tag, k), k % 16, self.trd(k, VA, j), pre, rel, due, use=None if use is None else use + 3 * k)
    def kfifo(self): return [r for k, (h, kt, i) in enumerate(self.kseq()[:P.NPK]) for r in self.krd(k, kt, i)]
    def vfifo(self): return [r for k, (h, j) in enumerate(self.vseq()[:P.NPV]) for r in self.trd(k, VA, j)]

    def qk_mfmas(self, sc, tag, first=False):
        end = {}; use = {}
        for k, (h, kt, i) in enumerate(self.kseq(first)):
            t = h + str(kt)
            for s in TL[t]:
                c = ("0" if first else vr(CI(s))) if i == 0 else vr(S(t, s))
                q = vr(QM(s, i)) if s < 2 else ar(QX(i))
                fr = [(tag, k)] + ([("qx", i)] if (first and s == 2) else [])
                end[t] = sc.m(f"{MF} {vr(S(t,s))}, {ar(FB(k))}, {q}, {c}", fr)
                use.setdefault((s, i), end[t])
        return end, use
    def pv_mfmas(self, sc, tag, first=False):
        start = {}; fin = {}
        for k, (h, j) in enumerate(self.vseq(first)):
            if j == 0:
                start[h] = sc.n()
                for s in TL[h + "0"]:
                    z = first and (h == "a" or s == 2)
                    fin[("l", s)] = sc.m(f"{MF} {ar(LS(s))}, {ar(ONES)}, {vr(PR(h,s))}, {'0' if z else ar(LS(s))}")
            for s in TL[h + "0"]:
                o = vr(OM(s, j)) if s < 2 else ar(OX(j))
                z = first and (h == "a" or s == 2)
                fin[(s, j)] = sc.m(f"{MF} {o}, {ar(FB(k))}, {vr(PR(h,s))}, {'0' if z else o}", [(tag, k)])
        return start, fin

    def kv_loop_items(self, sr, so):
        ld = lambda g, u: f"buffer_load_dwordx4 v{VO+(u&1)}, {srd(sr)}, s{so} offen offset:{u*1024}{P.KVNT} lds"
        it = [[f"s_bitcmp1_b32 s{sMWD}, s{sHS}", f"s_cselect_b32 s{sT0}, s{sDN}, s{sDP}"]]
        it.append([f"s_add_u32 m0, m0, s{sT0}"])
        for u in range(4): it.append([ld(0, u)])
        it.append([f"s_add_u32 m0, m0, 4096", f"s_add_u32 s{so}, s{so}, 4096"])
        for u in range(4): it.append([ld(1, u)])
        it.append([f"s_add_u32 s{so}, s{so}, {u32(P.KVINC - 4096)}"])
        if P.NODMA: it = [[x.replace("buffer_load_dwordx4", "buffer_nop") for x in i] for i in it]
        return it
    def place_dma(self, sc, it, pos):
        k = 0; pend = []; prev = max(-1, pos[0] - 2)
        for x in it:
            if x[0].startswith("buffer"):
                for j, y in enumerate(pend): sc.fix(max(prev, pos[k] - len(pend) + j), y)
                pend = []
                sc.fix(pos[k], x); prev = pos[k]; k += 1
            else: pend.append(x)
        for y in pend: sc.fix(pos[-1] + 1, y)
    def swap_items(self):
        it = []
        for a, b in ((sA, sB_), (sA + 1, sB_ + 1), (sOA, sOB)):
            it += [[f"s_mov_b32 s{sT0}, s{a}", f"s_mov_b32 s{a}, s{b}"], [f"s_mov_b32 s{b}, s{sT0}"]]
        return it
    def loop_bar(self, nm):
        w = self.lab("w"); r = self.lab("wr"); w3 = self.lab("w3")
        self.R0 += [f"{w}:", f"s_bitcmp1_b32 s{sML3}, s{sHS}", f"s_cbranch_scc1 {w3}", "s_waitcnt vmcnt(24) lgkmcnt(0)", f"s_branch {r}",
                   f"{w3}:", "s_waitcnt vmcnt(16) lgkmcnt(0)", f"s_branch {r}"]
        return [f"s_bitcmp1_b32 s{sML2}, s{sHS}", f"s_cbranch_scc0 {w}", "s_waitcnt vmcnt(8) lgkmcnt(0)", f"{r}:", "s_barrier"] + self.stamp("loop")
    def dsel(self): return [f"s_bitcmp1_b32 s{sMWR}, s{sHS}", f"s_cselect_b32 s{sD}, s{sNH}, s{sPH}"]
    def code_touch(self, sr, vt, first):
        lb = self.lab("cw")
        return [[f"s_getpc_b64 s[{sr}:{sr+1}]", f"{lb}:"], [f"s_mov_b32 s{sr+2}, L_code_end-{lb}"], [f"s_mov_b32 s{sr+3}, 0x20000"],
                [f"v_mbcnt_lo_u32_b32 v{vt}, -1, 0"], [f"v_mbcnt_hi_u32_b32 v{vt}, -1, v{vt}"], [f"v_lshlrev_b32 v{vt}, 14, v{vt}"],
                [f"s_lshr_b32 s{sT1}, s2, 3"], [f"s_lshl_b32 s{sT1}, s{sT1}, 9"]]
    def finish(self, L, fifo0, fifo1, name, vmq=None, pre=()):
        if vmq is not None: L = vmpass(L, vmq)
        L, fifo, _ = autowait(L, fifo0, look=False)
        self.fifo = fifo
        L, added = fix_hazards(L, pre)
        if fifo1 is not None:
            ds = []
            for l in L:
                if "lgkmcnt(0)" in l: ds = []
                elif l.startswith("ds_"): ds.append(l)
            itr = iter(ds)
            assert all(x in itr for x in fifo1), (name, ds, fifo1)
        L = [l for l in L if not l.startswith("buffer_nop")]
        if name[:2] in ("qk", "pv"):
            for pat in P.STRIP: L = [l for l in L if not l.startswith(pat)]
        if name == "tail":
            for pat in P.STRIPT: L = [l for l in L if not l.startswith(pat)]
        if name == "head":
            i0 = next(k for k, l in enumerate(L) if l.startswith("s_barrier"))
            for pat in P.STRIPH: L = L[:i0+1] + [l for l in L[i0+1:] if not l.startswith(pat)]
        self.sec[name] = (L, added)
        return L

    def qk_body(self, dma):
        sc = Sch()
        self.kfrags(sc, "k", None, "B", None); sc.init = [("k", k) for k in range(P.NPK)]
        end, _ = self.qk_mfmas(sc, "k")
        n = sc.n(); bg = n - 1 - P.BB
        self.vfrags(sc, "v", "B", None, f"s{sD}", n=P.NPV, use=n + 3)
        sc.bar("B", bg, self.loop_bar("qk"))
        sc.fix(24, self.dsel())
        if dma: self.place_dma(sc, self.kv_loop_items(sA, sOA), P.DQ)
        else: sc.chain(0, 20, self.swap_items() + self.cw2())
        a = self.softmax("b0", []); b = self.softmax("b1", ["b0"])
        sc.chain(end["b0"] + 2, n - 2, a + b, rels=[0] * len(a) + [end["b1"] + 2] * len(b))
        sc.fix(n - 1, [f"s_add_u32 s{sHS}, s{sHS}, 1", f"s_bitcmp1_b32 s{sMSP}, s{sHS}"])
        L = self.finish(sc.run(), self.kfifo(), self.vfifo(), "qk" + ("" if dma else "_n"))
        self.emit_fallbacks(L)
        return L
    def cw2(self):
        if not P.CW2: return []
        it = self.code_touch(sX, T2, False)
        if P.WOT:
            k = next(k for k, x in enumerate(it) if x[0].startswith("v_lshlrev"))
            it[k:k+1] = [[f"s_mul_i32 s{sT1}, s{sHd}, 32"], [f"s_lshl_b32 s{sT2}, s{sBt}, 2"], [f"s_add_u32 s{sT1}, s{sT1}, s{sT2}"], [f"s_add_u32 s{sT1}, s{sT1}, s{sW}"],
                         [f"s_mul_i32 s{sT1}, s{sT1}, 7168"], [f"s_add_u32 s{sWQ}, s{sWO}, s{sT1}", f"s_addc_u32 s{sWQ+1}, s{sWO+1}, 0"], [f"s_mov_b32 s{sWQ+2}, 7168"],
                         [f"v_lshlrev_b32 v{T2}, 7, v{T2}"], [f"buffer_load_dword a{DUM+1}, v{T2}, {srd(sWQ)}, 0 offen"], [f"v_lshlrev_b32 v{T2}, 7, v{T2}"]]
        it.append([f"s_lshl_b32 s{sT2}, s{sW}, 7"]); it.append([f"s_add_u32 s{sT1}, s{sT1}, s{sT2}"]); it.append([f"v_add_u32 v{T2}, s{sT1}, v{T2}"])
        it.append([f"buffer_load_dword a{DUM}, v{T2}, {srd(sX)}, 0 offen"])
        return it
    ALLST = [(t, s) for t in TL for s in TL[t]]
    def pv_body(self, dma):
        sc = Sch()
        self.vfrags(sc, "v", None, "B", None); sc.init = [("v", k) for k in range(P.NPV)]
        start, _ = self.pv_mfmas(sc, "v")
        n = sc.n(); bg = n - 1 - P.BB
        self.kfrags(sc, "k", "B", None, f"s{sD}", n=P.NPK, use=n)
        sc.bar("B", bg, self.loop_bar("pv"))
        sc.fix(bg - 2, self.dsel())
        if dma: self.place_dma(sc, self.kv_loop_items(sB_, sOB), P.DP)
        else: sc.chain(start["a"], bg - 3, self.swap_items() + self.cw2())
        a = self.softmax("a0", ["b0", "b1"]); b = self.softmax("a1", ["b0", "b1", "a0"])
        sc.chain(-1, start["a"] - 2, a + b, rels=[-1] * len(a) + [1] * len(b))
        sc.fix(n - 1, [f"s_add_u32 s{sHS}, s{sHS}, 1", f"s_bitcmp1_b32 s{sMSP}, s{sHS}"])
        L = self.finish(sc.run(), self.vfifo(), self.kfifo(), "pv" + ("" if dma else "_n"))
        self.emit_fallbacks(L, self.ALLST)
        return L

    HW, HX = 128, 136
    WA, XA, X5A = 232, 236, 238
    FL = FLP
    flb = 0
    def w_items(self, c):
        slot = [SLOT(1), SLOT(2), SLOT(0)][c % 3]
        it = []
        for g in range(2):
            it.append([f"s_add_u32 m0, s{sW8K}, {slot + g*4096}"])
            for u in range(4):
                it.append([f"buffer_load_dwordx4 v{self.HW+4*g+u}, {srd(sWQ)}, s{sCW} offen offset:{u*1024}{' nt' if c in P.WNT0 else P.WNT} lds ; @t:c{c}"])
        it.append([f"s_add_u32 s{sCW}, s{sCW}, 0x80000", f"s_cmp_eq_u32 s{sCW}, 0x380000"]); it[-1].append(f"s_cselect_b32 s{sCW}, 0, s{sCW}")
        return it
    XM = [SLOT(4), SLOT(3), SLOT(3) + 16384]
    def x_items(self, c):
        it = [[f"s_add_u32 m0, s{sT2}, {self.XM[c % 3]}"]]
        for k in range(4): it.append([f"buffer_load_dwordx4 v{self.HX+k}, {srd(sX)}, s{sCX} offen offset:{k*1024}{' nt' if c in P.WNT0 else P.WNT} lds ; @t:c{c}"])
        it.append([f"s_add_u32 m0, s{sT3}, {SLOT(4) + 16384 + 4096*(c % 3)}"])
        it.append([f"buffer_load_dwordx4 v{self.HX+4}, {srd(sX)}, s{sCX} offen{' nt' if c in P.WNT0 else P.WNT} lds ; @t:c{c}"])
        it.append([f"s_add_u32 s{sCX}, s{sCX}, 128", f"s_cmp_eq_u32 s{sCX}, 896", f"s_cselect_b32 s{sCX}, 0, s{sCX}"])
        return it
    def kv_head_items(self, n, reg=None):
        sr, so = (sA, sOA) if n % 2 == 0 else (sB_, sOB)
        if reg is None: reg = n in (0, 1, 6, 7)
        tag = "KV"[n % 2] + str(n // 2)
        it = []
        for g in range(2):
            it.append([f"s_mov_b32 s{so}, {(n//2)*P.KVINC + g*4096}"] + ([] if reg else [f"s_add_u32 m0, s{sW8K}, {SLOT(n) + g*4096}"]))
            for u in range(4):
                dst = STR_(n, 4 * g + u) + ", " if reg else ""
                it.append([f"buffer_load_dwordx4 {dst}v{VO+(u&1)}, {srd(sr)}, s{so} offen offset:{u*1024}{P.KVNT}{'' if reg else ' lds'} ; @t:{tag}"])
        return it
    def flush_items(self, n):
        base = SLOT(n) & ~65535
        it = [[f"v_add_u32 v{FLP}, {u32(base - self.flb)}, v{FLP}"]] if base != self.flb else []
        self.flb = base
        return it + [["@vmw " + "KV"[n % 2] + str(n // 2)]] + [[f"ds_write_b128 v{FLP}, {STR_(n, k)} offset:{SLOT(n) - base + k*1024}"] for k in range(8)]
    def uni_plan(self):
        N = lambda k: 80 if k % 2 == 0 else 85
        g0 = {2: 0}
        for k in range(3, 32): g0[k] = g0[k - 1] + N(k - 1)
        bar = lambda k: g0[k + 1] - 1 - P.BB
        G = {p: int(P.UG[0] + (P.UG[1] - P.UG[0]) * ((p - 64) / 191) ** P.UP) for p in range(64, 256)}
        ev = []
        tag = lambda p: "KV"[(p >> 3) & 1] + str(p >> 4) + ("" if p % 8 == 7 or p < 64 else f".{p % 8}")
        staged = {p for p in range(48, 64)} | {p for p in G if G[p] <= bar(p // 8 - 5) + 1}
        wr = {}
        fl = []
        for p in sorted(staged):
            n = p // 8
            g = max(G[p + 16] - P.UF, bar(n - 5) + 1, 0)
            if p + 16 in staged:
                G[p + 16] = max(G[p + 16], g + 3)
            assert g < bar(n - 1) - 2
            fl.append((g, p))
        for p in range(65, 256): G[p] = max(G[p], G[p - 1] + 1)
        for g, p in fl:
            n = p // 8; base = SLOT(n) & ~65535
            it = [f"v_add_u32 v{FLP}, {u32(base - self.flb)}, v{FLP}"] if base != self.flb else []
            self.flb = base
            wr[p] = f"ds_write_b128 v{FLP}, {STR_(n, p % 8)} offset:{SLOT(n) - base + (p % 8)*1024}"
            if it: ev.append((g - 1, 0, it))
            ev.append((g, 1, (["@vmw " + tag(p | P.UW)] if p % (P.UW + 1) == 0 or p - 1 not in staged else []) + [wr[p]]))
        m0 = None
        for p in range(64, 256):
            n = p // 8; g, u = (p >> 2) & 1, p & 3
            sr, so = (sA, sOA) if n % 2 == 0 else (sB_, sOB)
            pre = []
            if u == 0: pre.append(f"s_mov_b32 s{so}, {(n//2)*P.KVINC + g*4096}")
            if p in staged:
                pre.append("@waitt " + wr[p - 16]); dst = STR_(n, p % 8) + ", "
            else:
                dst = ""
                if m0 != SLOT(n) + g * 4096: m0 = SLOT(n) + g * 4096; pre.append(f"s_add_u32 m0, s{sW8K}, {m0}")
            for x in pre: ev.append((G[p] - 1, 3, [x]))
            ev.append((G[p], 2, [f"buffer_load_dwordx4 {dst}v{VO+(u&1)}, {srd(sr)}, s{so} offen offset:{u*1024}{P.KVNT}{'' if dst else ' lds'} ; @t:{tag(p)}"]))
            assert G[p] < bar(n - 1) - 40
        ev.sort(key=lambda x: (x[0], x[1]))
        self.nstaged = len(staged)
        out = {k: [] for k in range(2, 30)}
        for g, _, it in ev:
            k = max(k for k in range(2, 30) if g0[k] - 1 <= g)
            out[k].append((g - g0[k], it))
        return out
    def static_body(self, k, ops, vq, last):
        sc = Sch(); qk = k % 2 == 0
        d0 = f"s{sNH}" if (k - 1) % 5 >= 3 else f"s{sPH}"
        if qk:
            self.kfrags(sc, "k", None, "B", None); sc.init = [("k", j) for j in range(P.NPK)]
            end, _ = self.qk_mfmas(sc, "k"); n = sc.n()
            self.vfrags(sc, "v", "B", None, d0, n=P.NPV, use=n + 3)
            a = self.softmax("b0", []); b = self.softmax("b1", ["b0"])
            sc.chain(end["b0"] + 2, n - 2, a + b, rels=[0] * len(a) + [end["b1"] + 2] * len(b))
        else:
            self.vfrags(sc, "v", None, "B", None); sc.init = [("v", j) for j in range(P.NPV)]
            start, _ = self.pv_mfmas(sc, "v"); n = sc.n()
            self.kfrags(sc, "k", "B", None, d0, n=P.NPK, use=n)
            a = self.softmax("a0", ["b0", "b1"]); b = self.softmax("a1", ["b0", "b1", "a0"])
            sc.chain(-1, start["a"] - 2, a + b, rels=[-1] * len(a) + [1] * len(b))
        bg = n - 1 - P.BB
        sc.bar("B", bg, ["@vmw " + "KV"[(k + 1) % 2] + str((k + 1) // 2) + " lgkmcnt(0)", "s_barrier"] + (self.stamp(11 + k) if P.STAMP == 1 or (P.STAMP == 4 and k % 4 == 1) else []))
        if not isinstance(ops, str):
            for g, it in ops: sc.fix(g, it)
            if k in P.UT: sc.chain(0 if qk else start["a"], 20 if qk else bg - 3, self.cw2())
        elif ops == "T": sc.chain(0 if qk else start["a"], 20 if qk else bg - 3, self.cw2())
        else:
            for op, (g0, x) in zip(ops, (P.PQ if qk else P.PP).get(ops, [])):
                if op == "F":
                    t = self.stg.pop(0); assert k + 1 <= t <= k + 4, (k, t)
                    sc.chain(g0, x, self.flush_items(t)); assert x < bg
                else:
                    t = self.nxt; self.nxt += 1
                    it = self.kv_head_items(t, op == "L")
                    if op == "L":
                        assert t - 2 not in self.stg; self.stg.append(t)
                        if ops == "FL": it = [["@waitw"]] + it
                    else: assert t <= k + 4
                    self.place_dma(sc, it, [g0 + x * j for j in range(8)])
        if last: sc.chain(n - 8, n - 1, last)
        L = self.finish(sc.run(), self.fifo, self.vfifo() if qk else self.kfifo(), f"{'qk' if qk else 'pv'}{k}", vmq=vq)
        self.emit_fallbacks(L, () if qk else self.ALLST)
        return L

    TV = 141
    def touch(self, n):
        return [f"s_mov_b32 s{sT1}, {(n//2)*32768}", f"buffer_load_dword a{LS(0)+1}, v{self.TV}, {srd(sA if n % 2 == 0 else sB_)}, s{sT1} offen offset:768 nt"]
    def head_sched(self):
        sc = Sch(**P.SH)
        FL, EXO, EXP = self.FL, T0, T1
        XF = lambda c, ks, s: 64 + 24 * (c % 2) + 12 * ks + 4 * s
        QXA = lambda i: SB + 4 * ((i + 6) % 8)
        fk = 0; done = {}
        for c in range(7):
            rel = f"p{c}" if c else None; due = f"p{c+1}"
            wreg, wb = (self.WA, [SLOT(1), 0, SLOT(0)][c % 3]) if c % 3 != 1 else (self.WA + 2, 0)
            for ks in range(2):
                for s in range(3):
                    a = f"v{self.XA+ks} offset:{self.XM[c%3] - SLOT(3) + 2048*s}" if s < 2 else f"v{self.X5A+ks} offset:{4096*(c%3)}"
                    sc.add_frag(("x", c, ks, s), ("x", c % 2, ks, s), [f"ds_read_b128 {ar(XF(c,ks,s))}, {a}"], rel=rel, due=due, q="x")
            seq = [(ks, j) for ks in range(2) for j in range(16)] if c < 6 else [(ks, j) for j in range(16) for ks in range(2)]
            for (ks, j) in seq:
                f = ("w", c, ks, j)
                sc.add_frag(f, fk % 16, self.trd(fk, wreg, j, wb + ks * 4096), rel=rel, due=due)
                z = c == 0 and ks == 0
                for s in range(3 if j % 2 == 0 else 2):
                    o = vr(OM(s, j)) if s < 2 else vr(QXA(j // 2))
                    done[j] = sc.m(f"{MF} {o}, {ar(FB(fk))}, {ar(XF(c,ks,s))}, {'0' if z else o}", [f, ("x", c, ks, s)])
                fk += 1
            lines = [f"@vmw c{c+1} lgkmcnt(0)" if c < 6 else "s_waitcnt lgkmcnt(0)", "s_barrier"] + self.stamp(4 + c)
            sc.bar(due, sc.n() - 1 - P.BB, lines)
        nq = sc.n(); p6 = nq - 80 - 1 - P.BB; p7 = nq - 1 - P.BB
        self.kfrags(sc, "k0", "p7", "B0", None, first=True)
        for i in range(8):
            sc.add_frag(("qx", i), ("qx", i), [f"ds_read_b128 {ar(QX(i))}, v{FL} offset:{SLOT(1) + i*1024}"], rel="BX", q="qx")
        end, use = self.qk_mfmas(sc, "k0", True)
        n0 = sc.n(); b0 = n0 - 1 - P.BB
        sc.bar("B0", b0, ["s_waitcnt lgkmcnt(0)", "s_barrier"] + self.stamp(11))
        self.vfrags(sc, "v0", "B0", "B1", None, first=True)
        start, _ = self.pv_mfmas(sc, "v0", True)
        n1 = sc.n(); b1 = n1 - 1 - P.BB
        sc.bar("B1", b1, ["@vmw K1 lgkmcnt(0)", "s_barrier"] + self.stamp(12))
        self.kfrags(sc, "k1", "B1", None, "0x10000", n=P.NPK, use=n1)
        mul = lambda r: [f"v_mul_f32 v{r}, s{sSC}, v{r}"]
        xl = []; xr = []
        for i in range(8):
            it = []
            for s in range(2):
                r = OM(s, 2 * i); q = QM(s, i)
                it += [mul(r + k) for k in range(8)]
                if s == 1: it += [[f"v_permlane16_swap_b32 v{QM(0,i)+k}, v{QM(0,i)+2+k}"] for k in range(2)]
                it += [[f"v_cvt_pk_bf16_f32 v{q+k}, v{r+2*k}, v{r+2*k+1}"] for k in (0, 2, 1, 3)]
            it += [[f"v_permlane16_swap_b32 v{QM(1,i)+k}, v{QM(1,i)+2+k}"] for k in range(2)]
            sc.chain(done[2 * i + 1] + 2, max(use[(0, i)] - 2, done[2 * i + 1] + 2), it, hard=2.5)
            r = QXA(i)
            x = [mul(r + k) for k in range(4)] + [[f"v_cvt_pk_bf16_f32 v{r+k}, v{r+2*k}, v{r+2*k+1}"] for k in range(2)]
            xl.append(x)
        wr = lambda i: [[f"ds_write_b64 v{EXO}, {vr(QXA(i),2)} offset:{i*1024}"], [f"ds_write_b64 v{EXP}, {vr(QXA(i),2)} offset:{i*1024}"]]
        bx = nq + 10
        def xch(seq, g1):
            it = []; rl = []
            for k, i in seq:
                x = xl[i] if k == "c" else wr(i)
                it += x; rl += [done[2 * i] + 2 if k == "c" else p7 + 1] * len(x)
            sc.chain(rl[0], g1, it, rels=rl, hard=2.5)
        xch([("c", 0), ("c", 1), ("w", 0), ("w", 1)], nq - 2)
        xch([("c", i) for i in range(2, 7)] + [("w", i) for i in range(2, 7)] + [("c", 7), ("w", 7)], bx)
        sc.bar("BX", bx + 1, ["@waitw", "s_barrier"], clears=False)
        sc.chain(p6 + 2, p6 + 40, self.flush_items(0))
        assert p6 + 40 + 8 < done[9]
        sc.chain(use[(2, 7)], b0 - 4, self.flush_items(1))
        a0 = self.softmax("a0", [], init=(0, 1), add=True, first=True); a1 = self.softmax("a1", ["a0"], add=True, first=True)
        sc.chain(end["a1"] + 2, start["a"] - 2, a0 + a1)
        c0 = self.softmax("b0", ["a0", "a1"], init=(2,), add=True, first=True); c1 = self.softmax("b1", ["a0", "a1", "b0"], add=True, first=True)
        sc.chain(start["a"] - 1, start["b"] - 2, c0 + c1, rels=[0] * len(c0) + [end["b1"] + 2] * len(c1))
        free = {"c3": "p1", "c4": "p2", "c5": "p3", "c6": "p4", "K1": "p5", "V1": "p6", "K2": "p7", "V2": "B0"}
        bgap = {v[0]: g for g, v in sc.bars.items()}
        lastg = -10
        for (nm, g0, st) in P.HQ:
            if nm[0] == "c": it = self.w_items(int(nm[1])) + self.x_items(int(nm[1]))
            else: it = self.kv_head_items(2 * int(nm[1]) + (nm[0] == "V"))
            if nm in free: g0 = max(g0, bgap[free[nm]] + 2)
            g0 = max(g0, lastg + 3)
            nb = sum(1 for x in it if x[0].startswith("buffer"))
            pos = [g0 + k * st for k in range(nb)]
            self.place_dma(sc, it, pos); lastg = pos[-1]
            if nm[0] == "c": assert lastg < bgap[f"p{nm[1]}"], nm
        assert lastg < b1
        for (n, g) in P.TCH:
            if g >= 0: sc.fix(g, self.touch(n))
        sc.fix(n1 - 1, [f"v_add_u32 v{VA}, s{sH}, v{VA}", f"v_add_u32 v{VA+1}, s{sH}, v{VA+1}"])
        return sc.run()

    def tail_sched(self):
        sc = Sch(**P.ST)
        WAr = lambda st, np_, rd: 128 + 4 * st + 2 * np_ + rd
        SO, SP_, SX_, MA = 140, 141, 142, 143
        MB, LN, FO, FP = CI(0), CI(0) + 1, CI(0) + 2, CI(0) + 3
        TT = [CI(1) + k for k in range(4)]
        units = [144 + 8 * k for k in range(6)] + [SB + 8 * k for k in range(5)]
        RV = lambda i: OM(0, 2 * i + 1)
        BX = lambda i: OM(1, 2 * i + 1)
        self.kfrags(sc, "k", None, "B30", None); sc.init = [("k", k) for k in range(P.NPK)]
        end, _ = self.qk_mfmas(sc, "k")
        n0 = sc.n(); b0 = n0 - 1 - P.BB
        def wo_items(j, slot):
            it = []
            for g in range(2):
                it.append([f"s_add_u32 m0, s{sW8K}, {SLOT(slot) + g*4096}"] + ([f"s_add_u32 s{sT0}, s{sCO+j}, 28672"] if g else []))
                for u in range(4):
                    it.append([f"buffer_load_dwordx4 v{VO+u}, {srd(sA)}, s{sT0 if g else sCO+j} offen offset:{u*1024} lds ; @t:o{j}"])
            return it
        sw = [f"s_mul_i32 s{sT0}, s{sHd}, 229376", f"s_add_u32 s{sA}, s{sWO}, s{sT0}", f"s_addc_u32 s{sA+1}, s{sWO+1}, 0", f"s_mov_b32 s{sA+2}, 229376",
              f"v_mbcnt_lo_u32_b32 v{T2}, -1, 0", f"v_mbcnt_hi_u32_b32 v{T2}, -1, v{T2}",
              f"v_bfe_u32 v{VO}, v{T2}, 2, 3", f"v_mul_u32_u24 v{VO}, 896, v{VO}", f"v_lshrrev_b32 v{VO+1}, 5, v{T2}",
              f"v_lshl_add_u32 v{VO}, v{VO+1}, 6, v{VO}", f"v_lshrrev_b32 v{VO+1}, 3, v{T2}", f"v_and_b32 v{VO+1}, 2, v{VO+1}",
              f"v_and_b32 v{VO+2}, 3, v{T2}", f"v_xor_b32 v{VO+1}, v{VO+1}, v{VO+2}", f"v_lshl_add_u32 v{VO}, v{VO+1}, 4, v{VO}",
              f"s_mul_i32 s{sT0}, s{sW}, 57344", f"v_add_u32 v{VO}, s{sT0}, v{VO}"]
        sw += [f"v_add_u32 v{VO+u}, {6144*u}, v{VO}" for u in range(1, 4)]
        sw = [[x] for x in sw]
        sw[1:3] = [sw[1] + sw[2]]
        for j in range(7):
            if j == 0: sw.append([f"s_lshl_b32 s{sCO}, s{sC}, 7"])
            else: sw.append([f"s_add_u32 s{sCO+j}, s{sCO+j-1}, 128", f"s_cmp_eq_u32 s{sCO+j}, 896", f"s_cselect_b32 s{sCO+j}, 0, s{sCO+j}"])
            sw.append([f"s_mul_i32 s{sCS+j}, s{sCO+j}, 160"])
        sc.chain(0, 24, sw)
        a = self.softmax("b0", []); b = self.softmax("b1", ["b0"])
        sc.chain(end["b0"] + 2, n0 - 2, a + b, rels=[0] * len(a) + [end["b1"] + 2] * len(b))
        self.place_dma(sc, wo_items(0, 2), P.WO0)
        if P.WO1: self.place_dma(sc, wo_items(1, 3), P.WO1)
        sc.bar("B30", b0, [f"s_waitcnt vmcnt({16 if P.WO1 else 8}) lgkmcnt(0)", "s_barrier"] + self.stamp(41))
        self.vfrags(sc, "v", "B30", "B31", f"s{sNH}")
        start, fin = self.pv_mfmas(sc, "v")
        n1 = sc.n(); b1 = n1 - 1 - P.BB
        a = self.softmax("a0", ["b0", "b1"]); b = self.softmax("a1", ["b0", "b1", "a0"])
        sc.chain(n0 - 1, start["a"] - 2, a + b, rels=[0] * len(a) + [n0 + 1] * len(b))
        if not P.WO1: self.place_dma(sc, wo_items(1, 3), [n0 + 4 + 5 * k for k in range(8)])
        L_, G_, R_ = units[0], units[0] + 1, units[0] + 2
        su = [f"v_mbcnt_lo_u32_b32 v{L_}, -1, 0", f"v_mbcnt_hi_u32_b32 v{L_}, -1, v{L_}",
              f"v_lshrrev_b32 v{G_}, 5, v{L_}", f"v_bfe_u32 v{R_}, v{L_}, 2, 3", f"v_lshlrev_b32 v{R_}, 6, v{R_}",
              f"v_lshl_add_u32 v{G_}, v{G_}, 10, v{R_}", f"v_and_b32 v{R_}, 3, v{L_}", f"v_lshl_add_u32 v{G_}, v{R_}, 3, v{G_}",
              f"v_and_b32 v{R_}, 16, v{L_}", f"v_lshl_add_u32 v{G_}, v{R_}, 1, v{G_}",
              f"s_and_b32 s{sT1}, s{sW}, 1", f"s_mul_i32 s{sT2}, s{sT1}, 2080", f"v_xor_b32 v{WAr(0,0,0)}, s{sT2}, v{G_}",
              f"v_xor_b32 v{WAr(0,0,1)}, 2048, v{WAr(0,0,0)}", f"v_xor_b32 v{WAr(0,1,0)}, 32, v{WAr(0,0,0)}", f"v_xor_b32 v{WAr(0,1,1)}, 2080, v{WAr(0,0,0)}"]
        su += [f"v_add_u32 v{WAr(1,0,0)+k}, 0x10000, v{WAr(0,0,0)+k}" for k in range(4)]
        su += [f"v_lshlrev_b32 v{L_}, 4, v{L_}", f"s_xor_b32 s{sT2}, s{sW8K}, 8192", f"v_add_u32 v{MA}, s{sT2}, v{L_}",
               f"s_lshl_b32 s{sT2}, s{sW}, 12", f"s_lshl_b32 s{sT1}, s{sT1}, 10", f"s_add_u32 s{sT2}, s{sT2}, s{sT1}",
               f"v_add_u32 v{SO}, s{sT2}, v{L_}", f"v_xor_b32 v{SP_}, 1024, v{SO}",
               f"s_lshl_b32 s{sT2}, s{sW}, 10", f"s_add_u32 s{sT2}, s{sT2}, 16384", f"v_add_u32 v{SX_}, s{sT2}, v{L_}",
               f"v_add_u32 v{G_}, {SLOT(4)}, v{MA}"]
        sc.chain(n0 + 3, start["a"] - 1, [[x] for x in su])
        w = [[f"v_accvgpr_read_b32 v{CI(2)+1}, a{LS(2)}"], [f"ds_write_b64 v{G_}, {vr(CI(2),2)}"]]
        w += [[f"ds_write_b128 v{MA}, {ar(OX(2*i+1))} offset:{i*1024}"] for i in range(8)]
        sc.chain(start["a"] + 2, b1 - 6, w)
        sc.bar("B31", b1, ["@vmw o0 lgkmcnt(0)", "s_barrier"] + self.stamp(42))
        fk = [0]; ui = [0]; buse = {}
        def nunit():
            r = units[(ui[0] + 1) % len(units)]; ui[0] += 1; return r
        SLW = [2, 3, 1, 4, 0, 2, 3]
        def group(j, np_, subs, rel, due):
            sl = SLW[j]
            acc = {s: nunit() for s in subs}
            for hi in range(2):
                for i in range(8):
                    f = ("o", fk[0]); k = fk[0]; fk[0] += 1
                    off = (sl & 1) * 32768 + i * 4096 + hi * 512
                    sc.add_frag(f, k % 16, [f"ds_read_b64_tr_b16 {ar(FB(k)+2*rd,2)}, v{WAr(sl>>1,np_,rd)} offset:{off}" for rd in range(2)], rel=rel, due=due)
                    for s in subs:
                        o = vr(acc[s] + 4 * hi)
                        bop = vr(OM(s, 2 * i)) if s < 2 else vr(BX(i))
                        g = sc.m(f"{MF} {o}, {ar(FB(k))}, {bop}, {'0' if i == 0 else o}", [f] + ([("bx", i)] if s == 2 else []))
                        buse.setdefault((s, i), g)
            it = []
            for s in subs:
                r = acc[s]
                if s < 2 and P.INRED and not P.NRM:
                    mu = lambda k: [[f"v_mul_f32 v{r+k}, v{r+k}, v{T0+s}"]]
                    cv = lambda k: [[f"v_cvt_pk_bf16_f32 v{r+k}, v{r+2*k}, v{r+2*k+1}"]]
                    it += mu(0) + mu(1) + mu(2) + mu(3) + cv(0) + mu(4) + mu(5) + cv(1) + mu(6) + mu(7) + cv(2) + cv(3)
                else: it += [[f"v_cvt_pk_bf16_f32 v{r+k}, v{r+2*k}, v{r+2*k+1}"] for k in range(4)]
                vo = SX_ if s == 2 else (SO if np_ == 0 else SP_)
                it.append([f"buffer_store_dwordx4 {vr(r)}, v{vo}, {srd(sWS)}, s{sCS+j} offen offset:{2048*s if s < 2 else 0}{P.STMOD}"])
            return g, it
        pend = []
        def G(j, np_, subs, rel, due):
            g0 = sc.n()
            g, it = group(j, np_, subs, rel, due)
            if pend: sc.chain(g0 + 1, g - 2, pend.pop())
            pend.append(it)
            return g
        g0 = sc.n()
        G(0, 0, (0, 1), "B31", "Bc"); ga = G(0, 1, (0, 1), "B31", "Bc")
        sc.bar("Ba", ga - P.BB, ["@vmw o1", "s_barrier"] + self.stamp(43), clears=P.STAMP in (1, 3))
        G(1, 0, (0, 1), "Ba", "Bc"); gb = G(1, 1, (0, 1), "Ba", "Bc")
        sc.bar("Bb", gb - P.BB, ["@waitw", "@vmw o2", "s_barrier"] + self.stamp(44), clears=P.STAMP in (1, 3))
        for i in range(8):
            sc.add_frag(("bx", i), ("bx", i), [f"ds_read_b64 {vr(BX(i)+2,2)}, v{MA} offset:{i*1024}"], rel="Bb", due="Bc", q="bx")
        G(2, 1, (0, 1), "Bb", None)
        G(0, 0, (2,), "Bb", "Bc"); gc = G(1, 0, (2,), "Bb", "Bc")
        sc.bar("Bc", gc - 4, ["@vmw o3 lgkmcnt(0)", "s_barrier"] + self.stamp(45))
        G(2, 0, (0, 1, 2), "Bb", None)
        G(3, 0, (0, 1, 2), "Bc", None); gd = G(3, 1, (0, 1), "Bc", None)
        sc.bar("Bd", gd - P.BB, ["@vmw o4", "s_barrier"] + self.stamp(46), clears=P.STAMP in (1, 3))
        G(4, 0, (0, 1, 2), "Bd", None); ge = G(4, 1, (0, 1), "Bd", None)
        sc.bar("Be", ge - P.BB, ["@vmw o6", "s_barrier"] + self.stamp(47), clears=P.STAMP in (1, 3))
        for j in (5, 6):
            G(j, 0, (0, 1, 2), "Be", None); G(j, 1, (0, 1), "Be", None)
        for i in range(8):
            it = []
            for s in range(2):
                r = OM(s, 2 * i)
                if P.NRM: it += [[f"v_mul_f32 v{r+k}, v{r+k}, v{T0+s}"] for k in range(8)]
                it += [[f"v_cvt_pk_bf16_f32 v{r+k}, v{r+2*k}, v{r+2*k+1}"] for k in range(4)]
            r0 = fin[(1, 2 * i + 1)] + 2
            if P.NRM and i == 0:
                it = [[f"v_accvgpr_read_b32 v{T0}, a{LS(0)}"], [f"v_accvgpr_read_b32 v{T1}, a{LS(1)}"], [f"v_rcp_f32 v{T0}, v{T0}"], [f"v_rcp_f32 v{T1}, v{T1}"]] + it
                allp = []; allr = [fin[("l", 1)] + 2] * 4
            if P.NRM:
                allp += it; allr += [r0] * (len(allp) - len(allr))
            else: sc.chain(r0, max(r0, buse[(0, i)] - 2), it, hard=2.5)
        if P.NRM: sc.chain(allr[0], buse[(0, 7)] - 2, allp, rels=allr, hard=P.NH)
        gm = buse[(0, 7)]
        m = [[f"v_xor_b32 v{MB}, 8192, v{MA}"], [f"v_add_u32 v{LN}, {SLOT(4)}, v{MB}"], [f"ds_read_b64 {vr(TT[0],2)}, v{LN}"]]
        m += [[f"ds_read_b128 {vr(RV(i))}, v{MB} offset:{i*1024}"] for i in range(8)]
        m += [[f"v_add_u32 v{WAr(2,0,0)+k}, 0x20000, v{WAr(0,0,0)+k}"] for k in range(4)]
        if P.INRED:
            if not P.NRM: m = [[f"v_accvgpr_read_b32 v{T0}, a{LS(0)}"], [f"v_accvgpr_read_b32 v{T1}, a{LS(1)}"], [f"v_rcp_f32 v{T0}, v{T0}"], [f"v_rcp_f32 v{T1}, v{T1}"]] + m
            m += [[f"v_min_f32 v{T2}, v{CI(2)}, v{TT[0]}"], [f"v_sub_f32 v{FO}, v{T2}, v{CI(2)}"], [f"v_sub_f32 v{FP}, v{T2}, v{TT[0]}"],
                  [f"v_exp_f32 v{FO}, v{FO}"], [f"v_exp_f32 v{FP}, v{FP}"], [f"v_mul_f32 v{T2}, v{FO}, v{CI(2)+1}"], [f"v_fmac_f32 v{T2}, v{FP}, v{TT[1]}"],
                  [f"v_rcp_f32 v{T2}, v{T2}", "s_nop 0"], [f"v_mul_f32 v{FO}, v{FO}, v{T2}"], [f"v_mul_f32 v{FP}, v{FP}, v{T2}"]]
        else:
            m += [[f"v_min_f32 v{T0}, v{CI(2)}, v{TT[0]}"], [f"v_sub_f32 v{FO}, v{T0}, v{CI(2)}"], [f"v_sub_f32 v{FP}, v{T0}, v{TT[0]}"],
                  [f"v_exp_f32 v{FO}, v{FO}"], [f"v_exp_f32 v{FP}, v{FP}"], [f"v_accvgpr_read_b32 v{T0}, a{LS(0)}"],
                  [f"v_accvgpr_read_b32 v{T1}, a{LS(1)}"], [f"v_mul_f32 v{T2}, v{FO}, v{CI(2)+1}"], [f"v_fmac_f32 v{T2}, v{FP}, v{TT[1]}"],
                  [f"v_mov_b32_dpp v{T2}, v{T0} quad_perm:[0,1,2,3] row_mask:0x1 bank_mask:0xf"],
                  [f"v_mov_b32_dpp v{T2}, v{T1} quad_perm:[0,1,2,3] row_mask:0x2 bank_mask:0xf"],
                  [f"v_bfe_u32 v{T0}, v{MA}, 2, 7"], [f"s_lshl_b32 s{sT1}, s{sW}, 7"], [f"v_rcp_f32 v{T2}, v{T2}"],
                  [f"v_and_b32 v{T1}, 60, v{T0}"], [f"v_add_u32 v{T0}, s{sT1}, v{T0}"], [f"s_lshr_b32 s{sT1}, s{sW}, 1"],
                  [f"s_lshl_b32 s{sT1}, s{sT1}, 6"], [f"s_add_u32 s{sT1}, s{sT1}, 512"], [f"v_add_u32 v{T1}, s{sT1}, v{T1}"],
                  [f"s_mov_b32 s{sT1}, 143360"],
                  [f"v_mov_b32_dpp v{T0}, v{T1} quad_perm:[0,1,2,3] row_mask:0xc bank_mask:0xf"],
                  [f"buffer_store_dword v{T2}, v{T0}, {srd(sWS)}, s{sT1} offen{P.STMOD}"]]
        nst = len(m)
        for i in range(8):
            m += [[f"v_accvgpr_read_b32 v{TT[k]}, a{OX(2*i)+k}"] for k in range(4)]
            m += [[f"v_mul_f32 v{RV(i)+k}, v{RV(i)+k}, v{FP}"] for k in range(4)]
            m += [[f"v_fmac_f32 v{RV(i)+k}, v{TT[k]}, v{FO}"] for k in range(4)]
            m += [[f"v_cvt_pk_bf16_f32 v{BX(i)+k}, v{RV(i)+2*k}, v{RV(i)+2*k+1}"] for k in range(2)]
            m += [[f"ds_write_b64 v{MB}, {vr(BX(i),2)} offset:{i*1024}"]]
        sc.chain(gm, gb - P.BB - 3, m)
        self.place_dma(sc, wo_items(2, 1), [g0 + 2 + 4 * k for k in range(8)])
        self.place_dma(sc, wo_items(3, 4), [ga + 4 + 5 * k for k in range(8)])
        p = gc - 4 + 3
        for j, st in ((4, 3), (5, 5), (6, 5)):
            self.place_dma(sc, wo_items(j, SLW[j]), [p + st * k for k in range(8)]); p += 8 * st + 1
        L = sc.run()
        i1 = next(k for k, l in enumerate(L) if l.startswith("v_min_f32"))
        i2 = next(k for k, l in enumerate(L) if "@t:o3" in l)
        assert i1 < i2
        if P.INRED:
            i1 = next(k for k, l in enumerate(L) if l.startswith(f"v_rcp_f32 v{T1},")); i2 = next(k for k, l in enumerate(L) if l.startswith("v_mul_f32") and l.endswith(f"v{T0}"))
            assert i1 < i2
        L += ["s_nop 7"] + [x for it in pend.pop() for x in it]
        return L

    def fin(self):
        L = []; e = L.append
        sDB, sPR, sOU = sA, sB_, sX
        sOLD, sIDX, sMASK, sSEEN, sNEW, sPEND, sCNT, sPAR, sOWN, sSZ, sHO = 32, 33, 34, 35, 36, 37, 38, 39, 40, 41, 42
        ACC = lambda h, k, d: 24 * (h >> 1) + 8 * k + 2 * d
        LN, L4, LO, SOF, TV = 236, 237, 238, 239, 240
        PO = [241, 242, 243]; OO = [244, 245, 246]
        zero = [f"v_mov_b64 v[{r}:{r+1}], 0" for r in range(0, 192, 2)]
        e(f"s_lshl_b32 s{sT0}, s{sBLK}, 3"); e(f"s_add_u32 s{sT0}, s{sT0}, s{sBt}")
        e(f"s_lshl_b32 s{sT1}, s{sT0}, 4"); e(f"s_add_u32 s{sDB}, s94, s{sT1}"); e(f"s_addc_u32 s{sDB+1}, s95, 0"); e(f"s_mov_b32 s{sDB+2}, 4")
        e(f"s_mov_b32 s{sSZ}, {16*PART}"); e(f"s_mul_i32 s{sT0}, s{sT0}, s{sSZ}")
        e(f"s_add_u32 s{sPR}, s72, s{sT0}"); e(f"s_addc_u32 s{sPR+1}, s73, 0")
        e(f"s_mov_b32 s{sOU}, s92"); e(f"s_mov_b32 s{sOU+1}, s93"); e(f"s_mov_b32 s{sOU+2}, {8*160*1792}"); e(f"s_mov_b32 s{sOU+3}, 0x20000")
        e(f"s_lshl_b32 s{sOWN}, 1, s{sHd}"); e(f"s_mov_b32 s{sCNT}, {P.SPIN}"); e(f"s_mov_b32 s{sPEND}, 0")
        e(f"v_mbcnt_lo_u32_b32 v{LN}, -1, 0"); e(f"v_mbcnt_hi_u32_b32 v{LN}, -1, v{LN}"); e(f"v_lshlrev_b32 v{L4}, 2, v{LN}")
        e(f"v_and_b32 v{TV}, 15, v{LN}"); e(f"v_mul_u32_u24 v{LO}, 1792, v{TV}"); e(f"v_bfe_u32 v{TV}, v{LN}, 4, 1")
        e(f"v_lshl_add_u32 v{LO}, v{TV}, 6, v{LO}"); e(f"v_lshrrev_b32 v{TV}, 5, v{LN}"); e(f"v_lshl_add_u32 v{LO}, v{TV}, 4, v{LO}")
        MA_, MP_, TW = 247, 248, 249
        e(f"v_mov_b32 v{TV}, s{sOWN}"); e(f"v_mov_b32 v{TW}, s{sOWN}"); e(f"s_mov_b32 s{sPR+2}, s{sSZ}")
        e(f"v_mul_u32_u24 v{MA_}, {PART}, v{LN}"); e(f"v_add_u32 v{MA_}, {MBOX}, v{MA_}")
        e(f"v_lshlrev_b32 v{MP_}, 8, v{LN}"); e(f"v_add_u32 v{MP_}, {MBOX}, v{MP_}")
        IDN = 232
        e(f"v_and_b32 v{IDN}, 1, v{LN}"); e(f"v_lshlrev_b32 v{IDN}, 4, v{IDN}"); e(f"s_movk_i32 s{sT0}, 0x3f80"); e(f"v_lshlrev_b32 v{IDN}, v{IDN}, s{sT0}")
        e(f"v_bfe_i32 v{SOF}, v{LN}, 1, 1"); e(f"v_and_b32 v{IDN+1}, v{IDN}, v{SOF}"); e(f"v_xor_b32 v{IDN}, v{IDN}, v{IDN+1}")
        e("s_waitcnt vmcnt(0)")
        L += self.stamp(48)
        e("s_barrier")
        e(f"s_cmp_lg_u32 s{sW}, 0"); e("s_cbranch_scc1 L_f_b0")
        e(f"buffer_atomic_add v{TV}, v{L4}, {srd(sDB)}, 0 offen sc0")
        e(f"buffer_atomic_add v{TW}, v{MA_}, {srd(sPR)}, 0 offen"); e("s_waitcnt vmcnt(1)")
        e(f"ds_write_b32 v{L4}, v{TV}"); e("s_waitcnt lgkmcnt(0)")
        e("L_f_b0:"); e("s_barrier")
        e(f"ds_read_b32 v{TV}, v{L4}"); e("s_waitcnt lgkmcnt(0)"); e(f"v_readfirstlane_b32 s{sOLD}, v{TV}")
        L += self.stamp(49)
        e(f"s_and_b32 s{sMASK}, s{sOLD}, 0xffff"); e(f"s_bcnt1_i32_b32 s{sIDX}, s{sMASK}"); e(f"s_or_b32 s{sMASK}, s{sMASK}, s{sOWN}")
        if P.STAMP: e(f"v_writelane_b32 v{STR}, s{sIDX}, 60"); e(f"v_writelane_b32 v{STR}, 16, 61")
        e(f"s_cmp_lg_u32 s{sIDX}, 15"); e("s_cbranch_scc1 L_f_share")
        e(f"s_lshr_b32 s{sPEND}, s{sOLD}, 16")
        e("L_f_next:")
        e(f"s_cmp_eq_u32 s{sPEND}, 0"); e("s_cbranch_scc1 L_f_end")
        e(f"s_ff1_i32_b32 s{sIDX}, s{sPEND}"); e(f"s_bitset0_b32 s{sPEND}, s{sIDX}")
        e("L_f_share:")
        lv = list(P.LV) + [(0, 0)] * (7 - len(P.LV))
        tu = sum(u << (4 * k) for k, (u, c) in enumerate(lv)); tc = sum(c << (4 * k) for k, (u, c) in enumerate(lv))
        e(f"s_lshl_b32 s{sT0}, s{sIDX}, 2"); e(f"s_add_u32 s{sT0}, s{sT0}, s{sW}")
        e(f"s_mul_i32 s{sT1}, s{sT0}, 26"); e(f"s_lshr_b32 s{sT1}, s{sT1}, 8")
        e(f"s_mul_i32 s{sT2}, s{sT1}, 10"); e(f"s_sub_u32 s{sT0}, s{sT0}, s{sT2}")
        e(f"s_lshl_b32 s{sT1}, s{sT1}, 2")
        e(f"s_lshr_b32 s{sT2}, {hex(tu)}, s{sT1}"); e(f"s_and_b32 s{sT2}, s{sT2}, 15")
        e(f"s_lshr_b32 s{sT3}, {hex(tc)}, s{sT1}"); e(f"s_and_b32 s{sT3}, s{sT3}, 15")
        e("s_cbranch_scc0 L_f_next")
        e(f"s_mul_i32 s{sHO}, s{sBt}, 10"); e(f"s_add_u32 s{sHO}, s{sHO}, s{sT0}"); e(f"s_mul_i32 s{sHO}, s{sHO}, {16*1792}")
        e(f"s_mul_i32 s{sT1}, s{sBLK}, 896"); e(f"s_add_u32 s{sHO}, s{sHO}, s{sT1}")
        e(f"s_lshl_b32 s{sT0}, s{sT0}, 11")
        a, b, c = sNEW, sSEEN, sOLD
        for k in range(3):
            e(f"s_lshr_b32 s{a}, s{sT2}, 1"); e(f"s_and_b32 s{b}, s{sT2}, 1")
            e(f"s_mul_i32 s{c}, s{a}, 20"); e(f"s_add_u32 s{c}, s{c}, s{b}"); e(f"s_lshl_b32 s{c}, s{c}, 10"); e(f"s_add_u32 s{c}, s{c}, s{sT0}")
            e(f"s_lshl_b32 s{a}, s{a}, 2"); e(f"s_add_u32 s{a}, s{a}, s{b}"); e(f"s_lshl_b32 s{a}, s{a}, 5"); e(f"s_add_u32 s{a}, s{a}, s{sHO}")
            e(f"v_lshl_add_u32 v{PO[k]}, v{LN}, 4, s{c}"); e(f"v_add_u32 v{OO[k]}, s{a}, v{LO}")
            e(f"s_add_u32 s{sT2}, s{sT2}, 1")
        e(f"s_mov_b32 s{sNEW}, s{sMASK}"); e(f"s_mov_b32 s{sSEEN}, s{sMASK}")
        L += self.stamp(50)
        if P.STAMP: e(f"s_mov_b32 s44, {52 if P.STAMP in (1, 4) else 16}")
        e(f"s_cmp_eq_u32 s{sT3}, 2"); e("s_cbranch_scc1 L_f2_i"); e(f"s_cmp_eq_u32 s{sT3}, 1"); e("s_cbranch_scc1 L_f1_i")
        for U in (3, 2, 1):
            e(f"L_f{U}_i:")
            for q in range(4):
                e(f"s_and_b32 s{sT0}, s{sNEW}, {15 << (4*q)}"); e(f"s_cbranch_scc0 L_f{U}_h{4*q+3}")
                for h in range(4 * q, 4 * q + 4):
                    e(f"s_bitcmp1_b32 s{sNEW}, {h}"); e(f"s_cbranch_scc0 L_f{U}_h{h}")
                    e(f"s_mov_b32 s{sHO}, {h*PART}")
                    for k in range(U): e(f"buffer_load_dwordx4 {ar(12*h+4*k)}, v{PO[k]}, {srd(sPR)}, s{sHO} offen sc1")
                    e(f"L_f{U}_h{h}:")
            e(f"s_cmp_eq_u32 s{sSEEN}, 0xffff"); e(f"s_cbranch_scc1 L_f{U}_sum")
            e(f"L_f{U}_spin:")
            e(f"buffer_load_dword v{TV}, v{MP_}, {srd(sWS)}, 0 offen sc1"); e("s_waitcnt vmcnt(0)")
            e(f"v_readfirstlane_b32 s{sMASK}, v{TV}"); e(f"s_and_b32 s{sMASK}, s{sMASK}, 0xffff")
            e(f"s_andn2_b32 s{sNEW}, s{sMASK}, s{sSEEN}"); e(f"s_cbranch_scc1 L_f{U}_got")
            if P.SLEEP: e(f"s_sleep {P.SLEEP}")
            e(f"s_sub_u32 s{sCNT}, s{sCNT}, 1"); e(f"s_cbranch_scc0 L_f{U}_spin")
            e(f"s_lshl_b32 s{sT0}, 0x10000, s{sIDX}"); e(f"v_mov_b32 v{TV}, s{sT0}")
            e(f"buffer_atomic_or v{TV}, v{L4}, {srd(sDB)}, 0 offen sc0"); e("s_waitcnt vmcnt(0)")
            e(f"v_readfirstlane_b32 s{sMASK}, v{TV}"); e(f"s_and_b32 s{sMASK}, s{sMASK}, 0xffff")
            e(f"s_cmp_lg_u32 s{sMASK}, 0xffff"); e("s_cbranch_scc1 L_f_end")
            e(f"s_andn2_b32 s{sNEW}, s{sMASK}, s{sSEEN}")
            e(f"L_f{U}_got:")
            e(f"s_or_b32 s{sSEEN}, s{sSEEN}, s{sNEW}")
            if P.STAMP: L += ["s_memrealtime s[84:85]", "s_waitcnt lgkmcnt(0)", "s_mov_b32 m0, s44", f"s_bcnt1_i32_b32 s45, s{sSEEN}", f"v_writelane_b32 v{STR}, s84, m0",
                              f"v_writelane_b32 v{STC}, s45, m0", "s_add_u32 s44, s44, 1", f"v_writelane_b32 v{STR}, s44, 61"]
            e(f"s_branch L_f{U}_i")
            e(f"L_f{U}_sum:")
            e("s_waitcnt vmcnt(0)")
            L += self.stamp(51)
            for h in range(16):
                for k in range(U):
                    for d in range(2):
                        o = vr(8 * k + 4 * d)
                        e(f"v_mfma_f32_4x4x4_16b_bf16 {o}, {vr(IDN,2)}, {ar(12*h+4*k+2*d,2)}, {o if h else 0}")
                if U == 1: e("s_nop 0")
            e("s_nop 4")
            for k in range(U):
                r = 32 + 4 * k
                for d in range(4): e(f"v_cvt_pk_bf16_f32 v{r+d}, v{8*k+2*d}, v{8*k+2*d+1}")
                e(f"v_permlane16_swap_b32 v{r}, v{r+2}"); e(f"v_permlane16_swap_b32 v{r+1}, v{r+3}")
                e(f"buffer_store_dwordx4 {vr(r)}, v{OO[k]}, {srd(sOU)}, 0 offen")
            e(f"s_mov_b32 s{sMASK}, 0xffff"); e("s_branch L_f_next")
        e("L_f_end:")
        return L

    def attn_kernel(self):
        e = self.e
        kn = NAME + "_kernel" if P.INRED else "attn_kernel"
        e(f".globl {kn}"); e(".p2align 8"); e(f".type {kn},@function"); e(f"{kn}:")
        p0 = len(self.L)
        e("s_cmp_ge_u32 s2, 256"); e("s_cbranch_scc1 L_attn_end")
        e(f"s_and_b32 s{sT0}, s2, 7")
        if P.XMAP: e(f"s_xor_b32 s{sT0}, s{sT0}, {P.XMAP}")
        e(f"s_lshr_b32 s{sBLK}, s{sT0}, 2"); e(f"s_mul_i32 s{sT1}, s{sBLK}, 40")
        e(f"s_add_u32 s4, s0, s{sT1}"); e("s_addc_u32 s5, s1, 0")
        e(f"s_load_dwordx8 s[{sPT}:{sPT+7}], s[4:5], 0")
        e(f"s_load_dwordx2 s[{sWO}:{sWO+1}], s[4:5], 32")
        e("s_load_dwordx2 s[72:73], s[0:1], 96")
        if P.INRED: e("s_load_dwordx4 s[92:95], s[0:1], 80")
        for x in self.stamp("start"): e(x)
        t = list(range(160, 176))
        ln, g, r4, x4, tq, tu, tv = t[:7]
        e(f"s_getpc_b64 s[{sWS}:{sWS+1}]"); e("L_cw0:"); e(f"s_mov_b32 s{sWS+2}, L_code_end-L_cw0"); e(f"s_mov_b32 s{sWS+3}, 0x20000")
        e(f"v_and_b32 v{ln}, 63, v0"); e(f"v_lshrrev_b32 v{tq}, 6, v0"); e(f"s_lshr_b32 s{sT1}, s2, 3"); e(f"s_lshl_b32 s{sT2}, s{sT1}, 9")
        e(f"v_lshlrev_b32 v{tu}, 14, v{ln}"); e(f"v_lshl_add_u32 v{tu}, v{tq}, 7, v{tu}"); e(f"v_add_u32 v{tu}, s{sT2}, v{tu}")
        e(f"buffer_load_dword a{LS(0)}, v{tu}, {srd(sWS)}, 0 offen")
        e(f"v_readfirstlane_b32 s{sW}, v{tq}")
        e(f"s_and_b32 s{sHd}, s{sT0}, 3"); e(f"s_lshl_b32 s{sHd}, s{sHd}, 2"); e(f"s_and_b32 s{sT2}, s{sT1}, 3")
        e(f"s_add_u32 s{sHd}, s{sHd}, s{sT2}"); e(f"s_lshr_b32 s{sBt}, s{sT1}, 2")
        if P.ROT:
            e(f"s_lshl_b32 s{sC}, s{sT2}, 1"); e(f"s_add_u32 s{sC}, s{sC}, s{sBt}"); e(f"s_sub_u32 s{sT2}, s{sC}, 7")
            e(f"s_cmp_ge_u32 s{sC}, 7"); e(f"s_cselect_b32 s{sC}, s{sT2}, s{sC}")
        else: e(f"s_mov_b32 s{sC}, 0")
        if P.ROTH == 0: e(f"s_mov_b32 s{sCW}, 0"); e(f"s_mov_b32 s{sCX}, 0")
        elif P.ROTH == 2: e(f"s_and_b32 s{sCX}, s{sBt}, 1"); e(f"s_lshl_b32 s{sCW}, s{sCX}, 21"); e(f"s_lshl_b32 s{sCX}, s{sCX}, 9")
        elif P.ROTH == 3: e(f"s_and_b32 s{sCX}, s{sBt}, 3"); e(f"s_lshl_b32 s{sCW}, s{sCX}, 20"); e(f"s_lshl_b32 s{sCX}, s{sCX}, 8")
        elif P.ROTH == 4: e(f"s_and_b32 s{sCX}, s{sBt}, 1"); e(f"s_lshl_b32 s{sCW}, s{sCX}, 19"); e(f"s_lshl_b32 s{sCX}, s{sCX}, 7")
        else: e(f"s_lshl_b32 s{sCW}, s{sC}, 19"); e(f"s_lshl_b32 s{sCX}, s{sC}, 7")
        e(f"s_lshl_b32 s{sW8K}, s{sW}, 13"); e(f"s_movk_i32 s{sF}, 0x9c")
        e(f"s_lshl_b32 s{sT0}, s{sW}, 1"); e(f"s_lshr_b32 s{sT0}, s{sF}, s{sT0}"); e(f"s_and_b32 s{sT0}, s{sT0}, 3")
        e(f"v_lshrrev_b32 v{g}, 4, v{ln}"); e(f"v_bfe_u32 v{r4}, v{ln}, 2, 2"); e(f"v_and_b32 v{x4}, 3, v{ln}")
        e(f"v_xor_b32 v{tq}, s{sT0}, v{x4}"); e(f"v_lshlrev_b32 v{tq}, 4, v{tq}"); e(f"v_lshl_add_u32 v{tq}, v{g}, 6, v{tq}")
        HW, HX = self.HW, self.HX
        e(f"s_lshl_b32 s{sT0}, s{sW}, 17"); e(f"v_lshl_add_u32 v{tu}, v{r4}, 13, v{tq}"); e(f"v_add_u32 v{HW+1}, s{sT0}, v{tu}")
        for k in (0, 2, 3, 4, 5, 6, 7):
            gg, u = k >> 2, k & 3
            e(f"v_add_u32 v{HW+k}, {768 + (2*gg + (u>>1))*32768 + (u&1)*256 - u*1024}, v{HW+1}")
        e(f"v_bfe_u32 v{tu}, v{ln}, 2, 3"); e(f"v_mul_u32_u24 v{tu}, 896, v{tu}"); e(f"v_lshrrev_b32 v{tv}, 5, v{ln}")
        e(f"v_lshl_add_u32 v{tu}, v{tv}, 6, v{tu}")
        e(f"v_and_b32 v{tv}, 1, v{g}"); e(f"v_mul_u32_u24 v{tv}, 3, v{tv}"); e(f"v_xor_b32 v{tv}, v{tv}, v{x4}")
        e(f"v_lshl_add_u32 v{tu}, v{tv}, 4, v{tu}")
        e(f"s_mul_i32 s{sT0}, s{sW}, 28672"); e(f"v_add_u32 v{HX}, s{sT0}, v{tu}"); e(f"v_xor_b32 v{tv}, 16, v{HX}")
        e(f"v_add_u32 v{HX+1}, 6144, v{tv}"); e(f"v_add_u32 v{HX+2}, 12288, v{HX}"); e(f"v_add_u32 v{HX+3}, 18432, v{tv}")
        e(f"s_and_b32 s{sT1}, s{sW}, 1"); e(f"s_lshl_b32 s{sT1}, s{sT1}, 4"); e(f"v_xor_b32 v{tv}, s{sT1}, v{tu}")
        e(f"s_mul_i32 s{sT0}, s{sW}, 7168"); e(f"s_add_u32 s{sT0}, s{sT0}, {128*896}"); e(f"v_add_u32 v{HX+4}, s{sT0}, v{tv}")
        e(f"s_lshl_b32 s{sT2}, s{sW}, 12"); e(f"s_lshl_b32 s{sT3}, s{sW}, 10")
        e(f"s_mul_i32 s{sT0}, s{sBt}, 143360"); e(f"s_lshl_b32 s{sT1}, s{sHd}, 9")
        e(f"s_mov_b32 s{sX+2}, 143360"); e(f"s_mov_b32 s{sX+3}, 0x20000"); e(f"s_mov_b32 s{sWQ+3}, 0x20000")
        e(f"s_sub_u32 s{sWQ+2}, {448*8192+768}, s{sT1}")
        e("s_waitcnt lgkmcnt(0)")
        e(f"s_add_u32 s{sWQ}, s{sPT+6}, s{sT1}"); e(f"s_addc_u32 s{sWQ+1}, s{sPT+7}, 0")
        e(f"s_sub_u32 s{sWQ}, s{sWQ}, 768"); e(f"s_subb_u32 s{sWQ+1}, s{sWQ+1}, 0")
        e(f"s_add_u32 s{sX}, s{sPT}, s{sT0}"); e(f"s_addc_u32 s{sX+1}, s{sPT+1}, 0")
        for x in self.stamp(1): e(x)
        for it in self.w_items(0) + self.x_items(0):
            for x in it: e(x)
        for x in self.stamp(2): e(x)
        e(f"s_lshl_b32 s{sT0}, s{sBt}, 4"); e(f"s_add_u32 s{sT0}, s{sT0}, s{sHd}"); e(f"s_lshl_b32 s{sT1}, s{sT0}, 19")
        for s_, p in ((sA, sPT + 2), (sB_, sPT + 4)):
            e(f"s_add_u32 s{s_}, s{p}, s{sT1}"); e(f"s_addc_u32 s{s_+1}, s{p+1}, 0")
            e(f"s_sub_u32 s{s_}, s{s_}, 768"); e(f"s_subb_u32 s{s_+1}, s{s_+1}, 0")
            e(f"s_mov_b32 s{s_+2}, {524288+768}"); e(f"s_mov_b32 s{s_+3}, 0x20000")
        e(f"s_lshl_b32 s{sT1}, s{sBLK}, 7"); e(f"s_add_u32 s{sT0}, s{sT0}, s{sT1}"); e(f"s_mul_i32 s{sT0}, s{sT0}, {PART}")
        e(f"s_add_u32 s{sWS}, s72, s{sT0}"); e(f"s_addc_u32 s{sWS+1}, s73, 0"); e(f"s_mov_b32 s{sWS+2}, {PART}")
        e(f"v_lshl_add_u32 v{tu}, v{r4}, 9, v{tq}"); e(f"v_add_u32 v{VO+1}, s{sW8K}, v{tu}")
        e(f"v_add_u32 v{VO}, 768, v{VO+1}")
        e(f"s_and_b32 s{sT0}, s{sW}, 1"); e(f"s_lshl_b32 s{sT1}, s{sT0}, 13"); e(f"s_sub_u32 s{sH}, 4096, s{sT1}")
        e(f"s_sub_u32 s{sPH}, 0x10000, s{sH}"); e(f"s_sub_u32 s{sNH}, {u32(-98304)}, s{sH}")
        e(f"s_xor_b32 s{sT1}, s{sT0}, 1"); e(f"s_lshl_b32 s{sT1}, s{sT1}, 12")
        e(f"s_lshl_b32 s{sT0}, s{sT0}, 1")
        e(f"v_lshlrev_b32 v{tv}, 1, v{g}"); e(f"v_bfe_u32 v{tv}, s{sF}, v{tv}, 2"); e(f"v_lshrrev_b32 v{tu}, 1, v{x4}")
        e(f"v_xor_b32 v{tv}, v{tv}, v{tu}"); e(f"v_xor_b32 v{tv}, s{sT0}, v{tv}"); e(f"v_lshlrev_b32 v{tv}, 4, v{tv}")
        e(f"v_lshl_add_u32 v{tv}, v{g}, 13, v{tv}"); e(f"v_lshl_add_u32 v{tv}, v{r4}, 6, v{tv}")
        e(f"v_and_b32 v{tu}, 1, v{x4}"); e(f"v_lshl_add_u32 v{self.WA}, v{tu}, 3, v{tv}"); e(f"v_xor_b32 v{self.WA+1}, 32, v{self.WA}")
        e(f"v_add_u32 v{self.WA+2}, {SLOT(2)}, v{self.WA}"); e(f"v_add_u32 v{self.WA+3}, {SLOT(2)}, v{self.WA+1}")
        e(f"s_add_u32 s{sD}, s{sT1}, {SLOT(1)}"); e(f"v_add_u32 v{VA}, s{sD}, v{self.WA}"); e(f"v_add_u32 v{VA+1}, s{sD}, v{self.WA+1}")
        fj = t[7]
        e(f"v_lshlrev_b32 v{fj}, 1, v{r4}"); e(f"v_bfe_u32 v{fj}, s{sF}, v{fj}, 2")
        e(f"s_movk_i32 s{sD}, 0xd8"); e(f"v_lshlrev_b32 v{tv}, 1, v{g}"); e(f"v_bfe_u32 v{tv}, s{sD}, v{tv}, 2")
        e(f"v_xor_b32 v{tv}, v{tv}, v{fj}"); e(f"v_xor_b32 v{tv}, s{sT0}, v{tv}"); e(f"v_lshlrev_b32 v{tv}, 4, v{tv}")
        e(f"v_lshl_add_u32 v{tv}, v{r4}, 13, v{tv}"); e(f"v_lshl_add_u32 v{tv}, v{x4}, 6, v{tv}"); e(f"v_add_u32 v{KA}, s{sT1}, v{tv}")
        e(f"v_and_b32 v{tv}, 1, v{g}"); e(f"v_lshlrev_b32 v{tv}, 1, v{tv}"); e(f"v_xor_b32 v{tv}, v{tv}, v{fj}"); e(f"v_lshlrev_b32 v{tv}, 4, v{tv}")
        e(f"v_and_b32 v{tu}, 7, v{ln}"); e(f"v_lshl_add_u32 v{tv}, v{tu}, 6, v{tv}")
        e(f"v_lshrrev_b32 v{tu}, 5, v{ln}"); e(f"v_lshl_add_u32 v{tv}, v{tu}, 9, v{tv}")
        e(f"v_bfe_u32 v{tq}, v{ln}, 3, 1"); e(f"v_lshl_add_u32 v{tv}, v{tq}, 10, v{tv}")
        e(f"s_add_u32 s{sT0}, s{sT2}, {SLOT(3)}"); e(f"v_add_u32 v{self.XA}, s{sT0}, v{tv}"); e(f"v_xor_b32 v{self.XA+1}, 16, v{self.XA}")
        e(f"s_lshr_b32 s{sT0}, s{sW}, 1"); e(f"s_lshl_b32 s{sT0}, s{sT0}, 11"); e(f"s_add_u32 s{sT0}, s{sT0}, {SLOT(4)+16384}")
        e(f"v_add_u32 v{self.X5A}, s{sT0}, v{tv}"); e(f"v_xor_b32 v{self.X5A+1}, 16, v{self.X5A}")
        e(f"v_lshlrev_b32 v{tv}, 4, v{ln}"); e(f"v_add_u32 v{self.FL}, s{sW8K}, v{tv}")
        e(f"v_and_b32 v{tv}, 0xf0, v{tv}"); e(f"v_lshl_add_u32 v{tv}, v{tu}, 9, v{tv}"); e(f"v_and_b32 v{tu}, 1, v{g}")
        e(f"v_lshl_add_u32 v{tv}, v{tu}, 3, v{tv}"); e(f"s_add_u32 s{sT0}, s{sW8K}, {SLOT(1)}"); e(f"v_add_u32 v{T0}, s{sT0}, v{tv}")
        e(f"v_xor_b32 v{T1}, {8192+256}, v{T0}")
        e(f"s_mov_b32 s{sSC}, {hex(f2u(math.log2(math.e) / 16.0))}"); e(f"s_mov_b32 s{sTH}, {hex(f2u(P.THR))}"); e(f"s_mov_b32 s{sHI}, 0xffff0000")
        e(f"s_mov_b32 s{sT0}, 0x3f803f80")
        for k in range(4): e(f"v_accvgpr_write_b32 a{ONES+k}, s{sT0}")
        if P.UNI: P.EV = ["D"] * 24 + [""] * 4
        H = 2 + len(P.EV); assert H % 2 == 0
        nxt = 8 + sum(x.count("L") + x.count("D") for x in P.EV); la = la0 = nxt - H; msp = mwr = mwd = ml2 = ml3 = 0
        assert la % 2 == 0
        for hs in range(H, 30):
            if hs in P.SKIP: la -= 1; msp |= 1 << hs
            else:
                assert nxt == hs + la
                if nxt % 5 == 0: mwd |= 1 << hs
                nxt += 1
            if (hs - 1) % 5 >= 3: mwr |= 1 << hs
            if la == 2: ml2 |= 1 << hs
            if la == 3: ml3 |= 1 << hs
        assert nxt == 32 and la == 2
        msp |= 1 << 30
        for s_, v in ((sMSP, msp), (sMWR, mwr), (sMWD, mwd), (sML2, ml2), (sML3, ml3), (sDP, 28672), (sDN, -(131072 + 4096)), (sHS, H)):
            e(f"s_mov_b32 s{s_}, {u32(v)}")
        for it in self.x_items(1) + self.w_items(1):
            for x in it: e(x)
        if P.INRED:
            e(f"v_lshlrev_b32 v{tu}, 8, v{ln}"); e(f"v_add_u32 v{tu}, {MBOX}, v{tu}"); e(f"v_mov_b32 v{tv}, 0")
            e(f"buffer_store_dword v{tv}, v{tu}, {srd(sWS)}, 0 offen sc1")
        e(f"v_lshlrev_b32 v{self.TV}, 7, v{ln}"); e(f"v_add_u32 v{self.TV}, s{sW8K}, v{self.TV}")
        for (n, g) in P.TCH:
            if g < 0:
                for x in self.touch(n): e(x)
        e("@vmw c0"); e("s_barrier")
        for x in self.stamp(3): e(x)
        for x in self.head_sched(): e(x)
        vq = [0]
        head = self.finish(self.L[p0:], [], self.kfifo(), "head", vmq=vq)
        self.L[p0:] = head
        self.emit_fallbacks(head, pv0=False)
        self.stg = [6, 7]; self.nxt = 8; st = []
        if P.UNI: plan = self.uni_plan(); self.stg = []
        for k in range(2, H):
            last = None
            if k == H - 1 and H < 30:
                n1 = H + la0
                last = [[f"s_mov_b32 s{sOA}, {(n1//2)*P.KVINC}"], [f"s_mov_b32 s{sOB}, {(n1//2)*P.KVINC}"], [f"s_add_u32 m0, s{sW8K}, {SLOT(n1-1) + 4096}"]]
            st.append(self.static_body(k, plan[k] if P.UNI else P.EV[k - 2], vq, last))
            for x in st[-1]: e(x)
        assert not self.stg
        qk, qkn, pv, pvn = (self.qk_body(True), self.qk_body(False), self.pv_body(True), self.pv_body(False)) if H < 30 else ([],) * 4
        tail = self.finish(self.tail_sched(), self.kfifo(), None, "tail", vmq=[0])
        self.emit_fallbacks(tail)
        assert H not in P.SKIP
        if H < 30:
            e("L_qk:")
            for x in qk: e(x)
            e("s_cbranch_scc1 L_pvn")
            e("L_pv:")
            for x in pv: e(x)
            e("s_cbranch_scc0 L_qk")
            e("L_sp:"); e(f"s_cmp_eq_u32 s{sHS}, 30"); e("s_cbranch_scc1 L_tail")
            for x in qkn: e(x)
            e("s_cbranch_scc0 L_pv")
            e("L_pvn:")
            for x in pvn: e(x)
            e("s_cbranch_scc0 L_qk"); e("s_branch L_sp")
            for x in self.R0: e(x)
        e("L_tail:")
        for x in tail: e(x)
        if P.INRED:
            fin, _ = fix_hazards(self.fin(), tail[-30:])
            for x in fin: e(x)
        if P.STAMP:
            e("s_waitcnt vmcnt(0)")
            for x in self.stamp(63): e(x)
            e(f"v_writelane_b32 v{STR}, s{sST+4}, 0"); e(f"v_writelane_b32 v{STC}, s{sST+6}, 0")
            e(f"s_lshl_b32 s{sT0}, s2, 2"); e(f"s_add_u32 s{sT0}, s{sT0}, s{sW}"); e(f"s_lshl_b32 s{sT0}, s{sT0}, 9")
            e(f"s_add_u32 s{sT0}, s{sT0}, {STAMP_OFF}")
            e(f"s_add_u32 s{sWS}, s72, s{sT0}"); e(f"s_addc_u32 s{sWS+1}, s73, 0"); e(f"s_mov_b32 s{sWS+2}, 512")
            e("v_mbcnt_lo_u32_b32 v20, -1, 0"); e("v_mbcnt_hi_u32_b32 v20, -1, v20"); e("v_lshlrev_b32 v20, 2, v20")
            e(f"buffer_store_dword v{STR}, v20, {srd(sWS)}, 0 offen"); e(f"buffer_store_dword v{STC}, v20, {srd(sWS)}, 0 offen offset:256")
        e("L_attn_end:")
        e("s_endpgm")
        e("L_code_end:")
        self.resc_subs()
        for x in self.R1 + self.R: e(x)
        self.R = []
        assert not self.sites
        probs = []
        br = ["s_cbranch_scc0 L_x"]
        paths = {"head+qk": head + [x for b in st for x in b] + (qk if H < 30 else tail), "pv+tail": pv + br + tail, "pvn+tail": pvn + br + tail}
        for a, A in (("qk", qk), ("qkn", qkn)):
            for b, B in (("pv", pv), ("pvn", pvn)):
                paths[a + b] = A + br + B; paths[b + a] = B + br + A
        for nm, p in paths.items(): probs += check_hazards(p, nm)
        return probs

    def reduce_kernel(self):
        e = self.e
        e(".globl reduce_kernel"); e(".p2align 8"); e(".type reduce_kernel,@function"); e("reduce_kernel:")
        p0 = len(self.L)
        e("s_cmp_ge_u32 s2, 256"); e("s_cbranch_scc1 L_red_end")
        e("s_load_dwordx2 s[4:5], s[0:1], 80"); e("s_load_dwordx2 s[6:7], s[0:1], 96")
        if P.STAMP: e("s_memrealtime s[40:41]")
        e("v_lshrrev_b32 v1, 6, v0"); e("v_and_b32 v0, 63, v0"); e("v_lshlrev_b32 v2, 4, v0")
        e("v_readfirstlane_b32 s18, v1")
        e("s_and_b32 s16, s2, 15"); e("s_lshr_b32 s17, s2, 4")
        e(f"s_mul_i32 s17, s17, {P.RW}"); e("s_add_u32 s17, s17, s18")
        e("s_cmp_ge_u32 s17, 140"); e("s_cbranch_scc1 L_red_end")
        e(f"s_mul_i32 s19, s16, {16*PART}"); e("s_lshl_b32 s20, s17, 10")
        e("s_mul_i32 s22, s17, 3277"); e("s_lshr_b32 s22, s22, 16"); e("s_mul_i32 s23, s22, 20"); e("s_sub_u32 s23, s17, s23")
        e("s_lshr_b32 s23, s23, 1"); e("s_and_b32 s24, s17, 1")
        e("s_lshl_b32 s21, s23, 6"); e("s_add_u32 s21, s21, 143360")
        e("v_and_b32 v3, 15, v0"); e("v_lshlrev_b32 v4, 2, v3")
        e("s_waitcnt lgkmcnt(0)")
        e("s_add_u32 s8, s6, s19"); e("s_addc_u32 s9, s7, 0"); e(f"s_mov_b32 s10, {16*PART}"); e("s_mov_b32 s11, 0x20000")
        for h in range(16):
            e(f"buffer_load_dwordx4 {vr(32+4*h)}, v2, s[8:11], s20 offen{P.RDMOD}")
            e(f"buffer_load_dword v{16+h}, v4, s[8:11], s21 offen{P.RDMOD}")
            if h < 15: e(f"s_add_u32 s20, s20, {PART}"); e(f"s_add_u32 s21, s21, {PART}")
        e("s_and_b32 s25, s16, 7"); e("s_lshr_b32 s26, s16, 3")
        e("s_mul_i32 s25, s25, 10"); e("s_add_u32 s25, s25, s23"); e(f"s_mul_i32 s25, s25, {16*1792}")
        e("s_mul_i32 s26, s26, 896"); e("s_add_u32 s25, s25, s26")
        e("s_lshl_b32 s22, s22, 7"); e("s_add_u32 s25, s25, s22"); e("s_lshl_b32 s24, s24, 5"); e("s_add_u32 s25, s25, s24")
        e("v_mul_u32_u24 v3, 1792, v3"); e("v_bfe_u32 v5, v0, 4, 1"); e("v_lshl_add_u32 v3, v5, 6, v3")
        e("v_lshrrev_b32 v5, 5, v0"); e("v_lshl_add_u32 v3, v5, 4, v3")
        e("s_mov_b32 s12, s4"); e("s_mov_b32 s13, s5"); e(f"s_mov_b32 s14, {8*160*1792}"); e("s_mov_b32 s15, 0x20000")
        e("s_mov_b32 s27, 0xffff0000")
        for h in range(16):
            e(f"s_waitcnt vmcnt({2*(15-h)})")
            for d in range(4):
                r = 32 + 4 * h + d
                e(f"v_lshlrev_b32 v{4+(d&1)*2}, 16, v{r}"); e(f"v_and_b32 v{5+(d&1)*2}, s27, v{r}")
                for k in range(2):
                    if h == 0: e(f"v_mul_f32 v{8+2*d+k}, v{4+(d&1)*2+k}, v{16+h}")
                    else: e(f"v_fmac_f32 v{8+2*d+k}, v{4+(d&1)*2+k}, v{16+h}")
        for d in range(4): e(f"v_cvt_pk_bf16_f32 v{32+d}, v{8+2*d}, v{9+2*d}")
        e("s_nop 1"); e("v_permlane16_swap_b32 v32, v34"); e("v_permlane16_swap_b32 v33, v35")
        e(f"buffer_store_dwordx4 {vr(32)}, v3, s[12:15], s25 offen")
        if P.STAMP:
            e("s_waitcnt vmcnt(0)"); e("s_memrealtime s[42:43]"); e("s_waitcnt lgkmcnt(0)")
            e("s_mul_i32 s20, s16, 140"); e("s_add_u32 s20, s20, s17"); e("s_lshl_b32 s20, s20, 3"); e(f"s_add_u32 s20, s20, {STAMP_OFF + 524288}")
            e("s_add_u32 s8, s6, s20"); e("s_addc_u32 s9, s7, 0"); e("s_mov_b32 s10, 8")
            e("v_mov_b32 v4, s40"); e("v_mov_b32 v5, s42"); e("v_mov_b32 v6, 0")
            e("buffer_store_dwordx2 v[4:5], v6, s[8:11], 0 offen")
        e("L_red_end:")
        e("s_endpgm")
        return check_hazards(self.L[p0:], "reduce")

def desc(name, vg, acc):
    return [f".amdhsa_kernel {name}", f"  .amdhsa_next_free_vgpr {vg}", "  .amdhsa_next_free_sgpr 102",
            f"  .amdhsa_accum_offset {acc}", "  .amdhsa_group_segment_fixed_size 0", "  .amdhsa_kernarg_size 104",
            "  .amdhsa_user_sgpr_count 2", "  .amdhsa_user_sgpr_kernarg_segment_ptr 1",
            "  .amdhsa_system_sgpr_workgroup_id_x 1", ".end_amdhsa_kernel"]

def build(path, verbose=True):
    g = Gen()
    ref = open(f"cdna_kernels/{NAME}.s.ref").read().splitlines()
    g.L += [l for l in ref if l.startswith(";") and "@launch" not in l]
    if P.INRED: g.L += ["; @launch grid=(256,1,1) block=(256,1,1) lds=163840"]
    else: g.L += ["; @launch kernel=attn_kernel grid=(256,1,1) block=(256,1,1) lds=163840",
                  f"; @launch kernel=reduce_kernel grid=(256,1,1) block=({64*P.RW},1,1) lds=98304"]
    g.L += ['.amdgcn_target "amdgcn-amd-amdhsa--gfx950"', ".text"]
    probs = g.attn_kernel()
    if P.INRED: g.L += ['.section .rodata,"a"', ".p2align 6"] + desc(NAME + "_kernel", 512, 256)
    else:
        probs += g.reduce_kernel()
        g.L += ['.section .rodata,"a"', ".p2align 6"] + desc("attn_kernel", 512, 256) + [".p2align 6"] + desc("reduce_kernel", 96, 96)
    open(path, "w").write("\n".join(g.L) + "\n")
    seen = set()
    for p in probs:
        k = p.split("]", 1)[1]
        if k not in seen: print(p); seen.add(k)
    if verbose:
        for k, (v, added) in g.sec.items():
            ins = [Ins(x) for x in v]
            nm = sum(1 for i in ins if i.kind == "mfma")
            print(f"{k}: instr {sum(1 for i in ins if i.states)} mfma {nm} ({nm*16} cyc) est {est_cycles(v)} nops {added} waits {sum(1 for i in ins if i.mn=='s_waitcnt')}")
    return g

if __name__ == "__main__":
    out = sys.argv[1] if len(sys.argv) > 1 else "k3.s"
    for kv in sys.argv[2:]:
        k, v = kv.split("=", 1)
        setattr(P, k, eval(v))
    build(out)
```

```python
import math
from asmlib import Ins, regs_of

def icost(x):
    if x.startswith("@"): return 1
    return Ins(x.split(";")[0]).cost
def cost(it): return sum(icost(x) for x in it)

class Sch:
    def __init__(self, cap=2, lat=9, age=7, maxout=13, blat=7):
        self.cap, self.lat, self.age, self.maxout, self.blat = cap, lat, age, maxout, blat
        self.mf = []
        self.frag = {}
        self.queues = {}
        self.fixed = {}
        self.chains = []
        self.bars = {}
        self.init = []
    def n(self): return len(self.mf)
    def m(self, text, frags=()):
        self.mf.append((text, list(frags))); return len(self.mf) - 1
    def add_frag(self, f, buf, rds, pre=(), rel=None, due=None, q="f", use=None, by=None):
        assert f not in self.frag
        self.frag[f] = dict(buf=buf, rds=list(rds), pre=list(pre), rel=rel, due=due, use=use, by=by)
        self.queues.setdefault(q, []).append(f)
    def fix(self, g, item): self.fixed.setdefault(g, []).append(list(item))
    def chain(self, g0, g1, items, rels=None, after=None, hard=1.5):
        self.chains.append(dict(g0=g0, g1=g1, items=[list(i) for i in items], rels=rels, after=after, hard=hard))
    def bar(self, name, g, lines, clears=True):
        assert g not in self.bars
        self.bars[g] = (name, list(lines), clears)

    def run(self):
        n = len(self.mf)
        bg = {v[0]: g for g, v in self.bars.items()}
        first, last = {}, {}
        for i, (t, fs) in enumerate(self.mf):
            for f in fs:
                first.setdefault(f, i); last[f] = i
        Q = {}
        for q, fl in self.queues.items():
            it = []
            for f in fl:
                if f in self.init: continue
                d = self.frag[f]
                u = first.get(f, d["use"]); assert u is not None, f
                dl = u - 1 - self.lat
                hard = min(u - 1 - 3, n - 1)
                if d["due"] is not None:
                    dl = min(dl, bg[d["due"]] - self.blat); hard = min(hard, bg[d["due"]] - 2)
                if d["by"] is not None: dl = min(dl, d["by"] - 4); hard = min(hard, d["by"])
                for k, r in enumerate(d["rds"]):
                    it.append(dict(f=f, k=k, lines=(d["pre"] if k == 0 else []) + [r], rd=r, soft=dl, hard=hard))
            for k in range(len(it) - 2, -1, -1):
                it[k]["soft"] = min(it[k]["soft"], it[k + 1]["soft"] - 0.5)
                it[k]["hard"] = min(it[k]["hard"], it[k + 1]["hard"] - 0.34)
            Q[q] = it
        C = []
        for c in self.chains:
            tot = sum(cost(i) for i in c["items"]); w = c["g1"] - c["g0"] + 1
            assert w > 0, c
            rs = tot / w; rh = max(rs, c["hard"])
            rem = tot; it = []
            for k, i in enumerate(c["items"]):
                rem -= cost(i)
                it.append(dict(lines=i, soft=c["g1"] - rem / rs, hard=c["g1"] - rem / rh,
                               rel=max(c["g0"], c["rels"][k] if c["rels"] else -1), after=c["after"]))
            C.append(it)
        out = []
        bufuser = {}
        for k, f in enumerate(self.init):
            for r in self.frag[f]["rds"]: out.append((f, r, -8 + k))
            bufuser[self.frag[f]["buf"]] = f
        passed = set()
        L = []; self.gapcost = []
        issued = set(self.init)
        def fill(g, used, post):
            while True:
                cand = []
                for q, it in Q.items():
                    if not it: continue
                    x = it[0]; d = self.frag[x["f"]]
                    if d["rel"] is not None and d["rel"] not in passed: continue
                    pu = bufuser.get(d["buf"])
                    if x["k"] == 0 and pu is not None and last.get(pu, 10**9) > g: continue
                    if len(out) >= self.maxout and x["hard"] > g: continue
                    cand.append((x["soft"], 0, it))
                for it in C:
                    if not it: continue
                    x = it[0]
                    if x["rel"] > g or (x["after"] is not None and x["after"] not in passed): continue
                    if x["lines"][0].startswith("ds_") and len(out) >= self.maxout + 1 and x["hard"] > g: continue
                    cand.append((x["soft"], 1, it))
                cand.sort(key=lambda c: (c[0], c[1]))
                pick = None
                for c in cand:
                    x = c[2][0]; cx = cost(x["lines"])
                    if x["hard"] <= g or used + cx <= self.cap or (used == 0 and cx > self.cap) or g == n - 1:
                        pick = c; break
                if pick is None: return used
                x = pick[2].pop(0)
                L.extend(x["lines"]); used += cost(x["lines"])
                if pick[1] == 0:
                    out.append((x["f"], x["rd"], g)); bufuser[self.frag[x["f"]]["buf"]] = x["f"]
                    if x["k"] == len(self.frag[x["f"]]["rds"]) - 1: issued.add(x["f"])
                else:
                    for y in x["lines"]:
                        if y.startswith("ds_"): out.append((None, y, g))
        for g in range(-1, n):
            if g >= 0: L.append(self.mf[g][0])
            used = 0
            need = self.mf[g + 1][1] if g + 1 < n else []
            willwait = any(o[0] in need for o in out) or any(f not in issued for f in need)
            if g in self.bars and self.bars[g][2]: willwait = False
            if willwait: used += 1
            for it in self.fixed.get(g, []):
                L.extend(it); used += cost(it)
                for y in it:
                    if y.startswith("ds_"): out.append((None, y, g))
            if g in self.bars:
                name, lines, clears = self.bars[g]
                used = fill(g, used + self.cap, False) - self.cap
                for q, it in Q.items():
                    assert not any(self.frag[x["f"]]["due"] == name for x in it), f"reads due before {name} not issued"
                L.extend(lines); used += cost(lines)
                passed.add(name)
                if clears: out.clear()
                u2 = fill(g, 0, True); used += u2
            else:
                used = fill(g, used, False)
            for f in need: assert f in issued, f"frag {f} not issued before mfma {g+1}"
            idx = [k for k, o in enumerate(out) if o[0] in need]
            if idx:
                k = max(idx)
                while k + 1 < len(out) and out[k + 1][2] <= g - self.age: k += 1
                L.append("@waitt " + out[k][1])
                if not willwait: used += 1
                del out[:k + 1]
            self.gapcost.append(used)
        assert not any(Q.values()) and not any(C)
        return L

def est_cycles(lines):
    t = 0; free = 0
    for l in lines:
        i = Ins(l)
        if not i.states: continue
        if i.kind == "mfma":
            t = max(t, free); free = t + 4 * i.passes; t += 8
        else: t += 4 * i.cost
    return max(t, free)
```

```python
import sys, math, struct, re
from asmlib import Ins, check_hazards, autowait, fix_hazards
from sched3 import Sch, cost, est_cycles

NAME = "concat_heads__mha_block_cached__mha_block_cached__near_ridge"
MF = "v_mfma_f32_16x16x32_bf16"
def f2u(x): return struct.unpack("<I", struct.pack("<f", x))[0]
def vr(b, n=4): return f"v[{b}:{b+n-1}]"
def ar(b, n=4): return f"a[{b}:{b+n-1}]"
def srd(b): return f"s[{b}:{b+3}]"
def u32(x): return hex(x & 0xffffffff)

class P:
    STAMP = False
    BB = 12
    BQ = 68
    BP = 54
    NPK = 10
    NPV = 6
    KVNT = " nt"
    STMOD = " sc1"
    LTH = 2.0 ** 40
    HQ = [("c2", 0, 2), ("K0", 28, 2), ("c3", 100, 3), ("c4", 150, 2), ("V0", 180, 2), ("c5", 255, 3), ("c6", 310, 2),
          ("V1", 340, 8), ("K1", 410, 10), ("K2", 490, 8), ("K3", 555, 6), ("V2", 640, 6)]
    HST = (3, 4)
    KVINC = 32768
    LV = [(0, 3), (3, 3), (6, 3), (9, 2), (11, 2), (13, 1)]
    SPIN = 20000
    WNT = ""
    STRIP = []
    STRIPT = []
    STRIPH = []
    WNT0 = [0]
    WO0 = [58, 59, 60, 61, 62, 63, 64, 65]
    SH = {}
    ST = {}
    SL = {}
    UG = (2, 2240)
    UP = 1.0
    UF = 9
    UL = 110
    UT = [12, 22]
    FC = []
    FCL = 1
    FCG = 3
    FCN = 60
    FCS = 4352
    FORCE = False
    BXG = 34
    BAG = 22
    BBG = 50
    TCH = []
    TNT = ""
    WSP = False
    VN = 0
    WG = None
    ROTW = True
    WP = 0
    WONT = []
    RDMOD = " sc1"
    OUMOD = ""
    VSP = 0
    EPW = 4
    SMAJ = None
    BF = None
    TQ = [(38, 3), (64, 4), (98, 5), (150, 5), (191, 5)]
    TS0 = 0
    TSP = 1
    TSS = 1
    PT = ""
    PTS = 16
    WT = []

def QA(s, j): return 32 * s + 4 * j
def QR(s, i): return vr(32 * s + 8 * i) if i < 4 else ar(64 + 4 * (5 * (i - 4) + s))
def OV(t): return 8 * t + 4
def OR(s, j):
    t = 8 * s + j
    return vr(OV(t)) if t < 20 else ar(144 + 4 * (t - 20))
def OT(s, j):
    t = 8 * s + j
    return OV(t) if t < 20 else 8 * (t - 20)
SB = 160
TL = {"b0": (0, 1, 2), "b1": (0, 1, 2), "a0": (3, 4), "a1": (3, 4)}
TB = {"b0": 0, "b1": 3, "a0": 3, "a1": 5}
def HF(s): return "b" if s < 3 else "a"
def S(t, s): return SB + 4 * (TB[t] + s)
def PR(s): return S(HF(s) + "0", s)
def PP(s): return S(HF(s) + "1", s)
def CI(s): return 200 + 4 * s
KA, VA, VO, OWNP, PARP, T0, T1 = 244, 246, 248, 250, 251, 252, 253
FCV = T1
STR, STC = 254, 255
def FB(k): return 4 * k
def LS(s): return 224 + 4 * s
ONES = 244
def STG(b): return vr(220 + 4 * b) if b < 6 else ar(248 + 4 * (b - 6))
def STR_(n, k):
    if n == 0: return vr(SB + 4 * k)
    if n == 1: return ar(144 + 4 * k) if k < 4 else ar(32 + 4 * k)
    if n in (3, 4): return ar(160 + 32 * (n - 3) + 4 * k)
    assert n == 6
    return STG(k)
def SLOT(n): return (n % 5) * 32768
def PX(n, s): return SLOT(2 * n - 1) + (5 + s) * 1024 if s < 3 else SLOT(2 * n) + (3 + s) * 1024
MXA = SLOT(4) + 28 * 1024
sA, sB_, sX, sWQ, sWS = 8, 12, 16, 20, 24
sW, sW8K = 28, 29
sRET = 30
sTH, sH, sPH, sNH, sD, sMODE = 32, 33, 34, 35, 36, 37
sOA, sOB = 45, 46
sT0, sT1, sT2, sT3 = 47, 48, 49, 50
sBLK, sBt, sHd, sC, sSC, sBAD = 51, 52, 53, 54, 55, 56
sCW, sCX = 57, 58
sWO = 60
sF = 62
sM0 = 63
sPT = 64
sCO = 64
sCS = 74
sRT2 = 96
sST = 84
PART = 144384
MBOX = 143360 + 768
STAMP_OFF = 48 << 20
FC_OFF = 0x2500000
sFC, sFM, sFN, sFT, sF1 = 40, 38, 39, 44, 6

def vmpass(lines, q):
    out = []; done = q[0]
    for l in lines:
        if l.startswith("@vmw"):
            p = l.split(None, 2)
            idx = max(k for k, t in enumerate(q) if k and t and p[1] in t)
            n = min(63, len(q) - 1 - idx)
            if idx <= done:
                if len(p) > 2: out.append("s_waitcnt " + p[2])
                continue
            done = q[0] = idx
            out.append(f"s_waitcnt vmcnt({n})" + (" " + p[2] if len(p) > 2 else ""))
            continue
        if l.startswith("@vml"):
            n = int(l.split()[1])
            if len(q) - 1 - n > done: done = q[0] = len(q) - 1 - n; out.append(f"s_waitcnt vmcnt({n})")
            continue
        if l.startswith("buffer_"):
            q.append(l.split("@t:")[1].split() if "@t:" in l else None)
            l = l.split(";")[0].strip()
        out.append(l)
    return out
def tn(n): return "KV"[n % 2] + str(n // 2)

class Gen:
    def __init__(self):
        self.L = []; self.R = []; self.uid = 0; self.sec = {}; self.base = {OWNP: 0, PARP: 0}
    def e(self, s): self.L.append(s)
    def lab(self, p):
        self.uid += 1; return f"L{p}_{self.uid}"
    def stamp(self, k):
        if not P.STAMP: return []
        if k == "start": return [f"s_memrealtime s[{sST+4}:{sST+5}]", f"s_memtime s[{sST+6}:{sST+7}]"]
        o = ["s_waitcnt lgkmcnt(0)", f"s_memrealtime s[{sST}:{sST+1}]", f"s_memtime s[{sST+2}:{sST+3}]", "s_waitcnt lgkmcnt(0)"]
        if P.STAMP == 3 and k in (1, 2, 4, 5, 6, 7, 8, 49, 50): return []
        if P.STAMP in (2, 4) and k in (1, 2, 4, 5, 7, 8, 9, 11, 42, 43, 44, 46, 47, 49, 50, 58, 59): return []
        return o + [f"v_writelane_b32 v{STR}, s{sST}, {k}", f"v_writelane_b32 v{STC}, s{sST+2}, {k}"]

    def softmax(self, t, n, add=False):
        it = []; pend = []; o = 2 * int(t[1])
        for s in TL[t]:
            if add: it += [[f"v_add_f32 v{S(t,s)+k}, v{S(t,s)+k}, v{CI(s)}"] for k in range(4)]
            for k in range(4):
                it.append([f"v_exp_f32 v{S(t,s)+k}, v{S(t,s)+k}"])
                if pend: it.append(pend.pop(0))
                if k % 2 == 1: pend.append([f"v_cvt_pk_bf16_f32 v{PR(s)+o+k//2}, v{S(t,s)+k-1}, v{S(t,s)+k}"])
            if o: pend.append([f"ds_write_b128 v{PARP}, {vr(PR(s))} offset:@{PX(n,s)}"])
        return it + pend
    def pprd(self, n, s): return f"ds_read_b128 {vr(PP(s))}, v{OWNP} offset:@{PX(n,s)}"

    def krd(self, b, kt, i): return [f"ds_read_b128 {ar(FB(b))}, v{KA+(i>>2)} offset:{kt*2048 + (i&3)*256}"]
    def trd(self, b, reg, j, base=0):
        off = base + (j >> 1) * 256
        return [f"ds_read_b64_tr_b16 {ar(FB(b),2)}, v{reg+(j&1)} offset:{off}", f"ds_read_b64_tr_b16 {ar(FB(b)+2,2)}, v{reg+(j&1)} offset:{off+2048}"]
    def kfrags(self, sc, tag, rel, due, d0, n=16, use=None):
        for k in range(n):
            pre = [f"v_add_u32 v{KA+(k>>2)}, {d0}, v{KA+(k>>2)}"] if k in (0, 4) and d0 else []
            sc.add_frag((tag, k), k, self.krd(k, k >> 3, k & 7), pre, rel, due, use=None if use is None else use + 3 * k)
    def vfrags(self, sc, tag, rel, due, d0, n=16, use=None):
        for k in range(n):
            pre = []
            if k < 2 and d0: pre = [f"v_add_u32 v{VA+k}, {d0}, v{VA+k}"]
            if k in (8, 9): pre = [f"v_add_u32 v{VA+k-8}, s{sH}, v{VA+k-8}"]
            sc.add_frag((tag, k), k, self.trd(k, VA, k & 7), pre, rel, due, use=None if use is None else use + 3 * k)
    def qk_mfmas(self, sc, tag):
        end = {}
        for h in "ba":
            for k in range(16):
                t = h + str(k >> 3); i = k & 7
                for s in TL[t]:
                    end[t] = sc.m(f"{MF} {vr(S(t,s))}, {ar(FB(k))}, {QR(s,i)}, {vr(CI(s)) if i == 0 else vr(S(t,s))}", [(tag, k)])
        return end
    def pv_mfmas(self, sc, tag, first=False, og=OR):
        start = {}; fin = {}
        for h in "ba":
            start[h] = sc.n()
            for s in TL[h + "0"]: fin[("l", s)] = sc.m(f"{MF} {ar(LS(s))}, {ar(ONES)}, {vr(PR(s))}, {'0' if first else ar(LS(s))}")
            for k in range(16):
                if k == 8: start[h + "p"] = sc.n()
                for s in TL[h + "0"]:
                    o = og(s, k & 7)
                    fin[(s, k & 7)] = sc.m(f"{MF} {o}, {ar(FB(k))}, {vr(PR(s) if k < 8 else PP(s))}, {'0' if first and k < 8 else o}", [(tag, k)])
        return start, fin

    def place_dma(self, sc, it, pos):
        k = 0; pend = []; prev = max(-1, pos[0] - 2)
        for x in it:
            if x[0].startswith("buffer"):
                for j, y in enumerate(pend): sc.fix(max(prev, pos[k] - len(pend) + j), y)
                pend = []
                sc.fix(pos[k], x); prev = pos[k]; k += 1
            else: pend.append(x)
        for y in pend: sc.fix(pos[-1] + 1, y)
    def basepass(self, L):
        out = []
        for l in L:
            m = re.search(r"offset:@(\d+)", l)
            if m:
                a = int(m.group(1)); r = OWNP if f"v{OWNP}" in l else PARP
                if not 0 <= a - self.base[r] < 65536:
                    b = min(a & ~32767, 98304)
                    out.append(f"v_add_u32 v{r}, {u32(b - self.base[r])}, v{r}"); self.base[r] = b
                l = l.replace(m.group(0), f"offset:{a - self.base[r]}")
            out.append(l)
        return out
    def split_writes(self, L):
        def halves(l):
            m = re.match(r"ds_write_b128 (v\d+), ([va])\[(\d+):\d+\] offset:(@?)(\d+)$", l)
            a, k, r, at, o = m.group(1), m.group(2), int(m.group(3)), m.group(4), int(m.group(5))
            return [f"ds_write_b64 {a}, {k}[{r+2*h}:{r+2*h+1}] offset:{at}{o+8*h}" for h in range(2)]
        out = []; pend = []
        for l in L:
            if l.startswith("@waitt ds_write_b128"): l = "@waitt " + halves(l[7:])[1]
            if pend:
                stop = l.startswith("@waitw") or "lgkmcnt(0)" in l or l == "s_barrier" or l.startswith("s_cbranch") or l[7:] in pend
                if not stop and not l.startswith("@"):
                    w = Ins(l.split(";")[0]).wr
                    stop = any(w & Ins(x).rd for x in pend)
                if stop: out += pend; pend = []
            if l.startswith("ds_write_b128"):
                h = halves(l)
                if pend: pend += h
                else: out.append(h[0]); pend.append(h[1])
                continue
            out.append(l)
            if l.startswith("v_mfma") and pend: out.append(pend.pop(0))
        return out + pend
    def finish(self, L, name, pre=()):
        if P.WSP: L = self.split_writes(L)
        L = vmpass(L, self.vq)
        L, self.fifo, _ = autowait(L, self.fifo, look=False)
        L = self.basepass(L)
        L, added = fix_hazards(L, pre)
        if name[:2] in ("qk", "pv"):
            for pat in P.STRIP: L = [l for l in L if not l.startswith(pat)]
        if name == "tail":
            for pat in P.STRIPT: L = [l for l in L if not l.startswith(pat)]
        if name == "head":
            i0 = next(k for k, l in enumerate(L) if l.startswith("s_barrier"))
            for pat in P.STRIPH: L = L[:i0+1] + [l for l in L[i0+1:] if not l.startswith(pat)]
        self.sec[name] = (L, added)
        return L
    def cw2(self):
        lb = self.lab("cw"); sr = sX; vt = T0
        return [[f"s_getpc_b64 s[{sr}:{sr+1}]", f"{lb}:"], [f"s_mov_b32 s{sr+2}, L_code_end-{lb}"],
                [f"v_mbcnt_lo_u32_b32 v{vt}, -1, 0"], [f"v_mbcnt_hi_u32_b32 v{vt}, -1, v{vt}"], [f"v_lshlrev_b32 v{vt}, 14, v{vt}"],
                [f"s_lshr_b32 s{sT1}, s2, 3"], [f"s_lshl_b32 s{sT1}, s{sT1}, 9"],
                [f"s_lshl_b32 s{sT2}, s{sW}, 7"], [f"s_add_u32 s{sT1}, s{sT1}, s{sT2}"], [f"v_add_u32 v{vt}, s{sT1}, v{vt}"],
                [f"buffer_load_dword v{vt}, v{vt}, {srd(sX)}, 0 offen ; @t:cw"]]

    def wo_touch(self):
        vt = T0
        return [[f"s_mul_i32 s{sT1}, s{sHd}, 32"], [f"s_lshl_b32 s{sT2}, s{sBt}, 2"], [f"s_add_u32 s{sT1}, s{sT1}, s{sT2}"], [f"s_add_u32 s{sT1}, s{sT1}, s{sW}"],
                [f"s_mul_i32 s{sT1}, s{sT1}, 7168"], [f"s_add_u32 s{sWQ}, s{sWO}, s{sT1}", f"s_addc_u32 s{sWQ+1}, s{sWO+1}, 0"], [f"s_mov_b32 s{sWQ+2}, 7168"],
                ["@vmw cw", f"v_mbcnt_lo_u32_b32 v{vt}, -1, 0"], [f"v_mbcnt_hi_u32_b32 v{vt}, -1, v{vt}"], [f"v_lshlrev_b32 v{vt}, 7, v{vt}"],
                [f"buffer_load_dword v{vt}, v{vt}, {srd(sWQ)}, 0 offen ; @t:cw"]]

    HW, HX, WA, XA, TV = 192, 200, 205, 209, 215
    WS_ = [SLOT(3), SLOT(2), SLOT(0)]
    XM = [SLOT(4), SLOT(1), SLOT(1) + 16384]
    def w_items(self, c):
        it = []
        for g in range(2):
            it.append([f"s_add_u32 m0, s{sW8K}, {self.WS_[c % 3] + g*4096}"])
            for u in range(4):
                it.append([f"buffer_load_dwordx4 v{self.HW+4*g+u}, {srd(sWQ)}, s{sCW} offen offset:{u*1024}{' nt' if c in P.WNT0 else P.WNT} lds ; @t:c{c}"])
        it.append([f"s_add_u32 s{sCW}, s{sCW}, 0x80000", f"s_cmp_eq_u32 s{sCW}, 0x380000"]); it[-1].append(f"s_cselect_b32 s{sCW}, 0, s{sCW}")
        return it
    def x_items(self, c):
        it = [[f"s_add_u32 m0, s{sT2}, {self.XM[c % 3]}"]]
        for k in range(4): it.append([f"buffer_load_dwordx4 v{self.HX+k}, {srd(sX)}, s{sCX} offen offset:{k*1024}{' nt' if c in P.WNT0 else P.WNT} lds ; @t:c{c}"])
        it.append([f"s_add_u32 m0, s{sT3}, {SLOT(4) + 16384 + 4096*(c % 3)}"])
        it.append([f"buffer_load_dwordx4 v{self.HX+4}, {srd(sX)}, s{sCX} offen{' nt' if c in P.WNT0 else P.WNT} lds ; @t:c{c}"])
        it.append([f"s_add_u32 s{sCX}, s{sCX}, 128", f"s_cmp_eq_u32 s{sCX}, 896", f"s_cselect_b32 s{sCX}, 0, s{sCX}"])
        return it
    def ld(self, p, dst):
        n = p // 8; u = p & 3
        sr, so = (sA, sOA) if n % 2 == 0 else (sB_, sOB)
        return f"buffer_load_dwordx4 {dst + ', ' if dst else ''}v{VO+(u&1)}, {srd(sr)}, s{so} offen offset:{u*1024}{P.KVNT}{'' if dst else ' lds'} ; @t:{tn(n)} p{p}"
    def kv_head_items(self, n, np_=8):
        so = sOA if n % 2 == 0 else sOB
        reg = n in (0, 1, 6) + tuple(P.HST)
        it = []
        for k in range(np_):
            if k % 4 == 0: it.append([f"s_mov_b32 s{so}, {(n//2)*P.KVINC + k*1024}"] + ([] if reg else [f"s_add_u32 m0, s{sW8K}, {SLOT(n) + k*1024}"]))
            it.append([self.ld(8 * n + k, STR_(n, k) if reg else None)])
        return it
    def flush_items(self, n):
        return [["@vmw " + tn(n)]] + [[f"ds_write_b128 v{OWNP}, {STR_(n, k)} offset:@{SLOT(n) + k*1024}"] for k in range(8)]
    def uni_plan(self):
        N = lambda k: 80 if k % 2 == 0 else 85
        g0 = {2: 0, 1: -85}
        for k in range(3, 33): g0[k] = g0[k - 1] + N(k - 1)
        bar = lambda k: g0[k] + (P.BQ if k % 2 == 0 else P.BP)
        def rel(p):
            n, k = p // 8, p % 8
            if n % 2 == 0 and k >= 5: return g0[n - 3] + 14, self.pprd((n - 4) // 2, k - 5)
            if n % 2 == 1 and k >= 6: return bar(n - 4) + 12, self.pprd((n - 5) // 2, k - 3)
            return bar(n - 5) + 1, None
        seq = [46, 47] + list(range(56, 256))
        G = {p: -200 for p in range(48, 56)}
        pool = [(b, 48 + b) for b in range(8)]
        fl = {}; buf = {48 + b: b for b in range(8)}; prevo = {}
        prev = -1
        for q, p in enumerate(seq):
            g = max(int(P.UG[0] + (P.UG[1] - P.UG[0]) * (q / (len(seq) - 1)) ** P.UP), prev + 1)
            if q < 2: g = min(g, 2 + 11 * q)
            if g < rel(p)[0]:
                b, o = pool[0]
                f = max(rel(o)[0], G[o] + P.UL, 0)
                if f + 3 >= rel(p)[0]: g = rel(p)[0]
                else:
                    g = max(g, f + 3); fl[o] = max(f, min(g - P.UF, bar(o // 8 - 1) - 12))
                    pool = pool[1:] + [(b, p)]; buf[p] = b; prevo[p] = o
            G[p] = prev = g
            assert g < bar(p // 8 - 1) - 40, p
        pf = 0
        for b, o in pool: pf = fl[o] = max(rel(o)[0], min(G[o] + 180, bar(o // 8 - 1) - 30), pf + 3)
        ev = []; wr = {}
        for o in sorted(fl):
            assert fl[o] < bar(o // 8 - 1) - 2, o
            wr[o] = f"ds_write_b128 v{OWNP}, {STG(buf[o])} offset:@{SLOT(o // 8) + (o % 8)*1024}"
            ev.append((fl[o], 1, [f"@vmw p{o}"] + (["@waitt " + rel(o)[1]] if rel(o)[1] else []) + [wr[o]]))
        m0 = None; sv = {}
        for p in seq:
            n = p // 8; g = (p >> 2) & 1; so = sOA if n % 2 == 0 else sOB
            pre = []
            if sv.get(so) != (n, g): sv[so] = (n, g); pre.append(f"s_mov_b32 s{so}, {(n//2)*P.KVINC + g*4096}")
            if p in buf: pre.append("@waitt " + wr[prevo[p]])
            else:
                if rel(p)[1]: pre.append("@waitt " + rel(p)[1])
                if m0 != SLOT(n) + g * 4096: m0 = SLOT(n) + g * 4096; pre.append(f"s_add_u32 m0, s{sW8K}, {m0}")
            for x in pre: ev.append((G[p] - 1, 3, [x]))
            ev.append((G[p], 2, ([f"@vml {(P.VN(p) if callable(P.VN) else P.VN) - 1}"] if P.VN else []) + [self.ld(p, STG(buf[p]) if p in buf else None)]))
        assert max(x[0] for x in ev) < g0[30] - 1
        if P.WG:
            assert max(fl.values()) < g0[P.WG[2]] - 20
            g = max(P.WG[0], prev + 2)
            for j in range(2):
                k = 0; pre = []
                for x in self.wo_items(j, 2 + j):
                    if not x[0].startswith("buffer"): pre += x; continue
                    r, w = rel(8 * (32 + j) + k)
                    g = max(g, r)
                    for y in ([f"@waitt {w}"] if w else []) + pre: ev.append((g - 1, 3, [y]))
                    ev.append((g, 2, ([f"@vml {P.WG[3] - 1}"] if P.WG[3] else []) + x))
                    pre = []; k += 1; g += P.WG[1]
        ev.sort(key=lambda x: (x[0], x[1]))
        self.nstaged = len(buf)
        out = {k: [] for k in range(2, 31)}
        for g, _, it in ev:
            k = max(k for k in range(2, 31) if g0[k] - 1 <= g)
            out[k].append((g - g0[k], it))
        return out
    def kd(self, n): return u32(SLOT(n) - SLOT(n - 2))
    def vd(self, n): return f"s{sPH}" if SLOT(n) > SLOT(n - 2) else f"s{sNH}"
    def qk_part(self, sc, k):
        self.kfrags(sc, "k", None, "B", None); sc.init = [("k", j) for j in range(P.NPK)]
        end = self.qk_mfmas(sc, "k")
        a = self.softmax("b0", k // 2); b = self.softmax("b1", k // 2)
        sc.chain(end["b0"] + 2, P.BQ - 2, a + b, rels=[0] * len(a) + [end["b1"] + 2] * len(b))
        return end
    def pv_soft(self, sc, k, n0=0):
        a = self.softmax("a0", k // 2); b = self.softmax("a1", k // 2)
        sc.chain(n0 - 1, n0 + min(P.BP, 51) - 3, a + b, rels=[-1] * len(a) + [n0 + 1] * len(b))
        for s in range(3): sc.fix(n0 + 2 + 2 * s, [self.pprd(k // 2, s)])
        for s in (3, 4): sc.fix(n0 + P.BP + s - 2, [self.pprd(k // 2, s)])
    def static_body(self, k, ops):
        sc = Sch(**P.SL); qk = k % 2 == 0
        if qk:
            self.qk_part(sc, k); n = sc.n()
            self.vfrags(sc, "v", "B", None, self.vd(k + 1), n=P.NPV, use=n + 3)
        else:
            self.vfrags(sc, "v", None, "B", None); sc.init = [("v", j) for j in range(P.NPV)]
            self.pv_mfmas(sc, "v"); n = sc.n()
            self.kfrags(sc, "k", "B", None, self.kd(k + 1), n=P.NPK, use=n)
            self.pv_soft(sc, k)
        sc.bar("B", P.BQ if qk else P.BP, ["@vmw " + tn(k + 1) + " lgkmcnt(0)", "s_barrier"] + (self.stamp(11 + k) if P.STAMP == 1 or (P.STAMP == 4 and k % 4 == 1) else []))
        for g, it in ops: sc.fix(g, it)
        if k in P.UT: sc.chain(0, 20, self.cw2())
        if P.WG and k == P.WG[2]: sc.chain(2, 44, self.wo_setup())
        if k in P.WT: sc.chain(0, 20, self.wo_touch())
        if k in P.FC: sc.chain(P.FCG, 22, self.fc_items(k))
        return self.finish(sc.run(), f"{'qk' if qk else 'pv'}{k}", self.L[-30:])
    def fc_items(self, k):
        i = P.FC.index(k) + 1
        it = []
        if i - 1 - P.FCL >= 1:
            a, r = self.lab("fs"), self.lab("fq")
            it += [[f"@vmw fc{i-1}"], [f"v_cmp_gt_u32 s[4:5], {i-1-P.FCL}, v{FCV}"], [f"s_and_b32 s4, s4, s{sFM}", f"s_cbranch_scc1 {a}", f"{r}:"]]
            self.R += [f"{a}:", f"s_movk_i32 s{sFT}, {i-P.FCL}", f"s_call_b64 s[{sRT2}:{sRT2+1}], L_fcspin", f"s_branch {r}"]
        elif i > 1: it += [[f"@vmw fc{i-1}"]]
        if i <= len(P.FC) - 1:
            it += [[f"v_cndmask_b32 v{FCV}, 0, 1, s[{sF1}:{sF1+1}]"], [f"buffer_atomic_add v{FCV}, v{VO+1}, {srd(sFC)}, 0 offen sc0 ; @t:fc{i}"]]
        return it
    def fc_spin(self):
        return ["L_fcspin:", f"buffer_load_dword v{FCV}, v{VO+1}, {srd(sFC)}, 0 offen sc1", "s_waitcnt vmcnt(0)",
                f"v_cmp_gt_u32 s[4:5], s{sFT}, v{FCV}", f"s_and_b32 s4, s4, s{sFM}", "s_cbranch_scc0 L_fcret",
                f"s_sub_u32 s{sFN}, s{sFN}, 1", "s_cbranch_scc0 L_fcspin", f"s_mov_b32 s{sFM}, 0", "L_fcret:", f"s_setpc_b64 s[{sRT2}:{sRT2+1}]"]

    def head_sched(self):
        sc = Sch(**P.SH)
        XF = lambda c, ks, s: 64 + 40 * (1 - c % 2) + 20 * ks + 4 * s
        fk = 0; done = {}
        for c in range(7):
            rel = f"p{c}" if c else None; due = f"p{c+1}"
            wreg, wb = [(self.WA + 2, 32768), (self.WA + 2, 0), (self.WA, 0)][c % 3]
            for ks in range(2):
                for s in range(5):
                    if s == 4: a = f"v{self.XA+4+ks} offset:{4096*(c%3)}"
                    elif c % 3 == 0: a = f"v{self.XA+2+ks} offset:{2048*s}"
                    else: a = f"v{self.XA+ks} offset:{self.XM[c%3] - SLOT(1) + 2048*s}"
                    sc.add_frag(("x", c, ks, s), ("x", c % 2, ks, s), [f"ds_read_b128 {ar(XF(c,ks,s))}, {a}"], rel=rel, due=due, q="x")
            seq = [(ks, j) for ks in range(2) for j in range(8)] if c < 6 else [(ks, j) for j in range(8) for ks in range(2)]
            for (ks, j) in seq:
                f = ("w", c, ks, j); b = (fk + 4) % 12
                sc.add_frag(f, b, self.trd(b, wreg, j, wb + ks * 4096), rel=rel, due=due)
                for s in range(5):
                    o = vr(QA(s, j))
                    done[j] = sc.m(f"{MF} {o}, {ar(FB(b))}, {ar(XF(c,ks,s))}, {'0' if c == 0 and ks == 0 else o}", [f, ("x", c, ks, s)])
                fk += 1
            lines = [f"@vmw c{c+1} lgkmcnt(0)" if c < 6 else "s_waitcnt lgkmcnt(0)", "s_barrier"] + self.stamp(4 + c)
            sc.bar(due, sc.n() - 1 - P.BB, lines)
        nq = sc.n(); p6 = nq - 80 - 1 - P.BB; p7 = nq - 1 - P.BB
        XQ = lambda x: SLOT(1) + x * 1024 if x < 8 else SLOT(3) + (x - 8) * 1024 if x < 16 else SLOT(4) + (x - 16) * 1024
        qrd = lambda x: f"ds_read_b128 {QR(x % 5, 4 + x // 5)}, v{OWNP} offset:@{XQ(x)}"
        for x in range(20): sc.add_frag(("qx", x), ("qx", x), [qrd(x)], rel="p7" if x < 8 else "BX", q="qx", by=nq + 14 if x < 8 else nq + P.BXG + 16)
        order = [(kt, i) for i in (0, 1, 4, 2, 3) for kt in range(2)] + [(kt, i) for kt in range(2) for i in (5, 6, 7)]
        bufs = [8, 9, 10, 11, 0, 1, 2, 3, 4, 5, 6, 12, 13, 7, 14, 15]
        use = {}; end = {}
        for (kt, i), b in zip(order, bufs):
            sc.add_frag(("k0", kt, i), b, self.krd(b, kt, i), rel="BX" if b >= 12 else "p7", due="B0")
            for s in range(5):
                t = HF(s) + str(kt)
                g = sc.m(f"{MF} {vr(S(t,s))}, {ar(FB(b))}, {QR(s,i)}, {'0' if i == 0 else vr(S(t,s))}", [("k0", kt, i)] + ([("qx", 5 * (i - 4) + s)] if i >= 4 else []))
                use.setdefault((s, i), g); end[(kt, s)] = g
        n0 = sc.n(); b0 = end[(0, 4)] + 9
        sc.bar("B0", b0, ["s_waitcnt lgkmcnt(0)", "s_barrier"] + self.stamp(11))
        self.vfrags(sc, "v0", "B0", "B1", None)
        start, _ = self.pv_mfmas(sc, "v0", True)
        n1 = sc.n(); b1 = n0 + P.BP; bp = n0 + 8
        sc.bar("BP", bp, ["@waitw", "s_barrier"] + self.stamp(59), clears=False)
        sc.bar("B1", b1, ["@vmw K1 lgkmcnt(0)", "s_barrier"] + self.stamp(12))
        self.kfrags(sc, "k1", "B1", None, self.kd(2), n=P.NPK, use=n1)
        bx = nq + P.BXG
        wl = []; wrl = []
        for i in range(4):
            it = []; sw = []
            for s in range(5):
                r = QA(s, 2 * i)
                it += [[f"v_mul_f32 v{r+k}, s{sSC}, v{r+k}"] for k in range(8)] + sw
                it += [[f"v_cvt_pk_bf16_f32 v{r+k}, v{r+2*k}, v{r+2*k+1}"] for k in range(4)]
                sw = [[f"v_permlane16_swap_b32 v{r+k}, v{r+2+k}"] for k in range(2)]
                x = 5 * i + s
                w = [f"ds_write_b128 v{PARP}, {vr(r)} offset:@{XQ(x)}"]
                if x < 8 or i == 3: sw.append(w)
                else: wl.append(w)
            it += sw
            g1 = max(use[(0, i)] - 2, done[2 * i + 1] + 2)
            if i < 2: g1 = min(g1, p7 - 2 if i else p7 - 20)
            g1 = min(g1, bx - 2)
            sc.chain(done[2 * i + 1] + 2, g1, it, hard=2.5)
            wrl += [g1 + 1] * (len(wl) - len(wrl))
        sc.chain(p7 + 1, bx - 2, wl, rels=wrl, after="p7")
        sc.bar("BX", bx, ["@waitw", "s_barrier"] + self.stamp(58), clears=False)
        sc.chain(p6 + 2, p6 + 30, self.flush_items(0))
        sc.chain(use[(0, 4)], bx - 1, [["@waitt " + qrd(7)]] + self.flush_items(1))
        mx = []; rl = []
        for s in range(5):
            r = S(HF(s) + "0", s); c = CI(s)
            mx += [[f"v_min3_f32 v{c}, -v{r}, -v{r+1}, -v{r+2}"], [f"v_min_f32 v{c}, -v{r+3}, v{c}"]]; rl += [end[(0, s)] + 2] * 2
        mx += [[f"s_cmp_lg_u32 s{sMODE}, 0", "s_cbranch_scc1 L_tmax", "L_tmax_ret:"]]
        mx += [[f"ds_min_f32 v{T0}, v{CI(s)} offset:{64*s}"] for s in range(5)]
        sc.chain(rl[0], b0 - 1, mx, rels=rl + [0] * 6, hard=3)
        rd = [[f"ds_read2_b32 {vr(CI(s)+k,2)}, v{T0} offset0:{16*s} offset1:{16*s}"] for k in (0, 2) for s in range(5)]
        c0 = self.softmax("b0", 0, True); c1 = self.softmax("b1", 0, True)
        wr = [x for x in c1 if x[0].startswith("ds_")]; c1 = [x for x in c1 if x not in wr]
        sc.chain(b0, n0 - 1, rd + c0 + c1, rels=[0] * (len(rd) + len(c0)) + [end[(1, 2)] + 2] * len(c1), after="B0", hard=4)
        sc.chain(n0, bp - 1, wr)
        sc.chain(n0 + 1, b1 - 5, self.softmax("a0", 0, True) + self.softmax("a1", 0, True))
        for s in range(3): sc.fix(bp + 1 + s, [self.pprd(0, s)])
        for s in (3, 4): sc.fix(b1 + s - 2, [self.pprd(0, s)])
        if 3 in P.HST: sc.chain(end[(0, 0)], b0 - 1, [["@waitt " + qrd(15)]] + self.flush_items(3))
        if 4 in P.HST: sc.chain(bp + 10, start["a"] - 4, [["@waitt " + self.pprd(0, 2)]] + self.flush_items(4))
        free = {"c3": "p1", "c4": "p2", "c5": "p3", "c6": "p4", "K1": "p5", "V2": "B0"}
        bgap = {v[0]: g for g, v in sc.bars.items()}
        bgap["V1"] = end[(0, 0)]; bgap["K2"] = bp + 10
        if 3 not in P.HST: free["V1"] = "V1"
        if 4 not in P.HST: free["K2"] = "K2"
        lastg = -10; used = []
        HQ = P.HQ if not P.VSP else [x for x in P.HQ if x[0][0] == "c"] + [x for x in P.HQ if x[0][0] != "c"]
        for (nm, g0, st) in HQ:
            if P.VSP and nm == HQ[5][0]: lastc = lastg; lastg = -10
            if P.VSP and nm in free and nm[0] != "c": g0 = max(g0, lastc + 3)
            if nm[0] == "c": it = self.w_items(int(nm[1])) + self.x_items(int(nm[1]))
            else: it = self.kv_head_items(2 * int(nm[1]) + (nm[0] == "V"), 6 if nm == "V2" else 8)
            if nm == "V1" and nm in free: it = [["@waitt " + qrd(15)]] + it
            if nm == "K2" and nm in free: it = [["@waitt " + self.pprd(0, 2)]] + it
            if nm in free: g0 = max(g0, bgap[free[nm]] + 2)
            g0 = max(g0, lastg + 3)
            nb = sum(1 for x in it if x[0].startswith("buffer"))
            pos = [int(g0 + k * st) for k in range(nb)]
            for k in range(nb):
                if k: pos[k] = max(pos[k], pos[k - 1] + 1)
                while any(abs(pos[k] - u) < P.VSP for u in used): pos[k] += 1
            used += pos
            self.place_dma(sc, it, pos); lastg = pos[-1]
            if nm[0] == "c": assert lastg < bgap[f"p{nm[1]}"], nm
        assert lastg < n1 - 2
        if P.WP > 1: sc.fix(P.WP, [f"buffer_load_dword v{T1}, v{T1}, {srd(sFC)}, 0 offen{P.TNT}"])
        for (n, g) in P.TCH:
            assert g < b0
            sc.fix(g, [f"s_mov_b32 s{sT1}, {(n//2)*P.KVINC}", f"buffer_load_dword v{T1}, v{self.TV}, {srd(sA if n % 2 == 0 else sB_)}, s{sT1} offen offset:768{P.TNT}"])
        L = sc.run()
        ix = lambda t: L.index(t)
        bars = [k for k, l in enumerate(L) if l == "s_barrier"]
        for x in range(20):
            k = ix(f"ds_write_b128 v{PARP}, {vr(QA(x % 5, 2 * (x // 5)))} offset:@{XQ(x)}")
            assert (bars[5] < k < bars[6]) if x < 8 else (bars[6] < k < bars[7]), x
        assert ix(qrd(7)) < ix("@waitt " + qrd(7)) and ix(qrd(15)) < ix("@waitt " + qrd(15)) and ix(self.pprd(0, 2)) < ix("@waitt " + self.pprd(0, 2))
        return L
    def tmax(self):
        F = lambda i: OV(i); A = lambda s: OV(8 + s); AD = OV(13); X = OV(13) + 1
        R = ["L_tmax:", f"v_mbcnt_lo_u32_b32 v{X}, -1, 0", f"v_mbcnt_hi_u32_b32 v{X}, -1, v{X}",
             f"v_lshrrev_b32 v{AD}, 4, v{X}", f"v_lshlrev_b32 v{AD}, 1, v{AD}", f"s_movk_i32 s{sD}, 0xd8", f"v_bfe_u32 v{AD}, s{sD}, v{AD}, 2",
             f"v_lshlrev_b32 v{AD}, 4, v{AD}", f"v_and_b32 v{X}, 15, v{X}", f"v_lshl_add_u32 v{AD}, v{X}, 9, v{AD}",
             f"s_and_b32 s{sD}, s{sW}, 1", f"s_mul_i32 s{sD}, s{sD}, {262144 + 256}", f"v_add_u32 v{AD}, s{sD}, v{AD}", f"v_xor_b32 v{X}, 256, v{AD}",
             f"s_movk_i32 s{sD}, 768", "L_tmax_l:"]
        R += [f"buffer_load_dwordx4 {vr(F(i))}, v{AD if i < 4 else X}, {srd(sA)}, s{sD} offen offset:{64*(i&3)}" for i in range(8)]
        R += ["s_waitcnt vmcnt(0) lgkmcnt(0)"]
        for i in range(8):
            for s in range(5): R.append(f"{MF} {vr(A(s))}, {vr(F(i))}, {QR(s,i)}, {'0' if i == 0 else vr(A(s))}")
        R += ["s_nop 7", "s_nop 1"]
        for s in range(5): R += [f"v_min3_f32 v{CI(s)}, v{CI(s)}, -v{A(s)}, -v{A(s)+1}", f"v_min3_f32 v{CI(s)}, v{CI(s)}, -v{A(s)+2}, -v{A(s)+3}"]
        R += [f"s_add_u32 s{sD}, s{sD}, 8192", f"s_cmp_lt_u32 s{sD}, 262144", "s_cbranch_scc1 L_tmax_l", "s_branch L_tmax_ret"]
        return R

    WV = 220
    def wo_items(self, j, slot):
        it = []
        for g in range(2):
            it.append([f"s_add_u32 m0, s{sW8K}, {SLOT(slot) + g*4096}"] + ([f"s_add_u32 s{sT0}, s{sCO+j}, 28672"] if g else []))
            for u in range(4):
                it.append([f"buffer_load_dwordx4 v{self.WV+u}, {srd(sWQ)}, s{sT0 if g else sCO+j} offen offset:{u*1024}{' nt' if j in P.WONT else ''} lds ; @t:o{j}"])
        return it
    def wo_setup(self):
        WV = self.WV; L_ = WV + 3
        sw = [f"s_mul_i32 s{sT0}, s{sHd}, 229376", f"s_add_u32 s{sWQ}, s{sWO}, s{sT0}", f"s_addc_u32 s{sWQ+1}, s{sWO+1}, 0", f"s_mov_b32 s{sWQ+2}, 229376",
              f"v_mbcnt_lo_u32_b32 v{L_}, -1, 0", f"v_mbcnt_hi_u32_b32 v{L_}, -1, v{L_}",
              f"v_bfe_u32 v{WV}, v{L_}, 2, 3", f"v_mul_u32_u24 v{WV}, 896, v{WV}", f"v_lshrrev_b32 v{WV+1}, 5, v{L_}",
              f"v_lshl_add_u32 v{WV}, v{WV+1}, 6, v{WV}", f"v_lshrrev_b32 v{WV+1}, 3, v{L_}", f"v_and_b32 v{WV+1}, 2, v{WV+1}",
              f"v_and_b32 v{WV+2}, 3, v{L_}", f"v_xor_b32 v{WV+1}, v{WV+1}, v{WV+2}", f"v_lshl_add_u32 v{WV}, v{WV+1}, 4, v{WV}",
              f"s_mul_i32 s{sT0}, s{sW}, 57344", f"v_add_u32 v{WV}, s{sT0}, v{WV}"]
        sw += [f"v_add_u32 v{WV+u}, {6144*u}, v{WV}" for u in range(1, 4)]
        sw = [[x] for x in sw]
        sw[1:3] = [sw[1] + sw[2]]
        for j in range(7):
            nf = max(P.ROTW - 1, 0)
            if j == 0 and P.ROTW < 2: sw.append([f"s_lshl_b32 s{sCO}, s{sC}, 7" if P.ROTW else f"s_mov_b32 s{sCO}, 0"])
            elif j < nf: sw.append([f"s_movk_i32 s{sCO+j}, {128*j}"])
            elif j == nf: sw += [[f"s_cmp_ge_u32 s{sBt}, {7-nf}", f"s_cselect_b32 s{sT0}, {2*nf-7}, {nf}"], [f"s_add_u32 s{sCO+j}, s{sBt}, s{sT0}"], [f"s_lshl_b32 s{sCO+j}, s{sCO+j}, 7"]]
            else: sw.append([f"s_add_u32 s{sCO+j}, s{sCO+j-1}, 128", f"s_cmp_eq_u32 s{sCO+j}, 896", f"s_cselect_b32 s{sCO+j}, {128*nf}, s{sCO+j}"])
            sw.append([f"s_mul_i32 s{sCS+j}, s{sCO+j}, 160"])
        return sw
    def tail_sched(self):
        sc = Sch(**P.ST)
        WAr = lambda st, par: 224 + 2 * st + par
        SO = 230
        RL = lambda s: CI(0) + s
        LP = CI(2)
        end = self.qk_part(sc, 30)
        n0 = sc.n()
        wo_items = self.wo_items
        L_ = 233; O4 = 234
        sw = [] if P.WG else self.wo_setup()
        sw += [[f"v_mbcnt_lo_u32_b32 v{L_}, -1, 0"], [f"v_mbcnt_hi_u32_b32 v{L_}, -1, v{L_}"]]
        G_, R_ = WAr(0, 0), WAr(0, 1)
        su = [f"v_lshrrev_b32 v{G_}, 5, v{L_}", f"v_bfe_u32 v{R_}, v{L_}, 2, 3", f"v_lshlrev_b32 v{R_}, 6, v{R_}",
              f"v_lshl_add_u32 v{G_}, v{G_}, 10, v{R_}", f"v_and_b32 v{R_}, 3, v{L_}", f"v_lshl_add_u32 v{G_}, v{R_}, 3, v{G_}",
              f"v_and_b32 v{R_}, 16, v{L_}", f"v_lshl_add_u32 v{G_}, v{R_}, 1, v{G_}",
              f"s_and_b32 s{sT1}, s{sW}, 1", f"s_mul_i32 s{sT2}, s{sT1}, {16384+32}", f"v_xor_b32 v{G_}, s{sT2}, v{G_}", f"v_xor_b32 v{R_}, 0x4000, v{G_}"]
        su += [f"v_add_u32 v{WAr(st,k)}, {0x10000*st}, v{WAr(0,k)}" for st in (1, 2) for k in range(2)]
        su += [f"v_lshlrev_b32 v{L_}, 4, v{L_}", f"s_lshl_b32 s{sT1}, s{sT1}, 10", f"s_lshr_b32 s{sT2}, s{sW}, 1", f"s_lshl_b32 s{sT2}, s{sT2}, 13",
               f"s_add_u32 s{sT2}, s{sT2}, s{sT1}", f"v_add_u32 v{SO}, s{sT2}, v{L_}", f"v_add_u32 v{SO+1}, 4096, v{SO}",
               f"s_lshl_b32 s{sT2}, s{sW}, 10", f"s_add_u32 s{sT2}, s{sT2}, 16384", f"v_add_u32 v{SO+2}, s{sT2}, v{L_}",
               f"s_add_u32 s{sT2}, s{sW8K}, {SLOT(4)}", f"v_add_u32 v{O4}, s{sT2}, v{L_}", f"v_xor_b32 v{O4+1}, 0x2000, v{O4}", f"v_xor_b32 v{O4+2}, 0x4000, v{O4}"]
        sc.chain(0, 44, sw + [[x] for x in su])
        if P.WG:
            for g, it in self.plan[30]: sc.fix(g, it)
        else: self.place_dma(sc, wo_items(0, 2), P.WO0)
        sc.bar("B", P.BQ, ["@vmw V15 lgkmcnt(0)", "s_barrier"] + self.stamp(41))
        self.vfrags(sc, "v", "B", "B31", self.vd(31))
        start, fin = self.pv_mfmas(sc, "v", og=lambda s, j: vr(OT(s, j)))
        n1 = sc.n(); b1 = n0 + P.BP
        self.pv_soft(sc, 31, n0)
        if not P.WG: self.place_dma(sc, wo_items(1, 3), [n0 + 4 + 5 * k for k in range(8)])
        mv = lambda t: [[f"v_accvgpr_read_b32 v{8*(t-20)+k}, a{144+4*(t-20)+k}"] for k in range(4)]
        sc.chain(end["b1"] + 2, n0 + 8, [x for t in range(20, 24) for x in mv(t)])
        sc.chain(end["b1"] + 2, start["a"] - 2, [x for t in range(24, 40) for x in mv(t)], rels=[0] * 32 + [n0 + 1] * 32)
        sc.bar("B31", b1, ["s_waitcnt lgkmcnt(0)", "s_barrier"] + self.stamp(42))
        def XO(s, i, r):
            if s < 2: return f"v{O4 + r - OWNP}", f"offset:{(4 * s + i) * 1024}"
            return f"v{r}", f"offset:@{SLOT(0) + i * 1024 if s == 2 else SLOT(1) + (4 * (s - 3) + i) * 1024}"
        XL = SLOT(0) + 4096
        ord_ = lambda s, i: f"ds_read_b128 {QR(s, 4+i)}, {' '.join(XO(s, i, OWNP))}"
        g0 = sc.n(); ba = g0 + P.BAG; bb = g0 + P.BBG
        for h, bn, by in (("b", "Ba", ba + 10), ("a", "Bb", bb + 8)):
            for i in range(4):
                for s in TL[h + "0"]: sc.add_frag(("ox", s, i), ("ox", s, i), [ord_(s, i)], rel=bn, q="ox", by=by)
        pool = [S("b0", 0) + 4 * k for k in range(10)] + [OT(s, 2 * i + 1) for s in range(5) for i in range(4)]
        ui = [0]; fk = [0]; buse = {}
        def nacc():
            r = pool[ui[0] % len(pool)]; ui[0] += 1; return r
        SLW = [2, 3, 4, 0, 1, 2, 3]
        def wfrag(j, hi, i, rel, due):
            f = ("o", fk[0]); k = fk[0] % 16; fk[0] += 1; sl = SLW[j]
            off = (sl & 1) * 32768 + (i & 3) * 4096 + hi * 512
            sc.add_frag(f, k, [f"ds_read_b64_tr_b16 {ar(FB(k)+2*rd,2)}, v{WAr(sl>>1,i>>2)} offset:{off+2048*rd}" for rd in range(2)], rel=rel, due=due)
            return f, k
        def mm(fk_, acc, s, hi, i):
            o = vr(acc[s][hi])
            g = sc.m(f"{MF} {o}, {ar(FB(fk_[1]))}, {vr(OT(s,2*i)) if i < 4 else QR(s,i)}, {'0' if i == 0 else o}", [fk_[0]] + ([("ox", s, i - 4)] if i >= 4 else []))
            buse.setdefault((s, i), g); return g
        sts = []
        def epi(j, acc, s, his):
            it = []
            for hi in his:
                r = acc[s][hi]; d = acc[s][0] + 2 * hi
                it += [[f"v_mul_f32 v{r+k}, v{r+k}, v{RL(s)}"] for k in range(4)] + [[f"v_cvt_pk_bf16_f32 v{d+k}, v{r+2*k}, v{r+2*k+1}"] for k in range(2)]
            return it, [f"buffer_store_dwordx4 {vr(acc[s][0])}, v{SO+(s>>1)}, {srd(sWS)}, s{sCS+j} offen offset:{2048*(s&1)}{P.STMOD}"] if 1 in his else None
        def epis(g, j, acc, subs, his):
            for s in subs:
                it, st = epi(j, acc, s, his); w = P.EPW * len(his)
                sc.chain(g, g + w + 1, it); g += w
                if st: sts.append((g + 2, st))
        acc = {s: (nacc(), nacc()) for s in range(5)}
        fr = {(hi, i): wfrag(0, hi, i, "Bo", "Bc") for par in range(2) for i in range(4 * par, 4 * par + 4) for hi in range(2)}
        ge = {}
        for par in range(2):
            for h in "ba":
                for i in range(4 * par, 4 * par + 4):
                    for hi in range(2):
                        for s in TL[h + "0"]: ge[h] = mm(fr[(hi, i)], acc, s, hi, i)
        sc.bar("Bo", n1 - 1 - P.BB, ["@vmw o0", "s_barrier"], clears=False)
        sc.bar("Ba", ba, ["@waitw", "s_barrier"] + self.stamp(43), clears=False)
        sc.bar("Bb", bb, ["@waitw", "@vmw o1", "s_barrier"] + self.stamp(44), clears=False)
        epis(ge["b"] + 2, 0, acc, range(5), (0, 1))
        relw = {1: "Bb", 2: "Bc", 3: "Bc", 4: "Bd", 5: "Be", 6: "Bf" if P.BF else "Be"}
        gj = {}
        for j in range(1, 7):
            acc = {s: (nacc(), nacc()) for s in range(5)}
            if j == 6 and P.SMAJ:
                fr = {(hi, i): wfrag(j, hi, i, relw[j], None) for hi in range(2) for i in range(8)}
                for subs in P.SMAJ:
                    for hi in range(2):
                        for i in range(8):
                            for s in subs: g = mm(fr[(hi, i)], acc, s, hi, i)
                        if 4 not in subs or not hi: epis(g + 2, j, acc, subs, (hi,))
                pend = subs
            else:
                for hi in range(2):
                    for i in range(8):
                        f = wfrag(j, hi, i, relw[j], "Bc" if j == 1 else None)
                        for s in range(5): g = mm(f, acc, s, hi, i)
                    if j < 6 or not hi: epis(g + 2 + (12 if j == 1 and not hi else 0), j, acc, range(5), (hi,))
                pend = range(5)
            gj[j] = g
        pend = [epi(6, acc, s, (1,)) for s in pend]
        pend = [x for it, st in pend for x in it + [st]]
        if P.BF: sc.bar("Bf", gj[P.BF[0]] - P.BF[1], ["@vmw o6", "s_barrier"], clears=False)
        sc.bar("Bc", gj[1] - P.BB, ["@vmw o3 lgkmcnt(0)", "s_barrier"] + self.stamp(45))
        sc.bar("Bd", gj[3] - P.BB, ["@vmw o4", "s_barrier"] + self.stamp(46), clears=False)
        sc.bar("Be", gj[4] - P.BB, ["@waitw", "@vmw o5" if P.BF else "@vmw o6", "s_barrier"] + self.stamp(47), clears=False)
        for h, bg in (("b", ba), ("a", bb)):
            wl = []; wr = []
            for i in range(4):
                it = []
                for s in TL[h + "0"]:
                    r, r2 = OT(s, 2 * i), OT(s, 2 * i + 1)
                    it += [[f"v_cvt_pk_bf16_f32 v{r+k}, v{[r,r2][k>>1]+2*(k&1)}, v{[r,r2][k>>1]+2*(k&1)+1}"] for k in range(4)]
                    wl.append([f"ds_write_b128 {XO(s, i, PARP)[0]}, {vr(r)} {XO(s, i, PARP)[1]}"])
                r0 = fin[(TL[h + "0"][-1], 2 * i + 1)] + 2
                g1 = max(r0, min(buse[(TL[h + "0"][0], i)] - 2, r0 + 30))
                sc.chain(r0, g1, it, hard=2.5)
                wr += [g1 + 1] * (len(wl) - len(wr))
            if h == "b":
                wl = [[f"ds_write_b32 v{PARP}, a{LS(s)} offset:@{XL + (4*s if s < 4 else 1024)}"] for s in range(5)] + wl
                wr = [fin[("l", 4)] + 3] * 5 + wr
            sc.chain(max(b1 + 1, wr[0]), bg - 2, wl, rels=wr, after="B31")
        lrd = f"ds_read_b32 v{LP+4}, v{OWNP} offset:@{XL+1024}"
        m = [[f"ds_read_b128 {vr(LP)}, v{OWNP} offset:@{XL}"], [lrd]] + [[f"v_accvgpr_read_b32 v{RL(s)}, a{LS(s)}"] for s in range(5)]
        m += [[f"v_add_f32 v{RL(s)}, v{RL(s)}, v{LP+s}"] for s in range(5)]
        m += [[f"v_add_f32 v{LP}, v{RL(0)}, v{RL(1)}"], [f"v_add_f32 v{LP+1}, v{RL(2)}, v{RL(3)}"], [f"v_add3_u32 v{LP+2}, 0, 0, 0"], [f"v_add_f32 v{LP}, v{LP}, v{RL(4)}"], [f"v_add_f32 v{LP}, v{LP}, v{LP+1}"]]
        del m[-3]
        m += [[f"v_rcp_f32 v{RL(s)}, v{RL(s)}"] for s in range(5)]
        sc.chain(ba + 1, ge["b"], m, after="Ba")
        sc.chain(gj[3] - P.BB + 1, gj[4] - P.BB - 8, [[f"ds_write_b32 v{O4}, v{LP}"]], after="Bd")
        used = []
        pre = {2: [["@waitt " + ord_(1, 3)]], 3: [["@waitt " + ord_(2, 3), "@waitt " + lrd]], 4: [["@waitt " + ord_(4, 3)]]}
        for j, (o, st) in zip(range(2, 7), P.TQ):
            pos = [int(g0 + o + st * k) for k in range(8)]
            assert pos[0] > (ba + 12 if j < 4 else bb + 10 if j == 4 else gj[1] - P.BB + 1) and (not used or pos[0] > used[-1] + 1)
            self.place_dma(sc, pre.get(j, []) + wo_items(j, SLW[j]), pos); used += pos
        g1 = g0 + P.TS0 - P.TSS
        for g, st in sts:
            g1 = max(g, g1 + (P.TSS if g < gj[5] + 30 else min(P.TSS, 4)))
            while any(abs(g1 - u) < P.TSP for u in used): g1 += 1
            g1 = min(g1, sc.n() - 1); assert g1 < g + 150
            sc.fix(g1, st)
        ck = [[f"ds_read_b32 v{LP+1}, v{O4+2}"], [f"v_add_f32 v{LP}, v{LP}, v{LP+1}"], [f"v_cmp_nge_f32 vcc, s{sTH}, v{LP}"], ["s_cbranch_vccnz L_redo", "L_redo_ret:"]]
        sc.chain(gj[4] - P.BB + 1, gj[5], ck, rels=[0, gj[4] + 10, 0, 0], after="Be")
        L = sc.run()
        for x in (ord_(1, 3), ord_(2, 3), lrd, ord_(4, 3)):
            assert L.index(x) < L.index("@waitt " + x), x
        i1 = next(k for k, l in enumerate(L) if l.startswith(f"v_rcp_f32 v{RL(4)},")); i2 = next(k for k, l in enumerate(L) if l.startswith("v_mul_f32"))
        assert i1 < i2
        L += ["s_nop 7"] + [x for it in pend for x in it]
        return L
    def redo(self):
        return ["L_redo:", f"s_cmp_lg_u32 s{sMODE}, 0", "s_cbranch_scc1 L_redo_ret", f"s_mov_b32 s{sMODE}, 1", "s_waitcnt vmcnt(0) lgkmcnt(0)", "s_barrier",
                "v_mbcnt_lo_u32_b32 v0, -1, 0", "v_mbcnt_hi_u32_b32 v0, -1, v0", f"s_lshl_b32 s{sT0}, s{sW}, 6", f"v_add_u32 v0, s{sT0}, v0",
                "s_getpc_b64 s[4:5]", "L_redo_pc:", "s_sub_u32 s4, s4, L_redo_pc-L_again", "s_subb_u32 s5, s5, 0", "s_setpc_b64 s[4:5]"]

    def fin(self):
        L = []; e = L.append
        sDB, sPR, sOU = sA, sB_, sX
        sOLD, sIDX, sMASK, sSEEN, sNEW, sPEND, sCNT, sPAR, sOWN, sSZ, sHO = 32, 33, 34, 35, 36, 37, 38, 39, 40, 41, 42
        ACC = lambda h, k, d: 24 * (h >> 1) + 8 * k + 2 * d
        LN, L4, LO, SOF, TV = 236, 237, 238, 239, 240
        PO = [241, 242, 243]; OO = [244, 245, 246]
        zero = [f"v_mov_b64 v[{r}:{r+1}], 0" for r in range(0, 192, 2)]
        e(f"s_lshl_b32 s{sT0}, s{sBLK}, 3"); e(f"s_add_u32 s{sT0}, s{sT0}, s{sBt}")
        e(f"s_lshl_b32 s{sT1}, s{sT0}, 4"); e(f"s_add_u32 s{sDB}, s94, s{sT1}"); e(f"s_addc_u32 s{sDB+1}, s95, 0"); e(f"s_mov_b32 s{sDB+2}, 4")
        e(f"s_mov_b32 s{sSZ}, {16*PART}"); e(f"s_mul_i32 s{sT0}, s{sT0}, s{sSZ}")
        e(f"s_add_u32 s{sPR}, s72, s{sT0}"); e(f"s_addc_u32 s{sPR+1}, s73, 0")
        e(f"s_mov_b32 s{sOU}, s92"); e(f"s_mov_b32 s{sOU+1}, s93"); e(f"s_mov_b32 s{sOU+2}, {8*160*1792}"); e(f"s_mov_b32 s{sOU+3}, 0x20000")
        e(f"s_lshl_b32 s{sOWN}, 1, s{sHd}"); e(f"s_mov_b32 s{sCNT}, {P.SPIN}"); e(f"s_mov_b32 s{sPEND}, 0")
        e(f"v_mbcnt_lo_u32_b32 v{LN}, -1, 0"); e(f"v_mbcnt_hi_u32_b32 v{LN}, -1, v{LN}"); e(f"v_lshlrev_b32 v{L4}, 2, v{LN}")
        e(f"v_and_b32 v{TV}, 15, v{LN}"); e(f"v_mul_u32_u24 v{LO}, 1792, v{TV}"); e(f"v_bfe_u32 v{TV}, v{LN}, 4, 1")
        e(f"v_lshl_add_u32 v{LO}, v{TV}, 6, v{LO}"); e(f"v_lshrrev_b32 v{TV}, 5, v{LN}"); e(f"v_lshl_add_u32 v{LO}, v{TV}, 4, v{LO}")
        MA_, MP_, TW = 247, 248, 249
        e(f"v_mov_b32 v{TV}, s{sOWN}"); e(f"v_mov_b32 v{TW}, s{sOWN}"); e(f"s_mov_b32 s{sPR+2}, s{sSZ}")
        e(f"v_mul_u32_u24 v{MA_}, {PART}, v{LN}"); e(f"v_add_u32 v{MA_}, {MBOX}, v{MA_}")
        e(f"v_lshlrev_b32 v{MP_}, 8, v{LN}"); e(f"v_add_u32 v{MP_}, {MBOX}, v{MP_}")
        IDN = 232
        e(f"v_and_b32 v{IDN}, 1, v{LN}"); e(f"v_lshlrev_b32 v{IDN}, 4, v{IDN}"); e(f"s_movk_i32 s{sT0}, 0x3f80"); e(f"v_lshlrev_b32 v{IDN}, v{IDN}, s{sT0}")
        e(f"v_bfe_i32 v{SOF}, v{LN}, 1, 1"); e(f"v_and_b32 v{IDN+1}, v{IDN}, v{SOF}"); e(f"v_xor_b32 v{IDN}, v{IDN}, v{IDN+1}")
        e("s_waitcnt vmcnt(0)")
        L += self.stamp(48)
        e("s_barrier")
        e(f"s_cmp_lg_u32 s{sW}, 0"); e("s_cbranch_scc1 L_f_b0")
        e(f"buffer_atomic_add v{TV}, v{L4}, {srd(sDB)}, 0 offen sc0")
        e(f"buffer_atomic_add v{TW}, v{MA_}, {srd(sPR)}, 0 offen"); e("s_waitcnt vmcnt(1)")
        e(f"ds_write_b32 v{L4}, v{TV}"); e("s_waitcnt lgkmcnt(0)")
        e("L_f_b0:"); e("s_barrier")
        e(f"ds_read_b32 v{TV}, v{L4}"); e("s_waitcnt lgkmcnt(0)"); e(f"v_readfirstlane_b32 s{sOLD}, v{TV}")
        L += self.stamp(49)
        e(f"s_and_b32 s{sMASK}, s{sOLD}, 0xffff"); e(f"s_bcnt1_i32_b32 s{sIDX}, s{sMASK}"); e(f"s_or_b32 s{sMASK}, s{sMASK}, s{sOWN}")
        if P.STAMP: e(f"v_writelane_b32 v{STR}, s{sIDX}, 60"); e(f"v_writelane_b32 v{STR}, 16, 61")
        e(f"s_cmp_lg_u32 s{sIDX}, 15"); e("s_cbranch_scc1 L_f_share")
        e(f"s_lshr_b32 s{sPEND}, s{sOLD}, 16")
        e("L_f_next:")
        e(f"s_cmp_eq_u32 s{sPEND}, 0"); e("s_cbranch_scc1 L_f_end")
        e(f"s_ff1_i32_b32 s{sIDX}, s{sPEND}"); e(f"s_bitset0_b32 s{sPEND}, s{sIDX}")
        e("L_f_share:")
        lv = list(P.LV) + [(0, 0)] * (7 - len(P.LV))
        tu = sum(u << (4 * k) for k, (u, c) in enumerate(lv)); tc = sum(c << (4 * k) for k, (u, c) in enumerate(lv))
        e(f"s_lshl_b32 s{sT0}, s{sIDX}, 2"); e(f"s_add_u32 s{sT0}, s{sT0}, s{sW}")
        e(f"s_mul_i32 s{sT1}, s{sT0}, 26"); e(f"s_lshr_b32 s{sT1}, s{sT1}, 8")
        e(f"s_mul_i32 s{sT2}, s{sT1}, 10"); e(f"s_sub_u32 s{sT0}, s{sT0}, s{sT2}")
        e(f"s_lshl_b32 s{sT1}, s{sT1}, 2")
        e(f"s_lshr_b32 s{sT2}, {hex(tu)}, s{sT1}"); e(f"s_and_b32 s{sT2}, s{sT2}, 15")
        e(f"s_lshr_b32 s{sT3}, {hex(tc)}, s{sT1}"); e(f"s_and_b32 s{sT3}, s{sT3}, 15")
        e("s_cbranch_scc0 L_f_next")
        e(f"s_mul_i32 s{sHO}, s{sBt}, 10"); e(f"s_add_u32 s{sHO}, s{sHO}, s{sT0}"); e(f"s_mul_i32 s{sHO}, s{sHO}, {16*1792}")
        e(f"s_mul_i32 s{sT1}, s{sBLK}, 896"); e(f"s_add_u32 s{sHO}, s{sHO}, s{sT1}")
        e(f"s_lshl_b32 s{sT0}, s{sT0}, 11")
        a, b, c = sNEW, sSEEN, sOLD
        for k in range(3):
            e(f"s_lshr_b32 s{a}, s{sT2}, 1"); e(f"s_and_b32 s{b}, s{sT2}, 1")
            e(f"s_mul_i32 s{c}, s{a}, 20"); e(f"s_add_u32 s{c}, s{c}, s{b}"); e(f"s_lshl_b32 s{c}, s{c}, 10"); e(f"s_add_u32 s{c}, s{c}, s{sT0}")
            e(f"s_lshl_b32 s{a}, s{a}, 2"); e(f"s_add_u32 s{a}, s{a}, s{b}"); e(f"s_lshl_b32 s{a}, s{a}, 5"); e(f"s_add_u32 s{a}, s{a}, s{sHO}")
            e(f"v_lshl_add_u32 v{PO[k]}, v{LN}, 4, s{c}"); e(f"v_add_u32 v{OO[k]}, s{a}, v{LO}")
            e(f"s_add_u32 s{sT2}, s{sT2}, 1")
        e(f"s_mov_b32 s{sNEW}, s{sMASK}"); e(f"s_mov_b32 s{sSEEN}, s{sMASK}")
        L += self.stamp(50)
        if P.STAMP: e(f"s_mov_b32 s44, {52 if P.STAMP in (1, 4) else 16}")
        e(f"s_cmp_eq_u32 s{sT3}, 2"); e("s_cbranch_scc1 L_f2_i"); e(f"s_cmp_eq_u32 s{sT3}, 1"); e("s_cbranch_scc1 L_f1_i")
        for U in (3, 2, 1):
            e(f"L_f{U}_i:")
            for q in range(4):
                e(f"s_and_b32 s{sT0}, s{sNEW}, {15 << (4*q)}"); e(f"s_cbranch_scc0 L_f{U}_h{4*q+3}")
                for h in range(4 * q, 4 * q + 4):
                    e(f"s_bitcmp1_b32 s{sNEW}, {h}"); e(f"s_cbranch_scc0 L_f{U}_h{h}")
                    e(f"s_mov_b32 s{sHO}, {h*PART}")
                    for k in range(U): e(f"buffer_load_dwordx4 {ar(12*h+4*k)}, v{PO[k]}, {srd(sPR)}, s{sHO} offen{P.RDMOD}")
                    e(f"L_f{U}_h{h}:")
            e(f"s_cmp_eq_u32 s{sSEEN}, 0xffff"); e(f"s_cbranch_scc1 L_f{U}_sum")
            e(f"L_f{U}_spin:")
            e(f"buffer_load_dword v{TV}, v{MP_}, {srd(sWS)}, 0 offen sc1"); e("s_waitcnt vmcnt(0)")
            e(f"v_readfirstlane_b32 s{sMASK}, v{TV}"); e(f"s_and_b32 s{sMASK}, s{sMASK}, 0xffff")
            e(f"s_andn2_b32 s{sNEW}, s{sMASK}, s{sSEEN}"); e(f"s_cbranch_scc1 L_f{U}_got")
            e(f"s_sub_u32 s{sCNT}, s{sCNT}, 1"); e(f"s_cbranch_scc0 L_f{U}_spin")
            e(f"s_lshl_b32 s{sT0}, 0x10000, s{sIDX}"); e(f"v_mov_b32 v{TV}, s{sT0}")
            e(f"buffer_atomic_or v{TV}, v{L4}, {srd(sDB)}, 0 offen sc0"); e("s_waitcnt vmcnt(0)")
            e(f"v_readfirstlane_b32 s{sMASK}, v{TV}"); e(f"s_and_b32 s{sMASK}, s{sMASK}, 0xffff")
            e(f"s_cmp_lg_u32 s{sMASK}, 0xffff"); e("s_cbranch_scc1 L_f_end")
            e(f"s_andn2_b32 s{sNEW}, s{sMASK}, s{sSEEN}")
            e(f"L_f{U}_got:")
            e(f"s_or_b32 s{sSEEN}, s{sSEEN}, s{sNEW}")
            if P.STAMP: L += ["s_memrealtime s[84:85]", "s_waitcnt lgkmcnt(0)", "s_mov_b32 m0, s44", f"s_bcnt1_i32_b32 s45, s{sSEEN}", f"v_writelane_b32 v{STR}, s84, m0",
                              f"v_writelane_b32 v{STC}, s45, m0", "s_add_u32 s44, s44, 1", f"v_writelane_b32 v{STR}, s44, 61"]
            e(f"s_branch L_f{U}_i")
            e(f"L_f{U}_sum:")
            e("s_waitcnt vmcnt(0)")
            L += self.stamp(51)
            for h in range(16):
                for k in range(U):
                    for d in range(2):
                        o = vr(8 * k + 4 * d)
                        e(f"v_mfma_f32_4x4x4_16b_bf16 {o}, {vr(IDN,2)}, {ar(12*h+4*k+2*d,2)}, {o if h else 0}")
                if U == 1: e("s_nop 0")
            e("s_nop 4")
            for k in range(U):
                r = 32 + 4 * k
                for d in range(4): e(f"v_cvt_pk_bf16_f32 v{r+d}, v{8*k+2*d}, v{8*k+2*d+1}")
                e(f"v_permlane16_swap_b32 v{r}, v{r+2}"); e(f"v_permlane16_swap_b32 v{r+1}, v{r+3}")
                e(f"buffer_store_dwordx4 {vr(r)}, v{OO[k]}, {srd(sOU)}, 0 offen{P.OUMOD}")
            e(f"s_mov_b32 s{sMASK}, 0xffff"); e("s_branch L_f_next")
        e("L_f_end:")
        return L


    def attn_kernel(self):
        e = self.e
        kn = NAME + "_kernel"
        e(f".globl {kn}"); e(".p2align 8"); e(f".type {kn},@function"); e(f"{kn}:")
        p0 = len(self.L)
        e("s_cmp_ge_u32 s2, 256"); e("s_cbranch_scc1 L_attn_end")
        e(f"s_mov_b32 s{sMODE}, 0")
        e("L_again:")
        e(f"s_and_b32 s{sT0}, s2, 7")
        e(f"s_lshr_b32 s{sBLK}, s{sT0}, 2"); e(f"s_mul_i32 s{sT1}, s{sBLK}, 40")
        e(f"s_add_u32 s4, s0, s{sT1}"); e("s_addc_u32 s5, s1, 0")
        e(f"s_load_dwordx8 s[{sPT}:{sPT+7}], s[4:5], 0")
        e(f"s_load_dwordx2 s[{sWO}:{sWO+1}], s[4:5], 32")
        e("s_load_dwordx2 s[72:73], s[0:1], 96")
        e("s_load_dwordx4 s[92:95], s[0:1], 80")
        for x in self.stamp("start"): e(x)
        t = list(range(100, 116))
        ln, g, r4, x4, tq, tu, tv, fj = t[:8]
        e(f"s_getpc_b64 s[{sWS}:{sWS+1}]"); e("L_cw0:"); e(f"s_mov_b32 s{sWS+2}, L_code_end-L_cw0"); e(f"s_mov_b32 s{sWS+3}, 0x20000")
        e(f"v_and_b32 v{ln}, 63, v0"); e(f"v_lshrrev_b32 v{tq}, 6, v0"); e(f"s_lshr_b32 s{sT1}, s2, 3"); e(f"s_lshl_b32 s{sT2}, s{sT1}, 9")
        e(f"v_lshlrev_b32 v{tu}, 14, v{ln}"); e(f"v_lshl_add_u32 v{tu}, v{tq}, 7, v{tu}"); e(f"v_add_u32 v{tu}, s{sT2}, v{tu}")
        e(f"buffer_load_dword a{LS(0)}, v{tu}, {srd(sWS)}, 0 offen")
        e(f"v_readfirstlane_b32 s{sW}, v{tq}")
        e(f"s_and_b32 s{sHd}, s{sT0}, 3"); e(f"s_lshl_b32 s{sHd}, s{sHd}, 2"); e(f"s_and_b32 s{sT2}, s{sT1}, 3")
        e(f"s_add_u32 s{sHd}, s{sHd}, s{sT2}"); e(f"s_lshr_b32 s{sBt}, s{sT1}, 2")
        e(f"s_lshl_b32 s{sC}, s{sT2}, 1"); e(f"s_add_u32 s{sC}, s{sC}, s{sBt}"); e(f"s_sub_u32 s{sT2}, s{sC}, 7")
        e(f"s_cmp_ge_u32 s{sC}, 7"); e(f"s_cselect_b32 s{sC}, s{sT2}, s{sC}")
        e(f"s_lshl_b32 s{sCW}, s{sC}, 19"); e(f"s_lshl_b32 s{sCX}, s{sC}, 7")
        e(f"s_lshl_b32 s{sW8K}, s{sW}, 13"); e(f"s_movk_i32 s{sF}, 0x9c")
        e(f"s_lshl_b32 s{sT0}, s{sW}, 1"); e(f"s_lshr_b32 s{sT0}, s{sF}, s{sT0}"); e(f"s_and_b32 s{sT0}, s{sT0}, 3")
        e(f"v_lshrrev_b32 v{g}, 4, v{ln}"); e(f"v_bfe_u32 v{r4}, v{ln}, 2, 2"); e(f"v_and_b32 v{x4}, 3, v{ln}")
        e(f"v_xor_b32 v{tq}, s{sT0}, v{x4}"); e(f"v_lshlrev_b32 v{tq}, 4, v{tq}"); e(f"v_lshl_add_u32 v{tq}, v{g}, 6, v{tq}")
        HW, HX, WA, XA = self.HW, self.HX, self.WA, self.XA
        e(f"s_lshl_b32 s{sT0}, s{sW}, 17"); e(f"v_lshl_add_u32 v{tu}, v{r4}, 13, v{tq}"); e(f"v_add_u32 v{HW+1}, s{sT0}, v{tu}")
        for k in (0, 2, 3, 4, 5, 6, 7):
            gg, u = k >> 2, k & 3
            e(f"v_add_u32 v{HW+k}, {768 + (2*gg + (u>>1))*32768 + (u&1)*256 - u*1024}, v{HW+1}")
        e(f"v_bfe_u32 v{tu}, v{ln}, 2, 3"); e(f"v_mul_u32_u24 v{tu}, 896, v{tu}"); e(f"v_lshrrev_b32 v{tv}, 5, v{ln}")
        e(f"v_lshl_add_u32 v{tu}, v{tv}, 6, v{tu}")
        e(f"v_and_b32 v{tv}, 1, v{g}"); e(f"v_mul_u32_u24 v{tv}, 3, v{tv}"); e(f"v_xor_b32 v{tv}, v{tv}, v{x4}")
        e(f"v_lshl_add_u32 v{tu}, v{tv}, 4, v{tu}")
        e(f"s_mul_i32 s{sT0}, s{sW}, 28672"); e(f"v_add_u32 v{HX}, s{sT0}, v{tu}"); e(f"v_xor_b32 v{tv}, 16, v{HX}")
        e(f"v_add_u32 v{HX+1}, 6144, v{tv}"); e(f"v_add_u32 v{HX+2}, 12288, v{HX}"); e(f"v_add_u32 v{HX+3}, 18432, v{tv}")
        e(f"s_and_b32 s{sT1}, s{sW}, 1"); e(f"s_lshl_b32 s{sT1}, s{sT1}, 4"); e(f"v_xor_b32 v{tv}, s{sT1}, v{tu}")
        e(f"s_mul_i32 s{sT0}, s{sW}, 7168"); e(f"s_add_u32 s{sT0}, s{sT0}, {128*896}"); e(f"v_add_u32 v{HX+4}, s{sT0}, v{tv}")
        e(f"s_lshl_b32 s{sT2}, s{sW}, 12"); e(f"s_lshl_b32 s{sT3}, s{sW}, 10")
        e(f"s_mul_i32 s{sT0}, s{sBt}, 143360"); e(f"s_lshl_b32 s{sT1}, s{sHd}, 9")
        e(f"s_mov_b32 s{sX+2}, 143360"); e(f"s_mov_b32 s{sX+3}, 0x20000"); e(f"s_mov_b32 s{sWQ+3}, 0x20000")
        e(f"s_sub_u32 s{sWQ+2}, {448*8192+768}, s{sT1}")
        e("s_waitcnt lgkmcnt(0)")
        e(f"s_add_u32 s{sWQ}, s{sPT+6}, s{sT1}"); e(f"s_addc_u32 s{sWQ+1}, s{sPT+7}, 0")
        e(f"s_sub_u32 s{sWQ}, s{sWQ}, 768"); e(f"s_subb_u32 s{sWQ+1}, s{sWQ+1}, 0")
        e(f"s_add_u32 s{sX}, s{sPT}, s{sT0}"); e(f"s_addc_u32 s{sX+1}, s{sPT+1}, 0")
        for x in self.stamp(1): e(x)
        for it in self.w_items(0) + self.x_items(0):
            for x in it: e(x)
        for x in self.stamp(2): e(x)
        e(f"s_lshl_b32 s{sT0}, s{sBt}, 4"); e(f"s_add_u32 s{sT0}, s{sT0}, s{sHd}"); e(f"s_lshl_b32 s{sT1}, s{sT0}, 19")
        for s_, p in ((sA, sPT + 2), (sB_, sPT + 4)):
            e(f"s_add_u32 s{s_}, s{p}, s{sT1}"); e(f"s_addc_u32 s{s_+1}, s{p+1}, 0")
            e(f"s_sub_u32 s{s_}, s{s_}, 768"); e(f"s_subb_u32 s{s_+1}, s{s_+1}, 0")
            e(f"s_mov_b32 s{s_+2}, {524288+768}"); e(f"s_mov_b32 s{s_+3}, 0x20000")
        e(f"s_lshl_b32 s{sT1}, s{sBLK}, 7"); e(f"s_add_u32 s{sT0}, s{sT0}, s{sT1}"); e(f"s_mul_i32 s{sT0}, s{sT0}, {PART}")
        e(f"s_add_u32 s{sWS}, s72, s{sT0}"); e(f"s_addc_u32 s{sWS+1}, s73, 0"); e(f"s_mov_b32 s{sWS+2}, {PART}")
        e(f"v_lshl_add_u32 v{tu}, v{r4}, 9, v{tq}"); e(f"v_add_u32 v{VO+1}, s{sW8K}, v{tu}")
        e(f"v_add_u32 v{VO}, 768, v{VO+1}")
        e(f"s_and_b32 s{sT0}, s{sW}, 1"); e(f"s_lshl_b32 s{sT1}, s{sT0}, 13"); e(f"s_sub_u32 s{sH}, 4096, s{sT1}")
        e(f"s_sub_u32 s{sPH}, 0x10000, s{sH}"); e(f"s_sub_u32 s{sNH}, {u32(-98304)}, s{sH}")
        e(f"s_lshl_b32 s{sT1}, s{sT0}, 12"); e(f"s_lshl_b32 s{sT0}, s{sT0}, 10")
        e(f"v_lshlrev_b32 v{tv}, 1, v{g}"); e(f"v_bfe_u32 v{tv}, s{sF}, v{tv}, 2"); e(f"v_lshrrev_b32 v{tu}, 1, v{x4}")
        e(f"v_xor_b32 v{tv}, v{tv}, v{tu}"); e(f"v_lshl_add_u32 v{tv}, v{tv}, 4, s{sT0}")
        e(f"v_lshl_add_u32 v{tv}, v{g}, 13, v{tv}"); e(f"v_lshl_add_u32 v{tv}, v{r4}, 6, v{tv}")
        e(f"v_and_b32 v{tu}, 1, v{x4}"); e(f"v_lshl_add_u32 v{WA}, v{tu}, 3, v{tv}"); e(f"v_xor_b32 v{WA+1}, 32, v{WA}")
        e(f"v_add_u32 v{WA+2}, {SLOT(2)}, v{WA}"); e(f"v_add_u32 v{WA+3}, {SLOT(2)}, v{WA+1}")
        e(f"s_add_u32 s{sD}, s{sT1}, {SLOT(1)}"); e(f"v_add_u32 v{VA}, s{sD}, v{WA}"); e(f"v_add_u32 v{VA+1}, s{sD}, v{WA+1}")
        e(f"v_lshlrev_b32 v{fj}, 1, v{r4}"); e(f"v_bfe_u32 v{fj}, s{sF}, v{fj}, 2")
        e(f"s_movk_i32 s{sD}, 0xd8"); e(f"v_lshlrev_b32 v{tv}, 1, v{g}"); e(f"v_bfe_u32 v{tv}, s{sD}, v{tv}, 2")
        e(f"s_add_u32 s{sT1}, s{sT1}, s{sT0}")
        e(f"v_xor_b32 v{tv}, v{tv}, v{fj}"); e(f"v_lshl_add_u32 v{tv}, v{tv}, 4, s{sT1}")
        e(f"v_lshl_add_u32 v{tv}, v{r4}, 13, v{tv}"); e(f"v_lshl_add_u32 v{KA}, v{x4}, 6, v{tv}"); e(f"v_xor_b32 v{KA+1}, 1024, v{KA}")
        e(f"v_and_b32 v{tv}, 1, v{g}"); e(f"v_lshlrev_b32 v{tv}, 1, v{tv}"); e(f"v_xor_b32 v{tv}, v{tv}, v{fj}"); e(f"v_lshlrev_b32 v{tv}, 4, v{tv}")
        e(f"v_and_b32 v{tu}, 7, v{ln}"); e(f"v_lshl_add_u32 v{tv}, v{tu}, 6, v{tv}")
        e(f"v_lshrrev_b32 v{tu}, 5, v{ln}"); e(f"v_lshl_add_u32 v{tv}, v{tu}, 9, v{tv}")
        e(f"v_bfe_u32 v{tq}, v{ln}, 3, 1"); e(f"v_lshl_add_u32 v{tv}, v{tq}, 10, v{tv}")
        e(f"s_lshr_b32 s{sT1}, s{sW}, 1"); e(f"s_lshl_b32 s{sT0}, s{sT1}, 13"); e(f"s_add_u32 s{sT0}, s{sT0}, {SLOT(1)}")
        e(f"v_add_u32 v{XA}, s{sT0}, v{tv}"); e(f"v_xor_b32 v{XA+1}, 16, v{XA}")
        e(f"v_add_u32 v{XA+2}, {SLOT(4)-SLOT(1)}, v{XA}"); e(f"v_add_u32 v{XA+3}, {SLOT(4)-SLOT(1)}, v{XA+1}")
        e(f"s_lshl_b32 s{sT0}, s{sT1}, 11"); e(f"s_add_u32 s{sT0}, s{sT0}, {SLOT(4)+16384}")
        e(f"v_add_u32 v{XA+4}, s{sT0}, v{tv}"); e(f"v_xor_b32 v{XA+5}, 16, v{XA+4}")
        e(f"v_lshl_add_u32 v{OWNP}, v{ln}, 4, s{sW8K}"); e(f"v_xor_b32 v{PARP}, 0x2000, v{OWNP}")
        if P.TCH: e(f"v_lshl_add_u32 v{self.TV}, v{ln}, 7, s{sW8K}")
        e(f"s_mul_i32 s{sT0}, s{sT1}, 320"); e(f"s_add_u32 s{sT0}, s{sT0}, {MXA}"); e(f"v_and_b32 v{tu}, 15, v{ln}")
        e(f"v_lshl_add_u32 v{T0}, v{tu}, 2, s{sT0}"); e(f"v_mov_b32 v{tv}, 0x7f800000")
        for s in range(5): e(f"ds_write_b32 v{T0}, v{tv} offset:{64*s}")
        e(f"s_mov_b32 s{sSC}, {hex(f2u(math.log2(math.e) / 16.0))}"); e(f"s_mov_b32 s{sTH}, {hex(f2u(-1.0 if P.FORCE else P.LTH))}")
        e(f"s_mov_b32 s{sT0}, 0x3f803f80")
        for k in range(4): e(f"v_accvgpr_write_b32 a{ONES+k}, s{sT0}")
        for it in self.x_items(1) + self.w_items(1):
            for x in it: e(x)
        e(f"v_add_u32 v{tu}, s{sMODE}, v{ln}"); e(f"v_lshlrev_b32 v{tu}, 8, v{tu}"); e(f"v_add_u32 v{tu}, {MBOX}, v{tu}"); e(f"v_mov_b32 v{tq}, 0")
        e(f"buffer_store_dword v{tq}, v{tu}, {srd(sWS)}, 0 offen sc1")
        if P.WP:
            e(f"s_mul_i32 s{sT1}, s{sHd}, 32"); e(f"s_lshl_b32 s{sT0}, s{sBt}, 2"); e(f"s_add_u32 s{sT1}, s{sT1}, s{sT0}"); e(f"s_add_u32 s{sT1}, s{sT1}, s{sW}")
            e(f"s_mul_i32 s{sT1}, s{sT1}, 7168"); e(f"s_add_u32 s{sFC}, s{sWO}, s{sT1}"); e(f"s_addc_u32 s{sFC+1}, s{sWO+1}, 0"); e(f"s_movk_i32 s{sFC+2}, 7168")
            e(f"s_mov_b32 s{sFC+3}, 0x20000"); e(f"v_lshlrev_b32 v{T1}, 7, v{ln}")
            if P.WP == 1: e(f"buffer_load_dword v{T1}, v{T1}, {srd(sFC)}, 0 offen{P.TNT}")
        if P.PT:
            e(f"v_lshlrev_b32 v{tu}, {P.PTS}, v{ln}"); e(f"s_mov_b32 s{sFC+3}, 0x20000")
            e(f"s_lshl_b32 s{sT1}, s{sBLK}, 3"); e(f"s_add_u32 s{sT1}, s{sT1}, s{sBt}")
            for k, (nm, ptr, idx, sz) in enumerate((("w", sWO, sHd, 229376), ("d", 94, None, 256), ("p", 72, sT1, 16 * PART), ("o", 92, sBt, 160 * 1792))):
                if nm not in P.PT: continue
                if idx is None: e(f"s_mov_b32 s{sT0}, 0")
                else: e(f"s_mul_i32 s{sT0}, s{idx}, {sz}")
                e(f"s_add_u32 s{sFC}, s{ptr}, s{sT0}"); e(f"s_addc_u32 s{sFC+1}, s{ptr+1}, 0"); e(f"s_mov_b32 s{sFC+2}, {sz}")
                e(f"buffer_load_dword a{LS(1)+k}, v{tu}, {srd(sFC)}, 0 offen")
        e("@vmw c0 lgkmcnt(0)"); e("s_barrier")
        for x in self.stamp(3): e(x)
        for x in self.head_sched(): e(x)
        self.vq = [0]; self.fifo = []
        head = self.finish(self.L[p0:], "head")
        self.L[p0:] = head
        plan = self.plan = self.uni_plan()
        for k in range(2, 30):
            for x in self.static_body(k, plan[k]): e(x)
        tail = self.finish(self.tail_sched(), "tail", self.L[-30:])
        for x in tail: e(x)
        fin, _ = fix_hazards(self.fin(), tail[-30:])
        for x in fin: e(x)
        if P.STAMP:
            e("s_waitcnt vmcnt(0)")
            for x in self.stamp(63): e(x)
            e(f"v_writelane_b32 v{STR}, s{sST+4}, 0"); e(f"v_writelane_b32 v{STC}, s{sST+6}, 0")
            e(f"s_lshl_b32 s{sT0}, s2, 2"); e(f"s_add_u32 s{sT0}, s{sT0}, s{sW}"); e(f"s_lshl_b32 s{sT0}, s{sT0}, 9")
            e(f"s_add_u32 s{sT0}, s{sT0}, {STAMP_OFF}")
            e(f"s_add_u32 s{sWS}, s72, s{sT0}"); e(f"s_addc_u32 s{sWS+1}, s73, 0"); e(f"s_mov_b32 s{sWS+2}, 512")
            e("v_mbcnt_lo_u32_b32 v20, -1, 0"); e("v_mbcnt_hi_u32_b32 v20, -1, v20"); e("v_lshlrev_b32 v20, 2, v20")
            e(f"buffer_store_dword v{STR}, v20, {srd(sWS)}, 0 offen"); e(f"buffer_store_dword v{STC}, v20, {srd(sWS)}, 0 offen offset:256")
        e("L_attn_end:")
        e("s_endpgm")
        e("L_code_end:")
        body = self.L[p0:]
        for x in self.R + fix_hazards(self.tmax())[0] + fix_hazards(self.redo())[0] + (self.fc_spin() if P.FC else []): e(x)
        return check_hazards(body, "all")

def desc(name, vg, acc):
    return [f".amdhsa_kernel {name}", f"  .amdhsa_next_free_vgpr {vg}", "  .amdhsa_next_free_sgpr 102",
            f"  .amdhsa_accum_offset {acc}", "  .amdhsa_group_segment_fixed_size 0", "  .amdhsa_kernarg_size 104",
            "  .amdhsa_user_sgpr_count 2", "  .amdhsa_user_sgpr_kernarg_segment_ptr 1",
            "  .amdhsa_system_sgpr_workgroup_id_x 1", ".end_amdhsa_kernel"]

def build(path, verbose=True):
    g = Gen()
    ref = open(f"cdna_kernels/{NAME}.s.ref").read().splitlines()
    g.L += [l for l in ref if l.startswith(";") and "@launch" not in l]
    g.L += ["; @launch grid=(256,1,1) block=(256,1,1) lds=163840"]
    g.L += ['.amdgcn_target "amdgcn-amd-amdhsa--gfx950"', ".text"]
    probs = g.attn_kernel()
    g.L += ['.section .rodata,"a"', ".p2align 6"] + desc(NAME + "_kernel", 512, 256)
    open(path, "w").write("\n".join(g.L) + "\n")
    seen = set()
    for p in probs:
        k = p.split("]", 1)[1]
        if k not in seen: print(p); seen.add(k)
    if verbose:
        tot = 0
        for k, (v, added) in g.sec.items():
            ins = [Ins(x) for x in v]
            nm = sum(1 for i in ins if i.kind == "mfma"); tot += est_cycles(v)
            print(f"{k}: instr {sum(1 for i in ins if i.states)} mfma {nm} ({nm*16} cyc) est {est_cycles(v)} nops {added} waits {sum(1 for i in ins if i.mn=='s_waitcnt')}")
        print("total est", tot, "staged", g.nstaged)
    return g

if __name__ == "__main__":
    out = sys.argv[1] if len(sys.argv) > 1 else "k6.s"
    for kv in sys.argv[2:]:
        k, v = kv.split("=", 1)
        setattr(P, k, eval(v))
    build(out)
```

```python
import sys, math, struct, re
from asmlib import Ins, check_hazards, autowait, fix_hazards
from sched3 import Sch, cost, est_cycles

NAME = "concat_heads__mha_block_cached__mha_block_cached__near_ridge"
MF = "v_mfma_f32_16x16x32_bf16"
def f2u(x): return struct.unpack("<I", struct.pack("<f", x))[0]
def vr(b, n=4): return f"v[{b}:{b+n-1}]"
def ar(b, n=4): return f"a[{b}:{b+n-1}]"
def srd(b): return f"s[{b}:{b+3}]"
def u32(x): return hex(x & 0xffffffff)

class P:
    STAMP = False
    BB = 12
    BQ = 68
    BP = 54
    NPK = 10
    NPV = 6
    KVNT = " nt"
    STMOD = " sc1"
    LTH = 2.0 ** 40
    HQ = [("c2", 0, 2), ("K0", 28, 2), ("c3", 100, 3), ("c4", 150, 2), ("V0", 180, 2), ("c5", 255, 3), ("c6", 310, 2),
          ("V1", 340, 8), ("K1", 410, 10), ("K2", 490, 8), ("K3", 555, 6), ("V2", 640, 6)]
    HST = (3, 4)
    KVINC = 32768
    LV = [(0, 3), (3, 3), (6, 3), (9, 2), (11, 2), (13, 1)]
    SPIN = 20000
    WNT = ""
    STRIP = []
    STRIPT = []
    STRIPH = []
    WNT0 = [0]
    WO0 = [58, 59, 60, 61, 62, 63, 64, 65]
    SH = {}
    ST = {}
    SL = {}
    UG = (2, 2240)
    UP = 1.0
    UF = 9
    UL = 110
    UT = [12, 22]
    FC = []
    FCL = 1
    FCG = 3
    FCN = 60
    FCS = 4352
    FORCE = False
    BXG = 34
    BAG = 22
    BBG = 50
    TCH = []
    TNT = ""
    WSP = False
    VN = 0
    WG = None
    ROTW = True
    WP = 0
    WONT = []
    RDMOD = " sc1"
    OUMOD = ""
    VSP = 0
    EPW = 4
    SMAJ = None
    BF = None
    TQ = [(38, 3), (64, 4), (98, 5), (150, 5), (191, 5)]
    TS0 = 0
    TSP = 1
    TSS = 1
    PT = ""
    PTS = 16
    WT = []
    MAP = 4
    RSK = 0
    VL = None
    F2 = False
    NS = (7, 6, 2)
    CG = (70,)
    ZK = (4, 8)
    PG = 470
    EF = [(3, 425), (5, None)]
    FP = True
    PQ = []
    RA = 3
    RB = 1
    RH = 1

def QA(s, j): return 32 * s + 4 * j
def QR(s, i): return vr(32 * s + 8 * i) if i < 4 else ar(64 + 4 * (5 * (i - 4) + s))
def OV(t): return 8 * t + 4
def OR(s, j):
    t = 8 * s + j
    return vr(OV(t)) if t < 20 else ar(144 + 4 * (t - 20))
def OT(s, j):
    t = 8 * s + j
    return OV(t) if t < 20 else 8 * (t - 20)
SB = 160
TL = {"b0": (0, 1, 2), "b1": (0, 1, 2), "a0": (3, 4), "a1": (3, 4)}
TB = {"b0": 0, "b1": 3, "a0": 3, "a1": 5}
def HF(s): return "b" if s < 3 else "a"
def S(t, s): return SB + 4 * (TB[t] + s)
def PR(s): return S(HF(s) + "0", s)
def PP(s): return S(HF(s) + "1", s)
def CI(s): return 200 + 4 * s
KA, VA, VO, OWNP, PARP, T0, T1 = 244, 246, 248, 250, 251, 252, 253
FCV = T1
STR, STC = 254, 255
def FB(k): return 4 * k
def LS(s): return 224 + 4 * s
ONES = 244
def STG(b): return vr(220 + 4 * b) if b < 6 else ar(248 + 4 * (b - 6))
def STR_(n, k):
    if n == 0: return vr(SB + 4 * k)
    if n == 1: return ar(144 + 4 * k) if k < 4 else ar(32 + 4 * k)
    if n in (3, 4): return ar(160 + 32 * (n - 3) + 4 * k)
    assert n == 6
    return STG(k)
def SLOT(n): return (n % 5) * 32768
def PX(n, s): return SLOT(2 * n - 1) + (5 + s) * 1024 if s < 3 else SLOT(2 * n) + (3 + s) * 1024
MXA = SLOT(4) + 28 * 1024
sA, sB_, sX, sWQ, sWS = 8, 12, 16, 20, 24
sW, sW8K = 28, 29
sRET = 30
sTH, sH, sPH, sNH, sD, sMODE = 32, 33, 34, 35, 36, 37
sOA, sOB = 45, 46
sT0, sT1, sT2, sT3 = 47, 48, 49, 50
sBLK, sBt, sHd, sC, sSC, sBAD = 51, 52, 53, 54, 55, 56
sCW, sCX = 57, 58
sWO = 60
sF = 62
sM0 = 63
sPT = 64
sCO = 64
sCS = 74
sRT2 = 96
sST = 84
PART = 144384
MBOX = 143360 + 768
MB0 = 143360
sCLS = 71
class F:
    PO, OO, POS, MP, TV, BY, LN, Q2, D0, IDN, LO, PB = 237, 240, 245, 213, 214, 215, 216, 217, 218, 206, 205, 244
    sDB, sPR, sOU, sFL = sA, sB_, sX, 40
    IDX, FRC, CNT, GU, PEND, ST, SEEN, NEW, C, t0, t1, HO = 98, 99, 100, 101, 46, 38, 33, 81, 64, 6, 7, 36
STAMP_OFF = 48 << 20
FC_OFF = 0x2500000
sFC, sFM, sFN, sFT, sF1 = 40, 38, 39, 44, 6

def vmpass(lines, q):
    out = []; done = q[0]
    for l in lines:
        if l.startswith("@vmw"):
            p = l.split(None, 2)
            idx = max(k for k, t in enumerate(q) if k and t and p[1] in t)
            n = min(63, len(q) - 1 - idx)
            if idx <= done:
                if len(p) > 2: out.append("s_waitcnt " + p[2])
                continue
            done = q[0] = idx
            out.append(f"s_waitcnt vmcnt({n})" + (" " + p[2] if len(p) > 2 else ""))
            continue
        if l.startswith("@vml"):
            n = int(l.split()[1])
            if len(q) - 1 - n > done: done = q[0] = len(q) - 1 - n; out.append(f"s_waitcnt vmcnt({n})")
            if len(l.split()) > 2 and len(q) - 1 - int(l.split()[2]) > done:
                out += [f"s_bitcmp1_b32 s{sCLS}, {l.split()[3]}", f"s_cbranch_scc0 Lvl{len(q)}", f"s_waitcnt vmcnt({l.split()[2]})", f"Lvl{len(q)}:"]
            continue
        if l.startswith("buffer_"):
            q.append(l.split("@t:")[1].split() if "@t:" in l else None)
            l = l.split(";")[0].strip()
        out.append(l)
    return out
def tn(n): return "KV"[n % 2] + str(n // 2)

class Gen:
    def __init__(self):
        self.L = []; self.R = []; self.uid = 0; self.sec = {}; self.base = {OWNP: 0, PARP: 0}
    def e(self, s): self.L.append(s)
    def lab(self, p):
        self.uid += 1; return f"L{p}_{self.uid}"
    def stamp(self, k):
        if not P.STAMP: return []
        if k == "start": return [f"s_memrealtime s[{sST+4}:{sST+5}]", f"s_memtime s[{sST+6}:{sST+7}]"]
        o = ["s_waitcnt lgkmcnt(0)", f"s_memrealtime s[{sST}:{sST+1}]", f"s_memtime s[{sST+2}:{sST+3}]", "s_waitcnt lgkmcnt(0)"]
        if P.STAMP == 3 and k in (1, 2, 4, 5, 6, 7, 8, 49, 50): return []
        if P.STAMP in (2, 4) and k in (1, 2, 4, 5, 7, 8, 9, 11, 42, 43, 44, 46, 47, 49, 50, 58, 59): return []
        return o + [f"v_writelane_b32 v{STR}, s{sST}, {k}", f"v_writelane_b32 v{STC}, s{sST+2}, {k}"]

    def softmax(self, t, n, add=False):
        it = []; pend = []; o = 2 * int(t[1])
        for s in TL[t]:
            if add: it += [[f"v_add_f32 v{S(t,s)+k}, v{S(t,s)+k}, v{CI(s)}"] for k in range(4)]
            for k in range(4):
                it.append([f"v_exp_f32 v{S(t,s)+k}, v{S(t,s)+k}"])
                if pend: it.append(pend.pop(0))
                if k % 2 == 1: pend.append([f"v_cvt_pk_bf16_f32 v{PR(s)+o+k//2}, v{S(t,s)+k-1}, v{S(t,s)+k}"])
            if o: pend.append([f"ds_write_b128 v{PARP}, {vr(PR(s))} offset:@{PX(n,s)}"])
        return it + pend
    def pprd(self, n, s): return f"ds_read_b128 {vr(PP(s))}, v{OWNP} offset:@{PX(n,s)}"

    def krd(self, b, kt, i): return [f"ds_read_b128 {ar(FB(b))}, v{KA+(i>>2)} offset:{kt*2048 + (i&3)*256}"]
    def trd(self, b, reg, j, base=0):
        off = base + (j >> 1) * 256
        return [f"ds_read_b64_tr_b16 {ar(FB(b),2)}, v{reg+(j&1)} offset:{off}", f"ds_read_b64_tr_b16 {ar(FB(b)+2,2)}, v{reg+(j&1)} offset:{off+2048}"]
    def kfrags(self, sc, tag, rel, due, d0, n=16, use=None):
        for k in range(n):
            pre = [f"v_add_u32 v{KA+(k>>2)}, {d0}, v{KA+(k>>2)}"] if k in (0, 4) and d0 else []
            sc.add_frag((tag, k), k, self.krd(k, k >> 3, k & 7), pre, rel, due, use=None if use is None else use + 3 * k)
    def vfrags(self, sc, tag, rel, due, d0, n=16, use=None):
        for k in range(n):
            pre = []
            if k < 2 and d0: pre = [f"v_add_u32 v{VA+k}, {d0}, v{VA+k}"]
            if k in (8, 9): pre = [f"v_add_u32 v{VA+k-8}, s{sH}, v{VA+k-8}"]
            sc.add_frag((tag, k), k, self.trd(k, VA, k & 7), pre, rel, due, use=None if use is None else use + 3 * k)
    def qk_mfmas(self, sc, tag):
        end = {}
        for h in "ba":
            for k in range(16):
                t = h + str(k >> 3); i = k & 7
                for s in TL[t]:
                    end[t] = sc.m(f"{MF} {vr(S(t,s))}, {ar(FB(k))}, {QR(s,i)}, {vr(CI(s)) if i == 0 else vr(S(t,s))}", [(tag, k)])
        return end
    def pv_mfmas(self, sc, tag, first=False, og=OR):
        start = {}; fin = {}
        for h in "ba":
            start[h] = sc.n()
            for s in TL[h + "0"]: fin[("l", s)] = sc.m(f"{MF} {ar(LS(s))}, {ar(ONES)}, {vr(PR(s))}, {'0' if first else ar(LS(s))}")
            for k in range(16):
                if k == 8: start[h + "p"] = sc.n()
                for s in TL[h + "0"]:
                    o = og(s, k & 7)
                    fin[(s, k & 7)] = sc.m(f"{MF} {o}, {ar(FB(k))}, {vr(PR(s) if k < 8 else PP(s))}, {'0' if first and k < 8 else o}", [(tag, k)])
        return start, fin

    def place_dma(self, sc, it, pos):
        k = 0; pend = []; prev = max(-1, pos[0] - 2)
        for x in it:
            if x[0].startswith("buffer"):
                for j, y in enumerate(pend): sc.fix(max(prev, pos[k] - len(pend) + j), y)
                pend = []
                sc.fix(pos[k], x); prev = pos[k]; k += 1
            else: pend.append(x)
        for y in pend: sc.fix(pos[-1] + 1, y)
    def basepass(self, L):
        out = []
        for l in L:
            m = re.search(r"offset:@(\d+)", l)
            if m:
                a = int(m.group(1)); r = OWNP if f"v{OWNP}" in l else PARP
                if not 0 <= a - self.base[r] < 65536:
                    b = min(a & ~32767, 98304)
                    out.append(f"v_add_u32 v{r}, {u32(b - self.base[r])}, v{r}"); self.base[r] = b
                l = l.replace(m.group(0), f"offset:{a - self.base[r]}")
            out.append(l)
        return out
    def split_writes(self, L):
        def halves(l):
            m = re.match(r"ds_write_b128 (v\d+), ([va])\[(\d+):\d+\] offset:(@?)(\d+)$", l)
            a, k, r, at, o = m.group(1), m.group(2), int(m.group(3)), m.group(4), int(m.group(5))
            return [f"ds_write_b64 {a}, {k}[{r+2*h}:{r+2*h+1}] offset:{at}{o+8*h}" for h in range(2)]
        out = []; pend = []
        for l in L:
            if l.startswith("@waitt ds_write_b128"): l = "@waitt " + halves(l[7:])[1]
            if pend:
                stop = l.startswith("@waitw") or "lgkmcnt(0)" in l or l == "s_barrier" or l.startswith("s_cbranch") or l[7:] in pend
                if not stop and not l.startswith("@"):
                    w = Ins(l.split(";")[0]).wr
                    stop = any(w & Ins(x).rd for x in pend)
                if stop: out += pend; pend = []
            if l.startswith("ds_write_b128"):
                h = halves(l)
                if pend: pend += h
                else: out.append(h[0]); pend.append(h[1])
                continue
            out.append(l)
            if l.startswith("v_mfma") and pend: out.append(pend.pop(0))
        return out + pend
    def finish(self, L, name, pre=()):
        if P.WSP: L = self.split_writes(L)
        L = vmpass(L, self.vq)
        L, self.fifo, _ = autowait(L, self.fifo, look=False)
        L = self.basepass(L)
        L, added = fix_hazards(L, pre)
        if name[:2] in ("qk", "pv"):
            for pat in P.STRIP: L = [l for l in L if not l.startswith(pat)]
        if name == "tail":
            for pat in P.STRIPT: L = [l for l in L if not l.startswith(pat)]
        if name == "head":
            i0 = next(k for k, l in enumerate(L) if l.startswith("s_barrier"))
            for pat in P.STRIPH: L = L[:i0+1] + [l for l in L[i0+1:] if not l.startswith(pat)]
        self.sec[name] = (L, added)
        return L
    def cw2(self):
        lb = self.lab("cw"); sr = sX; vt = T0
        return [[f"s_getpc_b64 s[{sr}:{sr+1}]", f"{lb}:"], [f"s_mov_b32 s{sr+2}, L_code_end-{lb}"],
                [f"v_mbcnt_lo_u32_b32 v{vt}, -1, 0"], [f"v_mbcnt_hi_u32_b32 v{vt}, -1, v{vt}"], [f"v_lshlrev_b32 v{vt}, 14, v{vt}"],
                [f"s_lshr_b32 s{sT1}, s2, 3"], [f"s_lshl_b32 s{sT1}, s{sT1}, 9"],
                [f"s_lshl_b32 s{sT2}, s{sW}, 7"], [f"s_add_u32 s{sT1}, s{sT1}, s{sT2}"], [f"v_add_u32 v{vt}, s{sT1}, v{vt}"],
                [f"buffer_load_dword v{vt}, v{vt}, {srd(sX)}, 0 offen ; @t:cw"]]

    def wo_touch(self):
        vt = T0
        return [[f"s_mul_i32 s{sT1}, s{sHd}, 32"], [f"s_lshl_b32 s{sT2}, s{sBt}, 2"], [f"s_add_u32 s{sT1}, s{sT1}, s{sT2}"], [f"s_add_u32 s{sT1}, s{sT1}, s{sW}"],
                [f"s_mul_i32 s{sT1}, s{sT1}, 7168"], [f"s_add_u32 s{sWQ}, s{sWO}, s{sT1}", f"s_addc_u32 s{sWQ+1}, s{sWO+1}, 0"], [f"s_mov_b32 s{sWQ+2}, 7168"],
                ["@vmw cw", f"v_mbcnt_lo_u32_b32 v{vt}, -1, 0"], [f"v_mbcnt_hi_u32_b32 v{vt}, -1, v{vt}"], [f"v_lshlrev_b32 v{vt}, 7, v{vt}"],
                [f"buffer_load_dword v{vt}, v{vt}, {srd(sWQ)}, 0 offen ; @t:cw"]]

    HW, HX, WA, XA, TV = 192, 200, 205, 209, 215
    WS_ = [SLOT(3), SLOT(2), SLOT(0)]
    XM = [SLOT(4), SLOT(1), SLOT(1) + 16384]
    def w_items(self, c):
        it = []
        for g in range(2):
            it.append([f"s_add_u32 m0, s{sW8K}, {self.WS_[c % 3] + g*4096}"])
            for u in range(4):
                it.append([f"buffer_load_dwordx4 v{self.HW+4*g+u}, {srd(sWQ)}, s{sCW} offen offset:{u*1024}{' nt' if c in P.WNT0 else P.WNT} lds ; @t:c{c}"])
        it.append([f"s_add_u32 s{sCW}, s{sCW}, 0x80000", f"s_cmp_eq_u32 s{sCW}, 0x380000"]); it[-1].append(f"s_cselect_b32 s{sCW}, 0, s{sCW}")
        return it
    def x_items(self, c):
        it = [[f"s_add_u32 m0, s{sT2}, {self.XM[c % 3]}"]]
        for k in range(4): it.append([f"buffer_load_dwordx4 v{self.HX+k}, {srd(sX)}, s{sCX} offen offset:{k*1024}{' nt' if c in P.WNT0 else P.WNT} lds ; @t:c{c}"])
        it.append([f"s_add_u32 m0, s{sT3}, {SLOT(4) + 16384 + 4096*(c % 3)}"])
        it.append([f"buffer_load_dwordx4 v{self.HX+4}, {srd(sX)}, s{sCX} offen{' nt' if c in P.WNT0 else P.WNT} lds ; @t:c{c}"])
        it.append([f"s_add_u32 s{sCX}, s{sCX}, 128", f"s_cmp_eq_u32 s{sCX}, 896", f"s_cselect_b32 s{sCX}, 0, s{sCX}"])
        return it
    def ld(self, p, dst):
        n = p // 8; u = p & 3
        sr, so = (sA, sOA) if n % 2 == 0 else (sB_, sOB)
        return f"buffer_load_dwordx4 {dst + ', ' if dst else ''}v{VO+(u&1)}, {srd(sr)}, s{so} offen offset:{u*1024}{P.KVNT}{'' if dst else ' lds'} ; @t:{tn(n)} p{p}"
    def kv_head_items(self, n, np_=8):
        so = sOA if n % 2 == 0 else sOB
        reg = n in (0, 1, 6) + tuple(P.HST)
        it = []
        for k in range(np_):
            if k % 4 == 0: it.append([f"s_mov_b32 s{so}, {(n//2)*P.KVINC + k*1024}"] + ([] if reg else [f"s_add_u32 m0, s{sW8K}, {SLOT(n) + k*1024}"]))
            it.append([self.ld(8 * n + k, STR_(n, k) if reg else None)])
        return it
    def flush_items(self, n):
        return [["@vmw " + tn(n)]] + [[f"ds_write_b128 v{OWNP}, {STR_(n, k)} offset:@{SLOT(n) + k*1024}"] for k in range(8)]
    def uni_plan(self):
        N = lambda k: 80 if k % 2 == 0 else 85
        g0 = {2: 0, 1: -85}
        for k in range(3, 33): g0[k] = g0[k - 1] + N(k - 1)
        bar = lambda k: g0[k] + (P.BQ if k % 2 == 0 else P.BP)
        def rel(p):
            n, k = p // 8, p % 8
            if n % 2 == 0 and k >= 5: return g0[n - 3] + 14, self.pprd((n - 4) // 2, k - 5)
            if n % 2 == 1 and k >= 6: return bar(n - 4) + 12, self.pprd((n - 5) // 2, k - 3)
            return bar(n - 5) + 1, None
        seq = [46, 47] + list(range(56, 256))
        G = {p: -200 for p in range(48, 56)}
        pool = [(b, 48 + b) for b in range(8)]
        fl = {}; buf = {48 + b: b for b in range(8)}; prevo = {}
        prev = -1
        for q, p in enumerate(seq):
            g = max(int(P.UG[0] + (P.UG[1] - P.UG[0]) * (q / (len(seq) - 1)) ** P.UP), prev + 1)
            if q < 2: g = min(g, 2 + 11 * q)
            if g < rel(p)[0]:
                b, o = pool[0]
                f = max(rel(o)[0], G[o] + P.UL, 0)
                if f + 3 >= rel(p)[0]: g = rel(p)[0]
                else:
                    g = max(g, f + 3); fl[o] = max(f, min(g - P.UF, bar(o // 8 - 1) - 12))
                    pool = pool[1:] + [(b, p)]; buf[p] = b; prevo[p] = o
            G[p] = prev = g
            assert g < bar(p // 8 - 1) - 40, p
        pf = 0
        for b, o in pool: pf = fl[o] = max(rel(o)[0], min(G[o] + 180, bar(o // 8 - 1) - 30), pf + 3)
        ev = []; wr = {}
        for o in sorted(fl):
            assert fl[o] < bar(o // 8 - 1) - 2, o
            wr[o] = f"ds_write_b128 v{OWNP}, {STG(buf[o])} offset:@{SLOT(o // 8) + (o % 8)*1024}"
            ev.append((fl[o], 1, [f"@vmw p{o}"] + (["@waitt " + rel(o)[1]] if rel(o)[1] else []) + [wr[o]]))
        m0 = None; sv = {}
        for p in seq:
            n = p // 8; g = (p >> 2) & 1; so = sOA if n % 2 == 0 else sOB
            pre = []
            if sv.get(so) != (n, g): sv[so] = (n, g); pre.append(f"s_mov_b32 s{so}, {(n//2)*P.KVINC + g*4096}")
            if p in buf: pre.append("@waitt " + wr[prevo[p]])
            else:
                if rel(p)[1]: pre.append("@waitt " + rel(p)[1])
                if m0 != SLOT(n) + g * 4096: m0 = SLOT(n) + g * 4096; pre.append(f"s_add_u32 m0, s{sW8K}, {m0}")
            for x in pre: ev.append((G[p] - 1, 3, [x]))
            ev.append((G[p], 2, self.vml(p) + [self.ld(p, STG(buf[p]) if p in buf else None)]))
        assert max(x[0] for x in ev) < g0[30] - 1
        if P.WG:
            assert max(fl.values()) < g0[P.WG[2]] - 20
            g = max(P.WG[0], prev + 2)
            for j in range(2):
                k = 0; pre = []
                for x in self.wo_items(j, 2 + j):
                    if not x[0].startswith("buffer"): pre += x; continue
                    r, w = rel(8 * (32 + j) + k)
                    g = max(g, r)
                    for y in ([f"@waitt {w}"] if w else []) + pre: ev.append((g - 1, 3, [y]))
                    ev.append((g, 2, ([f"@vml {P.WG[3] - 1}"] if P.WG[3] else []) + x))
                    pre = []; k += 1; g += P.WG[1]
        ev.sort(key=lambda x: (x[0], x[1]))
        self.nstaged = len(buf)
        out = {k: [] for k in range(2, 31)}
        for g, _, it in ev:
            k = max(k for k in range(2, 31) if g0[k] - 1 <= g)
            out[k].append((g - g0[k], it))
        return out
    def vml(self, p):
        if P.VL:
            pm, wk, st, bit = next(x for x in P.VL[1:] if p < x[0])
            return [f"@vml {wk-1} {st-1} {bit}" if st < wk else f"@vml {wk-1}"]
        return [f"@vml {(P.VN(p) if callable(P.VN) else P.VN) - 1}"] if P.VN else []
    def kd(self, n): return u32(SLOT(n) - SLOT(n - 2))
    def vd(self, n): return f"s{sPH}" if SLOT(n) > SLOT(n - 2) else f"s{sNH}"
    def qk_part(self, sc, k):
        self.kfrags(sc, "k", None, "B", None); sc.init = [("k", j) for j in range(P.NPK)]
        end = self.qk_mfmas(sc, "k")
        a = self.softmax("b0", k // 2); b = self.softmax("b1", k // 2)
        sc.chain(end["b0"] + 2, P.BQ - 2, a + b, rels=[0] * len(a) + [end["b1"] + 2] * len(b))
        return end
    def pv_soft(self, sc, k, n0=0):
        a = self.softmax("a0", k // 2); b = self.softmax("a1", k // 2)
        sc.chain(n0 - 1, n0 + min(P.BP, 51) - 3, a + b, rels=[-1] * len(a) + [n0 + 1] * len(b))
        for s in range(3): sc.fix(n0 + 2 + 2 * s, [self.pprd(k // 2, s)])
        for s in (3, 4): sc.fix(n0 + P.BP + s - 2, [self.pprd(k // 2, s)])
    def static_body(self, k, ops):
        sc = Sch(**P.SL); qk = k % 2 == 0
        if qk:
            self.qk_part(sc, k); n = sc.n()
            self.vfrags(sc, "v", "B", None, self.vd(k + 1), n=P.NPV, use=n + 3)
        else:
            self.vfrags(sc, "v", None, "B", None); sc.init = [("v", j) for j in range(P.NPV)]
            self.pv_mfmas(sc, "v"); n = sc.n()
            self.kfrags(sc, "k", "B", None, self.kd(k + 1), n=P.NPK, use=n)
            self.pv_soft(sc, k)
        sc.bar("B", P.BQ if qk else P.BP, ["@vmw " + tn(k + 1) + " lgkmcnt(0)", "s_barrier"] + (self.stamp(11 + k) if P.STAMP == 1 or (P.STAMP == 4 and k % 4 == 1) else []))
        for g, it in ops: sc.fix(g, it)
        if k in P.UT: sc.chain(0, 20, self.cw2())
        if P.WG and k == P.WG[2]: sc.chain(2, 44, self.wo_setup())
        if k in P.WT: sc.chain(0, 20, self.wo_touch())
        if P.F2 and k == P.ZK[0]: sc.chain(0, 24, self.f2_zero())
        if P.F2 and k == P.ZK[1]: sc.chain(0, 20, self.f2_started())
        if k in P.FC: sc.chain(P.FCG, 22, self.fc_items(k))
        return self.finish(sc.run(), f"{'qk' if qk else 'pv'}{k}", self.L[-30:])
    def fc_items(self, k):
        i = P.FC.index(k) + 1
        it = []
        if i - 1 - P.FCL >= 1:
            a, r = self.lab("fs"), self.lab("fq")
            it += [[f"@vmw fc{i-1}"], [f"v_cmp_gt_u32 s[4:5], {i-1-P.FCL}, v{FCV}"], [f"s_and_b32 s4, s4, s{sFM}", f"s_cbranch_scc1 {a}", f"{r}:"]]
            self.R += [f"{a}:", f"s_movk_i32 s{sFT}, {i-P.FCL}", f"s_call_b64 s[{sRT2}:{sRT2+1}], L_fcspin", f"s_branch {r}"]
        elif i > 1: it += [[f"@vmw fc{i-1}"]]
        if i <= len(P.FC) - 1:
            it += [[f"v_cndmask_b32 v{FCV}, 0, 1, s[{sF1}:{sF1+1}]"], [f"buffer_atomic_add v{FCV}, v{VO+1}, {srd(sFC)}, 0 offen sc0 ; @t:fc{i}"]]
        return it
    def fc_spin(self):
        return ["L_fcspin:", f"buffer_load_dword v{FCV}, v{VO+1}, {srd(sFC)}, 0 offen sc1", "s_waitcnt vmcnt(0)",
                f"v_cmp_gt_u32 s[4:5], s{sFT}, v{FCV}", f"s_and_b32 s4, s4, s{sFM}", "s_cbranch_scc0 L_fcret",
                f"s_sub_u32 s{sFN}, s{sFN}, 1", "s_cbranch_scc0 L_fcspin", f"s_mov_b32 s{sFM}, 0", "L_fcret:", f"s_setpc_b64 s[{sRT2}:{sRT2+1}]"]

    def head_sched(self):
        sc = Sch(**P.SH)
        XF = lambda c, ks, s: 64 + 40 * (1 - c % 2) + 20 * ks + 4 * s
        fk = 0; done = {}
        for c in range(7):
            rel = f"p{c}" if c else None; due = f"p{c+1}"
            wreg, wb = [(self.WA + 2, 32768), (self.WA + 2, 0), (self.WA, 0)][c % 3]
            for ks in range(2):
                for s in range(5):
                    if s == 4: a = f"v{self.XA+4+ks} offset:{4096*(c%3)}"
                    elif c % 3 == 0: a = f"v{self.XA+2+ks} offset:{2048*s}"
                    else: a = f"v{self.XA+ks} offset:{self.XM[c%3] - SLOT(1) + 2048*s}"
                    sc.add_frag(("x", c, ks, s), ("x", c % 2, ks, s), [f"ds_read_b128 {ar(XF(c,ks,s))}, {a}"], rel=rel, due=due, q="x")
            seq = [(ks, j) for ks in range(2) for j in range(8)] if c < 6 else [(ks, j) for j in range(8) for ks in range(2)]
            for (ks, j) in seq:
                f = ("w", c, ks, j); b = (fk + 4) % 12
                sc.add_frag(f, b, self.trd(b, wreg, j, wb + ks * 4096), rel=rel, due=due)
                for s in range(5):
                    o = vr(QA(s, j))
                    done[j] = sc.m(f"{MF} {o}, {ar(FB(b))}, {ar(XF(c,ks,s))}, {'0' if c == 0 and ks == 0 else o}", [f, ("x", c, ks, s)])
                fk += 1
            lines = [f"@vmw c{c+1} lgkmcnt(0)" if c < 6 else "s_waitcnt lgkmcnt(0)", "s_barrier"] + self.stamp(4 + c)
            sc.bar(due, sc.n() - 1 - P.BB, lines)
        nq = sc.n(); p6 = nq - 80 - 1 - P.BB; p7 = nq - 1 - P.BB
        XQ = lambda x: SLOT(1) + x * 1024 if x < 8 else SLOT(3) + (x - 8) * 1024 if x < 16 else SLOT(4) + (x - 16) * 1024
        qrd = lambda x: f"ds_read_b128 {QR(x % 5, 4 + x // 5)}, v{OWNP} offset:@{XQ(x)}"
        for x in range(20): sc.add_frag(("qx", x), ("qx", x), [qrd(x)], rel="p7" if x < 8 else "BX", q="qx", by=nq + 14 if x < 8 else nq + P.BXG + 16)
        order = [(kt, i) for i in (0, 1, 4, 2, 3) for kt in range(2)] + [(kt, i) for kt in range(2) for i in (5, 6, 7)]
        bufs = [8, 9, 10, 11, 0, 1, 2, 3, 4, 5, 6, 12, 13, 7, 14, 15]
        use = {}; end = {}
        for (kt, i), b in zip(order, bufs):
            sc.add_frag(("k0", kt, i), b, self.krd(b, kt, i), rel="BX" if b >= 12 else "p7", due="B0")
            for s in range(5):
                t = HF(s) + str(kt)
                g = sc.m(f"{MF} {vr(S(t,s))}, {ar(FB(b))}, {QR(s,i)}, {'0' if i == 0 else vr(S(t,s))}", [("k0", kt, i)] + ([("qx", 5 * (i - 4) + s)] if i >= 4 else []))
                use.setdefault((s, i), g); end[(kt, s)] = g
        n0 = sc.n(); b0 = end[(0, 4)] + 9
        sc.bar("B0", b0, ["s_waitcnt lgkmcnt(0)", "s_barrier"] + self.stamp(11))
        self.vfrags(sc, "v0", "B0", "B1", None)
        start, _ = self.pv_mfmas(sc, "v0", True)
        n1 = sc.n(); b1 = n0 + P.BP; bp = n0 + 8
        sc.bar("BP", bp, ["@waitw", "s_barrier"] + self.stamp(59), clears=False)
        sc.bar("B1", b1, ["@vmw K1 lgkmcnt(0)", "s_barrier"] + self.stamp(12))
        self.kfrags(sc, "k1", "B1", None, self.kd(2), n=P.NPK, use=n1)
        bx = nq + P.BXG
        wl = []; wrl = []
        for i in range(4):
            it = []; sw = []
            for s in range(5):
                r = QA(s, 2 * i)
                it += [[f"v_mul_f32 v{r+k}, s{sSC}, v{r+k}"] for k in range(8)] + sw
                it += [[f"v_cvt_pk_bf16_f32 v{r+k}, v{r+2*k}, v{r+2*k+1}"] for k in range(4)]
                sw = [[f"v_permlane16_swap_b32 v{r+k}, v{r+2+k}"] for k in range(2)]
                x = 5 * i + s
                w = [f"ds_write_b128 v{PARP}, {vr(r)} offset:@{XQ(x)}"]
                if x < 8 or i == 3: sw.append(w)
                else: wl.append(w)
            it += sw
            g1 = max(use[(0, i)] - 2, done[2 * i + 1] + 2)
            if i < 2: g1 = min(g1, p7 - 2 if i else p7 - 20)
            g1 = min(g1, bx - 2)
            sc.chain(done[2 * i + 1] + 2, g1, it, hard=2.5)
            wrl += [g1 + 1] * (len(wl) - len(wrl))
        sc.chain(p7 + 1, bx - 2, wl, rels=wrl, after="p7")
        sc.bar("BX", bx, ["@waitw", "s_barrier"] + self.stamp(58), clears=False)
        sc.chain(p6 + 2, p6 + 30, self.flush_items(0))
        sc.chain(use[(0, 4)], bx - 1, [["@waitt " + qrd(7)]] + self.flush_items(1))
        mx = []; rl = []
        for s in range(5):
            r = S(HF(s) + "0", s); c = CI(s)
            mx += [[f"v_min3_f32 v{c}, -v{r}, -v{r+1}, -v{r+2}"], [f"v_min_f32 v{c}, -v{r+3}, v{c}"]]; rl += [end[(0, s)] + 2] * 2
        mx += [[f"s_cmp_lg_u32 s{sMODE}, 0", "s_cbranch_scc1 L_tmax", "L_tmax_ret:"]]
        mx += [[f"ds_min_f32 v{T0}, v{CI(s)} offset:{64*s}"] for s in range(5)]
        sc.chain(rl[0], b0 - 1, mx, rels=rl + [0] * 6, hard=3)
        rd = [[f"ds_read2_b32 {vr(CI(s)+k,2)}, v{T0} offset0:{16*s} offset1:{16*s}"] for k in (0, 2) for s in range(5)]
        c0 = self.softmax("b0", 0, True); c1 = self.softmax("b1", 0, True)
        wr = [x for x in c1 if x[0].startswith("ds_")]; c1 = [x for x in c1 if x not in wr]
        sc.chain(b0, n0 - 1, rd + c0 + c1, rels=[0] * (len(rd) + len(c0)) + [end[(1, 2)] + 2] * len(c1), after="B0", hard=4)
        sc.chain(n0, bp - 1, wr)
        sc.chain(n0 + 1, b1 - 5, self.softmax("a0", 0, True) + self.softmax("a1", 0, True))
        for s in range(3): sc.fix(bp + 1 + s, [self.pprd(0, s)])
        for s in (3, 4): sc.fix(b1 + s - 2, [self.pprd(0, s)])
        if 3 in P.HST: sc.chain(end[(0, 0)], b0 - 1, [["@waitt " + qrd(15)]] + self.flush_items(3))
        if 4 in P.HST: sc.chain(bp + 10, start["a"] - 4, [["@waitt " + self.pprd(0, 2)]] + self.flush_items(4))
        free = {"c3": "p1", "c4": "p2", "c5": "p3", "c6": "p4", "K1": "p5", "V2": "B0"}
        bgap = {v[0]: g for g, v in sc.bars.items()}
        bgap["V1"] = end[(0, 0)]; bgap["K2"] = bp + 10
        if 3 not in P.HST: free["V1"] = "V1"
        if 4 not in P.HST: free["K2"] = "K2"
        lastg = -10; used = []
        HQ = P.HQ if not P.VSP else [x for x in P.HQ if x[0][0] == "c"] + [x for x in P.HQ if x[0][0] != "c"]
        for (nm, g0, st) in HQ:
            if P.VSP and nm == HQ[5][0]: lastc = lastg; lastg = -10
            if P.VSP and nm in free and nm[0] != "c": g0 = max(g0, lastc + 3)
            if nm[0] == "c": it = self.w_items(int(nm[1])) + self.x_items(int(nm[1]))
            else: it = self.kv_head_items(2 * int(nm[1]) + (nm[0] == "V"), 6 if nm == "V2" else 8)
            if nm == "V1" and nm in free: it = [["@waitt " + qrd(15)]] + it
            if nm == "K2" and nm in free: it = [["@waitt " + self.pprd(0, 2)]] + it
            if nm in free: g0 = max(g0, bgap[free[nm]] + 2)
            g0 = max(g0, lastg + 3)
            nb = sum(1 for x in it if x[0].startswith("buffer"))
            pos = [int(g0 + k * st) for k in range(nb)]
            for k in range(nb):
                if k: pos[k] = max(pos[k], pos[k - 1] + 1)
                while any(abs(pos[k] - u) < P.VSP for u in used): pos[k] += 1
            used += pos
            self.place_dma(sc, it, pos); lastg = pos[-1]
            if nm[0] == "c": assert lastg < bgap[f"p{nm[1]}"], nm
        assert lastg < n1 - 2
        if P.WP > 1: sc.fix(P.WP, [f"buffer_load_dword v{T1}, v{T1}, {srd(sFC)}, 0 offen{P.TNT}"])
        for (n, g) in P.TCH:
            assert g < b0
            sc.fix(g, [f"s_mov_b32 s{sT1}, {(n//2)*P.KVINC}", f"buffer_load_dword v{T1}, v{self.TV}, {srd(sA if n % 2 == 0 else sB_)}, s{sT1} offen offset:768{P.TNT}"])
        L = sc.run()
        ix = lambda t: L.index(t)
        bars = [k for k, l in enumerate(L) if l == "s_barrier"]
        for x in range(20):
            k = ix(f"ds_write_b128 v{PARP}, {vr(QA(x % 5, 2 * (x // 5)))} offset:@{XQ(x)}")
            assert (bars[5] < k < bars[6]) if x < 8 else (bars[6] < k < bars[7]), x
        assert ix(qrd(7)) < ix("@waitt " + qrd(7)) and ix(qrd(15)) < ix("@waitt " + qrd(15)) and ix(self.pprd(0, 2)) < ix("@waitt " + self.pprd(0, 2))
        return L
    def tmax(self):
        F = lambda i: OV(i); A = lambda s: OV(8 + s); AD = OV(13); X = OV(13) + 1
        R = ["L_tmax:", f"v_mbcnt_lo_u32_b32 v{X}, -1, 0", f"v_mbcnt_hi_u32_b32 v{X}, -1, v{X}",
             f"v_lshrrev_b32 v{AD}, 4, v{X}", f"v_lshlrev_b32 v{AD}, 1, v{AD}", f"s_movk_i32 s{sD}, 0xd8", f"v_bfe_u32 v{AD}, s{sD}, v{AD}, 2",
             f"v_lshlrev_b32 v{AD}, 4, v{AD}", f"v_and_b32 v{X}, 15, v{X}", f"v_lshl_add_u32 v{AD}, v{X}, 9, v{AD}",
             f"s_and_b32 s{sD}, s{sW}, 1", f"s_mul_i32 s{sD}, s{sD}, {262144 + 256}", f"v_add_u32 v{AD}, s{sD}, v{AD}", f"v_xor_b32 v{X}, 256, v{AD}",
             f"s_movk_i32 s{sD}, 768", "L_tmax_l:"]
        R += [f"buffer_load_dwordx4 {vr(F(i))}, v{AD if i < 4 else X}, {srd(sA)}, s{sD} offen offset:{64*(i&3)}" for i in range(8)]
        R += ["s_waitcnt vmcnt(0) lgkmcnt(0)"]
        for i in range(8):
            for s in range(5): R.append(f"{MF} {vr(A(s))}, {vr(F(i))}, {QR(s,i)}, {'0' if i == 0 else vr(A(s))}")
        R += ["s_nop 7", "s_nop 1"]
        for s in range(5): R += [f"v_min3_f32 v{CI(s)}, v{CI(s)}, -v{A(s)}, -v{A(s)+1}", f"v_min3_f32 v{CI(s)}, v{CI(s)}, -v{A(s)+2}, -v{A(s)+3}"]
        R += [f"s_add_u32 s{sD}, s{sD}, 8192", f"s_cmp_lt_u32 s{sD}, 262144", "s_cbranch_scc1 L_tmax_l", "s_branch L_tmax_ret"]
        return R

    WV = 220
    def wo_items(self, j, slot):
        it = []
        for g in range(2):
            it.append([f"s_add_u32 m0, s{sW8K}, {SLOT(slot) + g*4096}"] + ([f"s_add_u32 s{sT0}, s{sCO+j}, 28672"] if g else []))
            for u in range(4):
                it.append([f"buffer_load_dwordx4 v{self.WV+u}, {srd(sWQ)}, s{sT0 if g else sCO+j} offen offset:{u*1024}{' nt' if j in P.WONT else ''} lds ; @t:o{j}"])
        return it
    def wo_setup(self):
        WV = self.WV; L_ = WV + 3
        sw = [f"s_mul_i32 s{sT0}, s{sHd}, 229376", f"s_add_u32 s{sWQ}, s{sWO}, s{sT0}", f"s_addc_u32 s{sWQ+1}, s{sWO+1}, 0", f"s_mov_b32 s{sWQ+2}, 229376",
              f"v_mbcnt_lo_u32_b32 v{L_}, -1, 0", f"v_mbcnt_hi_u32_b32 v{L_}, -1, v{L_}",
              f"v_bfe_u32 v{WV}, v{L_}, 2, 3", f"v_mul_u32_u24 v{WV}, 896, v{WV}", f"v_lshrrev_b32 v{WV+1}, 5, v{L_}",
              f"v_lshl_add_u32 v{WV}, v{WV+1}, 6, v{WV}", f"v_lshrrev_b32 v{WV+1}, 3, v{L_}", f"v_and_b32 v{WV+1}, 2, v{WV+1}",
              f"v_and_b32 v{WV+2}, 3, v{L_}", f"v_xor_b32 v{WV+1}, v{WV+1}, v{WV+2}", f"v_lshl_add_u32 v{WV}, v{WV+1}, 4, v{WV}",
              f"s_mul_i32 s{sT0}, s{sW}, 57344", f"v_add_u32 v{WV}, s{sT0}, v{WV}"]
        sw += [f"v_add_u32 v{WV+u}, {6144*u}, v{WV}" for u in range(1, 4)]
        sw = [[x] for x in sw]
        sw[1:3] = [sw[1] + sw[2]]
        for j in range(7):
            nf = max(P.ROTW - 1, 0)
            if j == 0 and P.ROTW < 2: sw.append([f"s_lshl_b32 s{sCO}, s{sC}, 7" if P.ROTW else f"s_mov_b32 s{sCO}, 0"])
            elif j < nf: sw.append([f"s_movk_i32 s{sCO+j}, {128*j}"])
            elif j == nf: sw += [[f"s_cmp_ge_u32 s{sBt}, {7-nf}", f"s_cselect_b32 s{sT0}, {2*nf-7}, {nf}"], [f"s_add_u32 s{sCO+j}, s{sBt}, s{sT0}"], [f"s_lshl_b32 s{sCO+j}, s{sCO+j}, 7"]]
            else: sw.append([f"s_add_u32 s{sCO+j}, s{sCO+j-1}, 128", f"s_cmp_eq_u32 s{sCO+j}, 896", f"s_cselect_b32 s{sCO+j}, {128*nf}, s{sCO+j}"])
            sw.append([f"s_mul_i32 s{sCS+j}, s{sCO+j}, 160"])
        return sw
    def tail_sched(self):
        sc = Sch(**P.ST)
        WAr = lambda st, par: 224 + 2 * st + par
        SO = 230
        RL = lambda s: CI(0) + s
        LP = CI(2)
        end = self.qk_part(sc, 30)
        n0 = sc.n()
        wo_items = self.wo_items
        L_ = 233; O4 = 234
        sw = [] if P.WG else self.wo_setup()
        sw += [[f"v_mbcnt_lo_u32_b32 v{L_}, -1, 0"], [f"v_mbcnt_hi_u32_b32 v{L_}, -1, v{L_}"]]
        G_, R_ = WAr(0, 0), WAr(0, 1)
        su = [f"v_lshrrev_b32 v{G_}, 5, v{L_}", f"v_bfe_u32 v{R_}, v{L_}, 2, 3", f"v_lshlrev_b32 v{R_}, 6, v{R_}",
              f"v_lshl_add_u32 v{G_}, v{G_}, 10, v{R_}", f"v_and_b32 v{R_}, 3, v{L_}", f"v_lshl_add_u32 v{G_}, v{R_}, 3, v{G_}",
              f"v_and_b32 v{R_}, 16, v{L_}", f"v_lshl_add_u32 v{G_}, v{R_}, 1, v{G_}",
              f"s_and_b32 s{sT1}, s{sW}, 1", f"s_mul_i32 s{sT2}, s{sT1}, {16384+32}", f"v_xor_b32 v{G_}, s{sT2}, v{G_}", f"v_xor_b32 v{R_}, 0x4000, v{G_}"]
        su += [f"v_add_u32 v{WAr(st,k)}, {0x10000*st}, v{WAr(0,k)}" for st in (1, 2) for k in range(2)]
        su += [f"v_lshlrev_b32 v{L_}, 4, v{L_}", f"s_lshl_b32 s{sT1}, s{sT1}, 10", f"s_lshr_b32 s{sT2}, s{sW}, 1", f"s_lshl_b32 s{sT2}, s{sT2}, 13",
               f"s_add_u32 s{sT2}, s{sT2}, s{sT1}", f"v_add_u32 v{SO}, s{sT2}, v{L_}", f"v_add_u32 v{SO+1}, 4096, v{SO}",
               f"s_lshl_b32 s{sT2}, s{sW}, 10", f"s_add_u32 s{sT2}, s{sT2}, 16384", f"v_add_u32 v{SO+2}, s{sT2}, v{L_}",
               f"s_add_u32 s{sT2}, s{sW8K}, {SLOT(4)}", f"v_add_u32 v{O4}, s{sT2}, v{L_}", f"v_xor_b32 v{O4+1}, 0x2000, v{O4}", f"v_xor_b32 v{O4+2}, 0x4000, v{O4}"]
        sc.chain(0, 44, sw + [[x] for x in su])
        if P.WG:
            for g, it in self.plan[30]: sc.fix(g, it)
        else: self.place_dma(sc, wo_items(0, 2), P.WO0)
        sc.bar("B", P.BQ, ["@vmw V15 lgkmcnt(0)", "s_barrier"] + self.stamp(41))
        self.vfrags(sc, "v", "B", "B31", self.vd(31))
        start, fin = self.pv_mfmas(sc, "v", og=lambda s, j: vr(OT(s, j)))
        n1 = sc.n(); b1 = n0 + P.BP
        self.pv_soft(sc, 31, n0)
        if not P.WG: self.place_dma(sc, wo_items(1, 3), [n0 + 4 + 5 * k for k in range(8)])
        mv = lambda t: [[f"v_accvgpr_read_b32 v{8*(t-20)+k}, a{144+4*(t-20)+k}"] for k in range(4)]
        sc.chain(end["b1"] + 2, n0 + 8, [x for t in range(20, 24) for x in mv(t)])
        sc.chain(end["b1"] + 2, start["a"] - 2, [x for t in range(24, 40) for x in mv(t)], rels=[0] * 32 + [n0 + 1] * 32)
        sc.bar("B31", b1, ["s_waitcnt lgkmcnt(0)", "s_barrier"] + self.stamp(42))
        def XO(s, i, r):
            if s < 2: return f"v{O4 + r - OWNP}", f"offset:{(4 * s + i) * 1024}"
            return f"v{r}", f"offset:@{SLOT(0) + i * 1024 if s == 2 else SLOT(1) + (4 * (s - 3) + i) * 1024}"
        XL = SLOT(0) + 4096
        ord_ = lambda s, i: f"ds_read_b128 {QR(s, 4+i)}, {' '.join(XO(s, i, OWNP))}"
        g0 = sc.n(); ba = g0 + P.BAG; bb = g0 + P.BBG
        for h, bn, by in (("b", "Ba", ba + 10), ("a", "Bb", bb + 8)):
            for i in range(4):
                for s in TL[h + "0"]: sc.add_frag(("ox", s, i), ("ox", s, i), [ord_(s, i)], rel=bn, q="ox", by=by)
        pool = [S("b0", 0) + 4 * k for k in range(10)] + [OT(s, 2 * i + 1) for s in range(5) for i in range(4)]
        ui = [0]; fk = [0]; buse = {}
        def nacc():
            r = pool[ui[0] % len(pool)]; ui[0] += 1; return r
        SLW = [2, 3, 4, 0, 1, 2, 3]
        def wfrag(j, hi, i, rel, due):
            f = ("o", fk[0]); k = fk[0] % 16; fk[0] += 1; sl = SLW[j]
            off = (sl & 1) * 32768 + (i & 3) * 4096 + hi * 512
            sc.add_frag(f, k, [f"ds_read_b64_tr_b16 {ar(FB(k)+2*rd,2)}, v{WAr(sl>>1,i>>2)} offset:{off+2048*rd}" for rd in range(2)], rel=rel, due=due)
            return f, k
        def mm(fk_, acc, s, hi, i):
            o = vr(acc[s][hi])
            g = sc.m(f"{MF} {o}, {ar(FB(fk_[1]))}, {vr(OT(s,2*i)) if i < 4 else QR(s,i)}, {'0' if i == 0 else o}", [fk_[0]] + ([("ox", s, i - 4)] if i >= 4 else []))
            buse.setdefault((s, i), g); return g
        sts = []
        def epi(j, acc, s, his):
            it = []
            for hi in his:
                r = acc[s][hi]; d = acc[s][0] + 2 * hi
                it += [[f"v_mul_f32 v{r+k}, v{r+k}, v{RL(s)}"] for k in range(4)] + [[f"v_cvt_pk_bf16_f32 v{d+k}, v{r+2*k}, v{r+2*k+1}"] for k in range(2)]
            return it, [f"buffer_store_dwordx4 {vr(acc[s][0])}, v{SO+(s>>1)}, {srd(sWS)}, s{sCS+j} offen offset:{2048*(s&1)}{P.STMOD} ; @t:s{j}"] if 1 in his else None
        def epis(g, j, acc, subs, his):
            for s in subs:
                it, st = epi(j, acc, s, his); w = P.EPW * len(his)
                sc.chain(g, g + w + 1, it); g += w
                if st: sts.append((g + 2, st))
        acc = {s: (nacc(), nacc()) for s in range(5)}
        fr = {(hi, i): wfrag(0, hi, i, "Bo", "Bc") for par in range(2) for i in range(4 * par, 4 * par + 4) for hi in range(2)}
        ge = {}
        for par in range(2):
            for h in "ba":
                for i in range(4 * par, 4 * par + 4):
                    for hi in range(2):
                        for s in TL[h + "0"]: ge[h] = mm(fr[(hi, i)], acc, s, hi, i)
        sc.bar("Bo", n1 - 1 - P.BB, ["@vmw o0", "s_barrier"], clears=False)
        sc.bar("Ba", ba, ["@waitw", "s_barrier"] + self.stamp(43), clears=False)
        sc.bar("Bb", bb, ["@waitw", "@vmw o1", "s_barrier"] + self.stamp(44), clears=False)
        epis(ge["b"] + 2, 0, acc, range(5), (0, 1))
        relw = {1: "Bb", 2: "Bc", 3: "Bc", 4: "Bd", 5: "Be", 6: "Bf" if P.BF else "Be"}
        gj = {}
        for j in range(1, 7):
            acc = {s: (nacc(), nacc()) for s in range(5)}
            if j == 6 and P.SMAJ:
                fr = {(hi, i): wfrag(j, hi, i, relw[j], None) for hi in range(2) for i in range(8)}
                for subs in P.SMAJ:
                    for hi in range(2):
                        for i in range(8):
                            for s in subs: g = mm(fr[(hi, i)], acc, s, hi, i)
                        if 4 not in subs or not hi: epis(g + 2, j, acc, subs, (hi,))
                pend = subs
            else:
                for hi in range(2):
                    for i in range(8):
                        f = wfrag(j, hi, i, relw[j], "Bc" if j == 1 else None)
                        for s in range(5): g = mm(f, acc, s, hi, i)
                    if j < 6 or not hi: epis(g + 2 + (12 if j == 1 and not hi else 0), j, acc, range(5), (hi,))
                pend = range(5)
            gj[j] = g
        pend = [epi(6, acc, s, (1,)) for s in pend]
        pend = [x for it, st in pend for x in it + [st]]
        if P.BF: sc.bar("Bf", gj[P.BF[0]] - P.BF[1], ["@vmw o6", "s_barrier"], clears=False)
        sc.bar("Bc", gj[1] - P.BB, ["@vmw o3 lgkmcnt(0)", "s_barrier"] + self.stamp(45))
        sc.bar("Bd", gj[3] - P.BB, ["@vmw o4", "s_barrier"] + self.stamp(46), clears=False)
        sc.bar("Be", gj[4] - P.BB, ["@waitw", "@vmw o5" if P.BF else "@vmw o6", "s_barrier"] + self.stamp(47), clears=False)
        for h, bg in (("b", ba), ("a", bb)):
            wl = []; wr = []
            for i in range(4):
                it = []
                for s in TL[h + "0"]:
                    r, r2 = OT(s, 2 * i), OT(s, 2 * i + 1)
                    it += [[f"v_cvt_pk_bf16_f32 v{r+k}, v{[r,r2][k>>1]+2*(k&1)}, v{[r,r2][k>>1]+2*(k&1)+1}"] for k in range(4)]
                    wl.append([f"ds_write_b128 {XO(s, i, PARP)[0]}, {vr(r)} {XO(s, i, PARP)[1]}"])
                r0 = fin[(TL[h + "0"][-1], 2 * i + 1)] + 2
                g1 = max(r0, min(buse[(TL[h + "0"][0], i)] - 2, r0 + 30))
                sc.chain(r0, g1, it, hard=2.5)
                wr += [g1 + 1] * (len(wl) - len(wr))
            if h == "b":
                wl = [[f"ds_write_b32 v{PARP}, a{LS(s)} offset:@{XL + (4*s if s < 4 else 1024)}"] for s in range(5)] + wl
                wr = [fin[("l", 4)] + 3] * 5 + wr
            sc.chain(max(b1 + 1, wr[0]), bg - 2, wl, rels=wr, after="B31")
        lrd = f"ds_read_b32 v{LP+4}, v{OWNP} offset:@{XL+1024}"
        m = [[f"ds_read_b128 {vr(LP)}, v{OWNP} offset:@{XL}"], [lrd]] + [[f"v_accvgpr_read_b32 v{RL(s)}, a{LS(s)}"] for s in range(5)]
        m += [[f"v_add_f32 v{RL(s)}, v{RL(s)}, v{LP+s}"] for s in range(5)]
        m += [[f"v_add_f32 v{LP}, v{RL(0)}, v{RL(1)}"], [f"v_add_f32 v{LP+1}, v{RL(2)}, v{RL(3)}"], [f"v_add3_u32 v{LP+2}, 0, 0, 0"], [f"v_add_f32 v{LP}, v{LP}, v{RL(4)}"], [f"v_add_f32 v{LP}, v{LP}, v{LP+1}"]]
        del m[-3]
        m += [[f"v_rcp_f32 v{RL(s)}, v{RL(s)}"] for s in range(5)]
        sc.chain(ba + 1, ge["b"], m, after="Ba")
        sc.chain(gj[3] - P.BB + 1, gj[4] - P.BB - 8, [[f"ds_write_b32 v{O4}, v{LP}"]], after="Bd")
        used = []
        pre = {2: [["@waitt " + ord_(1, 3)]], 3: [["@waitt " + ord_(2, 3), "@waitt " + lrd]], 4: [["@waitt " + ord_(4, 3)]]}
        for j, (o, st) in zip(range(2, 7), P.TQ):
            pos = [int(g0 + o + st * k) for k in range(8)]
            assert pos[0] > (ba + 12 if j < 4 else bb + 10 if j == 4 else gj[1] - P.BB + 1) and (not used or pos[0] > used[-1] + 1)
            self.place_dma(sc, pre.get(j, []) + wo_items(j, SLW[j]), pos); used += pos
        g1 = g0 + P.TS0 - P.TSS
        for g, st in sts:
            g1 = max(g, g1 + (P.TSS if g < gj[5] + 30 else min(P.TSS, 4)))
            while any(abs(g1 - u) < P.TSP for u in used): g1 += 1
            g1 = min(g1, sc.n() - 1); assert g1 < g + 150
            sc.fix(g1, st)
        ck = [[f"ds_read_b32 v{LP+1}, v{O4+2}"], [f"v_add_f32 v{LP}, v{LP}, v{LP+1}"], [f"v_cmp_nge_f32 vcc, s{sTH}, v{LP}"], ["s_cbranch_vccnz L_redo", "L_redo_ret:"]]
        if P.F2:
            sc.chain(gj[4] - P.BB + 1, gj[4] + 16, ck, rels=[0, gj[4] + 6, 0, 0], after="Be")
            sc.chain(g0 + P.CG[0], g0 + P.PG - 2, self.f2_setup() + self.f2_share() + [["@vmw by", self.f2_st()]])
            sc.fix(g0 + P.PG, [self.f2_poll() + " ; @t:pl"])
            for n, g in P.EF:
                if g is not None:
                    assert g0 + g > gj[4] + 17
                    sc.fix(g0 + g, [f"@vmw s{n-1}"] + self.f2_flag(n))
        else: sc.chain(gj[4] - P.BB + 1, gj[5], ck, rels=[0, gj[4] + 10, 0, 0], after="Be")
        L = sc.run()
        for x in (ord_(1, 3), ord_(2, 3), lrd, ord_(4, 3)):
            assert L.index(x) < L.index("@waitt " + x), x
        i1 = next(k for k, l in enumerate(L) if l.startswith(f"v_rcp_f32 v{RL(4)},")); i2 = next(k for k, l in enumerate(L) if l.startswith("v_mul_f32"))
        assert i1 < i2
        L += ["s_nop 7"] + [x for it in pend for x in it]
        if P.F2:
            for n, g in P.EF:
                i = L.index(self.f2_flag(n)[1]) if g is not None else len(L)
                assert sum(1 for l in L[:i] if l.endswith(f"@t:s{n-1}")) == 5 and L.index("L_redo_ret:") < i
            assert L.index(self.f2_st()) < L.index(self.f2_poll() + " ; @t:pl")
            L += self.f2_first()
        return L
    def redo(self):
        return ["L_redo:", f"s_cmp_lg_u32 s{sMODE}, 0", "s_cbranch_scc1 L_redo_ret", f"s_mov_b32 s{sMODE}, 1", "s_waitcnt vmcnt(0) lgkmcnt(0)", "s_barrier",
                "v_mbcnt_lo_u32_b32 v0, -1, 0", "v_mbcnt_hi_u32_b32 v0, -1, v0", f"s_lshl_b32 s{sT0}, s{sW}, 6", f"v_add_u32 v0, s{sT0}, v0",
                "s_getpc_b64 s[4:5]", "L_redo_pc:", "s_sub_u32 s4, s4, L_redo_pc-L_again", "s_subb_u32 s5, s5, 0", "s_setpc_b64 s[4:5]"]

    def f2_zero(self):
        a, b = sT1, sT2
        return [[f"v_mbcnt_lo_u32_b32 v{T1}, -1, 0"], [f"v_mbcnt_hi_u32_b32 v{T1}, -1, v{T1}"], [f"v_lshlrev_b32 v{T1}, 4, v{T1}"],
                [f"s_lshl3_add_u32 s{a}, s{sBLK}, s{sBt}"], [f"s_mul_i32 s{a}, s{a}, {16*PART}"], [f"s_lshl_b32 s{b}, s{sW}, 8"], [f"s_lshl2_add_u32 s{b}, s{sHd}, s{b}"],
                [f"s_add_u32 s{a}, s{a}, s{b}"], [f"s_add_u32 s{a}, s{a}, {MB0}"], [f"s_add_u32 s{F.sFL}, s72, s{a}", f"s_addc_u32 s{F.sFL+1}, s73, 0"],
                [f"s_mov_b32 s{F.sFL+2}, 4"], [f"s_mov_b32 s{F.sFL+3}, 0x20000"], [f"buffer_store_dword v{T1}, v{T1}, {srd(F.sFL)}, 0 offen sc1"]]
    def f2_started(self):
        a = sT1
        return [[f"s_lshl3_add_u32 s{a}, s{sBLK}, s{sBt}"], [f"s_lshl4_add_u32 s{a}, s{a}, s{sHd}"], [f"s_add_u32 s{sX}, s94, s{a}", f"s_addc_u32 s{sX+1}, s95, 0"],
                [f"s_cmp_eq_u32 s{sW}, 0", f"s_cselect_b32 s{sX+2}, 1, 0"], [f"buffer_store_byte a{ONES}, v{T1}, {srd(sX)}, 0 offen sc1"]]
    def f2_setup(self):
        L_ = T1; a, b = F.t0, F.t1
        return [[f"s_lshl3_add_u32 s{a}, s{sBLK}, s{sBt}"], [f"s_lshl_b32 s{b}, s{a}, 4"],
                [f"s_add_u32 s{F.sDB}, s94, s{b}", f"s_addc_u32 s{F.sDB+1}, s95, 0"], [f"s_mov_b32 s{F.sDB+2}, 16"], [f"v_lshrrev_b32 v{F.LN}, 4, v{L_}"],
                [self.f2_bytes() + " ; @t:by"],
                [f"s_mul_i32 s{a}, s{a}, {16*PART}"], [f"s_add_u32 s{F.sPR}, s72, s{a}", f"s_addc_u32 s{F.sPR+1}, s73, 0"], [f"s_mov_b32 s{F.sPR+2}, {16*PART}"],
                [f"s_mov_b32 s{F.sOU}, s92"], [f"s_mov_b32 s{F.sOU+1}, s93"], [f"s_mov_b32 s{F.sOU+2}, {8*160*1792}"], [f"s_mov_b32 s{F.sOU+3}, 0x20000"],
                [f"s_mov_b32 s{F.FRC}, 0"], [f"s_movk_i32 s{F.CNT}, {P.SPIN}"], [f"s_mov_b32 s{F.PEND}, -1"], [f"s_mov_b32 s{F.GU}, 0"], [f"s_mov_b32 s{F.IDX}, s{sHd}"],
                [f"s_lshl_b32 s{a}, s{sW}, 8"], [f"s_add_u32 s{a}, s{a}, {MB0}"], [f"v_lshrrev_b32 v{F.MP}, 8, v{L_}"], [f"v_lshl_add_u32 v{F.MP}, v{F.MP}, 26, v{F.LN}"],
                [f"v_lshl_add_u32 v{F.MP}, v{F.MP}, 2, s{a}"], [f"v_and_b32 v{F.Q2}, 3, v{F.LN}"], [f"v_lshlrev_b32 v{F.Q2}, 1, v{F.Q2}"],
                [f"v_and_b32 v{F.LO}, 0xf0, v{L_}"], [f"v_mul_u32_u24 v{F.LO}, 112, v{F.LO}"], [f"v_bfe_u32 v{F.TV}, v{L_}, 8, 1"], [f"v_lshl_add_u32 v{F.LO}, v{F.TV}, 6, v{F.LO}"],
                [f"v_lshrrev_b32 v{F.TV}, 9, v{L_}"], [f"v_lshl_add_u32 v{F.LO}, v{F.TV}, 4, v{F.LO}"],
                [f"v_and_b32 v{F.IDN}, 16, v{L_}"], [f"s_movk_i32 s{a}, 0x3f80"], [f"v_lshlrev_b32 v{F.IDN}, v{F.IDN}, s{a}"], [f"v_bfe_i32 v{F.TV}, v{L_}, 5, 1"],
                [f"v_and_b32 v{F.IDN+1}, v{F.IDN}, v{F.TV}"], [f"v_xor_b32 v{F.IDN}, v{F.IDN}, v{F.IDN+1}"],
                [f"s_mul_i32 s{a}, s{sBt}, {160*1792}"], [f"s_mul_i32 s{b}, s{sBLK}, 896"], [f"s_add_u32 s{a}, s{a}, s{b}"], [f"s_and_b32 s{b}, s{sW}, 1"],
                [f"s_lshl_b32 s{b}, s{b}, 5"], [f"s_add_u32 s{a}, s{a}, s{b}"], [f"v_add_u32 v{F.LO}, s{a}, v{F.LO}"], [f"s_lshl_b32 s{b}, s{b}, 5"],
                [f"v_add_u32 v{F.PB}, s{b}, v{L_}"]]
    def f2_share(self):
        u, s_, d, a = F.t0, F.t1, F.NEW, F.NEW + 1
        it = [[f"s_lshl2_add_u32 s{F.IDX}, s{sW}, s{F.IDX}"], [f"s_and_b32 s{F.IDX}, s{F.IDX}, 15"], [f"s_min_u32 s{u}, s{F.IDX}, 3"], [f"s_lshl1_add_u32 s{u}, s{F.IDX}, s{u}"],
              [f"s_mov_b32 s{F.SEEN}, 0xffff0000"], [f"s_mov_b32 s{F.SEEN+1}, 0xffff0000"], [f"s_cmp_lt_u32 s{F.IDX}, 3", f"s_cselect_b32 s{F.SEEN+2}, 0xffff0000, -1"]]
        for k in range(3):
            it += [[f"s_mul_i32 s{s_}, s{u}, 37"], [f"s_lshr_b32 s{s_}, s{s_}, 8"], [f"s_mul_i32 s{d}, s{s_}, 7"], [f"s_sub_u32 s{d}, s{u}, s{d}"],
                   [f"v_sub_u32 v{F.POS+k}, s{d}, v{F.Q2}"], [f"v_add_u32 v{F.PO+k}, 7, v{F.POS+k}"], [f"v_min_u32 v{F.POS+k}, v{F.POS+k}, v{F.PO+k}"]]
            it += [[f"s_add_u32 s{d}, s{d}, s{sBt}"], [f"s_sub_u32 s{a}, s{d}, 7"], [f"s_min_u32 s{d}, s{d}, s{a}"]]
            it += [[f"s_lshr_b32 s{a}, s{sW}, 1"], [f"s_add_u32 s{F.HO}, s{a}, 8"], [f"s_lshl2_add_u32 s{a}, s{a}, s{s_}"],
                   [f"s_cmp_lt_u32 s{s_}, 4", f"s_cselect_b32 s{s_}, s{a}, s{F.HO}"]]
            it += [[f"s_mul_i32 s{a}, s{d}, 10"], [f"s_add_u32 s{a}, s{a}, s{s_}"], [f"s_lshl_b32 s{a}, s{a}, 11"], [f"v_add_u32 v{F.PO+k}, s{a}, v{F.PB}"],
                   [f"s_mul_i32 s{s_}, s{s_}, {16*14}"], [f"s_add_u32 s{a}, s{s_}, s{d}"], [f"s_lshl_b32 s{a}, s{a}, 7"], [f"v_add_u32 v{F.OO+k}, s{a}, v{F.LO}"]]
            if k < 2: it += [[f"s_add_u32 s{u}, s{u}, 1"]]
        return it
    def f2_poll(self): return f"buffer_load_dword v{F.TV}, v{F.MP}, {srd(F.sPR)}, 0 offen sc1"
    def f2_bytes(self): return f"buffer_load_ubyte v{F.BY}, v{F.LN}, {srd(F.sDB)}, 0 offen sc1"
    def f2_st(self): return f"v_cmp_lt_u32 s[{F.ST}:{F.ST+1}], 64, v{F.BY}"
    def f2_flag(self, n): return [f"v_mov_b32 v{F.D0+(n&1)}, {n}", f"buffer_store_dword v{F.D0+(n&1)}, v{T1}, {srd(F.sFL)}, 0 offen sc1 ; @t:f{n}"]
    def f2_trace(self):
        if not P.STAMP: return []
        return [f"s_bcnt0_i32_b32 s45, s{F.SEEN}", f"s_bcnt0_i32_b32 s84, s{F.SEEN+1}", "s_add_u32 s45, s45, s84", "s_memrealtime s[84:85]", "s_waitcnt lgkmcnt(0)", "s_mov_b32 m0, s44",
                f"v_writelane_b32 v{STR}, s84, m0", f"v_writelane_b32 v{STC}, s45, m0", "s_add_u32 s44, s44, 1", "s_min_u32 s44, s44, 40", f"v_writelane_b32 v{STR}, s44, 61"]
    def f2_first(self):
        L = ["@vmw pl"]; self.npost = 0
        for n, g in P.EF:
            if g is None: L += [f"@vmw s{n-1}"] + self.f2_flag(n); self.npost += 1
        if P.STAMP: L += [f"v_writelane_b32 v{STR}, s{F.IDX}, 60", "s_mov_b32 s44, 16", f"v_writelane_b32 v{STR}, 16, 61"]
        if not P.FP: L += ["@vmw s6", "s_branch L_f_pub"]
        return L
    def fin2(self):
        L = []; e = L.append
        e("L_f_calc:")
        C = [F.C, F.C + 2, F.t0]
        for k in range(3): e(f"v_cmp_gt_u32 s[{C[k]}:{C[k]+1}], v{F.TV}, v{F.POS+k}")
        for k in range(3):
            e(f"s_and_b32 s{C[k]}, s{C[k]}, s{F.ST}"); e(f"s_or_b32 s{C[k]}, s{C[k]}, s{F.FRC}")
            e(f"s_andn2_b32 s{F.NEW+k}, s{C[k]}, s{F.SEEN+k}"); e(f"s_or_b32 s{F.SEEN+k}, s{F.SEEN+k}, s{F.NEW+k}")
        e(f"s_or_b32 s{F.t0}, s{F.NEW}, s{F.NEW+1}"); e(f"s_or_b32 s{F.t0}, s{F.t0}, s{F.NEW+2}"); e("s_cbranch_scc0 L_f_k2h15")
        L += self.f2_trace()
        for k in range(3):
            if k == 2: e(f"s_cmp_eq_u32 s{F.NEW+k}, 0"); e("s_cbranch_scc1 L_f_k2h15")
            for q in range(4):
                hs = [q + 4 * x for x in range(4)]
                e(f"s_and_b32 s{F.t1}, s{F.NEW+k}, {hex(0x1111 << q)}"); e(f"s_cbranch_scc0 L_f_k{k}h{hs[-1]}")
                for h in hs:
                    e(f"s_bitcmp1_b32 s{F.NEW+k}, {h}"); e(f"s_cbranch_scc0 L_f_k{k}h{h}")
                    e(f"s_mov_b32 s{F.HO}, {h*PART}")
                    e(f"buffer_load_dwordx4 {ar(12*h+4*k)}, v{F.PO+k}, {srd(F.sPR)}, s{F.HO} offen{P.RDMOD}")
                    e(f"L_f_k{k}h{h}:")
        e(f"s_cmp_lg_u32 s{F.FRC}, 0"); e("s_cbranch_scc1 L_f_chk")
        e(f"s_bcnt1_i32_b32 s{F.t0}, s{F.NEW}"); e(f"s_bcnt1_i32_b32 s{F.t1}, s{F.NEW+1}"); e(f"s_add_u32 s{F.t0}, s{F.t0}, s{F.t1}")
        e(f"s_bcnt1_i32_b32 s{F.t1}, s{F.NEW+2}"); e(f"s_add_u32 s{F.t0}, s{F.t0}, s{F.t1}")
        for n in (12, 24): e(f"s_cmp_le_u32 s{F.t0}, {n}"); e(f"s_cbranch_scc1 L_f_w{n}")
        for n in range(48, -1, -1):
            if n in (12, 24): e(f"L_f_w{n}:")
            e(f"s_waitcnt vmcnt({n + self.npost})")
            if n: e(f"s_cmp_eq_u32 s{F.t0}, {n}"); e("s_cbranch_scc1 L_f_pub")
        e("L_f_pub:")
        L += self.stamp(48)
        L += [x.split(";")[0].strip() for x in self.f2_flag(7)]
        e(f"s_lshl_b32 s{F.FRC}, 1, s{sHd}"); e("s_branch L_f_calc")
        e("L_f_chk:")
        e(f"s_and_b32 s{F.t0}, s{F.SEEN}, s{F.SEEN+1}"); e(f"s_and_b32 s{F.t0}, s{F.t0}, s{F.SEEN+2}"); e(f"s_not_b32 s{F.t0}, s{F.t0}"); e("s_cbranch_scc0 L_f_sum")
        e(f"s_cmp_lg_u32 s{F.ST}, 0xffff"); e("s_cbranch_scc1 L_f_st")
        e("L_f_poll:")
        e(self.f2_poll()); e(f"s_sub_u32 s{F.CNT}, s{F.CNT}, 1"); e("s_waitcnt vmcnt(0)"); e("s_cbranch_scc0 L_f_calc")
        e(f"s_cmp_lg_u32 s{F.GU}, 0"); e("s_cbranch_scc1 L_f_end")
        e(f"s_and_b32 s{F.t0}, s{sHd}, 3"); e(f"s_lshl3_add_u32 s{F.t0}, s{F.t0}, s{sW}"); e(f"s_lshl_b32 s{F.t0}, 1, s{F.t0}"); e(f"v_mov_b32 v{F.BY}, s{F.t0}")
        e(f"s_and_b32 s{F.t0}, s{sHd}, 12"); e(f"v_add_u32 v{F.D0}, s{F.t0}, v{T1}")
        e(f"buffer_atomic_or v{F.BY}, v{F.D0}, {srd(F.sDB)}, 0 offen sc0"); e("s_waitcnt vmcnt(0)")
        e(f"s_mov_b32 s{F.GU}, 1"); e(f"s_mov_b32 s{F.CNT}, 2")
        e("L_f_st:")
        e(self.f2_bytes()); e("s_waitcnt vmcnt(0)"); e(self.f2_st()); e("s_branch L_f_poll")
        e("L_f_sum:")
        e(f"s_cmp_ge_u32 s{F.IDX}, 3"); e("s_waitcnt vmcnt(0)"); e(self.f2_bytes()); e("s_cbranch_scc1 L_f_s2")
        for U in (3, 2):
            e(f"L_f_s{U}:")
            L += self.stamp(51)
            for h in range(16):
                for k in range(U):
                    for d in range(2):
                        o = vr(8 * k + 4 * d)
                        e(f"v_mfma_f32_4x4x4_16b_bf16 {o}, {vr(F.IDN,2)}, {ar(12*h+4*k+2*d,2)}, {o if h else 0}")
            e("s_nop 4")
            for k in range(U):
                r = 32 + 4 * k
                for d in range(4): e(f"v_cvt_pk_bf16_f32 v{r+d}, v{8*k+2*d}, v{8*k+2*d+1}")
                e(f"v_permlane16_swap_b32 v{r}, v{r+2}"); e(f"v_permlane16_swap_b32 v{r+1}, v{r+3}")
                e(f"buffer_store_dwordx4 {vr(r)}, v{F.OO+k}, {srd(F.sOU)}, 0 offen{P.OUMOD}")
            e(f"s_waitcnt vmcnt({U})")
            if U > 2: e("s_branch L_f_next")
        e("L_f_next:")
        e(f"v_lshrrev_b32 v{F.BY}, s{sW}, v{F.BY}"); e(f"v_and_b32 v{F.BY}, 1, v{F.BY}"); e(f"v_cmp_eq_u32 vcc, 1, v{F.BY}")
        e(f"s_and_b32 s{F.t0}, vcc_lo, s{F.PEND}"); e("s_cbranch_scc0 L_f_end")
        e(f"s_ff1_i32_b32 s{F.IDX}, s{F.t0}"); e(f"s_bitset0_b32 s{F.PEND}, s{F.IDX}")
        L += [x for it in self.f2_share() for x in it]
        e(f"s_mov_b32 s{F.GU}, 1"); e(f"s_mov_b32 s{F.CNT}, 2"); e("s_branch L_f_st")
        e("L_f_end:")
        return L

    def fin(self):
        L = []; e = L.append
        sDB, sPR, sOU = sA, sB_, sX
        sOLD, sIDX, sMASK, sSEEN, sNEW, sPEND, sCNT, sPAR, sOWN, sSZ, sHO = 32, 33, 34, 35, 36, 37, 38, 39, 40, 41, 42
        ACC = lambda h, k, d: 24 * (h >> 1) + 8 * k + 2 * d
        LN, L4, LO, SOF, TV = 236, 237, 238, 239, 240
        PO = [241, 242, 243]; OO = [244, 245, 246]
        zero = [f"v_mov_b64 v[{r}:{r+1}], 0" for r in range(0, 192, 2)]
        e(f"s_lshl_b32 s{sT0}, s{sBLK}, 3"); e(f"s_add_u32 s{sT0}, s{sT0}, s{sBt}")
        e(f"s_lshl_b32 s{sT1}, s{sT0}, 4"); e(f"s_add_u32 s{sDB}, s94, s{sT1}"); e(f"s_addc_u32 s{sDB+1}, s95, 0"); e(f"s_mov_b32 s{sDB+2}, 4")
        e(f"s_mov_b32 s{sSZ}, {16*PART}"); e(f"s_mul_i32 s{sT0}, s{sT0}, s{sSZ}")
        e(f"s_add_u32 s{sPR}, s72, s{sT0}"); e(f"s_addc_u32 s{sPR+1}, s73, 0")
        e(f"s_mov_b32 s{sOU}, s92"); e(f"s_mov_b32 s{sOU+1}, s93"); e(f"s_mov_b32 s{sOU+2}, {8*160*1792}"); e(f"s_mov_b32 s{sOU+3}, 0x20000")
        e(f"s_lshl_b32 s{sOWN}, 1, s{sHd}"); e(f"s_mov_b32 s{sCNT}, {P.SPIN}"); e(f"s_mov_b32 s{sPEND}, 0")
        e(f"v_mbcnt_lo_u32_b32 v{LN}, -1, 0"); e(f"v_mbcnt_hi_u32_b32 v{LN}, -1, v{LN}"); e(f"v_lshlrev_b32 v{L4}, 2, v{LN}")
        e(f"v_and_b32 v{TV}, 15, v{LN}"); e(f"v_mul_u32_u24 v{LO}, 1792, v{TV}"); e(f"v_bfe_u32 v{TV}, v{LN}, 4, 1")
        e(f"v_lshl_add_u32 v{LO}, v{TV}, 6, v{LO}"); e(f"v_lshrrev_b32 v{TV}, 5, v{LN}"); e(f"v_lshl_add_u32 v{LO}, v{TV}, 4, v{LO}")
        MA_, MP_, TW = 247, 248, 249
        e(f"v_mov_b32 v{TV}, s{sOWN}"); e(f"v_mov_b32 v{TW}, s{sOWN}"); e(f"s_mov_b32 s{sPR+2}, s{sSZ}")
        e(f"v_mul_u32_u24 v{MA_}, {PART}, v{LN}"); e(f"v_add_u32 v{MA_}, {MBOX}, v{MA_}")
        e(f"v_lshlrev_b32 v{MP_}, 8, v{LN}"); e(f"v_add_u32 v{MP_}, {MBOX}, v{MP_}")
        IDN = 232
        e(f"v_and_b32 v{IDN}, 1, v{LN}"); e(f"v_lshlrev_b32 v{IDN}, 4, v{IDN}"); e(f"s_movk_i32 s{sT0}, 0x3f80"); e(f"v_lshlrev_b32 v{IDN}, v{IDN}, s{sT0}")
        e(f"v_bfe_i32 v{SOF}, v{LN}, 1, 1"); e(f"v_and_b32 v{IDN+1}, v{IDN}, v{SOF}"); e(f"v_xor_b32 v{IDN}, v{IDN}, v{IDN+1}")
        e("s_waitcnt vmcnt(0)")
        L += self.stamp(48)
        e("s_barrier")
        e(f"s_cmp_lg_u32 s{sW}, 0"); e("s_cbranch_scc1 L_f_b0")
        e(f"buffer_atomic_add v{TV}, v{L4}, {srd(sDB)}, 0 offen sc0")
        e(f"buffer_atomic_add v{TW}, v{MA_}, {srd(sPR)}, 0 offen"); e("s_waitcnt vmcnt(1)")
        e(f"ds_write_b32 v{L4}, v{TV}"); e("s_waitcnt lgkmcnt(0)")
        e("L_f_b0:"); e("s_barrier")
        e(f"ds_read_b32 v{TV}, v{L4}"); e("s_waitcnt lgkmcnt(0)"); e(f"v_readfirstlane_b32 s{sOLD}, v{TV}")
        L += self.stamp(49)
        e(f"s_and_b32 s{sMASK}, s{sOLD}, 0xffff"); e(f"s_bcnt1_i32_b32 s{sIDX}, s{sMASK}"); e(f"s_or_b32 s{sMASK}, s{sMASK}, s{sOWN}")
        if P.STAMP: e(f"v_writelane_b32 v{STR}, s{sIDX}, 60"); e(f"v_writelane_b32 v{STR}, 16, 61")
        e(f"s_cmp_lg_u32 s{sIDX}, 15"); e("s_cbranch_scc1 L_f_share")
        e(f"s_lshr_b32 s{sPEND}, s{sOLD}, 16")
        e("L_f_next:")
        e(f"s_cmp_eq_u32 s{sPEND}, 0"); e("s_cbranch_scc1 L_f_end")
        e(f"s_ff1_i32_b32 s{sIDX}, s{sPEND}"); e(f"s_bitset0_b32 s{sPEND}, s{sIDX}")
        e("L_f_share:")
        lv = list(P.LV) + [(0, 0)] * (7 - len(P.LV))
        tu = sum(u << (4 * k) for k, (u, c) in enumerate(lv)); tc = sum(c << (4 * k) for k, (u, c) in enumerate(lv))
        e(f"s_lshl_b32 s{sT0}, s{sIDX}, 2"); e(f"s_add_u32 s{sT0}, s{sT0}, s{sW}")
        e(f"s_mul_i32 s{sT1}, s{sT0}, 26"); e(f"s_lshr_b32 s{sT1}, s{sT1}, 8")
        e(f"s_mul_i32 s{sT2}, s{sT1}, 10"); e(f"s_sub_u32 s{sT0}, s{sT0}, s{sT2}")
        e(f"s_lshl_b32 s{sT1}, s{sT1}, 2")
        e(f"s_lshr_b32 s{sT2}, {hex(tu)}, s{sT1}"); e(f"s_and_b32 s{sT2}, s{sT2}, 15")
        e(f"s_lshr_b32 s{sT3}, {hex(tc)}, s{sT1}"); e(f"s_and_b32 s{sT3}, s{sT3}, 15")
        e("s_cbranch_scc0 L_f_next")
        e(f"s_mul_i32 s{sHO}, s{sBt}, 10"); e(f"s_add_u32 s{sHO}, s{sHO}, s{sT0}"); e(f"s_mul_i32 s{sHO}, s{sHO}, {16*1792}")
        e(f"s_mul_i32 s{sT1}, s{sBLK}, 896"); e(f"s_add_u32 s{sHO}, s{sHO}, s{sT1}")
        e(f"s_lshl_b32 s{sT0}, s{sT0}, 11")
        a, b, c = sNEW, sSEEN, sOLD
        for k in range(3):
            e(f"s_lshr_b32 s{a}, s{sT2}, 1"); e(f"s_and_b32 s{b}, s{sT2}, 1")
            e(f"s_mul_i32 s{c}, s{a}, 20"); e(f"s_add_u32 s{c}, s{c}, s{b}"); e(f"s_lshl_b32 s{c}, s{c}, 10"); e(f"s_add_u32 s{c}, s{c}, s{sT0}")
            e(f"s_lshl_b32 s{a}, s{a}, 2"); e(f"s_add_u32 s{a}, s{a}, s{b}"); e(f"s_lshl_b32 s{a}, s{a}, 5"); e(f"s_add_u32 s{a}, s{a}, s{sHO}")
            e(f"v_lshl_add_u32 v{PO[k]}, v{LN}, 4, s{c}"); e(f"v_add_u32 v{OO[k]}, s{a}, v{LO}")
            e(f"s_add_u32 s{sT2}, s{sT2}, 1")
        e(f"s_mov_b32 s{sNEW}, s{sMASK}"); e(f"s_mov_b32 s{sSEEN}, s{sMASK}")
        L += self.stamp(50)
        if P.STAMP: e(f"s_mov_b32 s44, {52 if P.STAMP in (1, 4) else 16}")
        e(f"s_cmp_eq_u32 s{sT3}, 2"); e("s_cbranch_scc1 L_f2_i"); e(f"s_cmp_eq_u32 s{sT3}, 1"); e("s_cbranch_scc1 L_f1_i")
        for U in (3, 2, 1):
            e(f"L_f{U}_i:")
            for q in range(4):
                e(f"s_and_b32 s{sT0}, s{sNEW}, {15 << (4*q)}"); e(f"s_cbranch_scc0 L_f{U}_h{4*q+3}")
                for h in range(4 * q, 4 * q + 4):
                    e(f"s_bitcmp1_b32 s{sNEW}, {h}"); e(f"s_cbranch_scc0 L_f{U}_h{h}")
                    e(f"s_mov_b32 s{sHO}, {h*PART}")
                    for k in range(U):
                        if (h * 3 + k) % 7 < P.RSK: continue
                        e(f"buffer_load_dwordx4 {ar(12*h+4*k)}, v{PO[k]}, {srd(sPR)}, s{sHO} offen{P.RDMOD}")
                    e(f"L_f{U}_h{h}:")
            e(f"s_cmp_eq_u32 s{sSEEN}, 0xffff"); e(f"s_cbranch_scc1 L_f{U}_sum")
            e(f"L_f{U}_spin:")
            e(f"buffer_load_dword v{TV}, v{MP_}, {srd(sWS)}, 0 offen sc1"); e("s_waitcnt vmcnt(0)")
            e(f"v_readfirstlane_b32 s{sMASK}, v{TV}"); e(f"s_and_b32 s{sMASK}, s{sMASK}, 0xffff")
            e(f"s_andn2_b32 s{sNEW}, s{sMASK}, s{sSEEN}"); e(f"s_cbranch_scc1 L_f{U}_got")
            e(f"s_sub_u32 s{sCNT}, s{sCNT}, 1"); e(f"s_cbranch_scc0 L_f{U}_spin")
            e(f"s_lshl_b32 s{sT0}, 0x10000, s{sIDX}"); e(f"v_mov_b32 v{TV}, s{sT0}")
            e(f"buffer_atomic_or v{TV}, v{L4}, {srd(sDB)}, 0 offen sc0"); e("s_waitcnt vmcnt(0)")
            e(f"v_readfirstlane_b32 s{sMASK}, v{TV}"); e(f"s_and_b32 s{sMASK}, s{sMASK}, 0xffff")
            e(f"s_cmp_lg_u32 s{sMASK}, 0xffff"); e("s_cbranch_scc1 L_f_end")
            e(f"s_andn2_b32 s{sNEW}, s{sMASK}, s{sSEEN}")
            e(f"L_f{U}_got:")
            e(f"s_or_b32 s{sSEEN}, s{sSEEN}, s{sNEW}")
            if P.STAMP: L += ["s_memrealtime s[84:85]", "s_waitcnt lgkmcnt(0)", "s_mov_b32 m0, s44", f"s_bcnt1_i32_b32 s45, s{sSEEN}", f"v_writelane_b32 v{STR}, s84, m0",
                              f"v_writelane_b32 v{STC}, s45, m0", "s_add_u32 s44, s44, 1", f"v_writelane_b32 v{STR}, s44, 61"]
            e(f"s_branch L_f{U}_i")
            e(f"L_f{U}_sum:")
            e("s_waitcnt vmcnt(0)")
            L += self.stamp(51)
            for h in range(16):
                for k in range(U):
                    for d in range(2):
                        o = vr(8 * k + 4 * d)
                        e(f"v_mfma_f32_4x4x4_16b_bf16 {o}, {vr(IDN,2)}, {ar(12*h+4*k+2*d,2)}, {o if h else 0}")
                if U == 1: e("s_nop 0")
            e("s_nop 4")
            for k in range(U):
                r = 32 + 4 * k
                for d in range(4): e(f"v_cvt_pk_bf16_f32 v{r+d}, v{8*k+2*d}, v{8*k+2*d+1}")
                e(f"v_permlane16_swap_b32 v{r}, v{r+2}"); e(f"v_permlane16_swap_b32 v{r+1}, v{r+3}")
                e(f"buffer_store_dwordx4 {vr(r)}, v{OO[k]}, {srd(sOU)}, 0 offen{P.OUMOD}")
            e(f"s_mov_b32 s{sMASK}, 0xffff"); e("s_branch L_f_next")
        e("L_f_end:")
        return L


    def attn_kernel(self):
        e = self.e
        kn = NAME + "_kernel"
        e(f".globl {kn}"); e(".p2align 8"); e(f".type {kn},@function"); e(f"{kn}:")
        p0 = len(self.L)
        e("s_cmp_ge_u32 s2, 256"); e("s_cbranch_scc1 L_attn_end")
        e(f"s_mov_b32 s{sMODE}, 0")
        e("L_again:")
        e(f"s_and_b32 s{sT0}, s2, 7")
        e(f"s_lshr_b32 s{sBLK}, s{sT0}, 2"); e(f"s_mul_i32 s{sT1}, s{sBLK}, 40")
        e(f"s_add_u32 s4, s0, s{sT1}"); e("s_addc_u32 s5, s1, 0")
        e(f"s_load_dwordx8 s[{sPT}:{sPT+7}], s[4:5], 0")
        e(f"s_load_dwordx2 s[{sWO}:{sWO+1}], s[4:5], 32")
        e("s_load_dwordx2 s[72:73], s[0:1], 96")
        e("s_load_dwordx4 s[92:95], s[0:1], 80")
        for x in self.stamp("start"): e(x)
        t = list(range(100, 116))
        ln, g, r4, x4, tq, tu, tv, fj = t[:8]
        e(f"s_getpc_b64 s[{sWS}:{sWS+1}]"); e("L_cw0:"); e(f"s_mov_b32 s{sWS+2}, L_code_end-L_cw0"); e(f"s_mov_b32 s{sWS+3}, 0x20000")
        e(f"v_and_b32 v{ln}, 63, v0"); e(f"v_lshrrev_b32 v{tq}, 6, v0"); e(f"s_lshr_b32 s{sT1}, s2, 3"); e(f"s_lshl_b32 s{sT2}, s{sT1}, 9")
        e(f"v_lshlrev_b32 v{tu}, 14, v{ln}"); e(f"v_lshl_add_u32 v{tu}, v{tq}, 7, v{tu}"); e(f"v_add_u32 v{tu}, s{sT2}, v{tu}")
        e(f"buffer_load_dword a{LS(0)}, v{tu}, {srd(sWS)}, 0 offen")
        e(f"v_readfirstlane_b32 s{sW}, v{tq}")
        if P.MAP == 4:
            e(f"s_and_b32 s{sHd}, s{sT0}, 3"); e(f"s_lshl_b32 s{sHd}, s{sHd}, 2"); e(f"s_and_b32 s{sT2}, s{sT1}, 3")
            e(f"s_add_u32 s{sHd}, s{sHd}, s{sT2}"); e(f"s_lshr_b32 s{sBt}, s{sT1}, 2")
            e(f"s_lshl_b32 s{sC}, s{sT2}, 1"); e(f"s_add_u32 s{sC}, s{sC}, s{sBt}"); e(f"s_sub_u32 s{sT2}, s{sC}, 7")
            e(f"s_cmp_ge_u32 s{sC}, 7"); e(f"s_cselect_b32 s{sC}, s{sT2}, s{sC}")
        else:
            if P.MAP == 16:
                e(f"s_and_b32 s{sHd}, s{sT1}, 15"); e(f"s_and_b32 s{sT2}, s{sT0}, 3"); e(f"s_lshr_b32 s{sC}, s{sT1}, 4")
                e(f"s_lshl_b32 s{sBt}, s{sT2}, 1"); e(f"s_add_u32 s{sBt}, s{sBt}, s{sC}")
                e(f"s_mul_i32 s{sC}, s{sC}, {P.RA}"); e(f"s_mul_i32 s{sT2}, s{sT2}, {P.RB}"); e(f"s_add_u32 s{sC}, s{sC}, s{sT2}")
                e(f"s_mul_i32 s{sT2}, s{sHd}, {P.RH}"); e(f"s_add_u32 s{sC}, s{sC}, s{sT2}")
            else:
                e(f"s_and_b32 s{sHd}, s{sT0}, 1"); e(f"s_lshl_b32 s{sHd}, s{sHd}, 3"); e(f"s_and_b32 s{sT2}, s{sT1}, 7"); e(f"s_add_u32 s{sHd}, s{sHd}, s{sT2}")
                e(f"s_and_b32 s{sBt}, s{sT0}, 2"); e(f"s_lshr_b32 s{sC}, s{sT1}, 3"); e(f"s_lshl_b32 s{sC}, s{sC}, 1"); e(f"s_add_u32 s{sT2}, s{sT2}, s{sC}")
                e(f"s_lshr_b32 s{sC}, s{sC}, 1"); e(f"s_lshl_b32 s{sBt}, s{sBt}, 1"); e(f"s_add_u32 s{sBt}, s{sBt}, s{sC}")
                e(f"s_bfe_u32 s{sC}, s{sT0}, 0x10001"); e(f"s_add_u32 s{sC}, s{sC}, s{sT2}")
            e(f"s_mul_i32 s{sT2}, s{sC}, 37"); e(f"s_lshr_b32 s{sT2}, s{sT2}, 8"); e(f"s_mul_i32 s{sT2}, s{sT2}, 7"); e(f"s_sub_u32 s{sC}, s{sC}, s{sT2}")
        e(f"s_lshl_b32 s{sCW}, s{sC}, 19"); e(f"s_lshl_b32 s{sCX}, s{sC}, 7")
        e(f"s_lshl_b32 s{sW8K}, s{sW}, 13"); e(f"s_movk_i32 s{sF}, 0x9c")
        e(f"s_lshl_b32 s{sT0}, s{sW}, 1"); e(f"s_lshr_b32 s{sT0}, s{sF}, s{sT0}"); e(f"s_and_b32 s{sT0}, s{sT0}, 3")
        e(f"v_lshrrev_b32 v{g}, 4, v{ln}"); e(f"v_bfe_u32 v{r4}, v{ln}, 2, 2"); e(f"v_and_b32 v{x4}, 3, v{ln}")
        e(f"v_xor_b32 v{tq}, s{sT0}, v{x4}"); e(f"v_lshlrev_b32 v{tq}, 4, v{tq}"); e(f"v_lshl_add_u32 v{tq}, v{g}, 6, v{tq}")
        HW, HX, WA, XA = self.HW, self.HX, self.WA, self.XA
        e(f"s_lshl_b32 s{sT0}, s{sW}, 17"); e(f"v_lshl_add_u32 v{tu}, v{r4}, 13, v{tq}"); e(f"v_add_u32 v{HW+1}, s{sT0}, v{tu}")
        for k in (0, 2, 3, 4, 5, 6, 7):
            gg, u = k >> 2, k & 3
            e(f"v_add_u32 v{HW+k}, {768 + (2*gg + (u>>1))*32768 + (u&1)*256 - u*1024}, v{HW+1}")
        e(f"v_bfe_u32 v{tu}, v{ln}, 2, 3"); e(f"v_mul_u32_u24 v{tu}, 896, v{tu}"); e(f"v_lshrrev_b32 v{tv}, 5, v{ln}")
        e(f"v_lshl_add_u32 v{tu}, v{tv}, 6, v{tu}")
        e(f"v_and_b32 v{tv}, 1, v{g}"); e(f"v_mul_u32_u24 v{tv}, 3, v{tv}"); e(f"v_xor_b32 v{tv}, v{tv}, v{x4}")
        e(f"v_lshl_add_u32 v{tu}, v{tv}, 4, v{tu}")
        e(f"s_mul_i32 s{sT0}, s{sW}, 28672"); e(f"v_add_u32 v{HX}, s{sT0}, v{tu}"); e(f"v_xor_b32 v{tv}, 16, v{HX}")
        e(f"v_add_u32 v{HX+1}, 6144, v{tv}"); e(f"v_add_u32 v{HX+2}, 12288, v{HX}"); e(f"v_add_u32 v{HX+3}, 18432, v{tv}")
        e(f"s_and_b32 s{sT1}, s{sW}, 1"); e(f"s_lshl_b32 s{sT1}, s{sT1}, 4"); e(f"v_xor_b32 v{tv}, s{sT1}, v{tu}")
        e(f"s_mul_i32 s{sT0}, s{sW}, 7168"); e(f"s_add_u32 s{sT0}, s{sT0}, {128*896}"); e(f"v_add_u32 v{HX+4}, s{sT0}, v{tv}")
        e(f"s_lshl_b32 s{sT2}, s{sW}, 12"); e(f"s_lshl_b32 s{sT3}, s{sW}, 10")
        e(f"s_mul_i32 s{sT0}, s{sBt}, 143360"); e(f"s_lshl_b32 s{sT1}, s{sHd}, 9")
        e(f"s_mov_b32 s{sX+2}, 143360"); e(f"s_mov_b32 s{sX+3}, 0x20000"); e(f"s_mov_b32 s{sWQ+3}, 0x20000")
        e(f"s_sub_u32 s{sWQ+2}, {448*8192+768}, s{sT1}")
        e("s_waitcnt lgkmcnt(0)")
        e(f"s_add_u32 s{sWQ}, s{sPT+6}, s{sT1}"); e(f"s_addc_u32 s{sWQ+1}, s{sPT+7}, 0")
        e(f"s_sub_u32 s{sWQ}, s{sWQ}, 768"); e(f"s_subb_u32 s{sWQ+1}, s{sWQ+1}, 0")
        e(f"s_add_u32 s{sX}, s{sPT}, s{sT0}"); e(f"s_addc_u32 s{sX+1}, s{sPT+1}, 0")
        for x in self.stamp(1): e(x)
        for it in self.w_items(0) + self.x_items(0):
            for x in it: e(x)
        for x in self.stamp(2): e(x)
        e(f"s_lshl_b32 s{sT0}, s{sBt}, 4"); e(f"s_add_u32 s{sT0}, s{sT0}, s{sHd}"); e(f"s_lshl_b32 s{sT1}, s{sT0}, 19")
        for s_, p in ((sA, sPT + 2), (sB_, sPT + 4)):
            e(f"s_add_u32 s{s_}, s{p}, s{sT1}"); e(f"s_addc_u32 s{s_+1}, s{p+1}, 0")
            e(f"s_sub_u32 s{s_}, s{s_}, 768"); e(f"s_subb_u32 s{s_+1}, s{s_+1}, 0")
            e(f"s_mov_b32 s{s_+2}, {524288+768}"); e(f"s_mov_b32 s{s_+3}, 0x20000")
        e(f"s_lshl_b32 s{sT1}, s{sBLK}, 7"); e(f"s_add_u32 s{sT0}, s{sT0}, s{sT1}"); e(f"s_mul_i32 s{sT0}, s{sT0}, {PART}")
        e(f"s_add_u32 s{sWS}, s72, s{sT0}"); e(f"s_addc_u32 s{sWS+1}, s73, 0"); e(f"s_mov_b32 s{sWS+2}, {PART}")
        e(f"v_lshl_add_u32 v{tu}, v{r4}, 9, v{tq}"); e(f"v_add_u32 v{VO+1}, s{sW8K}, v{tu}")
        e(f"v_add_u32 v{VO}, 768, v{VO+1}")
        e(f"s_and_b32 s{sT0}, s{sW}, 1"); e(f"s_lshl_b32 s{sT1}, s{sT0}, 13"); e(f"s_sub_u32 s{sH}, 4096, s{sT1}")
        e(f"s_sub_u32 s{sPH}, 0x10000, s{sH}"); e(f"s_sub_u32 s{sNH}, {u32(-98304)}, s{sH}")
        e(f"s_lshl_b32 s{sT1}, s{sT0}, 12"); e(f"s_lshl_b32 s{sT0}, s{sT0}, 10")
        e(f"v_lshlrev_b32 v{tv}, 1, v{g}"); e(f"v_bfe_u32 v{tv}, s{sF}, v{tv}, 2"); e(f"v_lshrrev_b32 v{tu}, 1, v{x4}")
        e(f"v_xor_b32 v{tv}, v{tv}, v{tu}"); e(f"v_lshl_add_u32 v{tv}, v{tv}, 4, s{sT0}")
        e(f"v_lshl_add_u32 v{tv}, v{g}, 13, v{tv}"); e(f"v_lshl_add_u32 v{tv}, v{r4}, 6, v{tv}")
        e(f"v_and_b32 v{tu}, 1, v{x4}"); e(f"v_lshl_add_u32 v{WA}, v{tu}, 3, v{tv}"); e(f"v_xor_b32 v{WA+1}, 32, v{WA}")
        e(f"v_add_u32 v{WA+2}, {SLOT(2)}, v{WA}"); e(f"v_add_u32 v{WA+3}, {SLOT(2)}, v{WA+1}")
        e(f"s_add_u32 s{sD}, s{sT1}, {SLOT(1)}"); e(f"v_add_u32 v{VA}, s{sD}, v{WA}"); e(f"v_add_u32 v{VA+1}, s{sD}, v{WA+1}")
        e(f"v_lshlrev_b32 v{fj}, 1, v{r4}"); e(f"v_bfe_u32 v{fj}, s{sF}, v{fj}, 2")
        e(f"s_movk_i32 s{sD}, 0xd8"); e(f"v_lshlrev_b32 v{tv}, 1, v{g}"); e(f"v_bfe_u32 v{tv}, s{sD}, v{tv}, 2")
        e(f"s_add_u32 s{sT1}, s{sT1}, s{sT0}")
        e(f"v_xor_b32 v{tv}, v{tv}, v{fj}"); e(f"v_lshl_add_u32 v{tv}, v{tv}, 4, s{sT1}")
        e(f"v_lshl_add_u32 v{tv}, v{r4}, 13, v{tv}"); e(f"v_lshl_add_u32 v{KA}, v{x4}, 6, v{tv}"); e(f"v_xor_b32 v{KA+1}, 1024, v{KA}")
        e(f"v_and_b32 v{tv}, 1, v{g}"); e(f"v_lshlrev_b32 v{tv}, 1, v{tv}"); e(f"v_xor_b32 v{tv}, v{tv}, v{fj}"); e(f"v_lshlrev_b32 v{tv}, 4, v{tv}")
        e(f"v_and_b32 v{tu}, 7, v{ln}"); e(f"v_lshl_add_u32 v{tv}, v{tu}, 6, v{tv}")
        e(f"v_lshrrev_b32 v{tu}, 5, v{ln}"); e(f"v_lshl_add_u32 v{tv}, v{tu}, 9, v{tv}")
        e(f"v_bfe_u32 v{tq}, v{ln}, 3, 1"); e(f"v_lshl_add_u32 v{tv}, v{tq}, 10, v{tv}")
        e(f"s_lshr_b32 s{sT1}, s{sW}, 1"); e(f"s_lshl_b32 s{sT0}, s{sT1}, 13"); e(f"s_add_u32 s{sT0}, s{sT0}, {SLOT(1)}")
        e(f"v_add_u32 v{XA}, s{sT0}, v{tv}"); e(f"v_xor_b32 v{XA+1}, 16, v{XA}")
        e(f"v_add_u32 v{XA+2}, {SLOT(4)-SLOT(1)}, v{XA}"); e(f"v_add_u32 v{XA+3}, {SLOT(4)-SLOT(1)}, v{XA+1}")
        e(f"s_lshl_b32 s{sT0}, s{sT1}, 11"); e(f"s_add_u32 s{sT0}, s{sT0}, {SLOT(4)+16384}")
        e(f"v_add_u32 v{XA+4}, s{sT0}, v{tv}"); e(f"v_xor_b32 v{XA+5}, 16, v{XA+4}")
        e(f"v_lshl_add_u32 v{OWNP}, v{ln}, 4, s{sW8K}"); e(f"v_xor_b32 v{PARP}, 0x2000, v{OWNP}")
        if P.TCH: e(f"v_lshl_add_u32 v{self.TV}, v{ln}, 7, s{sW8K}")
        e(f"s_mul_i32 s{sT0}, s{sT1}, 320"); e(f"s_add_u32 s{sT0}, s{sT0}, {MXA}"); e(f"v_and_b32 v{tu}, 15, v{ln}")
        e(f"v_lshl_add_u32 v{T0}, v{tu}, 2, s{sT0}"); e(f"v_mov_b32 v{tv}, 0x7f800000")
        for s in range(5): e(f"ds_write_b32 v{T0}, v{tv} offset:{64*s}")
        e(f"s_mov_b32 s{sSC}, {hex(f2u(math.log2(math.e) / 16.0))}"); e(f"s_mov_b32 s{sTH}, {hex(f2u(-1.0 if P.FORCE else P.LTH))}")
        if P.VL: e(f"s_lshl_b32 s{sT0}, s{sBt}, 2"); e(f"s_lshr_b32 s{sCLS}, {hex(P.VL[0])}, s{sT0}")
        e(f"s_mov_b32 s{sT0}, 0x3f803f80")
        for k in range(4): e(f"v_accvgpr_write_b32 a{ONES+k}, s{sT0}")
        for it in self.x_items(1) + self.w_items(1):
            for x in it: e(x)
        for nm in P.PQ:
            for it in (self.w_items(int(nm[1])) + self.x_items(int(nm[1])) if nm[0] == "c" else self.kv_head_items(2 * int(nm[1]) + (nm[0] == "V"))):
                for x in it: e(x)
        if P.F2: pass
        else:
            e(f"v_add_u32 v{tu}, s{sMODE}, v{ln}"); e(f"v_lshlrev_b32 v{tu}, 8, v{tu}"); e(f"v_add_u32 v{tu}, {MBOX}, v{tu}"); e(f"v_mov_b32 v{tq}, 0")
            e(f"buffer_store_dword v{tq}, v{tu}, {srd(sWS)}, 0 offen sc1")
        if P.WP:
            e(f"s_mul_i32 s{sT1}, s{sHd}, 32"); e(f"s_lshl_b32 s{sT0}, s{sBt}, 2"); e(f"s_add_u32 s{sT1}, s{sT1}, s{sT0}"); e(f"s_add_u32 s{sT1}, s{sT1}, s{sW}")
            e(f"s_mul_i32 s{sT1}, s{sT1}, 7168"); e(f"s_add_u32 s{sFC}, s{sWO}, s{sT1}"); e(f"s_addc_u32 s{sFC+1}, s{sWO+1}, 0"); e(f"s_movk_i32 s{sFC+2}, 7168")
            e(f"s_mov_b32 s{sFC+3}, 0x20000"); e(f"v_lshlrev_b32 v{T1}, 7, v{ln}")
            if P.WP == 1: e(f"buffer_load_dword v{T1}, v{T1}, {srd(sFC)}, 0 offen{P.TNT}")
        if P.PT:
            e(f"v_lshlrev_b32 v{tu}, {P.PTS}, v{ln}"); e(f"s_mov_b32 s{sFC+3}, 0x20000")
            e(f"s_lshl_b32 s{sT1}, s{sBLK}, 3"); e(f"s_add_u32 s{sT1}, s{sT1}, s{sBt}")
            for k, (nm, ptr, idx, sz) in enumerate((("w", sWO, sHd, 229376), ("d", 94, None, 256), ("p", 72, sT1, 16 * PART), ("o", 92, sBt, 160 * 1792))):
                if nm not in P.PT: continue
                if idx is None: e(f"s_mov_b32 s{sT0}, 0")
                else: e(f"s_mul_i32 s{sT0}, s{idx}, {sz}")
                e(f"s_add_u32 s{sFC}, s{ptr}, s{sT0}"); e(f"s_addc_u32 s{sFC+1}, s{ptr+1}, 0"); e(f"s_mov_b32 s{sFC+2}, {sz}")
                e(f"buffer_load_dword a{LS(1)+k}, v{tu}, {srd(sFC)}, 0 offen")
        e("@vmw c0 lgkmcnt(0)"); e("s_barrier")
        for x in self.stamp(3): e(x)
        for x in self.head_sched(): e(x)
        self.vq = [0]; self.fifo = []
        head = self.finish(self.L[p0:], "head")
        self.L[p0:] = head
        plan = self.plan = self.uni_plan()
        for k in range(2, 30):
            for x in self.static_body(k, plan[k]): e(x)
        tail = self.finish(self.tail_sched(), "tail", self.L[-30:])
        for x in tail: e(x)
        fin, _ = fix_hazards(self.fin2() if P.F2 else self.fin(), tail[-30:])
        for x in fin: e(x)
        if P.STAMP:
            e("s_waitcnt vmcnt(0)")
            for x in self.stamp(63): e(x)
            e(f"v_writelane_b32 v{STR}, s{sST+4}, 0"); e(f"v_writelane_b32 v{STC}, s{sST+6}, 0")
            e(f"s_lshl_b32 s{sT0}, s2, 2"); e(f"s_add_u32 s{sT0}, s{sT0}, s{sW}"); e(f"s_lshl_b32 s{sT0}, s{sT0}, 9")
            e(f"s_add_u32 s{sT0}, s{sT0}, {STAMP_OFF}")
            e(f"s_add_u32 s{sWS}, s72, s{sT0}"); e(f"s_addc_u32 s{sWS+1}, s73, 0"); e(f"s_mov_b32 s{sWS+2}, 512")
            e("v_mbcnt_lo_u32_b32 v20, -1, 0"); e("v_mbcnt_hi_u32_b32 v20, -1, v20"); e("v_lshlrev_b32 v20, 2, v20")
            e(f"buffer_store_dword v{STR}, v20, {srd(sWS)}, 0 offen"); e(f"buffer_store_dword v{STC}, v20, {srd(sWS)}, 0 offen offset:256")
        e("L_attn_end:")
        e("s_endpgm")
        e("L_code_end:")
        body = self.L[p0:]
        for x in self.R + fix_hazards(self.tmax())[0] + fix_hazards(self.redo())[0] + (self.fc_spin() if P.FC else []): e(x)
        return check_hazards(body, "all")

def desc(name, vg, acc):
    return [f".amdhsa_kernel {name}", f"  .amdhsa_next_free_vgpr {vg}", "  .amdhsa_next_free_sgpr 102",
            f"  .amdhsa_accum_offset {acc}", "  .amdhsa_group_segment_fixed_size 0", "  .amdhsa_kernarg_size 104",
            "  .amdhsa_user_sgpr_count 2", "  .amdhsa_user_sgpr_kernarg_segment_ptr 1",
            "  .amdhsa_system_sgpr_workgroup_id_x 1", ".end_amdhsa_kernel"]

def build(path, verbose=True):
    g = Gen()
    ref = open(f"cdna_kernels/{NAME}.s.ref").read().splitlines()
    g.L += [l for l in ref if l.startswith(";") and "@launch" not in l]
    g.L += ["; @launch grid=(256,1,1) block=(256,1,1) lds=163840"]
    g.L += ['.amdgcn_target "amdgcn-amd-amdhsa--gfx950"', ".text"]
    probs = g.attn_kernel()
    g.L += ['.section .rodata,"a"', ".p2align 6"] + desc(NAME + "_kernel", 512, 256)
    open(path, "w").write("\n".join(g.L) + "\n")
    seen = set()
    for p in probs:
        k = p.split("]", 1)[1]
        if k not in seen: print(p); seen.add(k)
    if verbose:
        tot = 0
        for k, (v, added) in g.sec.items():
            ins = [Ins(x) for x in v]
            nm = sum(1 for i in ins if i.kind == "mfma"); tot += est_cycles(v)
            print(f"{k}: instr {sum(1 for i in ins if i.states)} mfma {nm} ({nm*16} cyc) est {est_cycles(v)} nops {added} waits {sum(1 for i in ins if i.mn=='s_waitcnt')}")
        print("total est", tot, "staged", g.nstaged)
    return g

if __name__ == "__main__":
    out = sys.argv[1] if len(sys.argv) > 1 else "k6.s"
    for kv in sys.argv[2:]:
        k, v = kv.split("=", 1)
        setattr(P, k, eval(v))
    build(out)
```

```python
import sys, math, struct, re
from asmlib import Ins, check_hazards, autowait, fix_hazards
from sched3 import Sch, cost, est_cycles

NAME = "concat_heads__mha_block_cached__mha_block_cached__near_ridge"
MF = "v_mfma_f32_16x16x32_bf16"
def f2u(x): return struct.unpack("<I", struct.pack("<f", x))[0]
def vr(b, n=4): return f"v[{b}:{b+n-1}]"
def ar(b, n=4): return f"a[{b}:{b+n-1}]"
def srd(b): return f"s[{b}:{b+3}]"
def u32(x): return hex(x & 0xffffffff)

class P:
    STAMP = False
    BB = 12
    BQ = 68
    BP = 54
    NPK = 10
    NPV = 6
    KVNT = " nt"
    STMOD = " sc1"
    LTH = 2.0 ** 40
    HQ = [("c2", 0, 2), ("K0", 28, 2), ("c3", 100, 3), ("c4", 150, 2), ("V0", 180, 2), ("c5", 255, 3), ("c6", 310, 2),
          ("V1", 340, 8), ("K1", 410, 10), ("K2", 490, 8), ("K3", 555, 6), ("V2", 640, 6)]
    HST = (3, 4)
    KVINC = 32768
    LV = [(0, 3), (3, 3), (6, 3), (9, 2), (11, 2), (13, 1)]
    SPIN = 20000
    WNT = ""
    STRIP = []
    STRIPT = []
    STRIPH = []
    WNT0 = [0]
    WO0 = [58, 59, 60, 61, 62, 63, 64, 65]
    SH = {}
    ST = {}
    SL = {}
    UG = (2, 2240)
    UP = 1.0
    UF = 9
    UL = 110
    UT = [12, 22]
    FC = []
    FCL = 1
    FCG = 3
    FCN = 60
    FCS = 4352
    FORCE = False
    BXG = 34
    BAG = 22
    BBG = 50
    TCH = []
    TNT = ""
    WSP = False
    VN = 0
    WG = None
    ROTW = True
    WP = 0
    WONT = []
    RDMOD = " sc1"
    OUMOD = ""
    VSP = 0
    EPW = 4
    SMAJ = None
    BF = None
    TQ = [(38, 3), (64, 4), (98, 5), (150, 5), (191, 5)]
    TS0 = 0
    TSP = 1
    TSS = 1
    PT = ""
    PTS = 16
    WT = []
    MAP = 4
    RSK = 0
    VL = None
    F2 = False
    NS = (7, 6, 2)
    CG = (70,)
    ZK = (4, 8)
    PG = 470
    EF = [(3, 425), (5, None)]
    FP = True
    HCH = 8
    QCH = 1
    TCN = 1
    PCH = None
    PCT = None
    BPH = 54
    BPT = None
    PQ = []
    RA = 3
    RB = 1
    RH = 1

def QA(s, j): return 32 * s + 4 * j
def QR(s, i): return vr(32 * s + 8 * i) if i < 4 else ar(64 + 4 * (5 * (i - 4) + s))
def OV(t): return 8 * t + 4
def OR(s, j):
    t = 8 * s + j
    return vr(OV(t)) if t < 20 else ar(144 + 4 * (t - 20))
def OT(s, j):
    t = 8 * s + j
    return OV(t) if t < 20 else 8 * (t - 20)
SB = 160
TL = {"b0": (0, 1, 2), "b1": (0, 1, 2), "a0": (3, 4), "a1": (3, 4)}
TB = {"b0": 0, "b1": 3, "a0": 3, "a1": 5}
def HF(s): return "b" if s < 3 else "a"
def S(t, s): return SB + 4 * (TB[t] + s)
def PR(s): return S(HF(s) + "0", s)
def PP(s): return S(HF(s) + "1", s)
def CI(s): return 200 + 4 * s
KA, VA, VO, OWNP, PARP, T0, T1 = 244, 246, 248, 250, 251, 252, 253
FCV = T1
STR, STC = 254, 255
def FB(k): return 4 * k
def LS(s): return 224 + 4 * s
ONES = 244
def STG(b): return vr(220 + 4 * b) if b < 6 else ar(248 + 4 * (b - 6))
def STR_(n, k):
    if n == 0: return vr(SB + 4 * k)
    if n == 1: return ar(144 + 4 * k) if k < 4 else ar(32 + 4 * k)
    if n in (3, 4): return ar(160 + 32 * (n - 3) + 4 * k)
    assert n == 6
    return STG(k)
def SLOT(n): return (n % 5) * 32768
def PX(n, s): return SLOT(2 * n - 1) + (5 + s) * 1024 if s < 3 else SLOT(2 * n) + (3 + s) * 1024
MXA = SLOT(4) + 28 * 1024
sA, sB_, sX, sWQ, sWS = 8, 12, 16, 20, 24
sW, sW8K = 28, 29
sRET = 30
sTH, sH, sPH, sNH, sD, sMODE = 32, 33, 34, 35, 36, 37
sOA, sOB = 45, 46
sT0, sT1, sT2, sT3 = 47, 48, 49, 50
sBLK, sBt, sHd, sC, sSC, sBAD = 51, 52, 53, 54, 55, 56
sCW, sCX = 57, 58
sWO = 60
sF = 62
sM0 = 63
sPT = 64
sCO = 64
sCS = 74
sRT2 = 96
sST = 84
PART = 144384
MBOX = 143360 + 768
MB0 = 143360
sCLS = 71
class F:
    PO, OO, POS, MP, TV, BY, LN, Q2, D0, IDN, LO, PB = 237, 240, 245, 213, 214, 215, 216, 217, 218, 206, 205, 244
    sDB, sPR, sOU, sFL = sA, sB_, sX, 40
    IDX, FRC, CNT, GU, PEND, ST, SEEN, NEW, C, t0, t1, HO = 98, 99, 100, 101, 46, 38, 33, 81, 64, 6, 7, 36
STAMP_OFF = 48 << 20
FC_OFF = 0x2500000
sFC, sFM, sFN, sFT, sF1 = 40, 38, 39, 44, 6

def vmpass(lines, q):
    out = []; done = q[0]
    for l in lines:
        if l.startswith("@vmw"):
            p = l.split(None, 2)
            idx = max(k for k, t in enumerate(q) if k and t and p[1] in t)
            n = min(63, len(q) - 1 - idx)
            if idx <= done:
                if len(p) > 2: out.append("s_waitcnt " + p[2])
                continue
            done = q[0] = idx
            out.append(f"s_waitcnt vmcnt({n})" + (" " + p[2] if len(p) > 2 else ""))
            continue
        if l.startswith("@vml"):
            n = int(l.split()[1])
            if len(q) - 1 - n > done: done = q[0] = len(q) - 1 - n; out.append(f"s_waitcnt vmcnt({n})")
            if len(l.split()) > 2 and len(q) - 1 - int(l.split()[2]) > done:
                out += [f"s_bitcmp1_b32 s{sCLS}, {l.split()[3]}", f"s_cbranch_scc0 Lvl{len(q)}", f"s_waitcnt vmcnt({l.split()[2]})", f"Lvl{len(q)}:"]
            continue
        if l.startswith("buffer_"):
            q.append(l.split("@t:")[1].split() if "@t:" in l else None)
            l = l.split(";")[0].strip()
        out.append(l)
    return out
def tn(n): return "KV"[n % 2] + str(n // 2)

class Gen:
    def __init__(self):
        self.L = []; self.R = []; self.uid = 0; self.sec = {}; self.base = {OWNP: 0, PARP: 0}
    def e(self, s): self.L.append(s)
    def lab(self, p):
        self.uid += 1; return f"L{p}_{self.uid}"
    def stamp(self, k):
        if not P.STAMP: return []
        if k == "start": return [f"s_memrealtime s[{sST+4}:{sST+5}]", f"s_memtime s[{sST+6}:{sST+7}]"]
        o = ["s_waitcnt lgkmcnt(0)", f"s_memrealtime s[{sST}:{sST+1}]", f"s_memtime s[{sST+2}:{sST+3}]", "s_waitcnt lgkmcnt(0)"]
        if P.STAMP == 3 and k in (1, 2, 4, 5, 6, 7, 8, 49, 50): return []
        if P.STAMP in (2, 4) and k in (1, 2, 4, 5, 7, 8, 9, 11, 42, 43, 44, 46, 47, 49, 50, 58, 59): return []
        return o + [f"v_writelane_b32 v{STR}, s{sST}, {k}", f"v_writelane_b32 v{STC}, s{sST+2}, {k}"]

    def softmax(self, t, n, add=False):
        it = []; pend = []; o = 2 * int(t[1])
        for s in TL[t]:
            if add: it += [[f"v_add_f32 v{S(t,s)+k}, v{S(t,s)+k}, v{CI(s)}"] for k in range(4)]
            for k in range(4):
                it.append([f"v_exp_f32 v{S(t,s)+k}, v{S(t,s)+k}"])
                if pend: it.append(pend.pop(0))
                if k % 2 == 1: pend.append([f"v_cvt_pk_bf16_f32 v{PR(s)+o+k//2}, v{S(t,s)+k-1}, v{S(t,s)+k}"])
            if o: pend.append([f"ds_write_b128 v{PARP}, {vr(PR(s))} offset:@{PX(n,s)}"])
        return it + pend
    def pprd(self, n, s): return f"ds_read_b128 {vr(PP(s))}, v{OWNP} offset:@{PX(n,s)}"

    def krd(self, b, kt, i): return [f"ds_read_b128 {ar(FB(b))}, v{KA+(i>>2)} offset:{kt*2048 + (i&3)*256}"]
    def trd(self, b, reg, j, base=0):
        off = base + (j >> 1) * 256
        return [f"ds_read_b64_tr_b16 {ar(FB(b),2)}, v{reg+(j&1)} offset:{off}", f"ds_read_b64_tr_b16 {ar(FB(b)+2,2)}, v{reg+(j&1)} offset:{off+2048}"]
    def kfrags(self, sc, tag, rel, due, d0, n=16, use=None):
        for k in range(n):
            pre = [f"v_add_u32 v{KA+(k>>2)}, {d0}, v{KA+(k>>2)}"] if k in (0, 4) and d0 else []
            sc.add_frag((tag, k), k, self.krd(k, k >> 3, k & 7), pre, rel, due, use=None if use is None else use + 3 * k)
    def vord(self, nb): return [(h, j) for h in range(2) for j in range(nb)] + [(h, j) for j in range(nb, 8) for h in range(2)]
    def vfrags(self, sc, tag, rel, due, d0, n=16, use=None, ch=None):
        if P.PCH:
            for k, (h, j) in enumerate(self.vord((ch or P.PCH)[0])[:n]):
                r = VA + 2 * h
                pre = [f"v_add_u32 v{r+j}, {d0}, v{r+j}"] if j < 2 and d0 else []
                sc.add_frag((tag, k), k, self.trd(k, r, j), pre, rel, due, use=None if use is None else use + 3 * (k & ~1) + (k & 1))
            return
        for k in range(n):
            pre = []
            if k < 2 and d0: pre = [f"v_add_u32 v{VA+k}, {d0}, v{VA+k}"]
            if k in (8, 9): pre = [f"v_add_u32 v{VA+k-8}, s{sH}, v{VA+k-8}"]
            sc.add_frag((tag, k), k, self.trd(k, VA, k & 7), pre, rel, due, use=None if use is None else use + 3 * k)
    def qk_mfmas(self, sc, tag):
        end = {}
        for h in "ba":
            n = P.QCH if isinstance(P.QCH, int) else P.QCH[h == "a"]
            for k, s in [(k0 + c, s) for k0 in range(0, 16, n) for s in TL[h + "0"] for c in range(n)]:
                t = h + str(k >> 3); i = k & 7
                end[t] = sc.m(f"{MF} {vr(S(t,s))}, {ar(FB(k))}, {QR(s,i)}, {vr(CI(s)) if i == 0 else vr(S(t,s))}", [(tag, k)])
        return end
    def pv_mfmas(self, sc, tag, first=False, og=OR, ch=None):
        start = {}; fin = {}
        for h in "ba":
            start[h] = sc.n()
            for s in TL[h + "0"]: fin[("l", s)] = sc.m(f"{MF} {ar(LS(s))}, {ar(ONES)}, {vr(PR(s))}, {'0' if first else ar(LS(s))}")
            if P.PCH:
                ch = ch or P.PCH; vo = self.vord(ch[0]); nu = ch[h == "a"]; T = TL[h + "0"]
                for hh, j, s in [(hh, j, s) for hh in range(2) for j in range(nu) for s in T] + [(hh, j, s) for j in range(nu, 8) for s in T for hh in range(2)]:
                    o = og(s, j); k = vo.index((hh, j))
                    fin[(s, j)] = sc.m(f"{MF} {o}, {ar(FB(k))}, {vr(PP(s) if hh else PR(s))}, {'0' if first and not hh else o}", [(tag, k)])
                continue
            for k in range(16):
                if k == 8: start[h + "p"] = sc.n()
                for s in TL[h + "0"]:
                    o = og(s, k & 7)
                    fin[(s, k & 7)] = sc.m(f"{MF} {o}, {ar(FB(k))}, {vr(PR(s) if k < 8 else PP(s))}, {'0' if first and k < 8 else o}", [(tag, k)])
        return start, fin

    def place_dma(self, sc, it, pos):
        k = 0; pend = []; prev = max(-1, pos[0] - 2)
        for x in it:
            if x[0].startswith("buffer"):
                for j, y in enumerate(pend): sc.fix(max(prev, pos[k] - len(pend) + j), y)
                pend = []
                sc.fix(pos[k], x); prev = pos[k]; k += 1
            else: pend.append(x)
        for y in pend: sc.fix(pos[-1] + 1, y)
    def basepass(self, L):
        out = []
        for l in L:
            m = re.search(r"offset:@(\d+)", l)
            if m:
                a = int(m.group(1)); r = OWNP if f"v{OWNP}" in l else PARP
                if not 0 <= a - self.base[r] < 65536:
                    b = min(a & ~32767, 98304)
                    out.append(f"v_add_u32 v{r}, {u32(b - self.base[r])}, v{r}"); self.base[r] = b
                l = l.replace(m.group(0), f"offset:{a - self.base[r]}")
            out.append(l)
        return out
    def split_writes(self, L):
        def halves(l):
            m = re.match(r"ds_write_b128 (v\d+), ([va])\[(\d+):\d+\] offset:(@?)(\d+)$", l)
            a, k, r, at, o = m.group(1), m.group(2), int(m.group(3)), m.group(4), int(m.group(5))
            return [f"ds_write_b64 {a}, {k}[{r+2*h}:{r+2*h+1}] offset:{at}{o+8*h}" for h in range(2)]
        out = []; pend = []
        for l in L:
            if l.startswith("@waitt ds_write_b128"): l = "@waitt " + halves(l[7:])[1]
            if pend:
                stop = l.startswith("@waitw") or "lgkmcnt(0)" in l or l == "s_barrier" or l.startswith("s_cbranch") or l[7:] in pend
                if not stop and not l.startswith("@"):
                    w = Ins(l.split(";")[0]).wr
                    stop = any(w & Ins(x).rd for x in pend)
                if stop: out += pend; pend = []
            if l.startswith("ds_write_b128"):
                h = halves(l)
                if pend: pend += h
                else: out.append(h[0]); pend.append(h[1])
                continue
            out.append(l)
            if l.startswith("v_mfma") and pend: out.append(pend.pop(0))
        return out + pend
    def finish(self, L, name, pre=()):
        if P.WSP: L = self.split_writes(L)
        L = vmpass(L, self.vq)
        L, self.fifo, _ = autowait(L, self.fifo, look=False)
        L = self.basepass(L)
        L, added = fix_hazards(L, pre)
        if name[:2] in ("qk", "pv"):
            for pat in P.STRIP: L = [l for l in L if not l.startswith(pat)]
        if name == "tail":
            for pat in P.STRIPT: L = [l for l in L if not l.startswith(pat)]
        if name == "head":
            i0 = next(k for k, l in enumerate(L) if l.startswith("s_barrier"))
            for pat in P.STRIPH: L = L[:i0+1] + [l for l in L[i0+1:] if not l.startswith(pat)]
        self.sec[name] = (L, added)
        return L
    def cw2(self):
        lb = self.lab("cw"); sr = sX; vt = T0
        return [[f"s_getpc_b64 s[{sr}:{sr+1}]", f"{lb}:"], [f"s_mov_b32 s{sr+2}, L_code_end-{lb}"],
                [f"v_mbcnt_lo_u32_b32 v{vt}, -1, 0"], [f"v_mbcnt_hi_u32_b32 v{vt}, -1, v{vt}"], [f"v_lshlrev_b32 v{vt}, 14, v{vt}"],
                [f"s_lshr_b32 s{sT1}, s2, 3"], [f"s_lshl_b32 s{sT1}, s{sT1}, 9"],
                [f"s_lshl_b32 s{sT2}, s{sW}, 7"], [f"s_add_u32 s{sT1}, s{sT1}, s{sT2}"], [f"v_add_u32 v{vt}, s{sT1}, v{vt}"],
                [f"buffer_load_dword v{vt}, v{vt}, {srd(sX)}, 0 offen ; @t:cw"]]

    def wo_touch(self):
        vt = T0
        return [[f"s_mul_i32 s{sT1}, s{sHd}, 32"], [f"s_lshl_b32 s{sT2}, s{sBt}, 2"], [f"s_add_u32 s{sT1}, s{sT1}, s{sT2}"], [f"s_add_u32 s{sT1}, s{sT1}, s{sW}"],
                [f"s_mul_i32 s{sT1}, s{sT1}, 7168"], [f"s_add_u32 s{sWQ}, s{sWO}, s{sT1}", f"s_addc_u32 s{sWQ+1}, s{sWO+1}, 0"], [f"s_mov_b32 s{sWQ+2}, 7168"],
                ["@vmw cw", f"v_mbcnt_lo_u32_b32 v{vt}, -1, 0"], [f"v_mbcnt_hi_u32_b32 v{vt}, -1, v{vt}"], [f"v_lshlrev_b32 v{vt}, 7, v{vt}"],
                [f"buffer_load_dword v{vt}, v{vt}, {srd(sWQ)}, 0 offen ; @t:cw"]]

    HW, HX, WA, XA, TV = 192, 200, 205, 209, 215
    WS_ = [SLOT(3), SLOT(2), SLOT(0)]
    XM = [SLOT(4), SLOT(1), SLOT(1) + 16384]
    def w_items(self, c):
        it = []
        for g in range(2):
            it.append([f"s_add_u32 m0, s{sW8K}, {self.WS_[c % 3] + g*4096}"])
            for u in range(4):
                it.append([f"buffer_load_dwordx4 v{self.HW+4*g+u}, {srd(sWQ)}, s{sCW} offen offset:{u*1024}{' nt' if c in P.WNT0 else P.WNT} lds ; @t:c{c}"])
        it.append([f"s_add_u32 s{sCW}, s{sCW}, 0x80000", f"s_cmp_eq_u32 s{sCW}, 0x380000"]); it[-1].append(f"s_cselect_b32 s{sCW}, 0, s{sCW}")
        return it
    def x_items(self, c):
        it = [[f"s_add_u32 m0, s{sT2}, {self.XM[c % 3]}"]]
        for k in range(4): it.append([f"buffer_load_dwordx4 v{self.HX+k}, {srd(sX)}, s{sCX} offen offset:{k*1024}{' nt' if c in P.WNT0 else P.WNT} lds ; @t:c{c}"])
        it.append([f"s_add_u32 m0, s{sT3}, {SLOT(4) + 16384 + 4096*(c % 3)}"])
        it.append([f"buffer_load_dwordx4 v{self.HX+4}, {srd(sX)}, s{sCX} offen{' nt' if c in P.WNT0 else P.WNT} lds ; @t:c{c}"])
        it.append([f"s_add_u32 s{sCX}, s{sCX}, 128", f"s_cmp_eq_u32 s{sCX}, 896", f"s_cselect_b32 s{sCX}, 0, s{sCX}"])
        return it
    def ld(self, p, dst):
        n = p // 8; u = p & 3
        sr, so = (sA, sOA) if n % 2 == 0 else (sB_, sOB)
        if P.PCH and not u & 1: so = sPH + n % 2
        return f"buffer_load_dwordx4 {dst + ', ' if dst else ''}v{T1 if P.PCH else VO+(u&1)}, {srd(sr)}, s{so} offen offset:{u*1024}{P.KVNT}{'' if dst else ' lds'} ; @t:{tn(n)} p{p}"
    def kv_head_items(self, n, np_=8, k0=0):
        so = sOA if n % 2 == 0 else sOB
        reg = n in (0, 1, 6) + tuple(P.HST)
        it = []
        for k in range(k0, np_):
            if (k % 4 == 0 or k == k0) and P.PCH: it.append([f"s_mov_b32 s{sPH + n % 2}, {(n//2)*P.KVINC + (k&4)*1024 + 768}"])
            if k % 4 == 0 or k == k0: it.append([f"s_mov_b32 s{so}, {(n//2)*P.KVINC + (k&4)*1024}"] + ([] if reg else [f"s_add_u32 m0, s{sW8K}, {SLOT(n) + (k&4)*1024}"]))
            it.append([self.ld(8 * n + k, STR_(n, k) if reg else None)])
        return it
    def flush_items(self, n):
        return [["@vmw " + tn(n)]] + [[f"ds_write_b128 v{OWNP}, {STR_(n, k)} offset:@{SLOT(n) + k*1024}"] for k in range(8)]
    def uni_plan(self):
        N = lambda k: 80 if k % 2 == 0 else 85
        g0 = {2: 0, 1: -85}
        for k in range(3, 33): g0[k] = g0[k - 1] + N(k - 1)
        bar = lambda k: g0[k] + (P.BQ if k % 2 == 0 else P.BP if k > 1 else P.BPH)
        def rel(p):
            n, k = p // 8, p % 8
            if n % 2 == 0 and k >= 5: return g0[n - 3] + 14, self.pprd((n - 4) // 2, k - 5)
            if n % 2 == 1 and k >= 6: return bar(n - 4) + 12, self.pprd((n - 5) // 2, k - 3)
            return bar(n - 5) + 1, None
        seq = [46, 47] + list(range(56, 256))
        G = {p: -200 for p in range(48, 56)}
        pool = [(b, 48 + b) for b in range(8)]
        fl = {}; buf = {48 + b: b for b in range(8)}; prevo = {}
        prev = -1
        for q, p in enumerate(seq):
            g = max(int(P.UG[0] + (P.UG[1] - P.UG[0]) * (q / (len(seq) - 1)) ** P.UP), prev + 1)
            if q < 2: g = min(g, 2 + 11 * q)
            if g < rel(p)[0]:
                b, o = pool[0]
                f = max(rel(o)[0], G[o] + P.UL, 0)
                if f + 3 >= rel(p)[0]: g = rel(p)[0]
                else:
                    g = max(g, f + 3); fl[o] = max(f, min(g - P.UF, bar(o // 8 - 1) - 12))
                    pool = pool[1:] + [(b, p)]; buf[p] = b; prevo[p] = o
            G[p] = prev = g
            assert g < bar(p // 8 - 1) - 40, p
        pf = 0
        for b, o in pool: pf = fl[o] = max(rel(o)[0], min(G[o] + 180, bar(o // 8 - 1) - 30), pf + 3)
        ev = []; wr = {}
        for o in sorted(fl):
            assert fl[o] < bar(o // 8 - 1) - 2, o
            wr[o] = f"ds_write_b128 v{OWNP}, {STG(buf[o])} offset:@{SLOT(o // 8) + (o % 8)*1024}"
            ev.append((fl[o], 1, [f"@vmw p{o}"] + (["@waitt " + rel(o)[1]] if rel(o)[1] else []) + [wr[o]]))
        m0 = None; sv = {}
        for p in seq:
            n = p // 8; g = (p >> 2) & 1; so = sOA if n % 2 == 0 else sOB
            pre = []
            if P.PCH and not p & 1: so = sPH + n % 2
            if sv.get(so) != (n, g): sv[so] = (n, g); pre.append(f"s_mov_b32 s{so}, {(n//2)*P.KVINC + g*4096 + (768 if so < sOA else 0)}")
            if p in buf: pre.append("@waitt " + wr[prevo[p]])
            else:
                if rel(p)[1]: pre.append("@waitt " + rel(p)[1])
                if m0 != SLOT(n) + g * 4096: m0 = SLOT(n) + g * 4096; pre.append(f"s_add_u32 m0, s{sW8K}, {m0}")
            for x in pre: ev.append((G[p] - 1, 3, [x]))
            ev.append((G[p], 2, self.vml(p) + [self.ld(p, STG(buf[p]) if p in buf else None)]))
        assert max(x[0] for x in ev) < g0[30] - 1
        if P.WG:
            assert max(fl.values()) < g0[P.WG[2]] - 20
            g = max(P.WG[0], prev + 2)
            for j in range(2):
                k = 0; pre = []
                for x in self.wo_items(j, 2 + j):
                    if not x[0].startswith("buffer"): pre += x; continue
                    r, w = rel(8 * (32 + j) + k)
                    g = max(g, r)
                    for y in ([f"@waitt {w}"] if w else []) + pre: ev.append((g - 1, 3, [y]))
                    ev.append((g, 2, ([f"@vml {P.WG[3] - 1}"] if P.WG[3] else []) + x))
                    pre = []; k += 1; g += P.WG[1]
        ev.sort(key=lambda x: (x[0], x[1]))
        self.nstaged = len(buf)
        out = {k: [] for k in range(2, 31)}
        for g, _, it in ev:
            k = max(k for k in range(2, 31) if g0[k] - 1 <= g)
            out[k].append((g - g0[k], it))
        return out
    def vml(self, p):
        if P.VL:
            pm, wk, st, bit = next(x for x in P.VL[1:] if p < x[0])
            return [f"@vml {wk-1} {st-1} {bit}" if st < wk else f"@vml {wk-1}"]
        return [f"@vml {(P.VN(p) if callable(P.VN) else P.VN) - 1}"] if P.VN else []
    def kd(self, n): return u32(SLOT(n) - SLOT(n - 2))
    def vd(self, n): return self.kd(n) if P.PCH else f"s{sPH}" if SLOT(n) > SLOT(n - 2) else f"s{sNH}"
    def qk_part(self, sc, k):
        self.kfrags(sc, "k", None, "B", None); sc.init = [("k", j) for j in range(P.NPK)]
        end = self.qk_mfmas(sc, "k")
        a = self.softmax("b0", k // 2); b = self.softmax("b1", k // 2)
        sc.chain(end["b0"] + 2, P.BQ - 2, a + b, rels=[0] * len(a) + [end["b1"] + 2] * len(b))
        if P.PCH:
            for s in range(3): sc.fix(P.BQ + 3 + 2 * s, [self.pprd(k // 2, s)])
        return end
    def pv_soft(self, sc, k, n0=0, bp=None):
        a = self.softmax("a0", k // 2); b = self.softmax("a1", k // 2); bp = bp or P.BP
        sc.chain(n0 - 1, n0 + min(bp, 51) - 3, a + b, rels=[-1] * len(a) + [n0 + 1] * len(b))
        if not P.PCH:
            for s in range(3): sc.fix(n0 + 2 + 2 * s, [self.pprd(k // 2, s)])
        for s in (3, 4): sc.fix(n0 + bp + s - 2, [self.pprd(k // 2, s)])
    def static_body(self, k, ops):
        sc = Sch(**P.SL); qk = k % 2 == 0
        if qk:
            self.qk_part(sc, k); n = sc.n()
            self.vfrags(sc, "v", "B", None, self.vd(k + 1), n=P.NPV, use=n + 3)
        else:
            self.vfrags(sc, "v", None, "B", None); sc.init = [("v", j) for j in range(P.NPV)]
            self.pv_mfmas(sc, "v"); n = sc.n()
            self.kfrags(sc, "k", "B", None, self.kd(k + 1), n=P.NPK, use=n)
            self.pv_soft(sc, k)
        sc.bar("B", P.BQ if qk else P.BP, ["@vmw " + tn(k + 1) + " lgkmcnt(0)", "s_barrier"] + (self.stamp(11 + k) if P.STAMP == 1 or (P.STAMP == 4 and k % 4 == 1) else []))
        for g, it in ops: sc.fix(g, it)
        if k in P.UT: sc.chain(0, 20, self.cw2())
        if P.WG and k == P.WG[2]: sc.chain(2, 44, self.wo_setup())
        if k in P.WT: sc.chain(0, 20, self.wo_touch())
        if P.F2 and k == P.ZK[0]: sc.chain(0, 24, self.f2_zero())
        if P.F2 and k == P.ZK[1]: sc.chain(0, 20, self.f2_started())
        if k in P.FC: sc.chain(P.FCG, 22, self.fc_items(k))
        return self.finish(sc.run(), f"{'qk' if qk else 'pv'}{k}", self.L[-30:])
    def fc_items(self, k):
        i = P.FC.index(k) + 1
        it = []
        if i - 1 - P.FCL >= 1:
            a, r = self.lab("fs"), self.lab("fq")
            it += [[f"@vmw fc{i-1}"], [f"v_cmp_gt_u32 s[4:5], {i-1-P.FCL}, v{FCV}"], [f"s_and_b32 s4, s4, s{sFM}", f"s_cbranch_scc1 {a}", f"{r}:"]]
            self.R += [f"{a}:", f"s_movk_i32 s{sFT}, {i-P.FCL}", f"s_call_b64 s[{sRT2}:{sRT2+1}], L_fcspin", f"s_branch {r}"]
        elif i > 1: it += [[f"@vmw fc{i-1}"]]
        if i <= len(P.FC) - 1:
            it += [[f"v_cndmask_b32 v{FCV}, 0, 1, s[{sF1}:{sF1+1}]"], [f"buffer_atomic_add v{FCV}, v{VO+1}, {srd(sFC)}, 0 offen sc0 ; @t:fc{i}"]]
        return it
    def fc_spin(self):
        return ["L_fcspin:", f"buffer_load_dword v{FCV}, v{VO+1}, {srd(sFC)}, 0 offen sc1", "s_waitcnt vmcnt(0)",
                f"v_cmp_gt_u32 s[4:5], s{sFT}, v{FCV}", f"s_and_b32 s4, s4, s{sFM}", "s_cbranch_scc0 L_fcret",
                f"s_sub_u32 s{sFN}, s{sFN}, 1", "s_cbranch_scc0 L_fcspin", f"s_mov_b32 s{sFM}, 0", "L_fcret:", f"s_setpc_b64 s[{sRT2}:{sRT2+1}]"]

    def head_sched(self):
        sc = Sch(**P.SH)
        XF = lambda c, ks, s: 64 + 40 * (1 - c % 2) + 20 * ks + 4 * s
        fk = 0; done = {}
        for c in range(7):
            rel = f"p{c}" if c else None; due = f"p{c+1}"
            wreg, wb = [(self.WA + 2, 32768), (self.WA + 2, 0), (self.WA, 0)][c % 3]
            for ks in range(2):
                for s in range(5):
                    if s == 4: a = f"v{self.XA+4+ks} offset:{4096*(c%3)}"
                    elif c % 3 == 0: a = f"v{self.XA+2+ks} offset:{2048*s}"
                    else: a = f"v{self.XA+ks} offset:{self.XM[c%3] - SLOT(1) + 2048*s}"
                    sc.add_frag(("x", c, ks, s), ("x", c % 2, ks, s), [f"ds_read_b128 {ar(XF(c,ks,s))}, {a}"], rel=rel, due=due, q="x")
            seq = [(ks, j) for ks in range(2) for j in range(P.HCH)] if c < 6 else [(ks, j) for j in range(P.HCH) for ks in range(2)]
            seq += [(ks, j) for j in range(P.HCH, 8) for ks in range(2)]
            bu = {}
            for (ks, j) in seq:
                f = ("w", c, ks, j); b = bu[ks] = (fk + 4) % 12
                sc.add_frag(f, b, self.trd(b, wreg, j, wb + ks * 4096), rel=rel, due=due)
                fk += 1
                if j >= P.HCH and ks == 0: continue
                for s in range(5):
                    o = vr(QA(s, j))
                    for k2 in ((ks,) if j < P.HCH else (0, 1)):
                        done[j] = sc.m(f"{MF} {o}, {ar(FB(bu[k2]))}, {ar(XF(c,k2,s))}, {'0' if c == 0 and k2 == 0 else o}", [("w", c, k2, j), ("x", c, k2, s)])
            lines = [f"@vmw c{c+1} lgkmcnt(0)" if c < 6 else "s_waitcnt lgkmcnt(0)", "s_barrier"] + self.stamp(4 + c)
            sc.bar(due, sc.n() - 1 - P.BB, lines)
        nq = sc.n(); p6 = nq - 80 - 1 - P.BB; p7 = nq - 1 - P.BB
        XQ = lambda x: SLOT(1) + x * 1024 if x < 8 else SLOT(3) + (x - 8) * 1024 if x < 16 else SLOT(4) + (x - 16) * 1024
        qrd = lambda x: f"ds_read_b128 {QR(x % 5, 4 + x // 5)}, v{OWNP} offset:@{XQ(x)}"
        for x in range(20): sc.add_frag(("qx", x), ("qx", x), [qrd(x)], rel="p7" if x < 8 else "BX", q="qx", by=nq + 14 if x < 8 else nq + P.BXG + 16)
        order = [(kt, i) for i in (0, 1, 4, 2, 3) for kt in range(2)] + [(kt, i) for kt in range(2) for i in (5, 6, 7)]
        bufs = [8, 9, 10, 11, 0, 1, 2, 3, 4, 5, 6, 12, 13, 7, 14, 15]
        use = {}; end = {}
        for (kt, i), b in zip(order, bufs):
            sc.add_frag(("k0", kt, i), b, self.krd(b, kt, i), rel="BX" if b >= 12 else "p7", due="B0")
            for s in range(5):
                t = HF(s) + str(kt)
                g = sc.m(f"{MF} {vr(S(t,s))}, {ar(FB(b))}, {QR(s,i)}, {'0' if i == 0 else vr(S(t,s))}", [("k0", kt, i)] + ([("qx", 5 * (i - 4) + s)] if i >= 4 else []))
                use.setdefault((s, i), g); end[(kt, s)] = g
        n0 = sc.n(); b0 = end[(0, 4)] + 9
        sc.bar("B0", b0, ["s_waitcnt lgkmcnt(0)", "s_barrier"] + self.stamp(11))
        self.vfrags(sc, "v0", "B0", "B1", None, ch=(8, 8))
        start, _ = self.pv_mfmas(sc, "v0", True, ch=(8, 8))
        n1 = sc.n(); b1 = n0 + P.BPH; bp = n0 + 8
        sc.bar("BP", bp, ["@waitw", "s_barrier"] + self.stamp(59), clears=False)
        sc.bar("B1", b1, ["@vmw K1 lgkmcnt(0)", "s_barrier"] + self.stamp(12))
        self.kfrags(sc, "k1", "B1", None, self.kd(2), n=P.NPK, use=n1)
        bx = nq + P.BXG
        wl = []; wrl = []
        for i in range(4):
            it = []; sw = []
            for s in range(5):
                r = QA(s, 2 * i)
                it += [[f"v_mul_f32 v{r+k}, s{sSC}, v{r+k}"] for k in range(8)] + sw
                it += [[f"v_cvt_pk_bf16_f32 v{r+k}, v{r+2*k}, v{r+2*k+1}"] for k in range(4)]
                sw = [[f"v_permlane16_swap_b32 v{r+k}, v{r+2+k}"] for k in range(2)]
                x = 5 * i + s
                w = [f"ds_write_b128 v{PARP}, {vr(r)} offset:@{XQ(x)}"]
                if x < 8 or i == 3: sw.append(w)
                else: wl.append(w)
            it += sw
            g1 = max(use[(0, i)] - 2, done[2 * i + 1] + 2)
            if i < 2: g1 = min(g1, p7 - 2 if i else p7 - 20)
            g1 = min(g1, bx - 2)
            sc.chain(done[2 * i + 1] + 2, g1, it, hard=2.5)
            wrl += [g1 + 1] * (len(wl) - len(wrl))
        sc.chain(p7 + 1, bx - 2, wl, rels=wrl, after="p7")
        sc.bar("BX", bx, ["@waitw", "s_barrier"] + self.stamp(58), clears=False)
        sc.chain(p6 + 2, p6 + 30, self.flush_items(0))
        sc.chain(use[(0, 4)], bx - 1, [["@waitt " + qrd(7)]] + self.flush_items(1))
        mx = []; rl = []
        for s in range(5):
            r = S(HF(s) + "0", s); c = CI(s)
            mx += [[f"v_min3_f32 v{c}, -v{r}, -v{r+1}, -v{r+2}"], [f"v_min_f32 v{c}, -v{r+3}, v{c}"]]; rl += [end[(0, s)] + 2] * 2
        mx += [[f"s_cmp_lg_u32 s{sMODE}, 0", "s_cbranch_scc1 L_tmax", "L_tmax_ret:"]]
        mx += [[f"ds_min_f32 v{T0}, v{CI(s)} offset:{64*s}"] for s in range(5)]
        sc.chain(rl[0], b0 - 1, mx, rels=rl + [0] * 6, hard=3)
        rd = [[f"ds_read2_b32 {vr(CI(s)+k,2)}, v{T0} offset0:{16*s} offset1:{16*s}"] for k in (0, 2) for s in range(5)]
        c0 = self.softmax("b0", 0, True); c1 = self.softmax("b1", 0, True)
        wr = [x for x in c1 if x[0].startswith("ds_")]; c1 = [x for x in c1 if x not in wr]
        sc.chain(b0, n0 - 1, rd + c0 + c1, rels=[0] * (len(rd) + len(c0)) + [end[(1, 2)] + 2] * len(c1), after="B0", hard=4)
        sc.chain(n0, bp - 1, wr)
        sc.chain(n0 + 1, b1 - 5, self.softmax("a0", 0, True) + self.softmax("a1", 0, True))
        for s in range(3): sc.fix(bp + 1 + s, [self.pprd(0, s)])
        for s in (3, 4): sc.fix(b1 + s - 2, [self.pprd(0, s)])
        if 3 in P.HST: sc.chain(end[(0, 0)], b0 - 1, [["@waitt " + qrd(15)]] + self.flush_items(3))
        if 4 in P.HST: sc.chain(bp + 10, start["a"] - 4, [["@waitt " + self.pprd(0, 2)]] + self.flush_items(4))
        free = {"c3": "p1", "c4": "p2", "c5": "p3", "c6": "p4", "K1": "p5", "V2": "B0"}
        bgap = {v[0]: g for g, v in sc.bars.items()}
        bgap["V1"] = end[(0, 0)]; bgap["K2"] = bp + 10
        if 3 not in P.HST: free["V1"] = "V1"
        if 4 not in P.HST: free["K2"] = "K2"
        lastg = -10; used = []
        HQ = P.HQ if not P.VSP else [x for x in P.HQ if x[0][0] == "c"] + [x for x in P.HQ if x[0][0] != "c"]
        for (nm, g0, st, *rg) in HQ:
            if P.VSP and nm == HQ[5][0]: lastc = lastg; lastg = -10
            if P.VSP and nm in free and nm[0] != "c": g0 = max(g0, lastc + 3)
            if nm[0] == "c": it = self.w_items(int(nm[1])) + self.x_items(int(nm[1]))
            elif rg: it = self.kv_head_items(2 * int(nm[1]) + (nm[0] == "V"), rg[1], rg[0])
            else: it = self.kv_head_items(2 * int(nm[1]) + (nm[0] == "V"), 6 if nm == "V2" else 8)
            if nm == "V1" and nm in free: it = [["@waitt " + qrd(15)]] + it
            if nm == "K2" and nm in free: it = [["@waitt " + self.pprd(0, 2)]] + it
            if nm in free: g0 = max(g0, bgap[free[nm]] + 2)
            g0 = max(g0, lastg + 3)
            nb = sum(1 for x in it if x[0].startswith("buffer"))
            pos = [int(g0 + k * st) for k in range(nb)]
            for k in range(nb):
                if k: pos[k] = max(pos[k], pos[k - 1] + 1)
                while any(abs(pos[k] - u) < P.VSP for u in used): pos[k] += 1
            used += pos
            self.place_dma(sc, it, pos); lastg = pos[-1]
            if nm[0] == "c": assert lastg < bgap[f"p{nm[1]}"], nm
        assert lastg < n1 - 2
        if P.WP > 1: sc.fix(P.WP, [f"buffer_load_dword v{T1}, v{T1}, {srd(sFC)}, 0 offen{P.TNT}"])
        for (n, g) in P.TCH:
            assert g < b0
            sc.fix(g, [f"s_mov_b32 s{sT1}, {(n//2)*P.KVINC}", f"buffer_load_dword v{T1}, v{self.TV}, {srd(sA if n % 2 == 0 else sB_)}, s{sT1} offen offset:768{P.TNT}"])
        L = sc.run()
        ix = lambda t: L.index(t)
        bars = [k for k, l in enumerate(L) if l == "s_barrier"]
        for x in range(20):
            k = ix(f"ds_write_b128 v{PARP}, {vr(QA(x % 5, 2 * (x // 5)))} offset:@{XQ(x)}")
            assert (bars[5] < k < bars[6]) if x < 8 else (bars[6] < k < bars[7]), x
        assert ix(qrd(7)) < ix("@waitt " + qrd(7)) and ix(qrd(15)) < ix("@waitt " + qrd(15)) and ix(self.pprd(0, 2)) < ix("@waitt " + self.pprd(0, 2))
        return L
    def tmax(self):
        F = lambda i: OV(i); A = lambda s: OV(8 + s); AD = OV(13); X = OV(13) + 1
        R = ["L_tmax:", f"v_mbcnt_lo_u32_b32 v{X}, -1, 0", f"v_mbcnt_hi_u32_b32 v{X}, -1, v{X}",
             f"v_lshrrev_b32 v{AD}, 4, v{X}", f"v_lshlrev_b32 v{AD}, 1, v{AD}", f"s_movk_i32 s{sD}, 0xd8", f"v_bfe_u32 v{AD}, s{sD}, v{AD}, 2",
             f"v_lshlrev_b32 v{AD}, 4, v{AD}", f"v_and_b32 v{X}, 15, v{X}", f"v_lshl_add_u32 v{AD}, v{X}, 9, v{AD}",
             f"s_and_b32 s{sD}, s{sW}, 1", f"s_mul_i32 s{sD}, s{sD}, {262144 + 256}", f"v_add_u32 v{AD}, s{sD}, v{AD}", f"v_xor_b32 v{X}, 256, v{AD}",
             f"s_movk_i32 s{sD}, 768", "L_tmax_l:"]
        R += [f"buffer_load_dwordx4 {vr(F(i))}, v{AD if i < 4 else X}, {srd(sA)}, s{sD} offen offset:{64*(i&3)}" for i in range(8)]
        R += ["s_waitcnt vmcnt(0) lgkmcnt(0)"]
        for i in range(8):
            for s in range(5): R.append(f"{MF} {vr(A(s))}, {vr(F(i))}, {QR(s,i)}, {'0' if i == 0 else vr(A(s))}")
        R += ["s_nop 7", "s_nop 1"]
        for s in range(5): R += [f"v_min3_f32 v{CI(s)}, v{CI(s)}, -v{A(s)}, -v{A(s)+1}", f"v_min3_f32 v{CI(s)}, v{CI(s)}, -v{A(s)+2}, -v{A(s)+3}"]
        R += [f"s_add_u32 s{sD}, s{sD}, 8192", f"s_cmp_lt_u32 s{sD}, 262144", "s_cbranch_scc1 L_tmax_l", "s_branch L_tmax_ret"]
        return R

    WV = 220
    def wo_items(self, j, slot):
        it = []
        for g in range(2):
            it.append([f"s_add_u32 m0, s{sW8K}, {SLOT(slot) + g*4096}"] + ([f"s_add_u32 s{sT0}, s{sCO+j}, 28672"] if g else []))
            for u in range(4):
                it.append([f"buffer_load_dwordx4 v{self.WV+u}, {srd(sWQ)}, s{sT0 if g else sCO+j} offen offset:{u*1024}{' nt' if j in P.WONT else ''} lds ; @t:o{j}"])
        return it
    def wo_setup(self):
        WV = self.WV; L_ = WV + 3
        sw = [f"s_mul_i32 s{sT0}, s{sHd}, 229376", f"s_add_u32 s{sWQ}, s{sWO}, s{sT0}", f"s_addc_u32 s{sWQ+1}, s{sWO+1}, 0", f"s_mov_b32 s{sWQ+2}, 229376",
              f"v_mbcnt_lo_u32_b32 v{L_}, -1, 0", f"v_mbcnt_hi_u32_b32 v{L_}, -1, v{L_}",
              f"v_bfe_u32 v{WV}, v{L_}, 2, 3", f"v_mul_u32_u24 v{WV}, 896, v{WV}", f"v_lshrrev_b32 v{WV+1}, 5, v{L_}",
              f"v_lshl_add_u32 v{WV}, v{WV+1}, 6, v{WV}", f"v_lshrrev_b32 v{WV+1}, 3, v{L_}", f"v_and_b32 v{WV+1}, 2, v{WV+1}",
              f"v_and_b32 v{WV+2}, 3, v{L_}", f"v_xor_b32 v{WV+1}, v{WV+1}, v{WV+2}", f"v_lshl_add_u32 v{WV}, v{WV+1}, 4, v{WV}",
              f"s_mul_i32 s{sT0}, s{sW}, 57344", f"v_add_u32 v{WV}, s{sT0}, v{WV}"]
        sw += [f"v_add_u32 v{WV+u}, {6144*u}, v{WV}" for u in range(1, 4)]
        sw = [[x] for x in sw]
        sw[1:3] = [sw[1] + sw[2]]
        for j in range(7):
            nf = max(P.ROTW - 1, 0)
            if j == 0 and P.ROTW < 2: sw.append([f"s_lshl_b32 s{sCO}, s{sC}, 7" if P.ROTW else f"s_mov_b32 s{sCO}, 0"])
            elif j < nf: sw.append([f"s_movk_i32 s{sCO+j}, {128*j}"])
            elif j == nf: sw += [[f"s_cmp_ge_u32 s{sBt}, {7-nf}", f"s_cselect_b32 s{sT0}, {2*nf-7}, {nf}"], [f"s_add_u32 s{sCO+j}, s{sBt}, s{sT0}"], [f"s_lshl_b32 s{sCO+j}, s{sCO+j}, 7"]]
            else: sw.append([f"s_add_u32 s{sCO+j}, s{sCO+j-1}, 128", f"s_cmp_eq_u32 s{sCO+j}, 896", f"s_cselect_b32 s{sCO+j}, {128*nf}, s{sCO+j}"])
            sw.append([f"s_mul_i32 s{sCS+j}, s{sCO+j}, 160"])
        return sw
    def tail_sched(self):
        sc = Sch(**P.ST)
        WAr = lambda st, par: 224 + 2 * st + par
        SO = 230
        RL = lambda s: CI(0) + s
        LP = CI(2)
        end = self.qk_part(sc, 30)
        n0 = sc.n()
        wo_items = self.wo_items
        L_ = 233; O4 = 234
        sw = [] if P.WG else self.wo_setup()
        sw += [[f"v_mbcnt_lo_u32_b32 v{L_}, -1, 0"], [f"v_mbcnt_hi_u32_b32 v{L_}, -1, v{L_}"]]
        G_, R_ = WAr(0, 0), WAr(0, 1)
        su = [f"v_lshrrev_b32 v{G_}, 5, v{L_}", f"v_bfe_u32 v{R_}, v{L_}, 2, 3", f"v_lshlrev_b32 v{R_}, 6, v{R_}",
              f"v_lshl_add_u32 v{G_}, v{G_}, 10, v{R_}", f"v_and_b32 v{R_}, 3, v{L_}", f"v_lshl_add_u32 v{G_}, v{R_}, 3, v{G_}",
              f"v_and_b32 v{R_}, 16, v{L_}", f"v_lshl_add_u32 v{G_}, v{R_}, 1, v{G_}",
              f"s_and_b32 s{sT1}, s{sW}, 1", f"s_mul_i32 s{sT2}, s{sT1}, {16384+32}", f"v_xor_b32 v{G_}, s{sT2}, v{G_}", f"v_xor_b32 v{R_}, 0x4000, v{G_}"]
        su += [f"v_add_u32 v{WAr(st,k)}, {0x10000*st}, v{WAr(0,k)}" for st in (1, 2) for k in range(2)]
        su += [f"v_lshlrev_b32 v{L_}, 4, v{L_}", f"s_lshl_b32 s{sT1}, s{sT1}, 10", f"s_lshr_b32 s{sT2}, s{sW}, 1", f"s_lshl_b32 s{sT2}, s{sT2}, 13",
               f"s_add_u32 s{sT2}, s{sT2}, s{sT1}", f"v_add_u32 v{SO}, s{sT2}, v{L_}", f"v_add_u32 v{SO+1}, 4096, v{SO}",
               f"s_lshl_b32 s{sT2}, s{sW}, 10", f"s_add_u32 s{sT2}, s{sT2}, 16384", f"v_add_u32 v{SO+2}, s{sT2}, v{L_}",
               f"s_add_u32 s{sT2}, s{sW8K}, {SLOT(4)}", f"v_add_u32 v{O4}, s{sT2}, v{L_}", f"v_xor_b32 v{O4+1}, 0x2000, v{O4}", f"v_xor_b32 v{O4+2}, 0x4000, v{O4}"]
        sc.chain(0, 44, sw + [[x] for x in su])
        if P.WG:
            for g, it in self.plan[30]: sc.fix(g, it)
        else: self.place_dma(sc, wo_items(0, 2), P.WO0)
        sc.bar("B", P.BQ, ["@vmw V15 lgkmcnt(0)", "s_barrier"] + self.stamp(41))
        self.vfrags(sc, "v", "B", "B31", self.vd(31), ch=P.PCT)
        start, fin = self.pv_mfmas(sc, "v", og=lambda s, j: vr(OT(s, j)), ch=P.PCT)
        n1 = sc.n(); b1 = n0 + (P.BPT or P.BP)
        self.pv_soft(sc, 31, n0, P.BPT)
        if not P.WG: self.place_dma(sc, wo_items(1, 3), [n0 + 4 + 5 * k for k in range(8)])
        mv = lambda t: [[f"v_accvgpr_read_b32 v{8*(t-20)+k}, a{144+4*(t-20)+k}"] for k in range(4)]
        sc.chain(end["b1"] + 2, n0 + 8, [x for t in range(20, 24) for x in mv(t)])
        sc.chain(end["b1"] + 2, start["a"] - 2, [x for t in range(24, 40) for x in mv(t)], rels=[0] * 32 + [n0 + 1] * 32)
        sc.bar("B31", b1, ["s_waitcnt lgkmcnt(0)", "s_barrier"] + self.stamp(42))
        def XO(s, i, r):
            if s < 2: return f"v{O4 + r - OWNP}", f"offset:{(4 * s + i) * 1024}"
            return f"v{r}", f"offset:@{SLOT(0) + i * 1024 if s == 2 else SLOT(1) + (4 * (s - 3) + i) * 1024}"
        XL = SLOT(0) + 4096
        ord_ = lambda s, i: f"ds_read_b128 {QR(s, 4+i)}, {' '.join(XO(s, i, OWNP))}"
        g0 = sc.n(); ba = g0 + P.BAG; bb = g0 + P.BBG
        for h, bn, by in (("b", "Ba", ba + 10), ("a", "Bb", bb + 8)):
            for i in range(4):
                for s in TL[h + "0"]: sc.add_frag(("ox", s, i), ("ox", s, i), [ord_(s, i)], rel=bn, q="ox", by=by)
        pool = [S("b0", 0) + 4 * k for k in range(10)] + [OT(s, 2 * i + 1) for s in range(5) for i in range(4)]
        ui = [0]; fk = [0]; buse = {}
        def nacc():
            r = pool[ui[0] % len(pool)]; ui[0] += 1; return r
        SLW = [2, 3, 4, 0, 1, 2, 3]
        def wfrag(j, hi, i, rel, due):
            f = ("o", fk[0]); k = fk[0] % 16; fk[0] += 1; sl = SLW[j]
            off = (sl & 1) * 32768 + (i & 3) * 4096 + hi * 512
            sc.add_frag(f, k, [f"ds_read_b64_tr_b16 {ar(FB(k)+2*rd,2)}, v{WAr(sl>>1,i>>2)} offset:{off+2048*rd}" for rd in range(2)], rel=rel, due=due)
            return f, k
        def mm(fk_, acc, s, hi, i):
            o = vr(acc[s][hi])
            g = sc.m(f"{MF} {o}, {ar(FB(fk_[1]))}, {vr(OT(s,2*i)) if i < 4 else QR(s,i)}, {'0' if i == 0 else o}", [fk_[0]] + ([("ox", s, i - 4)] if i >= 4 else []))
            buse.setdefault((s, i), g); return g
        sts = []
        def epi(j, acc, s, his):
            it = []
            for hi in his:
                r = acc[s][hi]; d = acc[s][0] + 2 * hi
                it += [[f"v_mul_f32 v{r+k}, v{r+k}, v{RL(s)}"] for k in range(4)] + [[f"v_cvt_pk_bf16_f32 v{d+k}, v{r+2*k}, v{r+2*k+1}"] for k in range(2)]
            return it, [f"buffer_store_dwordx4 {vr(acc[s][0])}, v{SO+(s>>1)}, {srd(sWS)}, s{sCS+j} offen offset:{2048*(s&1)}{P.STMOD} ; @t:s{j}"] if 1 in his else None
        def epis(g, j, acc, subs, his):
            for s in subs:
                it, st = epi(j, acc, s, his); w = P.EPW * len(his)
                sc.chain(g, g + w + 1, it); g += w
                if st: sts.append((g + 2, st))
        acc = {s: (nacc(), nacc()) for s in range(5)}
        fr = {(hi, i): wfrag(0, hi, i, "Bo", "Bc") for par in range(2) for i in range(4 * par, 4 * par + 4) for hi in range(2)}
        ge = {}
        for par in range(2):
            for h in "ba":
                for i in range(4 * par, 4 * par + 4):
                    for hi in range(2):
                        for s in TL[h + "0"]: ge[h] = mm(fr[(hi, i)], acc, s, hi, i)
        sc.bar("Bo", n1 - 1 - P.BB, ["@vmw o0", "s_barrier"], clears=False)
        sc.bar("Ba", ba, ["@waitw", "s_barrier"] + self.stamp(43), clears=False)
        sc.bar("Bb", bb, ["@waitw", "@vmw o1", "s_barrier"] + self.stamp(44), clears=False)
        epis(ge["b"] + 2, 0, acc, range(5), (0, 1))
        relw = {1: "Bb", 2: "Bc", 3: "Bc", 4: "Bd", 5: "Be", 6: "Bf" if P.BF else "Be"}
        gj = {}
        for j in range(1, 7):
            acc = {s: (nacc(), nacc()) for s in range(5)}
            if j == 6 and P.SMAJ:
                fr = {(hi, i): wfrag(j, hi, i, relw[j], None) for hi in range(2) for i in range(8)}
                for subs in P.SMAJ:
                    for hi in range(2):
                        for i in range(8):
                            for s in subs: g = mm(fr[(hi, i)], acc, s, hi, i)
                        if 4 not in subs or not hi: epis(g + 2, j, acc, subs, (hi,))
                pend = subs
            else:
                for hi in range(2):
                    for i0 in range(0, 8, P.TCN):
                        f = {i: wfrag(j, hi, i, relw[j], "Bc" if j == 1 else None) for i in range(i0, i0 + P.TCN)}
                        for s in range(5):
                            for i in f: g = mm(f[i], acc, s, hi, i)
                    if j < 6 or not hi: epis(g + 2 + (12 if j == 1 and not hi else 0), j, acc, range(5), (hi,))
                pend = range(5)
            gj[j] = g
        pend = [epi(6, acc, s, (1,)) for s in pend]
        pend = [x for it, st in pend for x in it + [st]]
        if P.BF: sc.bar("Bf", gj[P.BF[0]] - P.BF[1], ["@vmw o6", "s_barrier"], clears=False)
        sc.bar("Bc", gj[1] - P.BB, ["@vmw o3 lgkmcnt(0)", "s_barrier"] + self.stamp(45))
        sc.bar("Bd", gj[3] - P.BB, ["@vmw o4", "s_barrier"] + self.stamp(46), clears=False)
        sc.bar("Be", gj[4] - P.BB, ["@waitw", "@vmw o5" if P.BF else "@vmw o6", "s_barrier"] + self.stamp(47), clears=False)
        for h, bg in (("b", ba), ("a", bb)):
            wl = []; wr = []
            for i in range(4):
                it = []
                for s in TL[h + "0"]:
                    r, r2 = OT(s, 2 * i), OT(s, 2 * i + 1)
                    it += [[f"v_cvt_pk_bf16_f32 v{r+k}, v{[r,r2][k>>1]+2*(k&1)}, v{[r,r2][k>>1]+2*(k&1)+1}"] for k in range(4)]
                    wl.append([f"ds_write_b128 {XO(s, i, PARP)[0]}, {vr(r)} {XO(s, i, PARP)[1]}"])
                r0 = fin[(TL[h + "0"][-1], 2 * i + 1)] + 2
                g1 = max(r0, min(buse[(TL[h + "0"][0], i)] - 2, r0 + 30))
                sc.chain(r0, g1, it, hard=2.5)
                wr += [g1 + 1] * (len(wl) - len(wr))
            if h == "b":
                wl = [[f"ds_write_b32 v{PARP}, a{LS(s)} offset:@{XL + (4*s if s < 4 else 1024)}"] for s in range(5)] + wl
                wr = [fin[("l", 4)] + 3] * 5 + wr
            sc.chain(max(b1 + 1, wr[0]), bg - 2, wl, rels=wr, after="B31")
        lrd = f"ds_read_b32 v{LP+4}, v{OWNP} offset:@{XL+1024}"
        m = [[f"ds_read_b128 {vr(LP)}, v{OWNP} offset:@{XL}"], [lrd]] + [[f"v_accvgpr_read_b32 v{RL(s)}, a{LS(s)}"] for s in range(5)]
        m += [[f"v_add_f32 v{RL(s)}, v{RL(s)}, v{LP+s}"] for s in range(5)]
        m += [[f"v_add_f32 v{LP}, v{RL(0)}, v{RL(1)}"], [f"v_add_f32 v{LP+1}, v{RL(2)}, v{RL(3)}"], [f"v_add3_u32 v{LP+2}, 0, 0, 0"], [f"v_add_f32 v{LP}, v{LP}, v{RL(4)}"], [f"v_add_f32 v{LP}, v{LP}, v{LP+1}"]]
        del m[-3]
        m += [[f"v_rcp_f32 v{RL(s)}, v{RL(s)}"] for s in range(5)]
        sc.chain(ba + 1, ge["b"], m, after="Ba")
        sc.chain(gj[3] - P.BB + 1, gj[4] - P.BB - 8, [[f"ds_write_b32 v{O4}, v{LP}"]], after="Bd")
        used = []
        pre = {2: [["@waitt " + ord_(1, 3)]], 3: [["@waitt " + ord_(2, 3), "@waitt " + lrd]], 4: [["@waitt " + ord_(4, 3)]]}
        for j, (o, st) in zip(range(2, 7), P.TQ):
            pos = [int(g0 + o + st * k) for k in range(8)]
            assert pos[0] > (ba + 12 if j < 4 else bb + 10 if j == 4 else gj[1] - P.BB + 1) and (not used or pos[0] > used[-1] + 1)
            self.place_dma(sc, pre.get(j, []) + wo_items(j, SLW[j]), pos); used += pos
        g1 = g0 + P.TS0 - P.TSS
        for g, st in sts:
            g1 = max(g, g1 + (P.TSS if g < gj[5] + 30 else min(P.TSS, 4)))
            while any(abs(g1 - u) < P.TSP for u in used): g1 += 1
            g1 = min(g1, sc.n() - 1); assert g1 < g + 150
            sc.fix(g1, st)
        ck = [[f"ds_read_b32 v{LP+1}, v{O4+2}"], [f"v_add_f32 v{LP}, v{LP}, v{LP+1}"], [f"v_cmp_nge_f32 vcc, s{sTH}, v{LP}"], ["s_cbranch_vccnz L_redo", "L_redo_ret:"]]
        if P.F2:
            sc.chain(gj[4] - P.BB + 1, gj[4] + 16, ck, rels=[0, gj[4] + 6, 0, 0], after="Be")
            sc.chain(g0 + P.CG[0], g0 + P.PG - 2, self.f2_setup() + self.f2_share() + [["@vmw by", self.f2_st()]])
            sc.fix(g0 + P.PG, [self.f2_poll() + " ; @t:pl"])
            for n, g in P.EF:
                if g is not None:
                    assert g0 + g > gj[4] + 17
                    sc.fix(g0 + g, [f"@vmw s{n-1}"] + self.f2_flag(n))
        else: sc.chain(gj[4] - P.BB + 1, gj[5], ck, rels=[0, gj[4] + 10, 0, 0], after="Be")
        L = sc.run()
        for x in (ord_(1, 3), ord_(2, 3), lrd, ord_(4, 3)):
            assert L.index(x) < L.index("@waitt " + x), x
        i1 = next(k for k, l in enumerate(L) if l.startswith(f"v_rcp_f32 v{RL(4)},")); i2 = next(k for k, l in enumerate(L) if l.startswith("v_mul_f32"))
        assert i1 < i2
        L += ["s_nop 7"] + [x for it in pend for x in it]
        if P.F2:
            for n, g in P.EF:
                i = L.index(self.f2_flag(n)[1]) if g is not None else len(L)
                assert sum(1 for l in L[:i] if l.endswith(f"@t:s{n-1}")) == 5 and L.index("L_redo_ret:") < i
            assert L.index(self.f2_st()) < L.index(self.f2_poll() + " ; @t:pl")
            L += self.f2_first()
        return L
    def redo(self):
        return ["L_redo:", f"s_cmp_lg_u32 s{sMODE}, 0", "s_cbranch_scc1 L_redo_ret", f"s_mov_b32 s{sMODE}, 1", "s_waitcnt vmcnt(0) lgkmcnt(0)", "s_barrier",
                "v_mbcnt_lo_u32_b32 v0, -1, 0", "v_mbcnt_hi_u32_b32 v0, -1, v0", f"s_lshl_b32 s{sT0}, s{sW}, 6", f"v_add_u32 v0, s{sT0}, v0",
                "s_getpc_b64 s[4:5]", "L_redo_pc:", "s_sub_u32 s4, s4, L_redo_pc-L_again", "s_subb_u32 s5, s5, 0", "s_setpc_b64 s[4:5]"]

    def f2_zero(self):
        a, b = sT1, sT2
        return [[f"v_mbcnt_lo_u32_b32 v{T1}, -1, 0"], [f"v_mbcnt_hi_u32_b32 v{T1}, -1, v{T1}"], [f"v_lshlrev_b32 v{T1}, 4, v{T1}"],
                [f"s_lshl3_add_u32 s{a}, s{sBLK}, s{sBt}"], [f"s_mul_i32 s{a}, s{a}, {16*PART}"], [f"s_lshl_b32 s{b}, s{sW}, 8"], [f"s_lshl2_add_u32 s{b}, s{sHd}, s{b}"],
                [f"s_add_u32 s{a}, s{a}, s{b}"], [f"s_add_u32 s{a}, s{a}, {MB0}"], [f"s_add_u32 s{F.sFL}, s72, s{a}", f"s_addc_u32 s{F.sFL+1}, s73, 0"],
                [f"s_mov_b32 s{F.sFL+2}, 4"], [f"s_mov_b32 s{F.sFL+3}, 0x20000"], [f"buffer_store_dword v{T1}, v{T1}, {srd(F.sFL)}, 0 offen sc1"]]
    def f2_started(self):
        a = sT1
        return [[f"s_lshl3_add_u32 s{a}, s{sBLK}, s{sBt}"], [f"s_lshl4_add_u32 s{a}, s{a}, s{sHd}"], [f"s_add_u32 s{sX}, s94, s{a}", f"s_addc_u32 s{sX+1}, s95, 0"],
                [f"s_cmp_eq_u32 s{sW}, 0", f"s_cselect_b32 s{sX+2}, 1, 0"], [f"buffer_store_byte a{ONES}, v{T1}, {srd(sX)}, 0 offen sc1"]]
    def f2_setup(self):
        L_ = T1; a, b = F.t0, F.t1
        return [[f"s_lshl3_add_u32 s{a}, s{sBLK}, s{sBt}"], [f"s_lshl_b32 s{b}, s{a}, 4"],
                [f"s_add_u32 s{F.sDB}, s94, s{b}", f"s_addc_u32 s{F.sDB+1}, s95, 0"], [f"s_mov_b32 s{F.sDB+2}, 16"], [f"v_lshrrev_b32 v{F.LN}, 4, v{L_}"],
                [self.f2_bytes() + " ; @t:by"],
                [f"s_mul_i32 s{a}, s{a}, {16*PART}"], [f"s_add_u32 s{F.sPR}, s72, s{a}", f"s_addc_u32 s{F.sPR+1}, s73, 0"], [f"s_mov_b32 s{F.sPR+2}, {16*PART}"],
                [f"s_mov_b32 s{F.sOU}, s92"], [f"s_mov_b32 s{F.sOU+1}, s93"], [f"s_mov_b32 s{F.sOU+2}, {8*160*1792}"], [f"s_mov_b32 s{F.sOU+3}, 0x20000"],
                [f"s_mov_b32 s{F.FRC}, 0"], [f"s_movk_i32 s{F.CNT}, {P.SPIN}"], [f"s_mov_b32 s{F.PEND}, -1"], [f"s_mov_b32 s{F.GU}, 0"], [f"s_mov_b32 s{F.IDX}, s{sHd}"],
                [f"s_lshl_b32 s{a}, s{sW}, 8"], [f"s_add_u32 s{a}, s{a}, {MB0}"], [f"v_lshrrev_b32 v{F.MP}, 8, v{L_}"], [f"v_lshl_add_u32 v{F.MP}, v{F.MP}, 26, v{F.LN}"],
                [f"v_lshl_add_u32 v{F.MP}, v{F.MP}, 2, s{a}"], [f"v_and_b32 v{F.Q2}, 3, v{F.LN}"], [f"v_lshlrev_b32 v{F.Q2}, 1, v{F.Q2}"],
                [f"v_and_b32 v{F.LO}, 0xf0, v{L_}"], [f"v_mul_u32_u24 v{F.LO}, 112, v{F.LO}"], [f"v_bfe_u32 v{F.TV}, v{L_}, 8, 1"], [f"v_lshl_add_u32 v{F.LO}, v{F.TV}, 6, v{F.LO}"],
                [f"v_lshrrev_b32 v{F.TV}, 9, v{L_}"], [f"v_lshl_add_u32 v{F.LO}, v{F.TV}, 4, v{F.LO}"],
                [f"v_and_b32 v{F.IDN}, 16, v{L_}"], [f"s_movk_i32 s{a}, 0x3f80"], [f"v_lshlrev_b32 v{F.IDN}, v{F.IDN}, s{a}"], [f"v_bfe_i32 v{F.TV}, v{L_}, 5, 1"],
                [f"v_and_b32 v{F.IDN+1}, v{F.IDN}, v{F.TV}"], [f"v_xor_b32 v{F.IDN}, v{F.IDN}, v{F.IDN+1}"],
                [f"s_mul_i32 s{a}, s{sBt}, {160*1792}"], [f"s_mul_i32 s{b}, s{sBLK}, 896"], [f"s_add_u32 s{a}, s{a}, s{b}"], [f"s_and_b32 s{b}, s{sW}, 1"],
                [f"s_lshl_b32 s{b}, s{b}, 5"], [f"s_add_u32 s{a}, s{a}, s{b}"], [f"v_add_u32 v{F.LO}, s{a}, v{F.LO}"], [f"s_lshl_b32 s{b}, s{b}, 5"],
                [f"v_add_u32 v{F.PB}, s{b}, v{L_}"]]
    def f2_share(self):
        u, s_, d, a = F.t0, F.t1, F.NEW, F.NEW + 1
        it = [[f"s_lshl2_add_u32 s{F.IDX}, s{sW}, s{F.IDX}"], [f"s_and_b32 s{F.IDX}, s{F.IDX}, 15"], [f"s_min_u32 s{u}, s{F.IDX}, 3"], [f"s_lshl1_add_u32 s{u}, s{F.IDX}, s{u}"],
              [f"s_mov_b32 s{F.SEEN}, 0xffff0000"], [f"s_mov_b32 s{F.SEEN+1}, 0xffff0000"], [f"s_cmp_lt_u32 s{F.IDX}, 3", f"s_cselect_b32 s{F.SEEN+2}, 0xffff0000, -1"]]
        for k in range(3):
            it += [[f"s_mul_i32 s{s_}, s{u}, 37"], [f"s_lshr_b32 s{s_}, s{s_}, 8"], [f"s_mul_i32 s{d}, s{s_}, 7"], [f"s_sub_u32 s{d}, s{u}, s{d}"],
                   [f"v_sub_u32 v{F.POS+k}, s{d}, v{F.Q2}"], [f"v_add_u32 v{F.PO+k}, 7, v{F.POS+k}"], [f"v_min_u32 v{F.POS+k}, v{F.POS+k}, v{F.PO+k}"]]
            it += [[f"s_add_u32 s{d}, s{d}, s{sBt}"], [f"s_sub_u32 s{a}, s{d}, 7"], [f"s_min_u32 s{d}, s{d}, s{a}"]]
            it += [[f"s_lshr_b32 s{a}, s{sW}, 1"], [f"s_add_u32 s{F.HO}, s{a}, 8"], [f"s_lshl2_add_u32 s{a}, s{a}, s{s_}"],
                   [f"s_cmp_lt_u32 s{s_}, 4", f"s_cselect_b32 s{s_}, s{a}, s{F.HO}"]]
            it += [[f"s_mul_i32 s{a}, s{d}, 10"], [f"s_add_u32 s{a}, s{a}, s{s_}"], [f"s_lshl_b32 s{a}, s{a}, 11"], [f"v_add_u32 v{F.PO+k}, s{a}, v{F.PB}"],
                   [f"s_mul_i32 s{s_}, s{s_}, {16*14}"], [f"s_add_u32 s{a}, s{s_}, s{d}"], [f"s_lshl_b32 s{a}, s{a}, 7"], [f"v_add_u32 v{F.OO+k}, s{a}, v{F.LO}"]]
            if k < 2: it += [[f"s_add_u32 s{u}, s{u}, 1"]]
        return it
    def f2_poll(self): return f"buffer_load_dword v{F.TV}, v{F.MP}, {srd(F.sPR)}, 0 offen sc1"
    def f2_bytes(self): return f"buffer_load_ubyte v{F.BY}, v{F.LN}, {srd(F.sDB)}, 0 offen sc1"
    def f2_st(self): return f"v_cmp_lt_u32 s[{F.ST}:{F.ST+1}], 64, v{F.BY}"
    def f2_flag(self, n): return [f"v_mov_b32 v{F.D0+(n&1)}, {n}", f"buffer_store_dword v{F.D0+(n&1)}, v{T1}, {srd(F.sFL)}, 0 offen sc1 ; @t:f{n}"]
    def f2_trace(self):
        if not P.STAMP: return []
        return [f"s_bcnt0_i32_b32 s45, s{F.SEEN}", f"s_bcnt0_i32_b32 s84, s{F.SEEN+1}", "s_add_u32 s45, s45, s84", "s_memrealtime s[84:85]", "s_waitcnt lgkmcnt(0)", "s_mov_b32 m0, s44",
                f"v_writelane_b32 v{STR}, s84, m0", f"v_writelane_b32 v{STC}, s45, m0", "s_add_u32 s44, s44, 1", "s_min_u32 s44, s44, 40", f"v_writelane_b32 v{STR}, s44, 61"]
    def f2_first(self):
        L = ["@vmw pl"]; self.npost = 0
        for n, g in P.EF:
            if g is None: L += [f"@vmw s{n-1}"] + self.f2_flag(n); self.npost += 1
        if P.STAMP: L += [f"v_writelane_b32 v{STR}, s{F.IDX}, 60", "s_mov_b32 s44, 16", f"v_writelane_b32 v{STR}, 16, 61"]
        if not P.FP: L += ["@vmw s6", "s_branch L_f_pub"]
        return L
    def fin2(self):
        L = []; e = L.append
        e("L_f_calc:")
        C = [F.C, F.C + 2, F.t0]
        for k in range(3): e(f"v_cmp_gt_u32 s[{C[k]}:{C[k]+1}], v{F.TV}, v{F.POS+k}")
        for k in range(3):
            e(f"s_and_b32 s{C[k]}, s{C[k]}, s{F.ST}"); e(f"s_or_b32 s{C[k]}, s{C[k]}, s{F.FRC}")
            e(f"s_andn2_b32 s{F.NEW+k}, s{C[k]}, s{F.SEEN+k}"); e(f"s_or_b32 s{F.SEEN+k}, s{F.SEEN+k}, s{F.NEW+k}")
        e(f"s_or_b32 s{F.t0}, s{F.NEW}, s{F.NEW+1}"); e(f"s_or_b32 s{F.t0}, s{F.t0}, s{F.NEW+2}"); e("s_cbranch_scc0 L_f_k2h15")
        L += self.f2_trace()
        for k in range(3):
            if k == 2: e(f"s_cmp_eq_u32 s{F.NEW+k}, 0"); e("s_cbranch_scc1 L_f_k2h15")
            for q in range(4):
                hs = [q + 4 * x for x in range(4)]
                e(f"s_and_b32 s{F.t1}, s{F.NEW+k}, {hex(0x1111 << q)}"); e(f"s_cbranch_scc0 L_f_k{k}h{hs[-1]}")
                for h in hs:
                    e(f"s_bitcmp1_b32 s{F.NEW+k}, {h}"); e(f"s_cbranch_scc0 L_f_k{k}h{h}")
                    e(f"s_mov_b32 s{F.HO}, {h*PART}")
                    e(f"buffer_load_dwordx4 {ar(12*h+4*k)}, v{F.PO+k}, {srd(F.sPR)}, s{F.HO} offen{P.RDMOD}")
                    e(f"L_f_k{k}h{h}:")
        e(f"s_cmp_lg_u32 s{F.FRC}, 0"); e("s_cbranch_scc1 L_f_chk")
        e(f"s_bcnt1_i32_b32 s{F.t0}, s{F.NEW}"); e(f"s_bcnt1_i32_b32 s{F.t1}, s{F.NEW+1}"); e(f"s_add_u32 s{F.t0}, s{F.t0}, s{F.t1}")
        e(f"s_bcnt1_i32_b32 s{F.t1}, s{F.NEW+2}"); e(f"s_add_u32 s{F.t0}, s{F.t0}, s{F.t1}")
        for n in (12, 24): e(f"s_cmp_le_u32 s{F.t0}, {n}"); e(f"s_cbranch_scc1 L_f_w{n}")
        for n in range(48, -1, -1):
            if n in (12, 24): e(f"L_f_w{n}:")
            e(f"s_waitcnt vmcnt({n + self.npost})")
            if n: e(f"s_cmp_eq_u32 s{F.t0}, {n}"); e("s_cbranch_scc1 L_f_pub")
        e("L_f_pub:")
        L += self.stamp(48)
        L += [x.split(";")[0].strip() for x in self.f2_flag(7)]
        e(f"s_lshl_b32 s{F.FRC}, 1, s{sHd}"); e("s_branch L_f_calc")
        e("L_f_chk:")
        e(f"s_and_b32 s{F.t0}, s{F.SEEN}, s{F.SEEN+1}"); e(f"s_and_b32 s{F.t0}, s{F.t0}, s{F.SEEN+2}"); e(f"s_not_b32 s{F.t0}, s{F.t0}"); e("s_cbranch_scc0 L_f_sum")
        e(f"s_cmp_lg_u32 s{F.ST}, 0xffff"); e("s_cbranch_scc1 L_f_st")
        e("L_f_poll:")
        e(self.f2_poll()); e(f"s_sub_u32 s{F.CNT}, s{F.CNT}, 1"); e("s_waitcnt vmcnt(0)"); e("s_cbranch_scc0 L_f_calc")
        e(f"s_cmp_lg_u32 s{F.GU}, 0"); e("s_cbranch_scc1 L_f_end")
        e(f"s_and_b32 s{F.t0}, s{sHd}, 3"); e(f"s_lshl3_add_u32 s{F.t0}, s{F.t0}, s{sW}"); e(f"s_lshl_b32 s{F.t0}, 1, s{F.t0}"); e(f"v_mov_b32 v{F.BY}, s{F.t0}")
        e(f"s_and_b32 s{F.t0}, s{sHd}, 12"); e(f"v_add_u32 v{F.D0}, s{F.t0}, v{T1}")
        e(f"buffer_atomic_or v{F.BY}, v{F.D0}, {srd(F.sDB)}, 0 offen sc0"); e("s_waitcnt vmcnt(0)")
        e(f"s_mov_b32 s{F.GU}, 1"); e(f"s_mov_b32 s{F.CNT}, 2")
        e("L_f_st:")
        e(self.f2_bytes()); e("s_waitcnt vmcnt(0)"); e(self.f2_st()); e("s_branch L_f_poll")
        e("L_f_sum:")
        e(f"s_cmp_ge_u32 s{F.IDX}, 3"); e("s_waitcnt vmcnt(0)"); e(self.f2_bytes()); e("s_cbranch_scc1 L_f_s2")
        for U in (3, 2):
            e(f"L_f_s{U}:")
            L += self.stamp(51)
            for h in range(16):
                for k in range(U):
                    for d in range(2):
                        o = vr(8 * k + 4 * d)
                        e(f"v_mfma_f32_4x4x4_16b_bf16 {o}, {vr(F.IDN,2)}, {ar(12*h+4*k+2*d,2)}, {o if h else 0}")
            e("s_nop 4")
            for k in range(U):
                r = 32 + 4 * k
                for d in range(4): e(f"v_cvt_pk_bf16_f32 v{r+d}, v{8*k+2*d}, v{8*k+2*d+1}")
                e(f"v_permlane16_swap_b32 v{r}, v{r+2}"); e(f"v_permlane16_swap_b32 v{r+1}, v{r+3}")
                e(f"buffer_store_dwordx4 {vr(r)}, v{F.OO+k}, {srd(F.sOU)}, 0 offen{P.OUMOD}")
            e(f"s_waitcnt vmcnt({U})")
            if U > 2: e("s_branch L_f_next")
        e("L_f_next:")
        e(f"v_lshrrev_b32 v{F.BY}, s{sW}, v{F.BY}"); e(f"v_and_b32 v{F.BY}, 1, v{F.BY}"); e(f"v_cmp_eq_u32 vcc, 1, v{F.BY}")
        e(f"s_and_b32 s{F.t0}, vcc_lo, s{F.PEND}"); e("s_cbranch_scc0 L_f_end")
        e(f"s_ff1_i32_b32 s{F.IDX}, s{F.t0}"); e(f"s_bitset0_b32 s{F.PEND}, s{F.IDX}")
        L += [x for it in self.f2_share() for x in it]
        e(f"s_mov_b32 s{F.GU}, 1"); e(f"s_mov_b32 s{F.CNT}, 2"); e("s_branch L_f_st")
        e("L_f_end:")
        return L

    def fin(self):
        L = []; e = L.append
        sDB, sPR, sOU = sA, sB_, sX
        sOLD, sIDX, sMASK, sSEEN, sNEW, sPEND, sCNT, sPAR, sOWN, sSZ, sHO = 32, 33, 34, 35, 36, 37, 38, 39, 40, 41, 42
        ACC = lambda h, k, d: 24 * (h >> 1) + 8 * k + 2 * d
        LN, L4, LO, SOF, TV = 236, 237, 238, 239, 240
        PO = [241, 242, 243]; OO = [244, 245, 246]
        zero = [f"v_mov_b64 v[{r}:{r+1}], 0" for r in range(0, 192, 2)]
        e(f"s_lshl_b32 s{sT0}, s{sBLK}, 3"); e(f"s_add_u32 s{sT0}, s{sT0}, s{sBt}")
        e(f"s_lshl_b32 s{sT1}, s{sT0}, 4"); e(f"s_add_u32 s{sDB}, s94, s{sT1}"); e(f"s_addc_u32 s{sDB+1}, s95, 0"); e(f"s_mov_b32 s{sDB+2}, 4")
        e(f"s_mov_b32 s{sSZ}, {16*PART}"); e(f"s_mul_i32 s{sT0}, s{sT0}, s{sSZ}")
        e(f"s_add_u32 s{sPR}, s72, s{sT0}"); e(f"s_addc_u32 s{sPR+1}, s73, 0")
        e(f"s_mov_b32 s{sOU}, s92"); e(f"s_mov_b32 s{sOU+1}, s93"); e(f"s_mov_b32 s{sOU+2}, {8*160*1792}"); e(f"s_mov_b32 s{sOU+3}, 0x20000")
        e(f"s_lshl_b32 s{sOWN}, 1, s{sHd}"); e(f"s_mov_b32 s{sCNT}, {P.SPIN}"); e(f"s_mov_b32 s{sPEND}, 0")
        e(f"v_mbcnt_lo_u32_b32 v{LN}, -1, 0"); e(f"v_mbcnt_hi_u32_b32 v{LN}, -1, v{LN}"); e(f"v_lshlrev_b32 v{L4}, 2, v{LN}")
        e(f"v_and_b32 v{TV}, 15, v{LN}"); e(f"v_mul_u32_u24 v{LO}, 1792, v{TV}"); e(f"v_bfe_u32 v{TV}, v{LN}, 4, 1")
        e(f"v_lshl_add_u32 v{LO}, v{TV}, 6, v{LO}"); e(f"v_lshrrev_b32 v{TV}, 5, v{LN}"); e(f"v_lshl_add_u32 v{LO}, v{TV}, 4, v{LO}")
        MA_, MP_, TW = 247, 248, 249
        e(f"v_mov_b32 v{TV}, s{sOWN}"); e(f"v_mov_b32 v{TW}, s{sOWN}"); e(f"s_mov_b32 s{sPR+2}, s{sSZ}")
        e(f"v_mul_u32_u24 v{MA_}, {PART}, v{LN}"); e(f"v_add_u32 v{MA_}, {MBOX}, v{MA_}")
        e(f"v_lshlrev_b32 v{MP_}, 8, v{LN}"); e(f"v_add_u32 v{MP_}, {MBOX}, v{MP_}")
        IDN = 232
        e(f"v_and_b32 v{IDN}, 1, v{LN}"); e(f"v_lshlrev_b32 v{IDN}, 4, v{IDN}"); e(f"s_movk_i32 s{sT0}, 0x3f80"); e(f"v_lshlrev_b32 v{IDN}, v{IDN}, s{sT0}")
        e(f"v_bfe_i32 v{SOF}, v{LN}, 1, 1"); e(f"v_and_b32 v{IDN+1}, v{IDN}, v{SOF}"); e(f"v_xor_b32 v{IDN}, v{IDN}, v{IDN+1}")
        e("s_waitcnt vmcnt(0)")
        L += self.stamp(48)
        e("s_barrier")
        e(f"s_cmp_lg_u32 s{sW}, 0"); e("s_cbranch_scc1 L_f_b0")
        e(f"buffer_atomic_add v{TV}, v{L4}, {srd(sDB)}, 0 offen sc0")
        e(f"buffer_atomic_add v{TW}, v{MA_}, {srd(sPR)}, 0 offen"); e("s_waitcnt vmcnt(1)")
        e(f"ds_write_b32 v{L4}, v{TV}"); e("s_waitcnt lgkmcnt(0)")
        e("L_f_b0:"); e("s_barrier")
        e(f"ds_read_b32 v{TV}, v{L4}"); e("s_waitcnt lgkmcnt(0)"); e(f"v_readfirstlane_b32 s{sOLD}, v{TV}")
        L += self.stamp(49)
        e(f"s_and_b32 s{sMASK}, s{sOLD}, 0xffff"); e(f"s_bcnt1_i32_b32 s{sIDX}, s{sMASK}"); e(f"s_or_b32 s{sMASK}, s{sMASK}, s{sOWN}")
        if P.STAMP: e(f"v_writelane_b32 v{STR}, s{sIDX}, 60"); e(f"v_writelane_b32 v{STR}, 16, 61")
        e(f"s_cmp_lg_u32 s{sIDX}, 15"); e("s_cbranch_scc1 L_f_share")
        e(f"s_lshr_b32 s{sPEND}, s{sOLD}, 16")
        e("L_f_next:")
        e(f"s_cmp_eq_u32 s{sPEND}, 0"); e("s_cbranch_scc1 L_f_end")
        e(f"s_ff1_i32_b32 s{sIDX}, s{sPEND}"); e(f"s_bitset0_b32 s{sPEND}, s{sIDX}")
        e("L_f_share:")
        lv = list(P.LV) + [(0, 0)] * (7 - len(P.LV))
        tu = sum(u << (4 * k) for k, (u, c) in enumerate(lv)); tc = sum(c << (4 * k) for k, (u, c) in enumerate(lv))
        e(f"s_lshl_b32 s{sT0}, s{sIDX}, 2"); e(f"s_add_u32 s{sT0}, s{sT0}, s{sW}")
        e(f"s_mul_i32 s{sT1}, s{sT0}, 26"); e(f"s_lshr_b32 s{sT1}, s{sT1}, 8")
        e(f"s_mul_i32 s{sT2}, s{sT1}, 10"); e(f"s_sub_u32 s{sT0}, s{sT0}, s{sT2}")
        e(f"s_lshl_b32 s{sT1}, s{sT1}, 2")
        e(f"s_lshr_b32 s{sT2}, {hex(tu)}, s{sT1}"); e(f"s_and_b32 s{sT2}, s{sT2}, 15")
        e(f"s_lshr_b32 s{sT3}, {hex(tc)}, s{sT1}"); e(f"s_and_b32 s{sT3}, s{sT3}, 15")
        e("s_cbranch_scc0 L_f_next")
        e(f"s_mul_i32 s{sHO}, s{sBt}, 10"); e(f"s_add_u32 s{sHO}, s{sHO}, s{sT0}"); e(f"s_mul_i32 s{sHO}, s{sHO}, {16*1792}")
        e(f"s_mul_i32 s{sT1}, s{sBLK}, 896"); e(f"s_add_u32 s{sHO}, s{sHO}, s{sT1}")
        e(f"s_lshl_b32 s{sT0}, s{sT0}, 11")
        a, b, c = sNEW, sSEEN, sOLD
        for k in range(3):
            e(f"s_lshr_b32 s{a}, s{sT2}, 1"); e(f"s_and_b32 s{b}, s{sT2}, 1")
            e(f"s_mul_i32 s{c}, s{a}, 20"); e(f"s_add_u32 s{c}, s{c}, s{b}"); e(f"s_lshl_b32 s{c}, s{c}, 10"); e(f"s_add_u32 s{c}, s{c}, s{sT0}")
            e(f"s_lshl_b32 s{a}, s{a}, 2"); e(f"s_add_u32 s{a}, s{a}, s{b}"); e(f"s_lshl_b32 s{a}, s{a}, 5"); e(f"s_add_u32 s{a}, s{a}, s{sHO}")
            e(f"v_lshl_add_u32 v{PO[k]}, v{LN}, 4, s{c}"); e(f"v_add_u32 v{OO[k]}, s{a}, v{LO}")
            e(f"s_add_u32 s{sT2}, s{sT2}, 1")
        e(f"s_mov_b32 s{sNEW}, s{sMASK}"); e(f"s_mov_b32 s{sSEEN}, s{sMASK}")
        L += self.stamp(50)
        if P.STAMP: e(f"s_mov_b32 s44, {52 if P.STAMP in (1, 4) else 16}")
        e(f"s_cmp_eq_u32 s{sT3}, 2"); e("s_cbranch_scc1 L_f2_i"); e(f"s_cmp_eq_u32 s{sT3}, 1"); e("s_cbranch_scc1 L_f1_i")
        for U in (3, 2, 1):
            e(f"L_f{U}_i:")
            for q in range(4):
                e(f"s_and_b32 s{sT0}, s{sNEW}, {15 << (4*q)}"); e(f"s_cbranch_scc0 L_f{U}_h{4*q+3}")
                for h in range(4 * q, 4 * q + 4):
                    e(f"s_bitcmp1_b32 s{sNEW}, {h}"); e(f"s_cbranch_scc0 L_f{U}_h{h}")
                    e(f"s_mov_b32 s{sHO}, {h*PART}")
                    for k in range(U):
                        if (h * 3 + k) % 7 < P.RSK: continue
                        e(f"buffer_load_dwordx4 {ar(12*h+4*k)}, v{PO[k]}, {srd(sPR)}, s{sHO} offen{P.RDMOD}")
                    e(f"L_f{U}_h{h}:")
            e(f"s_cmp_eq_u32 s{sSEEN}, 0xffff"); e(f"s_cbranch_scc1 L_f{U}_sum")
            e(f"L_f{U}_spin:")
            e(f"buffer_load_dword v{TV}, v{MP_}, {srd(sWS)}, 0 offen sc1"); e("s_waitcnt vmcnt(0)")
            e(f"v_readfirstlane_b32 s{sMASK}, v{TV}"); e(f"s_and_b32 s{sMASK}, s{sMASK}, 0xffff")
            e(f"s_andn2_b32 s{sNEW}, s{sMASK}, s{sSEEN}"); e(f"s_cbranch_scc1 L_f{U}_got")
            e(f"s_sub_u32 s{sCNT}, s{sCNT}, 1"); e(f"s_cbranch_scc0 L_f{U}_spin")
            e(f"s_lshl_b32 s{sT0}, 0x10000, s{sIDX}"); e(f"v_mov_b32 v{TV}, s{sT0}")
            e(f"buffer_atomic_or v{TV}, v{L4}, {srd(sDB)}, 0 offen sc0"); e("s_waitcnt vmcnt(0)")
            e(f"v_readfirstlane_b32 s{sMASK}, v{TV}"); e(f"s_and_b32 s{sMASK}, s{sMASK}, 0xffff")
            e(f"s_cmp_lg_u32 s{sMASK}, 0xffff"); e("s_cbranch_scc1 L_f_end")
            e(f"s_andn2_b32 s{sNEW}, s{sMASK}, s{sSEEN}")
            e(f"L_f{U}_got:")
            e(f"s_or_b32 s{sSEEN}, s{sSEEN}, s{sNEW}")
            if P.STAMP: L += ["s_memrealtime s[84:85]", "s_waitcnt lgkmcnt(0)", "s_mov_b32 m0, s44", f"s_bcnt1_i32_b32 s45, s{sSEEN}", f"v_writelane_b32 v{STR}, s84, m0",
                              f"v_writelane_b32 v{STC}, s45, m0", "s_add_u32 s44, s44, 1", f"v_writelane_b32 v{STR}, s44, 61"]
            e(f"s_branch L_f{U}_i")
            e(f"L_f{U}_sum:")
            e("s_waitcnt vmcnt(0)")
            L += self.stamp(51)
            for h in range(16):
                for k in range(U):
                    for d in range(2):
                        o = vr(8 * k + 4 * d)
                        e(f"v_mfma_f32_4x4x4_16b_bf16 {o}, {vr(IDN,2)}, {ar(12*h+4*k+2*d,2)}, {o if h else 0}")
                if U == 1: e("s_nop 0")
            e("s_nop 4")
            for k in range(U):
                r = 32 + 4 * k
                for d in range(4): e(f"v_cvt_pk_bf16_f32 v{r+d}, v{8*k+2*d}, v{8*k+2*d+1}")
                e(f"v_permlane16_swap_b32 v{r}, v{r+2}"); e(f"v_permlane16_swap_b32 v{r+1}, v{r+3}")
                e(f"buffer_store_dwordx4 {vr(r)}, v{OO[k]}, {srd(sOU)}, 0 offen{P.OUMOD}")
            e(f"s_mov_b32 s{sMASK}, 0xffff"); e("s_branch L_f_next")
        e("L_f_end:")
        return L


    def attn_kernel(self):
        e = self.e
        kn = NAME + "_kernel"
        e(f".globl {kn}"); e(".p2align 8"); e(f".type {kn},@function"); e(f"{kn}:")
        p0 = len(self.L)
        e("s_cmp_ge_u32 s2, 256"); e("s_cbranch_scc1 L_attn_end")
        e(f"s_mov_b32 s{sMODE}, 0")
        e("L_again:")
        e(f"s_and_b32 s{sT0}, s2, 7")
        e(f"s_lshr_b32 s{sBLK}, s{sT0}, 2"); e(f"s_mul_i32 s{sT1}, s{sBLK}, 40")
        e(f"s_add_u32 s4, s0, s{sT1}"); e("s_addc_u32 s5, s1, 0")
        e(f"s_load_dwordx8 s[{sPT}:{sPT+7}], s[4:5], 0")
        e(f"s_load_dwordx2 s[{sWO}:{sWO+1}], s[4:5], 32")
        e("s_load_dwordx2 s[72:73], s[0:1], 96")
        e("s_load_dwordx4 s[92:95], s[0:1], 80")
        for x in self.stamp("start"): e(x)
        t = list(range(100, 116))
        ln, g, r4, x4, tq, tu, tv, fj = t[:8]
        e(f"s_getpc_b64 s[{sWS}:{sWS+1}]"); e("L_cw0:"); e(f"s_mov_b32 s{sWS+2}, L_code_end-L_cw0"); e(f"s_mov_b32 s{sWS+3}, 0x20000")
        e(f"v_and_b32 v{ln}, 63, v0"); e(f"v_lshrrev_b32 v{tq}, 6, v0"); e(f"s_lshr_b32 s{sT1}, s2, 3"); e(f"s_lshl_b32 s{sT2}, s{sT1}, 9")
        e(f"v_lshlrev_b32 v{tu}, 14, v{ln}"); e(f"v_lshl_add_u32 v{tu}, v{tq}, 7, v{tu}"); e(f"v_add_u32 v{tu}, s{sT2}, v{tu}")
        e(f"buffer_load_dword a{LS(0)}, v{tu}, {srd(sWS)}, 0 offen")
        e(f"v_readfirstlane_b32 s{sW}, v{tq}")
        if P.MAP == 4:
            e(f"s_and_b32 s{sHd}, s{sT0}, 3"); e(f"s_lshl_b32 s{sHd}, s{sHd}, 2"); e(f"s_and_b32 s{sT2}, s{sT1}, 3")
            e(f"s_add_u32 s{sHd}, s{sHd}, s{sT2}"); e(f"s_lshr_b32 s{sBt}, s{sT1}, 2")
            e(f"s_lshl_b32 s{sC}, s{sT2}, 1"); e(f"s_add_u32 s{sC}, s{sC}, s{sBt}"); e(f"s_sub_u32 s{sT2}, s{sC}, 7")
            e(f"s_cmp_ge_u32 s{sC}, 7"); e(f"s_cselect_b32 s{sC}, s{sT2}, s{sC}")
        else:
            if P.MAP == 16:
                e(f"s_and_b32 s{sHd}, s{sT1}, 15"); e(f"s_and_b32 s{sT2}, s{sT0}, 3"); e(f"s_lshr_b32 s{sC}, s{sT1}, 4")
                e(f"s_lshl_b32 s{sBt}, s{sT2}, 1"); e(f"s_add_u32 s{sBt}, s{sBt}, s{sC}")
                e(f"s_mul_i32 s{sC}, s{sC}, {P.RA}"); e(f"s_mul_i32 s{sT2}, s{sT2}, {P.RB}"); e(f"s_add_u32 s{sC}, s{sC}, s{sT2}")
                e(f"s_mul_i32 s{sT2}, s{sHd}, {P.RH}"); e(f"s_add_u32 s{sC}, s{sC}, s{sT2}")
            else:
                e(f"s_and_b32 s{sHd}, s{sT0}, 1"); e(f"s_lshl_b32 s{sHd}, s{sHd}, 3"); e(f"s_and_b32 s{sT2}, s{sT1}, 7"); e(f"s_add_u32 s{sHd}, s{sHd}, s{sT2}")
                e(f"s_and_b32 s{sBt}, s{sT0}, 2"); e(f"s_lshr_b32 s{sC}, s{sT1}, 3"); e(f"s_lshl_b32 s{sC}, s{sC}, 1"); e(f"s_add_u32 s{sT2}, s{sT2}, s{sC}")
                e(f"s_lshr_b32 s{sC}, s{sC}, 1"); e(f"s_lshl_b32 s{sBt}, s{sBt}, 1"); e(f"s_add_u32 s{sBt}, s{sBt}, s{sC}")
                e(f"s_bfe_u32 s{sC}, s{sT0}, 0x10001"); e(f"s_add_u32 s{sC}, s{sC}, s{sT2}")
            e(f"s_mul_i32 s{sT2}, s{sC}, 37"); e(f"s_lshr_b32 s{sT2}, s{sT2}, 8"); e(f"s_mul_i32 s{sT2}, s{sT2}, 7"); e(f"s_sub_u32 s{sC}, s{sC}, s{sT2}")
        e(f"s_lshl_b32 s{sCW}, s{sC}, 19"); e(f"s_lshl_b32 s{sCX}, s{sC}, 7")
        e(f"s_lshl_b32 s{sW8K}, s{sW}, 13"); e(f"s_movk_i32 s{sF}, 0x9c")
        e(f"s_lshl_b32 s{sT0}, s{sW}, 1"); e(f"s_lshr_b32 s{sT0}, s{sF}, s{sT0}"); e(f"s_and_b32 s{sT0}, s{sT0}, 3")
        e(f"v_lshrrev_b32 v{g}, 4, v{ln}"); e(f"v_bfe_u32 v{r4}, v{ln}, 2, 2"); e(f"v_and_b32 v{x4}, 3, v{ln}")
        e(f"v_xor_b32 v{tq}, s{sT0}, v{x4}"); e(f"v_lshlrev_b32 v{tq}, 4, v{tq}"); e(f"v_lshl_add_u32 v{tq}, v{g}, 6, v{tq}")
        HW, HX, WA, XA = self.HW, self.HX, self.WA, self.XA
        e(f"s_lshl_b32 s{sT0}, s{sW}, 17"); e(f"v_lshl_add_u32 v{tu}, v{r4}, 13, v{tq}"); e(f"v_add_u32 v{HW+1}, s{sT0}, v{tu}")
        for k in (0, 2, 3, 4, 5, 6, 7):
            gg, u = k >> 2, k & 3
            e(f"v_add_u32 v{HW+k}, {768 + (2*gg + (u>>1))*32768 + (u&1)*256 - u*1024}, v{HW+1}")
        e(f"v_bfe_u32 v{tu}, v{ln}, 2, 3"); e(f"v_mul_u32_u24 v{tu}, 896, v{tu}"); e(f"v_lshrrev_b32 v{tv}, 5, v{ln}")
        e(f"v_lshl_add_u32 v{tu}, v{tv}, 6, v{tu}")
        e(f"v_and_b32 v{tv}, 1, v{g}"); e(f"v_mul_u32_u24 v{tv}, 3, v{tv}"); e(f"v_xor_b32 v{tv}, v{tv}, v{x4}")
        e(f"v_lshl_add_u32 v{tu}, v{tv}, 4, v{tu}")
        e(f"s_mul_i32 s{sT0}, s{sW}, 28672"); e(f"v_add_u32 v{HX}, s{sT0}, v{tu}"); e(f"v_xor_b32 v{tv}, 16, v{HX}")
        e(f"v_add_u32 v{HX+1}, 6144, v{tv}"); e(f"v_add_u32 v{HX+2}, 12288, v{HX}"); e(f"v_add_u32 v{HX+3}, 18432, v{tv}")
        e(f"s_and_b32 s{sT1}, s{sW}, 1"); e(f"s_lshl_b32 s{sT1}, s{sT1}, 4"); e(f"v_xor_b32 v{tv}, s{sT1}, v{tu}")
        e(f"s_mul_i32 s{sT0}, s{sW}, 7168"); e(f"s_add_u32 s{sT0}, s{sT0}, {128*896}"); e(f"v_add_u32 v{HX+4}, s{sT0}, v{tv}")
        e(f"s_lshl_b32 s{sT2}, s{sW}, 12"); e(f"s_lshl_b32 s{sT3}, s{sW}, 10")
        e(f"s_mul_i32 s{sT0}, s{sBt}, 143360"); e(f"s_lshl_b32 s{sT1}, s{sHd}, 9")
        e(f"s_mov_b32 s{sX+2}, 143360"); e(f"s_mov_b32 s{sX+3}, 0x20000"); e(f"s_mov_b32 s{sWQ+3}, 0x20000")
        e(f"s_sub_u32 s{sWQ+2}, {448*8192+768}, s{sT1}")
        e("s_waitcnt lgkmcnt(0)")
        e(f"s_add_u32 s{sWQ}, s{sPT+6}, s{sT1}"); e(f"s_addc_u32 s{sWQ+1}, s{sPT+7}, 0")
        e(f"s_sub_u32 s{sWQ}, s{sWQ}, 768"); e(f"s_subb_u32 s{sWQ+1}, s{sWQ+1}, 0")
        e(f"s_add_u32 s{sX}, s{sPT}, s{sT0}"); e(f"s_addc_u32 s{sX+1}, s{sPT+1}, 0")
        for x in self.stamp(1): e(x)
        for it in self.w_items(0) + self.x_items(0):
            for x in it: e(x)
        for x in self.stamp(2): e(x)
        e(f"s_lshl_b32 s{sT0}, s{sBt}, 4"); e(f"s_add_u32 s{sT0}, s{sT0}, s{sHd}"); e(f"s_lshl_b32 s{sT1}, s{sT0}, 19")
        for s_, p in ((sA, sPT + 2), (sB_, sPT + 4)):
            e(f"s_add_u32 s{s_}, s{p}, s{sT1}"); e(f"s_addc_u32 s{s_+1}, s{p+1}, 0")
            e(f"s_sub_u32 s{s_}, s{s_}, 768"); e(f"s_subb_u32 s{s_+1}, s{s_+1}, 0")
            e(f"s_mov_b32 s{s_+2}, {524288+768}"); e(f"s_mov_b32 s{s_+3}, 0x20000")
        e(f"s_lshl_b32 s{sT1}, s{sBLK}, 7"); e(f"s_add_u32 s{sT0}, s{sT0}, s{sT1}"); e(f"s_mul_i32 s{sT0}, s{sT0}, {PART}")
        e(f"s_add_u32 s{sWS}, s72, s{sT0}"); e(f"s_addc_u32 s{sWS+1}, s73, 0"); e(f"s_mov_b32 s{sWS+2}, {PART}")
        e(f"v_lshl_add_u32 v{tu}, v{r4}, 9, v{tq}"); e(f"v_add_u32 v{T1 if P.PCH else VO+1}, s{sW8K}, v{tu}")
        if not P.PCH: e(f"v_add_u32 v{VO}, 768, v{VO+1}")
        e(f"s_and_b32 s{sT0}, s{sW}, 1"); e(f"s_lshl_b32 s{sT1}, s{sT0}, 13"); e(f"s_sub_u32 s{sH}, 4096, s{sT1}")
        e(f"s_sub_u32 s{sPH}, 0x10000, s{sH}"); e(f"s_sub_u32 s{sNH}, {u32(-98304)}, s{sH}")
        e(f"s_lshl_b32 s{sT1}, s{sT0}, 12"); e(f"s_lshl_b32 s{sT0}, s{sT0}, 10")
        e(f"v_lshlrev_b32 v{tv}, 1, v{g}"); e(f"v_bfe_u32 v{tv}, s{sF}, v{tv}, 2"); e(f"v_lshrrev_b32 v{tu}, 1, v{x4}")
        e(f"v_xor_b32 v{tv}, v{tv}, v{tu}"); e(f"v_lshl_add_u32 v{tv}, v{tv}, 4, s{sT0}")
        e(f"v_lshl_add_u32 v{tv}, v{g}, 13, v{tv}"); e(f"v_lshl_add_u32 v{tv}, v{r4}, 6, v{tv}")
        e(f"v_and_b32 v{tu}, 1, v{x4}"); e(f"v_lshl_add_u32 v{WA}, v{tu}, 3, v{tv}"); e(f"v_xor_b32 v{WA+1}, 32, v{WA}")
        e(f"v_add_u32 v{WA+2}, {SLOT(2)}, v{WA}"); e(f"v_add_u32 v{WA+3}, {SLOT(2)}, v{WA+1}")
        e(f"s_add_u32 s{sD}, s{sT1}, {SLOT(1)}"); e(f"v_add_u32 v{VA}, s{sD}, v{WA}"); e(f"v_add_u32 v{VA+1}, s{sD}, v{WA+1}")
        if P.PCH: e(f"v_xor_b32 v{VA+2}, 0x1000, v{VA}"); e(f"v_xor_b32 v{VA+3}, 0x1000, v{VA+1}")
        e(f"v_lshlrev_b32 v{fj}, 1, v{r4}"); e(f"v_bfe_u32 v{fj}, s{sF}, v{fj}, 2")
        e(f"s_movk_i32 s{sD}, 0xd8"); e(f"v_lshlrev_b32 v{tv}, 1, v{g}"); e(f"v_bfe_u32 v{tv}, s{sD}, v{tv}, 2")
        e(f"s_add_u32 s{sT1}, s{sT1}, s{sT0}")
        e(f"v_xor_b32 v{tv}, v{tv}, v{fj}"); e(f"v_lshl_add_u32 v{tv}, v{tv}, 4, s{sT1}")
        e(f"v_lshl_add_u32 v{tv}, v{r4}, 13, v{tv}"); e(f"v_lshl_add_u32 v{KA}, v{x4}, 6, v{tv}"); e(f"v_xor_b32 v{KA+1}, 1024, v{KA}")
        e(f"v_and_b32 v{tv}, 1, v{g}"); e(f"v_lshlrev_b32 v{tv}, 1, v{tv}"); e(f"v_xor_b32 v{tv}, v{tv}, v{fj}"); e(f"v_lshlrev_b32 v{tv}, 4, v{tv}")
        e(f"v_and_b32 v{tu}, 7, v{ln}"); e(f"v_lshl_add_u32 v{tv}, v{tu}, 6, v{tv}")
        e(f"v_lshrrev_b32 v{tu}, 5, v{ln}"); e(f"v_lshl_add_u32 v{tv}, v{tu}, 9, v{tv}")
        e(f"v_bfe_u32 v{tq}, v{ln}, 3, 1"); e(f"v_lshl_add_u32 v{tv}, v{tq}, 10, v{tv}")
        e(f"s_lshr_b32 s{sT1}, s{sW}, 1"); e(f"s_lshl_b32 s{sT0}, s{sT1}, 13"); e(f"s_add_u32 s{sT0}, s{sT0}, {SLOT(1)}")
        e(f"v_add_u32 v{XA}, s{sT0}, v{tv}"); e(f"v_xor_b32 v{XA+1}, 16, v{XA}")
        e(f"v_add_u32 v{XA+2}, {SLOT(4)-SLOT(1)}, v{XA}"); e(f"v_add_u32 v{XA+3}, {SLOT(4)-SLOT(1)}, v{XA+1}")
        e(f"s_lshl_b32 s{sT0}, s{sT1}, 11"); e(f"s_add_u32 s{sT0}, s{sT0}, {SLOT(4)+16384}")
        e(f"v_add_u32 v{XA+4}, s{sT0}, v{tv}"); e(f"v_xor_b32 v{XA+5}, 16, v{XA+4}")
        e(f"v_lshl_add_u32 v{OWNP}, v{ln}, 4, s{sW8K}"); e(f"v_xor_b32 v{PARP}, 0x2000, v{OWNP}")
        if P.TCH: e(f"v_lshl_add_u32 v{self.TV}, v{ln}, 7, s{sW8K}")
        e(f"s_mul_i32 s{sT0}, s{sT1}, 320"); e(f"s_add_u32 s{sT0}, s{sT0}, {MXA}"); e(f"v_and_b32 v{tu}, 15, v{ln}")
        e(f"v_lshl_add_u32 v{T0}, v{tu}, 2, s{sT0}"); e(f"v_mov_b32 v{tv}, 0x7f800000")
        for s in range(5): e(f"ds_write_b32 v{T0}, v{tv} offset:{64*s}")
        e(f"s_mov_b32 s{sSC}, {hex(f2u(math.log2(math.e) / 16.0))}"); e(f"s_mov_b32 s{sTH}, {hex(f2u(-1.0 if P.FORCE else P.LTH))}")
        if P.VL: e(f"s_lshl_b32 s{sT0}, s{sBt}, 2"); e(f"s_lshr_b32 s{sCLS}, {hex(P.VL[0])}, s{sT0}")
        e(f"s_mov_b32 s{sT0}, 0x3f803f80")
        for k in range(4): e(f"v_accvgpr_write_b32 a{ONES+k}, s{sT0}")
        for it in self.x_items(1) + self.w_items(1):
            for x in it: e(x)
        for nm in P.PQ:
            for it in (self.w_items(int(nm[1])) + self.x_items(int(nm[1])) if nm[0] == "c" else self.kv_head_items(2 * int(nm[1]) + (nm[0] == "V"), int(nm[2:] or 8))):
                for x in it: e(x)
        if P.F2: pass
        else:
            e(f"v_add_u32 v{tu}, s{sMODE}, v{ln}"); e(f"v_lshlrev_b32 v{tu}, 8, v{tu}"); e(f"v_add_u32 v{tu}, {MBOX}, v{tu}"); e(f"v_mov_b32 v{tq}, 0")
            e(f"buffer_store_dword v{tq}, v{tu}, {srd(sWS)}, 0 offen sc1")
        if P.WP:
            e(f"s_mul_i32 s{sT1}, s{sHd}, 32"); e(f"s_lshl_b32 s{sT0}, s{sBt}, 2"); e(f"s_add_u32 s{sT1}, s{sT1}, s{sT0}"); e(f"s_add_u32 s{sT1}, s{sT1}, s{sW}")
            e(f"s_mul_i32 s{sT1}, s{sT1}, 7168"); e(f"s_add_u32 s{sFC}, s{sWO}, s{sT1}"); e(f"s_addc_u32 s{sFC+1}, s{sWO+1}, 0"); e(f"s_movk_i32 s{sFC+2}, 7168")
            e(f"s_mov_b32 s{sFC+3}, 0x20000"); e(f"v_lshlrev_b32 v{T1}, 7, v{ln}")
            if P.WP == 1: e(f"buffer_load_dword v{T1}, v{T1}, {srd(sFC)}, 0 offen{P.TNT}")
        if P.PT:
            e(f"v_lshlrev_b32 v{tu}, {P.PTS}, v{ln}"); e(f"s_mov_b32 s{sFC+3}, 0x20000")
            e(f"s_lshl_b32 s{sT1}, s{sBLK}, 3"); e(f"s_add_u32 s{sT1}, s{sT1}, s{sBt}")
            for k, (nm, ptr, idx, sz) in enumerate((("w", sWO, sHd, 229376), ("d", 94, None, 256), ("p", 72, sT1, 16 * PART), ("o", 92, sBt, 160 * 1792))):
                if nm not in P.PT: continue
                if idx is None: e(f"s_mov_b32 s{sT0}, 0")
                else: e(f"s_mul_i32 s{sT0}, s{idx}, {sz}")
                e(f"s_add_u32 s{sFC}, s{ptr}, s{sT0}"); e(f"s_addc_u32 s{sFC+1}, s{ptr+1}, 0"); e(f"s_mov_b32 s{sFC+2}, {sz}")
                e(f"buffer_load_dword a{LS(1)+k}, v{tu}, {srd(sFC)}, 0 offen")
        e("@vmw c0 lgkmcnt(0)"); e("s_barrier")
        for x in self.stamp(3): e(x)
        for x in self.head_sched(): e(x)
        self.vq = [0]; self.fifo = []
        head = self.finish(self.L[p0:], "head")
        self.L[p0:] = head
        plan = self.plan = self.uni_plan()
        for k in range(2, 30):
            for x in self.static_body(k, plan[k]): e(x)
        tail = self.finish(self.tail_sched(), "tail", self.L[-30:])
        for x in tail: e(x)
        fin, _ = fix_hazards(self.fin2() if P.F2 else self.fin(), tail[-30:])
        for x in fin: e(x)
        if P.STAMP:
            e("s_waitcnt vmcnt(0)")
            for x in self.stamp(63): e(x)
            e(f"v_writelane_b32 v{STR}, s{sST+4}, 0"); e(f"v_writelane_b32 v{STC}, s{sST+6}, 0")
            e(f"s_lshl_b32 s{sT0}, s2, 2"); e(f"s_add_u32 s{sT0}, s{sT0}, s{sW}"); e(f"s_lshl_b32 s{sT0}, s{sT0}, 9")
            e(f"s_add_u32 s{sT0}, s{sT0}, {STAMP_OFF}")
            e(f"s_add_u32 s{sWS}, s72, s{sT0}"); e(f"s_addc_u32 s{sWS+1}, s73, 0"); e(f"s_mov_b32 s{sWS+2}, 512")
            e("v_mbcnt_lo_u32_b32 v20, -1, 0"); e("v_mbcnt_hi_u32_b32 v20, -1, v20"); e("v_lshlrev_b32 v20, 2, v20")
            e(f"buffer_store_dword v{STR}, v20, {srd(sWS)}, 0 offen"); e(f"buffer_store_dword v{STC}, v20, {srd(sWS)}, 0 offen offset:256")
        e("L_attn_end:")
        e("s_endpgm")
        e("L_code_end:")
        body = self.L[p0:]
        for x in self.R + fix_hazards(self.tmax())[0] + fix_hazards(self.redo())[0] + (self.fc_spin() if P.FC else []): e(x)
        return check_hazards(body, "all")

def desc(name, vg, acc):
    return [f".amdhsa_kernel {name}", f"  .amdhsa_next_free_vgpr {vg}", "  .amdhsa_next_free_sgpr 102",
            f"  .amdhsa_accum_offset {acc}", "  .amdhsa_group_segment_fixed_size 0", "  .amdhsa_kernarg_size 104",
            "  .amdhsa_user_sgpr_count 2", "  .amdhsa_user_sgpr_kernarg_segment_ptr 1",
            "  .amdhsa_system_sgpr_workgroup_id_x 1", ".end_amdhsa_kernel"]

def build(path, verbose=True):
    g = Gen()
    ref = open(f"cdna_kernels/{NAME}.s.ref").read().splitlines()
    g.L += [l for l in ref if l.startswith(";") and "@launch" not in l]
    g.L += ["; @launch grid=(256,1,1) block=(256,1,1) lds=163840"]
    g.L += ['.amdgcn_target "amdgcn-amd-amdhsa--gfx950"', ".text"]
    probs = g.attn_kernel()
    g.L += ['.section .rodata,"a"', ".p2align 6"] + desc(NAME + "_kernel", 512, 256)
    open(path, "w").write("\n".join(g.L) + "\n")
    seen = set()
    for p in probs:
        k = p.split("]", 1)[1]
        if k not in seen: print(p); seen.add(k)
    if verbose:
        tot = 0
        for k, (v, added) in g.sec.items():
            ins = [Ins(x) for x in v]
            nm = sum(1 for i in ins if i.kind == "mfma"); tot += est_cycles(v)
            print(f"{k}: instr {sum(1 for i in ins if i.states)} mfma {nm} ({nm*16} cyc) est {est_cycles(v)} nops {added} waits {sum(1 for i in ins if i.mn=='s_waitcnt')}")
        print("total est", tot, "staged", g.nstaged)
    return g

if __name__ == "__main__":
    out = sys.argv[1] if len(sys.argv) > 1 else "k6.s"
    for kv in sys.argv[2:]:
        k, v = kv.split("=", 1)
        setattr(P, k, eval(v))
    build(out)
```

```python
import sys, math, struct, re
from asmlib import Ins, check_hazards, autowait, fix_hazards
from sched3 import Sch, cost, est_cycles

NAME = "concat_heads__mha_block_cached__mha_block_cached__near_ridge"
MF = "v_mfma_f32_16x16x32_bf16"
def f2u(x): return struct.unpack("<I", struct.pack("<f", x))[0]
def vr(b, n=4): return f"v[{b}:{b+n-1}]"
def ar(b, n=4): return f"a[{b}:{b+n-1}]"
def srd(b): return f"s[{b}:{b+3}]"
def u32(x): return hex(x & 0xffffffff)

class P:
    STAMP = False
    BB = 12
    BQ = 68
    BP = 54
    NPK = 10
    NPV = 6
    KVNT = " nt"
    STMOD = " sc1"
    LTH = 2.0 ** 40
    HQ = [("c2", 0, 2), ("K0", 28, 2), ("c3", 100, 3), ("c4", 150, 2), ("V0", 180, 2), ("c5", 255, 3), ("c6", 310, 2),
          ("V1", 340, 8), ("K1", 410, 10), ("K2", 490, 8), ("K3", 555, 6), ("V2", 640, 6)]
    HST = (3, 4)
    KVINC = 32768
    LV = [(0, 3), (3, 3), (6, 3), (9, 2), (11, 2), (13, 1)]
    SPIN = 20000
    WNT = ""
    STRIP = []
    STRIPT = []
    STRIPH = []
    WNT0 = [0]
    WO0 = [58, 59, 60, 61, 62, 63, 64, 65]
    SH = {}
    ST = {}
    SL = {}
    UG = (2, 2240)
    UP = 1.0
    UF = 9
    UL = 110
    UT = [12, 22]
    FC = []
    FCL = 1
    FCG = 3
    FCN = 60
    FCS = 4352
    FORCE = False
    BXG = 34
    BAG = 22
    BBG = 50
    TCH = []
    TNT = ""
    WSP = False
    VN = 0
    WG = None
    ROTW = True
    WP = 0
    WONT = []
    RDMOD = " sc1"
    OUMOD = ""
    VSP = 0
    EPW = 4
    SMAJ = None
    BF = None
    TQ = [(38, 3), (64, 4), (98, 5), (150, 5), (191, 5)]
    TS0 = 0
    TSP = 1
    TSS = 1
    PT = ""
    PTS = 16
    WT = []
    MAP = 4
    RSK = 0
    VL = None
    F2 = False
    NS = (7, 6, 2)
    CG = (70,)
    ZK = (4, 8)
    PG = 470
    EF = [(3, 425), (5, None)]
    FP = True
    HCH = 8
    QCH = 1
    TCN = 1
    PCH = None
    PCT = None
    BPH = 54
    BPT = None
    L2 = None
    PQ = []
    RA = 3
    RB = 1
    RH = 1

def QA(s, j): return 32 * s + 4 * j
def QR(s, i): return vr(32 * s + 8 * i) if i < 4 else ar(64 + 4 * (5 * (i - 4) + s))
def OV(t): return 8 * t + 4
def OR(s, j):
    t = 8 * s + j
    return vr(OV(t)) if t < 20 else ar(144 + 4 * (t - 20))
def OT(s, j):
    t = 8 * s + j
    return OV(t) if t < 20 else 8 * (t - 20)
SB = 160
TL = {"b0": (0, 1, 2), "b1": (0, 1, 2), "a0": (3, 4), "a1": (3, 4)}
TB = {"b0": 0, "b1": 3, "a0": 3, "a1": 5}
def HF(s): return "b" if s < 3 else "a"
def S(t, s): return SB + 4 * (TB[t] + s)
def PR(s): return S(HF(s) + "0", s)
def PP(s): return S(HF(s) + "1", s)
def CI(s): return 200 + 4 * s
KA, VA, VO, OWNP, PARP, T0, T1 = 244, 246, 248, 250, 251, 252, 253
FCV = T1
STR, STC = 254, 255
def FB(k): return 4 * k
def LS(s): return 224 + 4 * s
ONES = 244
def STG(b): return vr(220 + 4 * b) if b < 6 else ar(248 + 4 * (b - 6))
def STR_(n, k):
    if n == 0: return vr(SB + 4 * k)
    if n == 1: return ar(144 + 4 * k) if k < 4 else ar(32 + 4 * k)
    if n in (3, 4): return ar(160 + 32 * (n - 3) + 4 * k)
    assert n == 6
    return STG(k)
def SLOT(n): return (n % 5) * 32768
def PX(n, s): return SLOT(2 * n - 1) + (5 + s) * 1024 if s < 3 else SLOT(2 * n) + (3 + s) * 1024
MXA = SLOT(4) + 28 * 1024
sA, sB_, sX, sWQ, sWS = 8, 12, 16, 20, 24
sW, sW8K = 28, 29
sRET = 30
sTH, sH, sPH, sNH, sD, sMODE = 32, 33, 34, 35, 36, 37
sOA, sOB = 45, 46
sT0, sT1, sT2, sT3 = 47, 48, 49, 50
sBLK, sBt, sHd, sC, sSC, sBAD = 51, 52, 53, 54, 55, 56
sCW, sCX = 57, 58
sWO = 60
sF = 62
sM0 = 63
sPT = 64
sCO = 64
sCS = 74
sRT2 = 96
sST = 84
PART = 144384
MBOX = 143360 + 768
MB0 = 143360
sCLS = 71
class F:
    PO, OO, POS, MP, TV, BY, LN, Q2, D0, IDN, LO, PB = 237, 240, 245, 213, 214, 215, 216, 217, 218, 206, 205, 244
    sDB, sPR, sOU, sFL = sA, sB_, sX, 40
    IDX, FRC, CNT, GU, PEND, ST, SEEN, NEW, C, t0, t1, HO = 98, 99, 100, 101, 46, 38, 33, 81, 64, 6, 7, 36
STAMP_OFF = 48 << 20
FC_OFF = 0x2500000
sFC, sFM, sFN, sFT, sF1 = 40, 38, 39, 44, 6

def vmpass(lines, q):
    out = []; done = q[0]
    for l in lines:
        if l.startswith("@vmw"):
            p = l.split(None, 2)
            idx = max(k for k, t in enumerate(q) if k and t and p[1] in t)
            n = min(63, len(q) - 1 - idx)
            if idx <= done:
                if len(p) > 2: out.append("s_waitcnt " + p[2])
                continue
            done = q[0] = idx
            out.append(f"s_waitcnt vmcnt({n})" + (" " + p[2] if len(p) > 2 else ""))
            continue
        if l.startswith("@vml"):
            n = int(l.split()[1])
            if len(q) - 1 - n > done: done = q[0] = len(q) - 1 - n; out.append(f"s_waitcnt vmcnt({n})")
            if len(l.split()) > 2 and len(q) - 1 - int(l.split()[2]) > done:
                out += [f"s_bitcmp1_b32 s{sCLS}, {l.split()[3]}", f"s_cbranch_scc0 Lvl{len(q)}", f"s_waitcnt vmcnt({l.split()[2]})", f"Lvl{len(q)}:"]
            continue
        if l.startswith("buffer_"):
            q.append(l.split("@t:")[1].split() if "@t:" in l else None)
            l = l.split(";")[0].strip()
        out.append(l)
    return out
def so2(): return sPH if P.PCH else 38 if P.L2 else 0
def tn(n): return "KV"[n % 2] + str(n // 2)

class Gen:
    def __init__(self):
        self.L = []; self.R = []; self.uid = 0; self.sec = {}; self.base = {OWNP: 0, PARP: 0}
    def e(self, s): self.L.append(s)
    def lab(self, p):
        self.uid += 1; return f"L{p}_{self.uid}"
    def stamp(self, k):
        if not P.STAMP: return []
        if k == "start": return [f"s_memrealtime s[{sST+4}:{sST+5}]", f"s_memtime s[{sST+6}:{sST+7}]"]
        o = ["s_waitcnt lgkmcnt(0)", f"s_memrealtime s[{sST}:{sST+1}]", f"s_memtime s[{sST+2}:{sST+3}]", "s_waitcnt lgkmcnt(0)"]
        if P.STAMP == 3 and k in (1, 2, 4, 5, 6, 7, 8, 49, 50): return []
        if P.STAMP in (2, 4) and k in (1, 2, 4, 5, 7, 8, 9, 11, 42, 43, 44, 46, 47, 49, 50, 58, 59): return []
        return o + [f"v_writelane_b32 v{STR}, s{sST}, {k}", f"v_writelane_b32 v{STC}, s{sST+2}, {k}"]

    def softmax(self, t, n, add=False):
        it = []; pend = []; o = 2 * int(t[1])
        for s in TL[t]:
            if add: it += [[f"v_add_f32 v{S(t,s)+k}, v{S(t,s)+k}, v{CI(s)}"] for k in range(4)]
            for k in range(4):
                it.append([f"v_exp_f32 v{S(t,s)+k}, v{S(t,s)+k}"])
                if pend: it.append(pend.pop(0))
                if k % 2 == 1: pend.append([f"v_cvt_pk_bf16_f32 v{PR(s)+o+k//2}, v{S(t,s)+k-1}, v{S(t,s)+k}"])
            if o: pend.append([f"ds_write_b128 v{PARP}, {vr(PR(s))} offset:@{PX(n,s)}"])
        return it + pend
    def pprd(self, n, s): return f"ds_read_b128 {vr(PP(s))}, v{OWNP} offset:@{PX(n,s)}"

    def krd(self, b, kt, i): return [f"ds_read_b128 {ar(FB(b))}, v{KA+(i>>2)} offset:{kt*2048 + (i&3)*256}"]
    def trd(self, b, reg, j, base=0):
        off = base + (j >> 1) * 256
        return [f"ds_read_b64_tr_b16 {ar(FB(b),2)}, v{reg+(j&1)} offset:{off}", f"ds_read_b64_tr_b16 {ar(FB(b)+2,2)}, v{reg+(j&1)} offset:{off+2048}"]
    def kfrags(self, sc, tag, rel, due, d0, n=16, use=None):
        for k in range(n):
            pre = [f"v_add_u32 v{KA+(k>>2)}, {d0}, v{KA+(k>>2)}"] if k in (0, 4) and d0 else []
            sc.add_frag((tag, k), k, self.krd(k, k >> 3, k & 7), pre, rel, due, use=None if use is None else use + 3 * k)
    def vord(self, nb): return [(h, j) for h in range(2) for j in range(nb)] + [(h, j) for j in range(nb, 8) for h in range(2)]
    def vfrags(self, sc, tag, rel, due, d0, n=16, use=None, ch=None):
        if P.PCH:
            for k, (h, j) in enumerate(self.vord((ch or P.PCH)[0])[:n]):
                r = VA + 2 * h
                pre = [f"v_add_u32 v{r+j}, {d0}, v{r+j}"] if j < 2 and d0 else []
                sc.add_frag((tag, k), k, self.trd(k, r, j), pre, rel, due, use=None if use is None else use + 3 * (k & ~1) + (k & 1))
            return
        for k in range(n):
            pre = []
            if k < 2 and d0: pre = [f"v_add_u32 v{VA+k}, {d0}, v{VA+k}"]
            if k in (8, 9): pre = [f"v_add_u32 v{VA+k-8}, s{sH}, v{VA+k-8}"]
            sc.add_frag((tag, k), k, self.trd(k, VA, k & 7), pre, rel, due, use=None if use is None else use + 3 * k)
    def qk_mfmas(self, sc, tag):
        end = {}
        for h in "ba":
            n = P.QCH if isinstance(P.QCH, int) else P.QCH[h == "a"]
            for k, s in [(k0 + c, s) for k0 in range(0, 16, n) for s in TL[h + "0"] for c in range(n)]:
                t = h + str(k >> 3); i = k & 7
                end[t] = sc.m(f"{MF} {vr(S(t,s))}, {ar(FB(k))}, {QR(s,i)}, {vr(CI(s)) if i == 0 else vr(S(t,s))}", [(tag, k)])
        return end
    def pv_mfmas(self, sc, tag, first=False, og=OR, ch=None):
        start = {}; fin = {}
        for h in "ba":
            start[h] = sc.n()
            for s in TL[h + "0"]: fin[("l", s)] = sc.m(f"{MF} {ar(LS(s))}, {ar(ONES)}, {vr(PR(s))}, {'0' if first else ar(LS(s))}")
            if P.PCH:
                ch = ch or P.PCH; vo = self.vord(ch[0]); nu = ch[h == "a"]; T = TL[h + "0"]
                for hh, j, s in [(hh, j, s) for hh in range(2) for j in range(nu) for s in T] + [(hh, j, s) for j in range(nu, 8) for s in T for hh in range(2)]:
                    o = og(s, j); k = vo.index((hh, j))
                    fin[(s, j)] = sc.m(f"{MF} {o}, {ar(FB(k))}, {vr(PP(s) if hh else PR(s))}, {'0' if first and not hh else o}", [(tag, k)])
                continue
            for k in range(16):
                if k == 8: start[h + "p"] = sc.n()
                for s in TL[h + "0"]:
                    o = og(s, k & 7)
                    fin[(s, k & 7)] = sc.m(f"{MF} {o}, {ar(FB(k))}, {vr(PR(s) if k < 8 else PP(s))}, {'0' if first and k < 8 else o}", [(tag, k)])
        return start, fin

    def place_dma(self, sc, it, pos):
        k = 0; pend = []; prev = max(-1, pos[0] - 2)
        for x in it:
            if x[0].startswith("buffer"):
                for j, y in enumerate(pend): sc.fix(max(prev, pos[k] - len(pend) + j), y)
                pend = []
                sc.fix(pos[k], x); prev = pos[k]; k += 1
            else: pend.append(x)
        for y in pend: sc.fix(pos[-1] + 1, y)
    def basepass(self, L):
        out = []
        for l in L:
            m = re.search(r"offset:@(\d+)", l)
            if m:
                a = int(m.group(1)); r = OWNP if f"v{OWNP}" in l else PARP
                if not 0 <= a - self.base[r] < 65536:
                    b = min(a & ~32767, 98304)
                    out.append(f"v_add_u32 v{r}, {u32(b - self.base[r])}, v{r}"); self.base[r] = b
                l = l.replace(m.group(0), f"offset:{a - self.base[r]}")
            out.append(l)
        return out
    def split_writes(self, L):
        def halves(l):
            m = re.match(r"ds_write_b128 (v\d+), ([va])\[(\d+):\d+\] offset:(@?)(\d+)$", l)
            a, k, r, at, o = m.group(1), m.group(2), int(m.group(3)), m.group(4), int(m.group(5))
            return [f"ds_write_b64 {a}, {k}[{r+2*h}:{r+2*h+1}] offset:{at}{o+8*h}" for h in range(2)]
        out = []; pend = []
        for l in L:
            if l.startswith("@waitt ds_write_b128"): l = "@waitt " + halves(l[7:])[1]
            if pend:
                stop = l.startswith("@waitw") or "lgkmcnt(0)" in l or l == "s_barrier" or l.startswith("s_cbranch") or l[7:] in pend
                if not stop and not l.startswith("@"):
                    w = Ins(l.split(";")[0]).wr
                    stop = any(w & Ins(x).rd for x in pend)
                if stop: out += pend; pend = []
            if l.startswith("ds_write_b128"):
                h = halves(l)
                if pend: pend += h
                else: out.append(h[0]); pend.append(h[1])
                continue
            out.append(l)
            if l.startswith("v_mfma") and pend: out.append(pend.pop(0))
        return out + pend
    def finish(self, L, name, pre=()):
        if P.WSP: L = self.split_writes(L)
        L = vmpass(L, self.vq)
        L, self.fifo, _ = autowait(L, self.fifo, look=False)
        L = self.basepass(L)
        L, added = fix_hazards(L, pre)
        if name[:2] in ("qk", "pv"):
            for pat in P.STRIP: L = [l for l in L if not l.startswith(pat)]
        if name == "tail":
            for pat in P.STRIPT: L = [l for l in L if not l.startswith(pat)]
        if name == "head":
            i0 = next(k for k, l in enumerate(L) if l.startswith("s_barrier"))
            for pat in P.STRIPH: L = L[:i0+1] + [l for l in L[i0+1:] if not l.startswith(pat)]
        self.sec[name] = (L, added)
        return L
    def cw2(self):
        lb = self.lab("cw"); sr = sX; vt = T0
        return [[f"s_getpc_b64 s[{sr}:{sr+1}]", f"{lb}:"], [f"s_mov_b32 s{sr+2}, L_code_end-{lb}"],
                [f"v_mbcnt_lo_u32_b32 v{vt}, -1, 0"], [f"v_mbcnt_hi_u32_b32 v{vt}, -1, v{vt}"], [f"v_lshlrev_b32 v{vt}, 14, v{vt}"],
                [f"s_lshr_b32 s{sT1}, s2, 3"], [f"s_lshl_b32 s{sT1}, s{sT1}, 9"],
                [f"s_lshl_b32 s{sT2}, s{sW}, 7"], [f"s_add_u32 s{sT1}, s{sT1}, s{sT2}"], [f"v_add_u32 v{vt}, s{sT1}, v{vt}"],
                [f"buffer_load_dword v{vt}, v{vt}, {srd(sX)}, 0 offen ; @t:cw"]]

    def wo_touch(self):
        vt = T0
        return [[f"s_mul_i32 s{sT1}, s{sHd}, 32"], [f"s_lshl_b32 s{sT2}, s{sBt}, 2"], [f"s_add_u32 s{sT1}, s{sT1}, s{sT2}"], [f"s_add_u32 s{sT1}, s{sT1}, s{sW}"],
                [f"s_mul_i32 s{sT1}, s{sT1}, 7168"], [f"s_add_u32 s{sWQ}, s{sWO}, s{sT1}", f"s_addc_u32 s{sWQ+1}, s{sWO+1}, 0"], [f"s_mov_b32 s{sWQ+2}, 7168"],
                ["@vmw cw", f"v_mbcnt_lo_u32_b32 v{vt}, -1, 0"], [f"v_mbcnt_hi_u32_b32 v{vt}, -1, v{vt}"], [f"v_lshlrev_b32 v{vt}, 7, v{vt}"],
                [f"buffer_load_dword v{vt}, v{vt}, {srd(sWQ)}, 0 offen ; @t:cw"]]

    HW, HX, WA, XA, TV = 192, 200, 205, 209, 215
    WS_ = [SLOT(3), SLOT(2), SLOT(0)]
    XM = [SLOT(4), SLOT(1), SLOT(1) + 16384]
    def w_items(self, c):
        it = []
        for g in range(2):
            it.append([f"s_add_u32 m0, s{sW8K}, {self.WS_[c % 3] + g*4096}"])
            for u in range(4):
                it.append([f"buffer_load_dwordx4 v{self.HW+4*g+u}, {srd(sWQ)}, s{sCW} offen offset:{u*1024}{' nt' if c in P.WNT0 else P.WNT} lds ; @t:c{c}"])
        it.append([f"s_add_u32 s{sCW}, s{sCW}, 0x80000", f"s_cmp_eq_u32 s{sCW}, 0x380000"]); it[-1].append(f"s_cselect_b32 s{sCW}, 0, s{sCW}")
        return it
    def x_items(self, c):
        it = [[f"s_add_u32 m0, s{sT2}, {self.XM[c % 3]}"]]
        for k in range(4): it.append([f"buffer_load_dwordx4 v{self.HX+k}, {srd(sX)}, s{sCX} offen offset:{k*1024}{' nt' if c in P.WNT0 else P.WNT} lds ; @t:c{c}"])
        it.append([f"s_add_u32 m0, s{sT3}, {SLOT(4) + 16384 + 4096*(c % 3)}"])
        it.append([f"buffer_load_dwordx4 v{self.HX+4}, {srd(sX)}, s{sCX} offen{' nt' if c in P.WNT0 else P.WNT} lds ; @t:c{c}"])
        it.append([f"s_add_u32 s{sCX}, s{sCX}, 128", f"s_cmp_eq_u32 s{sCX}, 896", f"s_cselect_b32 s{sCX}, 0, s{sCX}"])
        return it
    def ld(self, p, dst):
        n = p // 8; u = p & 3
        sr, so = (sA, sOA) if n % 2 == 0 else (sB_, sOB)
        if so2() and not u & 1: so = so2() + n % 2
        return f"buffer_load_dwordx4 {dst + ', ' if dst else ''}v{T1 if P.PCH else VO+1 if so2() else VO+(u&1)}, {srd(sr)}, s{so} offen offset:{u*1024}{P.KVNT}{'' if dst else ' lds'} ; @t:{tn(n)} p{p}"
    def kv_head_items(self, n, np_=8, k0=0):
        so = sOA if n % 2 == 0 else sOB
        reg = n in (0, 1, 6) + tuple(P.HST)
        it = []
        for k in range(k0, np_):
            if (k % 4 == 0 or k == k0) and so2(): it.append([f"s_mov_b32 s{so2() + n % 2}, {(n//2)*P.KVINC + (k&4)*1024 + 768}"])
            if k % 4 == 0 or k == k0: it.append([f"s_mov_b32 s{so}, {(n//2)*P.KVINC + (k&4)*1024}"] + ([] if reg else [f"s_add_u32 m0, s{sW8K}, {SLOT(n) + (k&4)*1024}"]))
            it.append([self.ld(8 * n + k, STR_(n, k) if reg else None)])
        return it
    def touch(self, p):
        n = p // 8
        return [[f"s_mov_b32 s40, {(n//2)*P.KVINC + (p&7)*1024}"], [f"buffer_load_dword v{VO}, v{T1}, {srd(sA if n % 2 == 0 else sB_)}, s40 offen offset:768{P.TNT} ; @t:h{p}"]]
    def flush_items(self, n):
        return [["@vmw " + tn(n)]] + [[f"ds_write_b128 v{OWNP}, {STR_(n, k)} offset:@{SLOT(n) + k*1024}"] for k in range(8)]
    def uni_plan(self):
        N = lambda k: 80 if k % 2 == 0 else 85
        g0 = {2: 0, 1: -85}
        for k in range(3, 33): g0[k] = g0[k - 1] + N(k - 1)
        bar = lambda k: g0[k] + (P.BQ if k % 2 == 0 else P.BP if k > 1 else P.BPH)
        def rel(p):
            n, k = p // 8, p % 8
            if n % 2 == 0 and k >= 5: return g0[n - 3] + 14, self.pprd((n - 4) // 2, k - 5)
            if n % 2 == 1 and k >= 6: return bar(n - 4) + 12, self.pprd((n - 5) // 2, k - 3)
            return bar(n - 5) + 1, None
        seq = [46, 47] + list(range(56, 256))
        G = {p: -200 for p in range(48, 56)}
        pool = [(b, 48 + b) for b in range(8)]
        fl = {}; buf = {48 + b: b for b in range(8)}; prevo = {}
        prev = -1; tch = {}; hit = set()
        for q, p in enumerate(seq):
            g = max(int(P.UG[0] + (P.UG[1] - P.UG[0]) * (q / (len(seq) - 1)) ** P.UP), prev + 1)
            if q < 2: g = min(g, 2 + 11 * q)
            if P.L2:
                Z = P.L2; pts = [(Z["p0"], P.UG[0])] + list(Z["pts"]) + [(255, P.UG[1])]
                (pa, ga), (pb, gb) = next((x, y) for x, y in zip(pts, pts[1:]) if p <= y[0])
                h = int(ga + (gb - ga) * (p - pa) / (pb - pa))
                o = pool[0][1]; f = max(rel(o)[0], G[o] + P.UL, 0)
                if p >= Z["p0"] and p % Z["tw"] == 0 and max(prev + 1, min(rel(p + Z["tw"] - 1)[0], f + 3 if Z["stg"] else 9999)) - h > Z["mg"]: tch[p] = h
                tc = p < Z["p0"] or p - p % Z["tw"] in tch
                g = max(prev + Z["sp"], tch.get(p - p % Z["tw"], -99) + 20, 2) if tc else max(h, prev + 1)
                if tc: hit.add(p)
            if g < rel(p)[0]:
                b, o = pool[0]
                f = max(rel(o)[0], G[o] + P.UL, 0)
                if f + 3 >= rel(p)[0] or (p in hit and P.L2["stg"] < 2): g = rel(p)[0]
                else:
                    g = max(g, f + 3); fl[o] = max(f, min(g - P.UF, bar(o // 8 - 1) - 12))
                    pool = pool[1:] + [(b, p)]; buf[p] = b; prevo[p] = o
            G[p] = prev = g
            assert g < bar(p // 8 - 1) - 40, p
        pf = 0
        for b, o in pool: pf = fl[o] = max(rel(o)[0], min(G[o] + 180, bar(o // 8 - 1) - 30), pf + 3)
        ev = []; wr = {}
        for o in sorted(fl):
            assert fl[o] < bar(o // 8 - 1) - 2, o
            wr[o] = f"ds_write_b128 v{OWNP}, {STG(buf[o])} offset:@{SLOT(o // 8) + (o % 8)*1024}"
            ev.append((fl[o], 1, [f"@vmw p{o}"] + (["@waitt " + rel(o)[1]] if rel(o)[1] else []) + [wr[o]]))
        m0 = None; sv = {}
        for p in seq:
            n = p // 8; g = (p >> 2) & 1; so = sOA if n % 2 == 0 else sOB
            pre = []
            if so2() and not p & 1: so = so2() + n % 2
            if sv.get(so) != (n, g): sv[so] = (n, g); pre.append(f"s_mov_b32 s{so}, {(n//2)*P.KVINC + g*4096 + (768 if so < sOA else 0)}")
            if p in buf: pre.append("@waitt " + wr[prevo[p]])
            else:
                if rel(p)[1]: pre.append("@waitt " + rel(p)[1])
                if m0 != SLOT(n) + g * 4096: m0 = SLOT(n) + g * 4096; pre.append(f"s_add_u32 m0, s{sW8K}, {m0}")
            for x in pre: ev.append((G[p] - 1, 3, [x]))
            ev.append((G[p], 2, ([] if p in hit else [f"@hb 1 p{p}"] if P.L2 else self.vml(p)) + [self.ld(p, STG(buf[p]) if p in buf else None)]))
        for p, h in tch.items():
            a, b = self.touch(p); ev.append((h - 1, 3, a)); ev.append((h, 2.5, [f"@hb {P.L2['tw']} h{p}"] + b))
        self.ntch = len(tch)
        assert max(x[0] for x in ev) < g0[30] - 1
        if P.WG:
            assert max(fl.values()) < g0[P.WG[2]] - 20
            g = max(P.WG[0], prev + 2)
            for j in range(2):
                k = 0; pre = []
                for x in self.wo_items(j, 2 + j):
                    if not x[0].startswith("buffer"): pre += x; continue
                    r, w = rel(8 * (32 + j) + k)
                    g = max(g, r)
                    for y in ([f"@waitt {w}"] if w else []) + pre: ev.append((g - 1, 3, [y]))
                    ev.append((g, 2, ([f"@vml {P.WG[3] - 1}"] if P.WG[3] else []) + x))
                    pre = []; k += 1; g += P.WG[1]
        ev.sort(key=lambda x: (x[0], x[1]))
        if P.L2:
            hb = [(f"h{p}", P.L2["tw"]) for p, g in P.L2["hd"]]
            for _, _, it in ev:
                if not it[0].startswith("@hb"): continue
                _, w, tg = it[0].split(); w = int(w); k = len(hb) - 1; t = w
                while k >= 0 and t + hb[k][1] <= P.VN: t += hb[k][1]; k -= 1
                it[0:1] = [f"@vmw {hb[k][0]}"] if k >= 0 else []
                hb.append((tg, w))
        self.nstaged = len(buf)
        out = {k: [] for k in range(2, 31)}
        for g, _, it in ev:
            k = max(k for k in range(2, 31) if g0[k] - 1 <= g)
            out[k].append((g - g0[k], it))
        return out
    def vml(self, p):
        if P.VL:
            pm, wk, st, bit = next(x for x in P.VL[1:] if p < x[0])
            return [f"@vml {wk-1} {st-1} {bit}" if st < wk else f"@vml {wk-1}"]
        return [f"@vml {(P.VN(p) if callable(P.VN) else P.VN) - 1}"] if P.VN else []
    def kd(self, n): return u32(SLOT(n) - SLOT(n - 2))
    def vd(self, n): return self.kd(n) if P.PCH else f"s{sPH}" if SLOT(n) > SLOT(n - 2) else f"s{sNH}"
    def qk_part(self, sc, k):
        self.kfrags(sc, "k", None, "B", None); sc.init = [("k", j) for j in range(P.NPK)]
        end = self.qk_mfmas(sc, "k")
        a = self.softmax("b0", k // 2); b = self.softmax("b1", k // 2)
        sc.chain(end["b0"] + 2, P.BQ - 2, a + b, rels=[0] * len(a) + [end["b1"] + 2] * len(b))
        if P.PCH:
            for s in range(3): sc.fix(P.BQ + 3 + 2 * s, [self.pprd(k // 2, s)])
        return end
    def pv_soft(self, sc, k, n0=0, bp=None):
        a = self.softmax("a0", k // 2); b = self.softmax("a1", k // 2); bp = bp or P.BP
        sc.chain(n0 - 1, n0 + min(bp, 51) - 3, a + b, rels=[-1] * len(a) + [n0 + 1] * len(b))
        if not P.PCH:
            for s in range(3): sc.fix(n0 + 2 + 2 * s, [self.pprd(k // 2, s)])
        for s in (3, 4): sc.fix(n0 + bp + s - 2, [self.pprd(k // 2, s)])
    def static_body(self, k, ops):
        sc = Sch(**P.SL); qk = k % 2 == 0
        if qk:
            self.qk_part(sc, k); n = sc.n()
            self.vfrags(sc, "v", "B", None, self.vd(k + 1), n=P.NPV, use=n + 3)
        else:
            self.vfrags(sc, "v", None, "B", None); sc.init = [("v", j) for j in range(P.NPV)]
            self.pv_mfmas(sc, "v"); n = sc.n()
            self.kfrags(sc, "k", "B", None, self.kd(k + 1), n=P.NPK, use=n)
            self.pv_soft(sc, k)
        sc.bar("B", P.BQ if qk else P.BP, ["@vmw " + tn(k + 1) + " lgkmcnt(0)", "s_barrier"] + (self.stamp(11 + k) if P.STAMP == 1 or (P.STAMP == 4 and k % 4 == 1) else []))
        for g, it in ops: sc.fix(g, it)
        if k in P.UT: sc.chain(0, 20, self.cw2())
        if P.WG and k == P.WG[2]: sc.chain(2, 44, self.wo_setup())
        if k in P.WT: sc.chain(0, 20, self.wo_touch())
        if P.F2 and k == P.ZK[0]: sc.chain(0, 24, self.f2_zero())
        if P.F2 and k == P.ZK[1]: sc.chain(0, 20, self.f2_started())
        if k in P.FC: sc.chain(P.FCG, 22, self.fc_items(k))
        return self.finish(sc.run(), f"{'qk' if qk else 'pv'}{k}", self.L[-30:])
    def fc_items(self, k):
        i = P.FC.index(k) + 1
        it = []
        if i - 1 - P.FCL >= 1:
            a, r = self.lab("fs"), self.lab("fq")
            it += [[f"@vmw fc{i-1}"], [f"v_cmp_gt_u32 s[4:5], {i-1-P.FCL}, v{FCV}"], [f"s_and_b32 s4, s4, s{sFM}", f"s_cbranch_scc1 {a}", f"{r}:"]]
            self.R += [f"{a}:", f"s_movk_i32 s{sFT}, {i-P.FCL}", f"s_call_b64 s[{sRT2}:{sRT2+1}], L_fcspin", f"s_branch {r}"]
        elif i > 1: it += [[f"@vmw fc{i-1}"]]
        if i <= len(P.FC) - 1:
            it += [[f"v_cndmask_b32 v{FCV}, 0, 1, s[{sF1}:{sF1+1}]"], [f"buffer_atomic_add v{FCV}, v{VO+1}, {srd(sFC)}, 0 offen sc0 ; @t:fc{i}"]]
        return it
    def fc_spin(self):
        return ["L_fcspin:", f"buffer_load_dword v{FCV}, v{VO+1}, {srd(sFC)}, 0 offen sc1", "s_waitcnt vmcnt(0)",
                f"v_cmp_gt_u32 s[4:5], s{sFT}, v{FCV}", f"s_and_b32 s4, s4, s{sFM}", "s_cbranch_scc0 L_fcret",
                f"s_sub_u32 s{sFN}, s{sFN}, 1", "s_cbranch_scc0 L_fcspin", f"s_mov_b32 s{sFM}, 0", "L_fcret:", f"s_setpc_b64 s[{sRT2}:{sRT2+1}]"]

    def head_sched(self):
        sc = Sch(**P.SH)
        XF = lambda c, ks, s: 64 + 40 * (1 - c % 2) + 20 * ks + 4 * s
        fk = 0; done = {}
        for c in range(7):
            rel = f"p{c}" if c else None; due = f"p{c+1}"
            wreg, wb = [(self.WA + 2, 32768), (self.WA + 2, 0), (self.WA, 0)][c % 3]
            for ks in range(2):
                for s in range(5):
                    if s == 4: a = f"v{self.XA+4+ks} offset:{4096*(c%3)}"
                    elif c % 3 == 0: a = f"v{self.XA+2+ks} offset:{2048*s}"
                    else: a = f"v{self.XA+ks} offset:{self.XM[c%3] - SLOT(1) + 2048*s}"
                    sc.add_frag(("x", c, ks, s), ("x", c % 2, ks, s), [f"ds_read_b128 {ar(XF(c,ks,s))}, {a}"], rel=rel, due=due, q="x")
            seq = [(ks, j) for ks in range(2) for j in range(P.HCH)] if c < 6 else [(ks, j) for j in range(P.HCH) for ks in range(2)]
            seq += [(ks, j) for j in range(P.HCH, 8) for ks in range(2)]
            bu = {}
            for (ks, j) in seq:
                f = ("w", c, ks, j); b = bu[ks] = (fk + 4) % 12
                sc.add_frag(f, b, self.trd(b, wreg, j, wb + ks * 4096), rel=rel, due=due)
                fk += 1
                if j >= P.HCH and ks == 0: continue
                for s in range(5):
                    o = vr(QA(s, j))
                    for k2 in ((ks,) if j < P.HCH else (0, 1)):
                        done[j] = sc.m(f"{MF} {o}, {ar(FB(bu[k2]))}, {ar(XF(c,k2,s))}, {'0' if c == 0 and k2 == 0 else o}", [("w", c, k2, j), ("x", c, k2, s)])
            lines = [f"@vmw c{c+1} lgkmcnt(0)" if c < 6 else "s_waitcnt lgkmcnt(0)", "s_barrier"] + self.stamp(4 + c)
            sc.bar(due, sc.n() - 1 - P.BB, lines)
        nq = sc.n(); p6 = nq - 80 - 1 - P.BB; p7 = nq - 1 - P.BB
        XQ = lambda x: SLOT(1) + x * 1024 if x < 8 else SLOT(3) + (x - 8) * 1024 if x < 16 else SLOT(4) + (x - 16) * 1024
        qrd = lambda x: f"ds_read_b128 {QR(x % 5, 4 + x // 5)}, v{OWNP} offset:@{XQ(x)}"
        for x in range(20): sc.add_frag(("qx", x), ("qx", x), [qrd(x)], rel="p7" if x < 8 else "BX", q="qx", by=nq + 14 if x < 8 else nq + P.BXG + 16)
        order = [(kt, i) for i in (0, 1, 4, 2, 3) for kt in range(2)] + [(kt, i) for kt in range(2) for i in (5, 6, 7)]
        bufs = [8, 9, 10, 11, 0, 1, 2, 3, 4, 5, 6, 12, 13, 7, 14, 15]
        use = {}; end = {}
        for (kt, i), b in zip(order, bufs):
            sc.add_frag(("k0", kt, i), b, self.krd(b, kt, i), rel="BX" if b >= 12 else "p7", due="B0")
            for s in range(5):
                t = HF(s) + str(kt)
                g = sc.m(f"{MF} {vr(S(t,s))}, {ar(FB(b))}, {QR(s,i)}, {'0' if i == 0 else vr(S(t,s))}", [("k0", kt, i)] + ([("qx", 5 * (i - 4) + s)] if i >= 4 else []))
                use.setdefault((s, i), g); end[(kt, s)] = g
        n0 = sc.n(); b0 = end[(0, 4)] + 9
        sc.bar("B0", b0, ["s_waitcnt lgkmcnt(0)", "s_barrier"] + self.stamp(11))
        self.vfrags(sc, "v0", "B0", "B1", None, ch=(8, 8))
        start, _ = self.pv_mfmas(sc, "v0", True, ch=(8, 8))
        n1 = sc.n(); b1 = n0 + P.BPH; bp = n0 + 8
        sc.bar("BP", bp, ["@waitw", "s_barrier"] + self.stamp(59), clears=False)
        sc.bar("B1", b1, ["@vmw K1 lgkmcnt(0)", "s_barrier"] + self.stamp(12))
        self.kfrags(sc, "k1", "B1", None, self.kd(2), n=P.NPK, use=n1)
        bx = nq + P.BXG
        wl = []; wrl = []
        for i in range(4):
            it = []; sw = []
            for s in range(5):
                r = QA(s, 2 * i)
                it += [[f"v_mul_f32 v{r+k}, s{sSC}, v{r+k}"] for k in range(8)] + sw
                it += [[f"v_cvt_pk_bf16_f32 v{r+k}, v{r+2*k}, v{r+2*k+1}"] for k in range(4)]
                sw = [[f"v_permlane16_swap_b32 v{r+k}, v{r+2+k}"] for k in range(2)]
                x = 5 * i + s
                w = [f"ds_write_b128 v{PARP}, {vr(r)} offset:@{XQ(x)}"]
                if x < 8 or i == 3: sw.append(w)
                else: wl.append(w)
            it += sw
            g1 = max(use[(0, i)] - 2, done[2 * i + 1] + 2)
            if i < 2: g1 = min(g1, p7 - 2 if i else p7 - 20)
            g1 = min(g1, bx - 2)
            sc.chain(done[2 * i + 1] + 2, g1, it, hard=2.5)
            wrl += [g1 + 1] * (len(wl) - len(wrl))
        sc.chain(p7 + 1, bx - 2, wl, rels=wrl, after="p7")
        sc.bar("BX", bx, ["@waitw", "s_barrier"] + self.stamp(58), clears=False)
        sc.chain(p6 + 2, p6 + 30, self.flush_items(0))
        sc.chain(use[(0, 4)], bx - 1, [["@waitt " + qrd(7)]] + self.flush_items(1))
        mx = []; rl = []
        for s in range(5):
            r = S(HF(s) + "0", s); c = CI(s)
            mx += [[f"v_min3_f32 v{c}, -v{r}, -v{r+1}, -v{r+2}"], [f"v_min_f32 v{c}, -v{r+3}, v{c}"]]; rl += [end[(0, s)] + 2] * 2
        mx += [[f"s_cmp_lg_u32 s{sMODE}, 0", "s_cbranch_scc1 L_tmax", "L_tmax_ret:"]]
        mx += [[f"ds_min_f32 v{T0}, v{CI(s)} offset:{64*s}"] for s in range(5)]
        sc.chain(rl[0], b0 - 1, mx, rels=rl + [0] * 6, hard=3)
        rd = [[f"ds_read2_b32 {vr(CI(s)+k,2)}, v{T0} offset0:{16*s} offset1:{16*s}"] for k in (0, 2) for s in range(5)]
        c0 = self.softmax("b0", 0, True); c1 = self.softmax("b1", 0, True)
        wr = [x for x in c1 if x[0].startswith("ds_")]; c1 = [x for x in c1 if x not in wr]
        sc.chain(b0, n0 - 1, rd + c0 + c1, rels=[0] * (len(rd) + len(c0)) + [end[(1, 2)] + 2] * len(c1), after="B0", hard=4)
        sc.chain(n0, bp - 1, wr)
        sc.chain(n0 + 1, b1 - 5, self.softmax("a0", 0, True) + self.softmax("a1", 0, True))
        for s in range(3): sc.fix(bp + 1 + s, [self.pprd(0, s)])
        for s in (3, 4): sc.fix(b1 + s - 2, [self.pprd(0, s)])
        if 3 in P.HST: sc.chain(end[(0, 0)], b0 - 1, [["@waitt " + qrd(15)]] + self.flush_items(3))
        if 4 in P.HST: sc.chain(bp + 10, start["a"] - 4, [["@waitt " + self.pprd(0, 2)]] + self.flush_items(4))
        free = {"c3": "p1", "c4": "p2", "c5": "p3", "c6": "p4", "K1": "p5", "V2": "B0"}
        bgap = {v[0]: g for g, v in sc.bars.items()}
        bgap["V1"] = end[(0, 0)]; bgap["K2"] = bp + 10
        if 3 not in P.HST: free["V1"] = "V1"
        if 4 not in P.HST: free["K2"] = "K2"
        lastg = -10; used = []
        HQ = P.HQ if not P.VSP else [x for x in P.HQ if x[0][0] == "c"] + [x for x in P.HQ if x[0][0] != "c"]
        for (nm, g0, st, *rg) in HQ:
            if P.VSP and nm == HQ[5][0]: lastc = lastg; lastg = -10
            if P.VSP and nm in free and nm[0] != "c": g0 = max(g0, lastc + 3)
            if nm[0] == "c": it = self.w_items(int(nm[1])) + self.x_items(int(nm[1]))
            elif rg: it = self.kv_head_items(2 * int(nm[1]) + (nm[0] == "V"), rg[1], rg[0])
            else: it = self.kv_head_items(2 * int(nm[1]) + (nm[0] == "V"), 6 if nm == "V2" else 8)
            if nm == "V1" and nm in free: it = [["@waitt " + qrd(15)]] + it
            if nm == "K2" and nm in free: it = [["@waitt " + self.pprd(0, 2)]] + it
            if nm in free: g0 = max(g0, bgap[free[nm]] + 2)
            g0 = max(g0, lastg + 3)
            nb = sum(1 for x in it if x[0].startswith("buffer"))
            pos = [int(g0 + k * st) for k in range(nb)]
            for k in range(nb):
                if k: pos[k] = max(pos[k], pos[k - 1] + 1)
                while any(abs(pos[k] - u) < P.VSP for u in used): pos[k] += 1
            used += pos
            self.place_dma(sc, it, pos); lastg = pos[-1]
            if nm[0] == "c": assert lastg < bgap[f"p{nm[1]}"], nm
        assert lastg < n1 - 2
        if P.WP > 1: sc.fix(P.WP, [f"buffer_load_dword v{T1}, v{T1}, {srd(sFC)}, 0 offen{P.TNT}"])
        for (p, g) in (P.L2["hd"] if P.L2 else []):
            a, b = self.touch(p); sc.fix(g - 1, a); sc.fix(g, b)
        for (n, g) in P.TCH:
            assert g < b0
            sc.fix(g, [f"s_mov_b32 s{sT1}, {(n//2)*P.KVINC}", f"buffer_load_dword v{T1}, v{self.TV}, {srd(sA if n % 2 == 0 else sB_)}, s{sT1} offen offset:768{P.TNT}"])
        L = sc.run()
        ix = lambda t: L.index(t)
        bars = [k for k, l in enumerate(L) if l == "s_barrier"]
        for x in range(20):
            k = ix(f"ds_write_b128 v{PARP}, {vr(QA(x % 5, 2 * (x // 5)))} offset:@{XQ(x)}")
            assert (bars[5] < k < bars[6]) if x < 8 else (bars[6] < k < bars[7]), x
        assert ix(qrd(7)) < ix("@waitt " + qrd(7)) and ix(qrd(15)) < ix("@waitt " + qrd(15)) and ix(self.pprd(0, 2)) < ix("@waitt " + self.pprd(0, 2))
        return L
    def tmax(self):
        F = lambda i: OV(i); A = lambda s: OV(8 + s); AD = OV(13); X = OV(13) + 1
        R = ["L_tmax:", f"v_mbcnt_lo_u32_b32 v{X}, -1, 0", f"v_mbcnt_hi_u32_b32 v{X}, -1, v{X}",
             f"v_lshrrev_b32 v{AD}, 4, v{X}", f"v_lshlrev_b32 v{AD}, 1, v{AD}", f"s_movk_i32 s{sD}, 0xd8", f"v_bfe_u32 v{AD}, s{sD}, v{AD}, 2",
             f"v_lshlrev_b32 v{AD}, 4, v{AD}", f"v_and_b32 v{X}, 15, v{X}", f"v_lshl_add_u32 v{AD}, v{X}, 9, v{AD}",
             f"s_and_b32 s{sD}, s{sW}, 1", f"s_mul_i32 s{sD}, s{sD}, {262144 + 256}", f"v_add_u32 v{AD}, s{sD}, v{AD}", f"v_xor_b32 v{X}, 256, v{AD}",
             f"s_movk_i32 s{sD}, 768", "L_tmax_l:"]
        R += [f"buffer_load_dwordx4 {vr(F(i))}, v{AD if i < 4 else X}, {srd(sA)}, s{sD} offen offset:{64*(i&3)}" for i in range(8)]
        R += ["s_waitcnt vmcnt(0) lgkmcnt(0)"]
        for i in range(8):
            for s in range(5): R.append(f"{MF} {vr(A(s))}, {vr(F(i))}, {QR(s,i)}, {'0' if i == 0 else vr(A(s))}")
        R += ["s_nop 7", "s_nop 1"]
        for s in range(5): R += [f"v_min3_f32 v{CI(s)}, v{CI(s)}, -v{A(s)}, -v{A(s)+1}", f"v_min3_f32 v{CI(s)}, v{CI(s)}, -v{A(s)+2}, -v{A(s)+3}"]
        R += [f"s_add_u32 s{sD}, s{sD}, 8192", f"s_cmp_lt_u32 s{sD}, 262144", "s_cbranch_scc1 L_tmax_l", "s_branch L_tmax_ret"]
        return R

    WV = 220
    def wo_items(self, j, slot):
        it = []
        for g in range(2):
            it.append([f"s_add_u32 m0, s{sW8K}, {SLOT(slot) + g*4096}"] + ([f"s_add_u32 s{sT0}, s{sCO+j}, 28672"] if g else []))
            for u in range(4):
                it.append([f"buffer_load_dwordx4 v{self.WV+u}, {srd(sWQ)}, s{sT0 if g else sCO+j} offen offset:{u*1024}{' nt' if j in P.WONT else ''} lds ; @t:o{j}"])
        return it
    def wo_setup(self):
        WV = self.WV; L_ = WV + 3
        sw = [f"s_mul_i32 s{sT0}, s{sHd}, 229376", f"s_add_u32 s{sWQ}, s{sWO}, s{sT0}", f"s_addc_u32 s{sWQ+1}, s{sWO+1}, 0", f"s_mov_b32 s{sWQ+2}, 229376",
              f"v_mbcnt_lo_u32_b32 v{L_}, -1, 0", f"v_mbcnt_hi_u32_b32 v{L_}, -1, v{L_}",
              f"v_bfe_u32 v{WV}, v{L_}, 2, 3", f"v_mul_u32_u24 v{WV}, 896, v{WV}", f"v_lshrrev_b32 v{WV+1}, 5, v{L_}",
              f"v_lshl_add_u32 v{WV}, v{WV+1}, 6, v{WV}", f"v_lshrrev_b32 v{WV+1}, 3, v{L_}", f"v_and_b32 v{WV+1}, 2, v{WV+1}",
              f"v_and_b32 v{WV+2}, 3, v{L_}", f"v_xor_b32 v{WV+1}, v{WV+1}, v{WV+2}", f"v_lshl_add_u32 v{WV}, v{WV+1}, 4, v{WV}",
              f"s_mul_i32 s{sT0}, s{sW}, 57344", f"v_add_u32 v{WV}, s{sT0}, v{WV}"]
        sw += [f"v_add_u32 v{WV+u}, {6144*u}, v{WV}" for u in range(1, 4)]
        sw = [[x] for x in sw]
        sw[1:3] = [sw[1] + sw[2]]
        for j in range(7):
            nf = max(P.ROTW - 1, 0)
            if j == 0 and P.ROTW < 2: sw.append([f"s_lshl_b32 s{sCO}, s{sC}, 7" if P.ROTW else f"s_mov_b32 s{sCO}, 0"])
            elif j < nf: sw.append([f"s_movk_i32 s{sCO+j}, {128*j}"])
            elif j == nf: sw += [[f"s_cmp_ge_u32 s{sBt}, {7-nf}", f"s_cselect_b32 s{sT0}, {2*nf-7}, {nf}"], [f"s_add_u32 s{sCO+j}, s{sBt}, s{sT0}"], [f"s_lshl_b32 s{sCO+j}, s{sCO+j}, 7"]]
            else: sw.append([f"s_add_u32 s{sCO+j}, s{sCO+j-1}, 128", f"s_cmp_eq_u32 s{sCO+j}, 896", f"s_cselect_b32 s{sCO+j}, {128*nf}, s{sCO+j}"])
            sw.append([f"s_mul_i32 s{sCS+j}, s{sCO+j}, 160"])
        return sw
    def tail_sched(self):
        sc = Sch(**P.ST)
        WAr = lambda st, par: 224 + 2 * st + par
        SO = 230
        RL = lambda s: CI(0) + s
        LP = CI(2)
        end = self.qk_part(sc, 30)
        n0 = sc.n()
        wo_items = self.wo_items
        L_ = 233; O4 = 234
        sw = [] if P.WG else self.wo_setup()
        sw += [[f"v_mbcnt_lo_u32_b32 v{L_}, -1, 0"], [f"v_mbcnt_hi_u32_b32 v{L_}, -1, v{L_}"]]
        G_, R_ = WAr(0, 0), WAr(0, 1)
        su = [f"v_lshrrev_b32 v{G_}, 5, v{L_}", f"v_bfe_u32 v{R_}, v{L_}, 2, 3", f"v_lshlrev_b32 v{R_}, 6, v{R_}",
              f"v_lshl_add_u32 v{G_}, v{G_}, 10, v{R_}", f"v_and_b32 v{R_}, 3, v{L_}", f"v_lshl_add_u32 v{G_}, v{R_}, 3, v{G_}",
              f"v_and_b32 v{R_}, 16, v{L_}", f"v_lshl_add_u32 v{G_}, v{R_}, 1, v{G_}",
              f"s_and_b32 s{sT1}, s{sW}, 1", f"s_mul_i32 s{sT2}, s{sT1}, {16384+32}", f"v_xor_b32 v{G_}, s{sT2}, v{G_}", f"v_xor_b32 v{R_}, 0x4000, v{G_}"]
        su += [f"v_add_u32 v{WAr(st,k)}, {0x10000*st}, v{WAr(0,k)}" for st in (1, 2) for k in range(2)]
        su += [f"v_lshlrev_b32 v{L_}, 4, v{L_}", f"s_lshl_b32 s{sT1}, s{sT1}, 10", f"s_lshr_b32 s{sT2}, s{sW}, 1", f"s_lshl_b32 s{sT2}, s{sT2}, 13",
               f"s_add_u32 s{sT2}, s{sT2}, s{sT1}", f"v_add_u32 v{SO}, s{sT2}, v{L_}", f"v_add_u32 v{SO+1}, 4096, v{SO}",
               f"s_lshl_b32 s{sT2}, s{sW}, 10", f"s_add_u32 s{sT2}, s{sT2}, 16384", f"v_add_u32 v{SO+2}, s{sT2}, v{L_}",
               f"s_add_u32 s{sT2}, s{sW8K}, {SLOT(4)}", f"v_add_u32 v{O4}, s{sT2}, v{L_}", f"v_xor_b32 v{O4+1}, 0x2000, v{O4}", f"v_xor_b32 v{O4+2}, 0x4000, v{O4}"]
        sc.chain(0, 44, sw + [[x] for x in su])
        if P.WG:
            for g, it in self.plan[30]: sc.fix(g, it)
        else: self.place_dma(sc, wo_items(0, 2), P.WO0)
        sc.bar("B", P.BQ, ["@vmw V15 lgkmcnt(0)", "s_barrier"] + self.stamp(41))
        self.vfrags(sc, "v", "B", "B31", self.vd(31), ch=P.PCT)
        start, fin = self.pv_mfmas(sc, "v", og=lambda s, j: vr(OT(s, j)), ch=P.PCT)
        n1 = sc.n(); b1 = n0 + (P.BPT or P.BP)
        self.pv_soft(sc, 31, n0, P.BPT)
        if not P.WG: self.place_dma(sc, wo_items(1, 3), [n0 + 4 + 5 * k for k in range(8)])
        mv = lambda t: [[f"v_accvgpr_read_b32 v{8*(t-20)+k}, a{144+4*(t-20)+k}"] for k in range(4)]
        sc.chain(end["b1"] + 2, n0 + 8, [x for t in range(20, 24) for x in mv(t)])
        sc.chain(end["b1"] + 2, start["a"] - 2, [x for t in range(24, 40) for x in mv(t)], rels=[0] * 32 + [n0 + 1] * 32)
        sc.bar("B31", b1, ["s_waitcnt lgkmcnt(0)", "s_barrier"] + self.stamp(42))
        def XO(s, i, r):
            if s < 2: return f"v{O4 + r - OWNP}", f"offset:{(4 * s + i) * 1024}"
            return f"v{r}", f"offset:@{SLOT(0) + i * 1024 if s == 2 else SLOT(1) + (4 * (s - 3) + i) * 1024}"
        XL = SLOT(0) + 4096
        ord_ = lambda s, i: f"ds_read_b128 {QR(s, 4+i)}, {' '.join(XO(s, i, OWNP))}"
        g0 = sc.n(); ba = g0 + P.BAG; bb = g0 + P.BBG
        for h, bn, by in (("b", "Ba", ba + 10), ("a", "Bb", bb + 8)):
            for i in range(4):
                for s in TL[h + "0"]: sc.add_frag(("ox", s, i), ("ox", s, i), [ord_(s, i)], rel=bn, q="ox", by=by)
        pool = [S("b0", 0) + 4 * k for k in range(10)] + [OT(s, 2 * i + 1) for s in range(5) for i in range(4)]
        ui = [0]; fk = [0]; buse = {}
        def nacc():
            r = pool[ui[0] % len(pool)]; ui[0] += 1; return r
        SLW = [2, 3, 4, 0, 1, 2, 3]
        def wfrag(j, hi, i, rel, due):
            f = ("o", fk[0]); k = fk[0] % 16; fk[0] += 1; sl = SLW[j]
            off = (sl & 1) * 32768 + (i & 3) * 4096 + hi * 512
            sc.add_frag(f, k, [f"ds_read_b64_tr_b16 {ar(FB(k)+2*rd,2)}, v{WAr(sl>>1,i>>2)} offset:{off+2048*rd}" for rd in range(2)], rel=rel, due=due)
            return f, k
        def mm(fk_, acc, s, hi, i):
            o = vr(acc[s][hi])
            g = sc.m(f"{MF} {o}, {ar(FB(fk_[1]))}, {vr(OT(s,2*i)) if i < 4 else QR(s,i)}, {'0' if i == 0 else o}", [fk_[0]] + ([("ox", s, i - 4)] if i >= 4 else []))
            buse.setdefault((s, i), g); return g
        sts = []
        def epi(j, acc, s, his):
            it = []
            for hi in his:
                r = acc[s][hi]; d = acc[s][0] + 2 * hi
                it += [[f"v_mul_f32 v{r+k}, v{r+k}, v{RL(s)}"] for k in range(4)] + [[f"v_cvt_pk_bf16_f32 v{d+k}, v{r+2*k}, v{r+2*k+1}"] for k in range(2)]
            return it, [f"buffer_store_dwordx4 {vr(acc[s][0])}, v{SO+(s>>1)}, {srd(sWS)}, s{sCS+j} offen offset:{2048*(s&1)}{P.STMOD} ; @t:s{j}"] if 1 in his else None
        def epis(g, j, acc, subs, his):
            for s in subs:
                it, st = epi(j, acc, s, his); w = P.EPW * len(his)
                sc.chain(g, g + w + 1, it); g += w
                if st: sts.append((g + 2, st))
        acc = {s: (nacc(), nacc()) for s in range(5)}
        fr = {(hi, i): wfrag(0, hi, i, "Bo", "Bc") for par in range(2) for i in range(4 * par, 4 * par + 4) for hi in range(2)}
        ge = {}
        for par in range(2):
            for h in "ba":
                for i in range(4 * par, 4 * par + 4):
                    for hi in range(2):
                        for s in TL[h + "0"]: ge[h] = mm(fr[(hi, i)], acc, s, hi, i)
        sc.bar("Bo", n1 - 1 - P.BB, ["@vmw o0", "s_barrier"], clears=False)
        sc.bar("Ba", ba, ["@waitw", "s_barrier"] + self.stamp(43), clears=False)
        sc.bar("Bb", bb, ["@waitw", "@vmw o1", "s_barrier"] + self.stamp(44), clears=False)
        epis(ge["b"] + 2, 0, acc, range(5), (0, 1))
        relw = {1: "Bb", 2: "Bc", 3: "Bc", 4: "Bd", 5: "Be", 6: "Bf" if P.BF else "Be"}
        gj = {}
        for j in range(1, 7):
            acc = {s: (nacc(), nacc()) for s in range(5)}
            if j == 6 and P.SMAJ:
                fr = {(hi, i): wfrag(j, hi, i, relw[j], None) for hi in range(2) for i in range(8)}
                for subs in P.SMAJ:
                    for hi in range(2):
                        for i in range(8):
                            for s in subs: g = mm(fr[(hi, i)], acc, s, hi, i)
                        if 4 not in subs or not hi: epis(g + 2, j, acc, subs, (hi,))
                pend = subs
            else:
                for hi in range(2):
                    for i0 in range(0, 8, P.TCN):
                        f = {i: wfrag(j, hi, i, relw[j], "Bc" if j == 1 else None) for i in range(i0, i0 + P.TCN)}
                        for s in range(5):
                            for i in f: g = mm(f[i], acc, s, hi, i)
                    if j < 6 or not hi: epis(g + 2 + (12 if j == 1 and not hi else 0), j, acc, range(5), (hi,))
                pend = range(5)
            gj[j] = g
        pend = [epi(6, acc, s, (1,)) for s in pend]
        pend = [x for it, st in pend for x in it + [st]]
        if P.BF: sc.bar("Bf", gj[P.BF[0]] - P.BF[1], ["@vmw o6", "s_barrier"], clears=False)
        sc.bar("Bc", gj[1] - P.BB, ["@vmw o3 lgkmcnt(0)", "s_barrier"] + self.stamp(45))
        sc.bar("Bd", gj[3] - P.BB, ["@vmw o4", "s_barrier"] + self.stamp(46), clears=False)
        sc.bar("Be", gj[4] - P.BB, ["@waitw", "@vmw o5" if P.BF else "@vmw o6", "s_barrier"] + self.stamp(47), clears=False)
        for h, bg in (("b", ba), ("a", bb)):
            wl = []; wr = []
            for i in range(4):
                it = []
                for s in TL[h + "0"]:
                    r, r2 = OT(s, 2 * i), OT(s, 2 * i + 1)
                    it += [[f"v_cvt_pk_bf16_f32 v{r+k}, v{[r,r2][k>>1]+2*(k&1)}, v{[r,r2][k>>1]+2*(k&1)+1}"] for k in range(4)]
                    wl.append([f"ds_write_b128 {XO(s, i, PARP)[0]}, {vr(r)} {XO(s, i, PARP)[1]}"])
                r0 = fin[(TL[h + "0"][-1], 2 * i + 1)] + 2
                g1 = max(r0, min(buse[(TL[h + "0"][0], i)] - 2, r0 + 30))
                sc.chain(r0, g1, it, hard=2.5)
                wr += [g1 + 1] * (len(wl) - len(wr))
            if h == "b":
                wl = [[f"ds_write_b32 v{PARP}, a{LS(s)} offset:@{XL + (4*s if s < 4 else 1024)}"] for s in range(5)] + wl
                wr = [fin[("l", 4)] + 3] * 5 + wr
            sc.chain(max(b1 + 1, wr[0]), bg - 2, wl, rels=wr, after="B31")
        lrd = f"ds_read_b32 v{LP+4}, v{OWNP} offset:@{XL+1024}"
        m = [[f"ds_read_b128 {vr(LP)}, v{OWNP} offset:@{XL}"], [lrd]] + [[f"v_accvgpr_read_b32 v{RL(s)}, a{LS(s)}"] for s in range(5)]
        m += [[f"v_add_f32 v{RL(s)}, v{RL(s)}, v{LP+s}"] for s in range(5)]
        m += [[f"v_add_f32 v{LP}, v{RL(0)}, v{RL(1)}"], [f"v_add_f32 v{LP+1}, v{RL(2)}, v{RL(3)}"], [f"v_add3_u32 v{LP+2}, 0, 0, 0"], [f"v_add_f32 v{LP}, v{LP}, v{RL(4)}"], [f"v_add_f32 v{LP}, v{LP}, v{LP+1}"]]
        del m[-3]
        m += [[f"v_rcp_f32 v{RL(s)}, v{RL(s)}"] for s in range(5)]
        sc.chain(ba + 1, ge["b"], m, after="Ba")
        sc.chain(gj[3] - P.BB + 1, gj[4] - P.BB - 8, [[f"ds_write_b32 v{O4}, v{LP}"]], after="Bd")
        used = []
        pre = {2: [["@waitt " + ord_(1, 3)]], 3: [["@waitt " + ord_(2, 3), "@waitt " + lrd]], 4: [["@waitt " + ord_(4, 3)]]}
        for j, (o, st) in zip(range(2, 7), P.TQ):
            pos = [int(g0 + o + st * k) for k in range(8)]
            assert pos[0] > (ba + 12 if j < 4 else bb + 10 if j == 4 else gj[1] - P.BB + 1) and (not used or pos[0] > used[-1] + 1)
            self.place_dma(sc, pre.get(j, []) + wo_items(j, SLW[j]), pos); used += pos
        g1 = g0 + P.TS0 - P.TSS
        for g, st in sts:
            g1 = max(g, g1 + (P.TSS if g < gj[5] + 30 else min(P.TSS, 4)))
            while any(abs(g1 - u) < P.TSP for u in used): g1 += 1
            g1 = min(g1, sc.n() - 1); assert g1 < g + 150
            sc.fix(g1, st)
        ck = [[f"ds_read_b32 v{LP+1}, v{O4+2}"], [f"v_add_f32 v{LP}, v{LP}, v{LP+1}"], [f"v_cmp_nge_f32 vcc, s{sTH}, v{LP}"], ["s_cbranch_vccnz L_redo", "L_redo_ret:"]]
        if P.F2:
            sc.chain(gj[4] - P.BB + 1, gj[4] + 16, ck, rels=[0, gj[4] + 6, 0, 0], after="Be")
            sc.chain(g0 + P.CG[0], g0 + P.PG - 2, self.f2_setup() + self.f2_share() + [["@vmw by", self.f2_st()]])
            sc.fix(g0 + P.PG, [self.f2_poll() + " ; @t:pl"])
            for n, g in P.EF:
                if g is not None:
                    assert g0 + g > gj[4] + 17
                    sc.fix(g0 + g, [f"@vmw s{n-1}"] + self.f2_flag(n))
        else: sc.chain(gj[4] - P.BB + 1, gj[5], ck, rels=[0, gj[4] + 10, 0, 0], after="Be")
        L = sc.run()
        for x in (ord_(1, 3), ord_(2, 3), lrd, ord_(4, 3)):
            assert L.index(x) < L.index("@waitt " + x), x
        i1 = next(k for k, l in enumerate(L) if l.startswith(f"v_rcp_f32 v{RL(4)},")); i2 = next(k for k, l in enumerate(L) if l.startswith("v_mul_f32"))
        assert i1 < i2
        L += ["s_nop 7"] + [x for it in pend for x in it]
        if P.F2:
            for n, g in P.EF:
                i = L.index(self.f2_flag(n)[1]) if g is not None else len(L)
                assert sum(1 for l in L[:i] if l.endswith(f"@t:s{n-1}")) == 5 and L.index("L_redo_ret:") < i
            assert L.index(self.f2_st()) < L.index(self.f2_poll() + " ; @t:pl")
            L += self.f2_first()
        return L
    def redo(self):
        return ["L_redo:", f"s_cmp_lg_u32 s{sMODE}, 0", "s_cbranch_scc1 L_redo_ret", f"s_mov_b32 s{sMODE}, 1", "s_waitcnt vmcnt(0) lgkmcnt(0)", "s_barrier",
                "v_mbcnt_lo_u32_b32 v0, -1, 0", "v_mbcnt_hi_u32_b32 v0, -1, v0", f"s_lshl_b32 s{sT0}, s{sW}, 6", f"v_add_u32 v0, s{sT0}, v0",
                "s_getpc_b64 s[4:5]", "L_redo_pc:", "s_sub_u32 s4, s4, L_redo_pc-L_again", "s_subb_u32 s5, s5, 0", "s_setpc_b64 s[4:5]"]

    def f2_zero(self):
        a, b = sT1, sT2
        return [[f"v_mbcnt_lo_u32_b32 v{T1}, -1, 0"], [f"v_mbcnt_hi_u32_b32 v{T1}, -1, v{T1}"], [f"v_lshlrev_b32 v{T1}, 4, v{T1}"],
                [f"s_lshl3_add_u32 s{a}, s{sBLK}, s{sBt}"], [f"s_mul_i32 s{a}, s{a}, {16*PART}"], [f"s_lshl_b32 s{b}, s{sW}, 8"], [f"s_lshl2_add_u32 s{b}, s{sHd}, s{b}"],
                [f"s_add_u32 s{a}, s{a}, s{b}"], [f"s_add_u32 s{a}, s{a}, {MB0}"], [f"s_add_u32 s{F.sFL}, s72, s{a}", f"s_addc_u32 s{F.sFL+1}, s73, 0"],
                [f"s_mov_b32 s{F.sFL+2}, 4"], [f"s_mov_b32 s{F.sFL+3}, 0x20000"], [f"buffer_store_dword v{T1}, v{T1}, {srd(F.sFL)}, 0 offen sc1"]]
    def f2_started(self):
        a = sT1
        return [[f"s_lshl3_add_u32 s{a}, s{sBLK}, s{sBt}"], [f"s_lshl4_add_u32 s{a}, s{a}, s{sHd}"], [f"s_add_u32 s{sX}, s94, s{a}", f"s_addc_u32 s{sX+1}, s95, 0"],
                [f"s_cmp_eq_u32 s{sW}, 0", f"s_cselect_b32 s{sX+2}, 1, 0"], [f"buffer_store_byte a{ONES}, v{T1}, {srd(sX)}, 0 offen sc1"]]
    def f2_setup(self):
        L_ = T1; a, b = F.t0, F.t1
        return [[f"s_lshl3_add_u32 s{a}, s{sBLK}, s{sBt}"], [f"s_lshl_b32 s{b}, s{a}, 4"],
                [f"s_add_u32 s{F.sDB}, s94, s{b}", f"s_addc_u32 s{F.sDB+1}, s95, 0"], [f"s_mov_b32 s{F.sDB+2}, 16"], [f"v_lshrrev_b32 v{F.LN}, 4, v{L_}"],
                [self.f2_bytes() + " ; @t:by"],
                [f"s_mul_i32 s{a}, s{a}, {16*PART}"], [f"s_add_u32 s{F.sPR}, s72, s{a}", f"s_addc_u32 s{F.sPR+1}, s73, 0"], [f"s_mov_b32 s{F.sPR+2}, {16*PART}"],
                [f"s_mov_b32 s{F.sOU}, s92"], [f"s_mov_b32 s{F.sOU+1}, s93"], [f"s_mov_b32 s{F.sOU+2}, {8*160*1792}"], [f"s_mov_b32 s{F.sOU+3}, 0x20000"],
                [f"s_mov_b32 s{F.FRC}, 0"], [f"s_movk_i32 s{F.CNT}, {P.SPIN}"], [f"s_mov_b32 s{F.PEND}, -1"], [f"s_mov_b32 s{F.GU}, 0"], [f"s_mov_b32 s{F.IDX}, s{sHd}"],
                [f"s_lshl_b32 s{a}, s{sW}, 8"], [f"s_add_u32 s{a}, s{a}, {MB0}"], [f"v_lshrrev_b32 v{F.MP}, 8, v{L_}"], [f"v_lshl_add_u32 v{F.MP}, v{F.MP}, 26, v{F.LN}"],
                [f"v_lshl_add_u32 v{F.MP}, v{F.MP}, 2, s{a}"], [f"v_and_b32 v{F.Q2}, 3, v{F.LN}"], [f"v_lshlrev_b32 v{F.Q2}, 1, v{F.Q2}"],
                [f"v_and_b32 v{F.LO}, 0xf0, v{L_}"], [f"v_mul_u32_u24 v{F.LO}, 112, v{F.LO}"], [f"v_bfe_u32 v{F.TV}, v{L_}, 8, 1"], [f"v_lshl_add_u32 v{F.LO}, v{F.TV}, 6, v{F.LO}"],
                [f"v_lshrrev_b32 v{F.TV}, 9, v{L_}"], [f"v_lshl_add_u32 v{F.LO}, v{F.TV}, 4, v{F.LO}"],
                [f"v_and_b32 v{F.IDN}, 16, v{L_}"], [f"s_movk_i32 s{a}, 0x3f80"], [f"v_lshlrev_b32 v{F.IDN}, v{F.IDN}, s{a}"], [f"v_bfe_i32 v{F.TV}, v{L_}, 5, 1"],
                [f"v_and_b32 v{F.IDN+1}, v{F.IDN}, v{F.TV}"], [f"v_xor_b32 v{F.IDN}, v{F.IDN}, v{F.IDN+1}"],
                [f"s_mul_i32 s{a}, s{sBt}, {160*1792}"], [f"s_mul_i32 s{b}, s{sBLK}, 896"], [f"s_add_u32 s{a}, s{a}, s{b}"], [f"s_and_b32 s{b}, s{sW}, 1"],
                [f"s_lshl_b32 s{b}, s{b}, 5"], [f"s_add_u32 s{a}, s{a}, s{b}"], [f"v_add_u32 v{F.LO}, s{a}, v{F.LO}"], [f"s_lshl_b32 s{b}, s{b}, 5"],
                [f"v_add_u32 v{F.PB}, s{b}, v{L_}"]]
    def f2_share(self):
        u, s_, d, a = F.t0, F.t1, F.NEW, F.NEW + 1
        it = [[f"s_lshl2_add_u32 s{F.IDX}, s{sW}, s{F.IDX}"], [f"s_and_b32 s{F.IDX}, s{F.IDX}, 15"], [f"s_min_u32 s{u}, s{F.IDX}, 3"], [f"s_lshl1_add_u32 s{u}, s{F.IDX}, s{u}"],
              [f"s_mov_b32 s{F.SEEN}, 0xffff0000"], [f"s_mov_b32 s{F.SEEN+1}, 0xffff0000"], [f"s_cmp_lt_u32 s{F.IDX}, 3", f"s_cselect_b32 s{F.SEEN+2}, 0xffff0000, -1"]]
        for k in range(3):
            it += [[f"s_mul_i32 s{s_}, s{u}, 37"], [f"s_lshr_b32 s{s_}, s{s_}, 8"], [f"s_mul_i32 s{d}, s{s_}, 7"], [f"s_sub_u32 s{d}, s{u}, s{d}"],
                   [f"v_sub_u32 v{F.POS+k}, s{d}, v{F.Q2}"], [f"v_add_u32 v{F.PO+k}, 7, v{F.POS+k}"], [f"v_min_u32 v{F.POS+k}, v{F.POS+k}, v{F.PO+k}"]]
            it += [[f"s_add_u32 s{d}, s{d}, s{sBt}"], [f"s_sub_u32 s{a}, s{d}, 7"], [f"s_min_u32 s{d}, s{d}, s{a}"]]
            it += [[f"s_lshr_b32 s{a}, s{sW}, 1"], [f"s_add_u32 s{F.HO}, s{a}, 8"], [f"s_lshl2_add_u32 s{a}, s{a}, s{s_}"],
                   [f"s_cmp_lt_u32 s{s_}, 4", f"s_cselect_b32 s{s_}, s{a}, s{F.HO}"]]
            it += [[f"s_mul_i32 s{a}, s{d}, 10"], [f"s_add_u32 s{a}, s{a}, s{s_}"], [f"s_lshl_b32 s{a}, s{a}, 11"], [f"v_add_u32 v{F.PO+k}, s{a}, v{F.PB}"],
                   [f"s_mul_i32 s{s_}, s{s_}, {16*14}"], [f"s_add_u32 s{a}, s{s_}, s{d}"], [f"s_lshl_b32 s{a}, s{a}, 7"], [f"v_add_u32 v{F.OO+k}, s{a}, v{F.LO}"]]
            if k < 2: it += [[f"s_add_u32 s{u}, s{u}, 1"]]
        return it
    def f2_poll(self): return f"buffer_load_dword v{F.TV}, v{F.MP}, {srd(F.sPR)}, 0 offen sc1"
    def f2_bytes(self): return f"buffer_load_ubyte v{F.BY}, v{F.LN}, {srd(F.sDB)}, 0 offen sc1"
    def f2_st(self): return f"v_cmp_lt_u32 s[{F.ST}:{F.ST+1}], 64, v{F.BY}"
    def f2_flag(self, n): return [f"v_mov_b32 v{F.D0+(n&1)}, {n}", f"buffer_store_dword v{F.D0+(n&1)}, v{T1}, {srd(F.sFL)}, 0 offen sc1 ; @t:f{n}"]
    def f2_trace(self):
        if not P.STAMP: return []
        return [f"s_bcnt0_i32_b32 s45, s{F.SEEN}", f"s_bcnt0_i32_b32 s84, s{F.SEEN+1}", "s_add_u32 s45, s45, s84", "s_memrealtime s[84:85]", "s_waitcnt lgkmcnt(0)", "s_mov_b32 m0, s44",
                f"v_writelane_b32 v{STR}, s84, m0", f"v_writelane_b32 v{STC}, s45, m0", "s_add_u32 s44, s44, 1", "s_min_u32 s44, s44, 40", f"v_writelane_b32 v{STR}, s44, 61"]
    def f2_first(self):
        L = ["@vmw pl"]; self.npost = 0
        for n, g in P.EF:
            if g is None: L += [f"@vmw s{n-1}"] + self.f2_flag(n); self.npost += 1
        if P.STAMP: L += [f"v_writelane_b32 v{STR}, s{F.IDX}, 60", "s_mov_b32 s44, 16", f"v_writelane_b32 v{STR}, 16, 61"]
        if not P.FP: L += ["@vmw s6", "s_branch L_f_pub"]
        return L
    def fin2(self):
        L = []; e = L.append
        e("L_f_calc:")
        C = [F.C, F.C + 2, F.t0]
        for k in range(3): e(f"v_cmp_gt_u32 s[{C[k]}:{C[k]+1}], v{F.TV}, v{F.POS+k}")
        for k in range(3):
            e(f"s_and_b32 s{C[k]}, s{C[k]}, s{F.ST}"); e(f"s_or_b32 s{C[k]}, s{C[k]}, s{F.FRC}")
            e(f"s_andn2_b32 s{F.NEW+k}, s{C[k]}, s{F.SEEN+k}"); e(f"s_or_b32 s{F.SEEN+k}, s{F.SEEN+k}, s{F.NEW+k}")
        e(f"s_or_b32 s{F.t0}, s{F.NEW}, s{F.NEW+1}"); e(f"s_or_b32 s{F.t0}, s{F.t0}, s{F.NEW+2}"); e("s_cbranch_scc0 L_f_k2h15")
        L += self.f2_trace()
        for k in range(3):
            if k == 2: e(f"s_cmp_eq_u32 s{F.NEW+k}, 0"); e("s_cbranch_scc1 L_f_k2h15")
            for q in range(4):
                hs = [q + 4 * x for x in range(4)]
                e(f"s_and_b32 s{F.t1}, s{F.NEW+k}, {hex(0x1111 << q)}"); e(f"s_cbranch_scc0 L_f_k{k}h{hs[-1]}")
                for h in hs:
                    e(f"s_bitcmp1_b32 s{F.NEW+k}, {h}"); e(f"s_cbranch_scc0 L_f_k{k}h{h}")
                    e(f"s_mov_b32 s{F.HO}, {h*PART}")
                    e(f"buffer_load_dwordx4 {ar(12*h+4*k)}, v{F.PO+k}, {srd(F.sPR)}, s{F.HO} offen{P.RDMOD}")
                    e(f"L_f_k{k}h{h}:")
        e(f"s_cmp_lg_u32 s{F.FRC}, 0"); e("s_cbranch_scc1 L_f_chk")
        e(f"s_bcnt1_i32_b32 s{F.t0}, s{F.NEW}"); e(f"s_bcnt1_i32_b32 s{F.t1}, s{F.NEW+1}"); e(f"s_add_u32 s{F.t0}, s{F.t0}, s{F.t1}")
        e(f"s_bcnt1_i32_b32 s{F.t1}, s{F.NEW+2}"); e(f"s_add_u32 s{F.t0}, s{F.t0}, s{F.t1}")
        for n in (12, 24): e(f"s_cmp_le_u32 s{F.t0}, {n}"); e(f"s_cbranch_scc1 L_f_w{n}")
        for n in range(48, -1, -1):
            if n in (12, 24): e(f"L_f_w{n}:")
            e(f"s_waitcnt vmcnt({n + self.npost})")
            if n: e(f"s_cmp_eq_u32 s{F.t0}, {n}"); e("s_cbranch_scc1 L_f_pub")
        e("L_f_pub:")
        L += self.stamp(48)
        L += [x.split(";")[0].strip() for x in self.f2_flag(7)]
        e(f"s_lshl_b32 s{F.FRC}, 1, s{sHd}"); e("s_branch L_f_calc")
        e("L_f_chk:")
        e(f"s_and_b32 s{F.t0}, s{F.SEEN}, s{F.SEEN+1}"); e(f"s_and_b32 s{F.t0}, s{F.t0}, s{F.SEEN+2}"); e(f"s_not_b32 s{F.t0}, s{F.t0}"); e("s_cbranch_scc0 L_f_sum")
        e(f"s_cmp_lg_u32 s{F.ST}, 0xffff"); e("s_cbranch_scc1 L_f_st")
        e("L_f_poll:")
        e(self.f2_poll()); e(f"s_sub_u32 s{F.CNT}, s{F.CNT}, 1"); e("s_waitcnt vmcnt(0)"); e("s_cbranch_scc0 L_f_calc")
        e(f"s_cmp_lg_u32 s{F.GU}, 0"); e("s_cbranch_scc1 L_f_end")
        e(f"s_and_b32 s{F.t0}, s{sHd}, 3"); e(f"s_lshl3_add_u32 s{F.t0}, s{F.t0}, s{sW}"); e(f"s_lshl_b32 s{F.t0}, 1, s{F.t0}"); e(f"v_mov_b32 v{F.BY}, s{F.t0}")
        e(f"s_and_b32 s{F.t0}, s{sHd}, 12"); e(f"v_add_u32 v{F.D0}, s{F.t0}, v{T1}")
        e(f"buffer_atomic_or v{F.BY}, v{F.D0}, {srd(F.sDB)}, 0 offen sc0"); e("s_waitcnt vmcnt(0)")
        e(f"s_mov_b32 s{F.GU}, 1"); e(f"s_mov_b32 s{F.CNT}, 2")
        e("L_f_st:")
        e(self.f2_bytes()); e("s_waitcnt vmcnt(0)"); e(self.f2_st()); e("s_branch L_f_poll")
        e("L_f_sum:")
        e(f"s_cmp_ge_u32 s{F.IDX}, 3"); e("s_waitcnt vmcnt(0)"); e(self.f2_bytes()); e("s_cbranch_scc1 L_f_s2")
        for U in (3, 2):
            e(f"L_f_s{U}:")
            L += self.stamp(51)
            for h in range(16):
                for k in range(U):
                    for d in range(2):
                        o = vr(8 * k + 4 * d)
                        e(f"v_mfma_f32_4x4x4_16b_bf16 {o}, {vr(F.IDN,2)}, {ar(12*h+4*k+2*d,2)}, {o if h else 0}")
            e("s_nop 4")
            for k in range(U):
                r = 32 + 4 * k
                for d in range(4): e(f"v_cvt_pk_bf16_f32 v{r+d}, v{8*k+2*d}, v{8*k+2*d+1}")
                e(f"v_permlane16_swap_b32 v{r}, v{r+2}"); e(f"v_permlane16_swap_b32 v{r+1}, v{r+3}")
                e(f"buffer_store_dwordx4 {vr(r)}, v{F.OO+k}, {srd(F.sOU)}, 0 offen{P.OUMOD}")
            e(f"s_waitcnt vmcnt({U})")
            if U > 2: e("s_branch L_f_next")
        e("L_f_next:")
        e(f"v_lshrrev_b32 v{F.BY}, s{sW}, v{F.BY}"); e(f"v_and_b32 v{F.BY}, 1, v{F.BY}"); e(f"v_cmp_eq_u32 vcc, 1, v{F.BY}")
        e(f"s_and_b32 s{F.t0}, vcc_lo, s{F.PEND}"); e("s_cbranch_scc0 L_f_end")
        e(f"s_ff1_i32_b32 s{F.IDX}, s{F.t0}"); e(f"s_bitset0_b32 s{F.PEND}, s{F.IDX}")
        L += [x for it in self.f2_share() for x in it]
        e(f"s_mov_b32 s{F.GU}, 1"); e(f"s_mov_b32 s{F.CNT}, 2"); e("s_branch L_f_st")
        e("L_f_end:")
        return L

    def fin(self):
        L = []; e = L.append
        sDB, sPR, sOU = sA, sB_, sX
        sOLD, sIDX, sMASK, sSEEN, sNEW, sPEND, sCNT, sPAR, sOWN, sSZ, sHO = 32, 33, 34, 35, 36, 37, 38, 39, 40, 41, 42
        ACC = lambda h, k, d: 24 * (h >> 1) + 8 * k + 2 * d
        LN, L4, LO, SOF, TV = 236, 237, 238, 239, 240
        PO = [241, 242, 243]; OO = [244, 245, 246]
        zero = [f"v_mov_b64 v[{r}:{r+1}], 0" for r in range(0, 192, 2)]
        e(f"s_lshl_b32 s{sT0}, s{sBLK}, 3"); e(f"s_add_u32 s{sT0}, s{sT0}, s{sBt}")
        e(f"s_lshl_b32 s{sT1}, s{sT0}, 4"); e(f"s_add_u32 s{sDB}, s94, s{sT1}"); e(f"s_addc_u32 s{sDB+1}, s95, 0"); e(f"s_mov_b32 s{sDB+2}, 4")
        e(f"s_mov_b32 s{sSZ}, {16*PART}"); e(f"s_mul_i32 s{sT0}, s{sT0}, s{sSZ}")
        e(f"s_add_u32 s{sPR}, s72, s{sT0}"); e(f"s_addc_u32 s{sPR+1}, s73, 0")
        e(f"s_mov_b32 s{sOU}, s92"); e(f"s_mov_b32 s{sOU+1}, s93"); e(f"s_mov_b32 s{sOU+2}, {8*160*1792}"); e(f"s_mov_b32 s{sOU+3}, 0x20000")
        e(f"s_lshl_b32 s{sOWN}, 1, s{sHd}"); e(f"s_mov_b32 s{sCNT}, {P.SPIN}"); e(f"s_mov_b32 s{sPEND}, 0")
        e(f"v_mbcnt_lo_u32_b32 v{LN}, -1, 0"); e(f"v_mbcnt_hi_u32_b32 v{LN}, -1, v{LN}"); e(f"v_lshlrev_b32 v{L4}, 2, v{LN}")
        e(f"v_and_b32 v{TV}, 15, v{LN}"); e(f"v_mul_u32_u24 v{LO}, 1792, v{TV}"); e(f"v_bfe_u32 v{TV}, v{LN}, 4, 1")
        e(f"v_lshl_add_u32 v{LO}, v{TV}, 6, v{LO}"); e(f"v_lshrrev_b32 v{TV}, 5, v{LN}"); e(f"v_lshl_add_u32 v{LO}, v{TV}, 4, v{LO}")
        MA_, MP_, TW = 247, 248, 249
        e(f"v_mov_b32 v{TV}, s{sOWN}"); e(f"v_mov_b32 v{TW}, s{sOWN}"); e(f"s_mov_b32 s{sPR+2}, s{sSZ}")
        e(f"v_mul_u32_u24 v{MA_}, {PART}, v{LN}"); e(f"v_add_u32 v{MA_}, {MBOX}, v{MA_}")
        e(f"v_lshlrev_b32 v{MP_}, 8, v{LN}"); e(f"v_add_u32 v{MP_}, {MBOX}, v{MP_}")
        IDN = 232
        e(f"v_and_b32 v{IDN}, 1, v{LN}"); e(f"v_lshlrev_b32 v{IDN}, 4, v{IDN}"); e(f"s_movk_i32 s{sT0}, 0x3f80"); e(f"v_lshlrev_b32 v{IDN}, v{IDN}, s{sT0}")
        e(f"v_bfe_i32 v{SOF}, v{LN}, 1, 1"); e(f"v_and_b32 v{IDN+1}, v{IDN}, v{SOF}"); e(f"v_xor_b32 v{IDN}, v{IDN}, v{IDN+1}")
        e("s_waitcnt vmcnt(0)")
        L += self.stamp(48)
        e("s_barrier")
        e(f"s_cmp_lg_u32 s{sW}, 0"); e("s_cbranch_scc1 L_f_b0")
        e(f"buffer_atomic_add v{TV}, v{L4}, {srd(sDB)}, 0 offen sc0")
        e(f"buffer_atomic_add v{TW}, v{MA_}, {srd(sPR)}, 0 offen"); e("s_waitcnt vmcnt(1)")
        e(f"ds_write_b32 v{L4}, v{TV}"); e("s_waitcnt lgkmcnt(0)")
        e("L_f_b0:"); e("s_barrier")
        e(f"ds_read_b32 v{TV}, v{L4}"); e("s_waitcnt lgkmcnt(0)"); e(f"v_readfirstlane_b32 s{sOLD}, v{TV}")
        L += self.stamp(49)
        e(f"s_and_b32 s{sMASK}, s{sOLD}, 0xffff"); e(f"s_bcnt1_i32_b32 s{sIDX}, s{sMASK}"); e(f"s_or_b32 s{sMASK}, s{sMASK}, s{sOWN}")
        if P.STAMP: e(f"v_writelane_b32 v{STR}, s{sIDX}, 60"); e(f"v_writelane_b32 v{STR}, 16, 61")
        e(f"s_cmp_lg_u32 s{sIDX}, 15"); e("s_cbranch_scc1 L_f_share")
        e(f"s_lshr_b32 s{sPEND}, s{sOLD}, 16")
        e("L_f_next:")
        e(f"s_cmp_eq_u32 s{sPEND}, 0"); e("s_cbranch_scc1 L_f_end")
        e(f"s_ff1_i32_b32 s{sIDX}, s{sPEND}"); e(f"s_bitset0_b32 s{sPEND}, s{sIDX}")
        e("L_f_share:")
        lv = list(P.LV) + [(0, 0)] * (7 - len(P.LV))
        tu = sum(u << (4 * k) for k, (u, c) in enumerate(lv)); tc = sum(c << (4 * k) for k, (u, c) in enumerate(lv))
        e(f"s_lshl_b32 s{sT0}, s{sIDX}, 2"); e(f"s_add_u32 s{sT0}, s{sT0}, s{sW}")
        e(f"s_mul_i32 s{sT1}, s{sT0}, 26"); e(f"s_lshr_b32 s{sT1}, s{sT1}, 8")
        e(f"s_mul_i32 s{sT2}, s{sT1}, 10"); e(f"s_sub_u32 s{sT0}, s{sT0}, s{sT2}")
        e(f"s_lshl_b32 s{sT1}, s{sT1}, 2")
        e(f"s_lshr_b32 s{sT2}, {hex(tu)}, s{sT1}"); e(f"s_and_b32 s{sT2}, s{sT2}, 15")
        e(f"s_lshr_b32 s{sT3}, {hex(tc)}, s{sT1}"); e(f"s_and_b32 s{sT3}, s{sT3}, 15")
        e("s_cbranch_scc0 L_f_next")
        e(f"s_mul_i32 s{sHO}, s{sBt}, 10"); e(f"s_add_u32 s{sHO}, s{sHO}, s{sT0}"); e(f"s_mul_i32 s{sHO}, s{sHO}, {16*1792}")
        e(f"s_mul_i32 s{sT1}, s{sBLK}, 896"); e(f"s_add_u32 s{sHO}, s{sHO}, s{sT1}")
        e(f"s_lshl_b32 s{sT0}, s{sT0}, 11")
        a, b, c = sNEW, sSEEN, sOLD
        for k in range(3):
            e(f"s_lshr_b32 s{a}, s{sT2}, 1"); e(f"s_and_b32 s{b}, s{sT2}, 1")
            e(f"s_mul_i32 s{c}, s{a}, 20"); e(f"s_add_u32 s{c}, s{c}, s{b}"); e(f"s_lshl_b32 s{c}, s{c}, 10"); e(f"s_add_u32 s{c}, s{c}, s{sT0}")
            e(f"s_lshl_b32 s{a}, s{a}, 2"); e(f"s_add_u32 s{a}, s{a}, s{b}"); e(f"s_lshl_b32 s{a}, s{a}, 5"); e(f"s_add_u32 s{a}, s{a}, s{sHO}")
            e(f"v_lshl_add_u32 v{PO[k]}, v{LN}, 4, s{c}"); e(f"v_add_u32 v{OO[k]}, s{a}, v{LO}")
            e(f"s_add_u32 s{sT2}, s{sT2}, 1")
        e(f"s_mov_b32 s{sNEW}, s{sMASK}"); e(f"s_mov_b32 s{sSEEN}, s{sMASK}")
        L += self.stamp(50)
        if P.STAMP: e(f"s_mov_b32 s44, {52 if P.STAMP in (1, 4) else 16}")
        e(f"s_cmp_eq_u32 s{sT3}, 2"); e("s_cbranch_scc1 L_f2_i"); e(f"s_cmp_eq_u32 s{sT3}, 1"); e("s_cbranch_scc1 L_f1_i")
        for U in (3, 2, 1):
            e(f"L_f{U}_i:")
            for q in range(4):
                e(f"s_and_b32 s{sT0}, s{sNEW}, {15 << (4*q)}"); e(f"s_cbranch_scc0 L_f{U}_h{4*q+3}")
                for h in range(4 * q, 4 * q + 4):
                    e(f"s_bitcmp1_b32 s{sNEW}, {h}"); e(f"s_cbranch_scc0 L_f{U}_h{h}")
                    e(f"s_mov_b32 s{sHO}, {h*PART}")
                    for k in range(U):
                        if (h * 3 + k) % 7 < P.RSK: continue
                        e(f"buffer_load_dwordx4 {ar(12*h+4*k)}, v{PO[k]}, {srd(sPR)}, s{sHO} offen{P.RDMOD}")
                    e(f"L_f{U}_h{h}:")
            e(f"s_cmp_eq_u32 s{sSEEN}, 0xffff"); e(f"s_cbranch_scc1 L_f{U}_sum")
            e(f"L_f{U}_spin:")
            e(f"buffer_load_dword v{TV}, v{MP_}, {srd(sWS)}, 0 offen sc1"); e("s_waitcnt vmcnt(0)")
            e(f"v_readfirstlane_b32 s{sMASK}, v{TV}"); e(f"s_and_b32 s{sMASK}, s{sMASK}, 0xffff")
            e(f"s_andn2_b32 s{sNEW}, s{sMASK}, s{sSEEN}"); e(f"s_cbranch_scc1 L_f{U}_got")
            e(f"s_sub_u32 s{sCNT}, s{sCNT}, 1"); e(f"s_cbranch_scc0 L_f{U}_spin")
            e(f"s_lshl_b32 s{sT0}, 0x10000, s{sIDX}"); e(f"v_mov_b32 v{TV}, s{sT0}")
            e(f"buffer_atomic_or v{TV}, v{L4}, {srd(sDB)}, 0 offen sc0"); e("s_waitcnt vmcnt(0)")
            e(f"v_readfirstlane_b32 s{sMASK}, v{TV}"); e(f"s_and_b32 s{sMASK}, s{sMASK}, 0xffff")
            e(f"s_cmp_lg_u32 s{sMASK}, 0xffff"); e("s_cbranch_scc1 L_f_end")
            e(f"s_andn2_b32 s{sNEW}, s{sMASK}, s{sSEEN}")
            e(f"L_f{U}_got:")
            e(f"s_or_b32 s{sSEEN}, s{sSEEN}, s{sNEW}")
            if P.STAMP: L += ["s_memrealtime s[84:85]", "s_waitcnt lgkmcnt(0)", "s_mov_b32 m0, s44", f"s_bcnt1_i32_b32 s45, s{sSEEN}", f"v_writelane_b32 v{STR}, s84, m0",
                              f"v_writelane_b32 v{STC}, s45, m0", "s_add_u32 s44, s44, 1", f"v_writelane_b32 v{STR}, s44, 61"]
            e(f"s_branch L_f{U}_i")
            e(f"L_f{U}_sum:")
            e("s_waitcnt vmcnt(0)")
            L += self.stamp(51)
            for h in range(16):
                for k in range(U):
                    for d in range(2):
                        o = vr(8 * k + 4 * d)
                        e(f"v_mfma_f32_4x4x4_16b_bf16 {o}, {vr(IDN,2)}, {ar(12*h+4*k+2*d,2)}, {o if h else 0}")
                if U == 1: e("s_nop 0")
            e("s_nop 4")
            for k in range(U):
                r = 32 + 4 * k
                for d in range(4): e(f"v_cvt_pk_bf16_f32 v{r+d}, v{8*k+2*d}, v{8*k+2*d+1}")
                e(f"v_permlane16_swap_b32 v{r}, v{r+2}"); e(f"v_permlane16_swap_b32 v{r+1}, v{r+3}")
                e(f"buffer_store_dwordx4 {vr(r)}, v{OO[k]}, {srd(sOU)}, 0 offen{P.OUMOD}")
            e(f"s_mov_b32 s{sMASK}, 0xffff"); e("s_branch L_f_next")
        e("L_f_end:")
        return L


    def attn_kernel(self):
        e = self.e
        kn = NAME + "_kernel"
        e(f".globl {kn}"); e(".p2align 8"); e(f".type {kn},@function"); e(f"{kn}:")
        p0 = len(self.L)
        e("s_cmp_ge_u32 s2, 256"); e("s_cbranch_scc1 L_attn_end")
        e(f"s_mov_b32 s{sMODE}, 0")
        e("L_again:")
        e(f"s_and_b32 s{sT0}, s2, 7")
        e(f"s_lshr_b32 s{sBLK}, s{sT0}, 2"); e(f"s_mul_i32 s{sT1}, s{sBLK}, 40")
        e(f"s_add_u32 s4, s0, s{sT1}"); e("s_addc_u32 s5, s1, 0")
        e(f"s_load_dwordx8 s[{sPT}:{sPT+7}], s[4:5], 0")
        e(f"s_load_dwordx2 s[{sWO}:{sWO+1}], s[4:5], 32")
        e("s_load_dwordx2 s[72:73], s[0:1], 96")
        e("s_load_dwordx4 s[92:95], s[0:1], 80")
        for x in self.stamp("start"): e(x)
        t = list(range(100, 116))
        ln, g, r4, x4, tq, tu, tv, fj = t[:8]
        e(f"s_getpc_b64 s[{sWS}:{sWS+1}]"); e("L_cw0:"); e(f"s_mov_b32 s{sWS+2}, L_code_end-L_cw0"); e(f"s_mov_b32 s{sWS+3}, 0x20000")
        e(f"v_and_b32 v{ln}, 63, v0"); e(f"v_lshrrev_b32 v{tq}, 6, v0"); e(f"s_lshr_b32 s{sT1}, s2, 3"); e(f"s_lshl_b32 s{sT2}, s{sT1}, 9")
        e(f"v_lshlrev_b32 v{tu}, 14, v{ln}"); e(f"v_lshl_add_u32 v{tu}, v{tq}, 7, v{tu}"); e(f"v_add_u32 v{tu}, s{sT2}, v{tu}")
        e(f"buffer_load_dword a{LS(0)}, v{tu}, {srd(sWS)}, 0 offen")
        e(f"v_readfirstlane_b32 s{sW}, v{tq}")
        if P.MAP == 4:
            e(f"s_and_b32 s{sHd}, s{sT0}, 3"); e(f"s_lshl_b32 s{sHd}, s{sHd}, 2"); e(f"s_and_b32 s{sT2}, s{sT1}, 3")
            e(f"s_add_u32 s{sHd}, s{sHd}, s{sT2}"); e(f"s_lshr_b32 s{sBt}, s{sT1}, 2")
            e(f"s_lshl_b32 s{sC}, s{sT2}, 1"); e(f"s_add_u32 s{sC}, s{sC}, s{sBt}"); e(f"s_sub_u32 s{sT2}, s{sC}, 7")
            e(f"s_cmp_ge_u32 s{sC}, 7"); e(f"s_cselect_b32 s{sC}, s{sT2}, s{sC}")
        else:
            if P.MAP == 16:
                e(f"s_and_b32 s{sHd}, s{sT1}, 15"); e(f"s_and_b32 s{sT2}, s{sT0}, 3"); e(f"s_lshr_b32 s{sC}, s{sT1}, 4")
                e(f"s_lshl_b32 s{sBt}, s{sT2}, 1"); e(f"s_add_u32 s{sBt}, s{sBt}, s{sC}")
                e(f"s_mul_i32 s{sC}, s{sC}, {P.RA}"); e(f"s_mul_i32 s{sT2}, s{sT2}, {P.RB}"); e(f"s_add_u32 s{sC}, s{sC}, s{sT2}")
                e(f"s_mul_i32 s{sT2}, s{sHd}, {P.RH}"); e(f"s_add_u32 s{sC}, s{sC}, s{sT2}")
            else:
                e(f"s_and_b32 s{sHd}, s{sT0}, 1"); e(f"s_lshl_b32 s{sHd}, s{sHd}, 3"); e(f"s_and_b32 s{sT2}, s{sT1}, 7"); e(f"s_add_u32 s{sHd}, s{sHd}, s{sT2}")
                e(f"s_and_b32 s{sBt}, s{sT0}, 2"); e(f"s_lshr_b32 s{sC}, s{sT1}, 3"); e(f"s_lshl_b32 s{sC}, s{sC}, 1"); e(f"s_add_u32 s{sT2}, s{sT2}, s{sC}")
                e(f"s_lshr_b32 s{sC}, s{sC}, 1"); e(f"s_lshl_b32 s{sBt}, s{sBt}, 1"); e(f"s_add_u32 s{sBt}, s{sBt}, s{sC}")
                e(f"s_bfe_u32 s{sC}, s{sT0}, 0x10001"); e(f"s_add_u32 s{sC}, s{sC}, s{sT2}")
            e(f"s_mul_i32 s{sT2}, s{sC}, 37"); e(f"s_lshr_b32 s{sT2}, s{sT2}, 8"); e(f"s_mul_i32 s{sT2}, s{sT2}, 7"); e(f"s_sub_u32 s{sC}, s{sC}, s{sT2}")
        e(f"s_lshl_b32 s{sCW}, s{sC}, 19"); e(f"s_lshl_b32 s{sCX}, s{sC}, 7")
        e(f"s_lshl_b32 s{sW8K}, s{sW}, 13"); e(f"s_movk_i32 s{sF}, 0x9c")
        e(f"s_lshl_b32 s{sT0}, s{sW}, 1"); e(f"s_lshr_b32 s{sT0}, s{sF}, s{sT0}"); e(f"s_and_b32 s{sT0}, s{sT0}, 3")
        e(f"v_lshrrev_b32 v{g}, 4, v{ln}"); e(f"v_bfe_u32 v{r4}, v{ln}, 2, 2"); e(f"v_and_b32 v{x4}, 3, v{ln}")
        e(f"v_xor_b32 v{tq}, s{sT0}, v{x4}"); e(f"v_lshlrev_b32 v{tq}, 4, v{tq}"); e(f"v_lshl_add_u32 v{tq}, v{g}, 6, v{tq}")
        HW, HX, WA, XA = self.HW, self.HX, self.WA, self.XA
        e(f"s_lshl_b32 s{sT0}, s{sW}, 17"); e(f"v_lshl_add_u32 v{tu}, v{r4}, 13, v{tq}"); e(f"v_add_u32 v{HW+1}, s{sT0}, v{tu}")
        for k in (0, 2, 3, 4, 5, 6, 7):
            gg, u = k >> 2, k & 3
            e(f"v_add_u32 v{HW+k}, {768 + (2*gg + (u>>1))*32768 + (u&1)*256 - u*1024}, v{HW+1}")
        e(f"v_bfe_u32 v{tu}, v{ln}, 2, 3"); e(f"v_mul_u32_u24 v{tu}, 896, v{tu}"); e(f"v_lshrrev_b32 v{tv}, 5, v{ln}")
        e(f"v_lshl_add_u32 v{tu}, v{tv}, 6, v{tu}")
        e(f"v_and_b32 v{tv}, 1, v{g}"); e(f"v_mul_u32_u24 v{tv}, 3, v{tv}"); e(f"v_xor_b32 v{tv}, v{tv}, v{x4}")
        e(f"v_lshl_add_u32 v{tu}, v{tv}, 4, v{tu}")
        e(f"s_mul_i32 s{sT0}, s{sW}, 28672"); e(f"v_add_u32 v{HX}, s{sT0}, v{tu}"); e(f"v_xor_b32 v{tv}, 16, v{HX}")
        e(f"v_add_u32 v{HX+1}, 6144, v{tv}"); e(f"v_add_u32 v{HX+2}, 12288, v{HX}"); e(f"v_add_u32 v{HX+3}, 18432, v{tv}")
        e(f"s_and_b32 s{sT1}, s{sW}, 1"); e(f"s_lshl_b32 s{sT1}, s{sT1}, 4"); e(f"v_xor_b32 v{tv}, s{sT1}, v{tu}")
        e(f"s_mul_i32 s{sT0}, s{sW}, 7168"); e(f"s_add_u32 s{sT0}, s{sT0}, {128*896}"); e(f"v_add_u32 v{HX+4}, s{sT0}, v{tv}")
        e(f"s_lshl_b32 s{sT2}, s{sW}, 12"); e(f"s_lshl_b32 s{sT3}, s{sW}, 10")
        e(f"s_mul_i32 s{sT0}, s{sBt}, 143360"); e(f"s_lshl_b32 s{sT1}, s{sHd}, 9")
        e(f"s_mov_b32 s{sX+2}, 143360"); e(f"s_mov_b32 s{sX+3}, 0x20000"); e(f"s_mov_b32 s{sWQ+3}, 0x20000")
        e(f"s_sub_u32 s{sWQ+2}, {448*8192+768}, s{sT1}")
        e("s_waitcnt lgkmcnt(0)")
        e(f"s_add_u32 s{sWQ}, s{sPT+6}, s{sT1}"); e(f"s_addc_u32 s{sWQ+1}, s{sPT+7}, 0")
        e(f"s_sub_u32 s{sWQ}, s{sWQ}, 768"); e(f"s_subb_u32 s{sWQ+1}, s{sWQ+1}, 0")
        e(f"s_add_u32 s{sX}, s{sPT}, s{sT0}"); e(f"s_addc_u32 s{sX+1}, s{sPT+1}, 0")
        for x in self.stamp(1): e(x)
        for it in self.w_items(0) + self.x_items(0):
            for x in it: e(x)
        for x in self.stamp(2): e(x)
        e(f"s_lshl_b32 s{sT0}, s{sBt}, 4"); e(f"s_add_u32 s{sT0}, s{sT0}, s{sHd}"); e(f"s_lshl_b32 s{sT1}, s{sT0}, 19")
        for s_, p in ((sA, sPT + 2), (sB_, sPT + 4)):
            e(f"s_add_u32 s{s_}, s{p}, s{sT1}"); e(f"s_addc_u32 s{s_+1}, s{p+1}, 0")
            e(f"s_sub_u32 s{s_}, s{s_}, 768"); e(f"s_subb_u32 s{s_+1}, s{s_+1}, 0")
            e(f"s_mov_b32 s{s_+2}, {524288+768}"); e(f"s_mov_b32 s{s_+3}, 0x20000")
        e(f"s_lshl_b32 s{sT1}, s{sBLK}, 7"); e(f"s_add_u32 s{sT0}, s{sT0}, s{sT1}"); e(f"s_mul_i32 s{sT0}, s{sT0}, {PART}")
        e(f"s_add_u32 s{sWS}, s72, s{sT0}"); e(f"s_addc_u32 s{sWS+1}, s73, 0"); e(f"s_mov_b32 s{sWS+2}, {PART}")
        e(f"v_lshl_add_u32 v{tu}, v{r4}, 9, v{tq}"); e(f"v_add_u32 v{T1 if P.PCH else VO+1}, s{sW8K}, v{tu}")
        if not so2(): e(f"v_add_u32 v{VO}, 768, v{VO+1}")
        if P.L2:
            e(f"v_lshl_add_u32 v{T1}, v{ln}, 7, s{sW8K}")
            if P.L2["tw"] < 8: e(f"v_lshrrev_b32 v{tu}, {P.L2['tw'].bit_length() + 2}, v{ln}"); e(f"v_lshl_add_u32 v{T1}, v{tu}, 24, v{T1}")
        e(f"s_and_b32 s{sT0}, s{sW}, 1"); e(f"s_lshl_b32 s{sT1}, s{sT0}, 13"); e(f"s_sub_u32 s{sH}, 4096, s{sT1}")
        e(f"s_sub_u32 s{sPH}, 0x10000, s{sH}"); e(f"s_sub_u32 s{sNH}, {u32(-98304)}, s{sH}")
        e(f"s_lshl_b32 s{sT1}, s{sT0}, 12"); e(f"s_lshl_b32 s{sT0}, s{sT0}, 10")
        e(f"v_lshlrev_b32 v{tv}, 1, v{g}"); e(f"v_bfe_u32 v{tv}, s{sF}, v{tv}, 2"); e(f"v_lshrrev_b32 v{tu}, 1, v{x4}")
        e(f"v_xor_b32 v{tv}, v{tv}, v{tu}"); e(f"v_lshl_add_u32 v{tv}, v{tv}, 4, s{sT0}")
        e(f"v_lshl_add_u32 v{tv}, v{g}, 13, v{tv}"); e(f"v_lshl_add_u32 v{tv}, v{r4}, 6, v{tv}")
        e(f"v_and_b32 v{tu}, 1, v{x4}"); e(f"v_lshl_add_u32 v{WA}, v{tu}, 3, v{tv}"); e(f"v_xor_b32 v{WA+1}, 32, v{WA}")
        e(f"v_add_u32 v{WA+2}, {SLOT(2)}, v{WA}"); e(f"v_add_u32 v{WA+3}, {SLOT(2)}, v{WA+1}")
        e(f"s_add_u32 s{sD}, s{sT1}, {SLOT(1)}"); e(f"v_add_u32 v{VA}, s{sD}, v{WA}"); e(f"v_add_u32 v{VA+1}, s{sD}, v{WA+1}")
        if P.PCH: e(f"v_xor_b32 v{VA+2}, 0x1000, v{VA}"); e(f"v_xor_b32 v{VA+3}, 0x1000, v{VA+1}")
        e(f"v_lshlrev_b32 v{fj}, 1, v{r4}"); e(f"v_bfe_u32 v{fj}, s{sF}, v{fj}, 2")
        e(f"s_movk_i32 s{sD}, 0xd8"); e(f"v_lshlrev_b32 v{tv}, 1, v{g}"); e(f"v_bfe_u32 v{tv}, s{sD}, v{tv}, 2")
        e(f"s_add_u32 s{sT1}, s{sT1}, s{sT0}")
        e(f"v_xor_b32 v{tv}, v{tv}, v{fj}"); e(f"v_lshl_add_u32 v{tv}, v{tv}, 4, s{sT1}")
        e(f"v_lshl_add_u32 v{tv}, v{r4}, 13, v{tv}"); e(f"v_lshl_add_u32 v{KA}, v{x4}, 6, v{tv}"); e(f"v_xor_b32 v{KA+1}, 1024, v{KA}")
        e(f"v_and_b32 v{tv}, 1, v{g}"); e(f"v_lshlrev_b32 v{tv}, 1, v{tv}"); e(f"v_xor_b32 v{tv}, v{tv}, v{fj}"); e(f"v_lshlrev_b32 v{tv}, 4, v{tv}")
        e(f"v_and_b32 v{tu}, 7, v{ln}"); e(f"v_lshl_add_u32 v{tv}, v{tu}, 6, v{tv}")
        e(f"v_lshrrev_b32 v{tu}, 5, v{ln}"); e(f"v_lshl_add_u32 v{tv}, v{tu}, 9, v{tv}")
        e(f"v_bfe_u32 v{tq}, v{ln}, 3, 1"); e(f"v_lshl_add_u32 v{tv}, v{tq}, 10, v{tv}")
        e(f"s_lshr_b32 s{sT1}, s{sW}, 1"); e(f"s_lshl_b32 s{sT0}, s{sT1}, 13"); e(f"s_add_u32 s{sT0}, s{sT0}, {SLOT(1)}")
        e(f"v_add_u32 v{XA}, s{sT0}, v{tv}"); e(f"v_xor_b32 v{XA+1}, 16, v{XA}")
        e(f"v_add_u32 v{XA+2}, {SLOT(4)-SLOT(1)}, v{XA}"); e(f"v_add_u32 v{XA+3}, {SLOT(4)-SLOT(1)}, v{XA+1}")
        e(f"s_lshl_b32 s{sT0}, s{sT1}, 11"); e(f"s_add_u32 s{sT0}, s{sT0}, {SLOT(4)+16384}")
        e(f"v_add_u32 v{XA+4}, s{sT0}, v{tv}"); e(f"v_xor_b32 v{XA+5}, 16, v{XA+4}")
        e(f"v_lshl_add_u32 v{OWNP}, v{ln}, 4, s{sW8K}"); e(f"v_xor_b32 v{PARP}, 0x2000, v{OWNP}")
        if P.TCH: e(f"v_lshl_add_u32 v{self.TV}, v{ln}, 7, s{sW8K}")
        e(f"s_mul_i32 s{sT0}, s{sT1}, 320"); e(f"s_add_u32 s{sT0}, s{sT0}, {MXA}"); e(f"v_and_b32 v{tu}, 15, v{ln}")
        e(f"v_lshl_add_u32 v{T0}, v{tu}, 2, s{sT0}"); e(f"v_mov_b32 v{tv}, 0x7f800000")
        for s in range(5): e(f"ds_write_b32 v{T0}, v{tv} offset:{64*s}")
        e(f"s_mov_b32 s{sSC}, {hex(f2u(math.log2(math.e) / 16.0))}"); e(f"s_mov_b32 s{sTH}, {hex(f2u(-1.0 if P.FORCE else P.LTH))}")
        if P.VL: e(f"s_lshl_b32 s{sT0}, s{sBt}, 2"); e(f"s_lshr_b32 s{sCLS}, {hex(P.VL[0])}, s{sT0}")
        e(f"s_mov_b32 s{sT0}, 0x3f803f80")
        for k in range(4): e(f"v_accvgpr_write_b32 a{ONES+k}, s{sT0}")
        for it in self.x_items(1) + self.w_items(1):
            for x in it: e(x)
        for nm in P.PQ:
            for it in (self.w_items(int(nm[1])) + self.x_items(int(nm[1])) if nm[0] == "c" else self.kv_head_items(2 * int(nm[1]) + (nm[0] == "V"), int(nm[2:] or 8))):
                for x in it: e(x)
        if P.F2: pass
        else:
            e(f"v_add_u32 v{tu}, s{sMODE}, v{ln}"); e(f"v_lshlrev_b32 v{tu}, 8, v{tu}"); e(f"v_add_u32 v{tu}, {MBOX}, v{tu}"); e(f"v_mov_b32 v{tq}, 0")
            e(f"buffer_store_dword v{tq}, v{tu}, {srd(sWS)}, 0 offen sc1")
        if P.WP:
            e(f"s_mul_i32 s{sT1}, s{sHd}, 32"); e(f"s_lshl_b32 s{sT0}, s{sBt}, 2"); e(f"s_add_u32 s{sT1}, s{sT1}, s{sT0}"); e(f"s_add_u32 s{sT1}, s{sT1}, s{sW}")
            e(f"s_mul_i32 s{sT1}, s{sT1}, 7168"); e(f"s_add_u32 s{sFC}, s{sWO}, s{sT1}"); e(f"s_addc_u32 s{sFC+1}, s{sWO+1}, 0"); e(f"s_movk_i32 s{sFC+2}, 7168")
            e(f"s_mov_b32 s{sFC+3}, 0x20000"); e(f"v_lshlrev_b32 v{T1}, 7, v{ln}")
            if P.WP == 1: e(f"buffer_load_dword v{T1}, v{T1}, {srd(sFC)}, 0 offen{P.TNT}")
        if P.PT:
            e(f"v_lshlrev_b32 v{tu}, {P.PTS}, v{ln}"); e(f"s_mov_b32 s{sFC+3}, 0x20000")
            e(f"s_lshl_b32 s{sT1}, s{sBLK}, 3"); e(f"s_add_u32 s{sT1}, s{sT1}, s{sBt}")
            for k, (nm, ptr, idx, sz) in enumerate((("w", sWO, sHd, 229376), ("d", 94, None, 256), ("p", 72, sT1, 16 * PART), ("o", 92, sBt, 160 * 1792))):
                if nm not in P.PT: continue
                if idx is None: e(f"s_mov_b32 s{sT0}, 0")
                else: e(f"s_mul_i32 s{sT0}, s{idx}, {sz}")
                e(f"s_add_u32 s{sFC}, s{ptr}, s{sT0}"); e(f"s_addc_u32 s{sFC+1}, s{ptr+1}, 0"); e(f"s_mov_b32 s{sFC+2}, {sz}")
                e(f"buffer_load_dword a{LS(1)+k}, v{tu}, {srd(sFC)}, 0 offen")
        e("@vmw c0 lgkmcnt(0)"); e("s_barrier")
        for x in self.stamp(3): e(x)
        for x in self.head_sched(): e(x)
        self.vq = [0]; self.fifo = []
        head = self.finish(self.L[p0:], "head")
        self.L[p0:] = head
        plan = self.plan = self.uni_plan()
        for k in range(2, 30):
            for x in self.static_body(k, plan[k]): e(x)
        tail = self.finish(self.tail_sched(), "tail", self.L[-30:])
        for x in tail: e(x)
        fin, _ = fix_hazards(self.fin2() if P.F2 else self.fin(), tail[-30:])
        for x in fin: e(x)
        if P.STAMP:
            e("s_waitcnt vmcnt(0)")
            for x in self.stamp(63): e(x)
            e(f"v_writelane_b32 v{STR}, s{sST+4}, 0"); e(f"v_writelane_b32 v{STC}, s{sST+6}, 0")
            e(f"s_lshl_b32 s{sT0}, s2, 2"); e(f"s_add_u32 s{sT0}, s{sT0}, s{sW}"); e(f"s_lshl_b32 s{sT0}, s{sT0}, 9")
            e(f"s_add_u32 s{sT0}, s{sT0}, {STAMP_OFF}")
            e(f"s_add_u32 s{sWS}, s72, s{sT0}"); e(f"s_addc_u32 s{sWS+1}, s73, 0"); e(f"s_mov_b32 s{sWS+2}, 512")
            e("v_mbcnt_lo_u32_b32 v20, -1, 0"); e("v_mbcnt_hi_u32_b32 v20, -1, v20"); e("v_lshlrev_b32 v20, 2, v20")
            e(f"buffer_store_dword v{STR}, v20, {srd(sWS)}, 0 offen"); e(f"buffer_store_dword v{STC}, v20, {srd(sWS)}, 0 offen offset:256")
        e("L_attn_end:")
        e("s_endpgm")
        e("L_code_end:")
        body = self.L[p0:]
        for x in self.R + fix_hazards(self.tmax())[0] + fix_hazards(self.redo())[0] + (self.fc_spin() if P.FC else []): e(x)
        return check_hazards(body, "all")

def desc(name, vg, acc):
    return [f".amdhsa_kernel {name}", f"  .amdhsa_next_free_vgpr {vg}", "  .amdhsa_next_free_sgpr 102",
            f"  .amdhsa_accum_offset {acc}", "  .amdhsa_group_segment_fixed_size 0", "  .amdhsa_kernarg_size 104",
            "  .amdhsa_user_sgpr_count 2", "  .amdhsa_user_sgpr_kernarg_segment_ptr 1",
            "  .amdhsa_system_sgpr_workgroup_id_x 1", ".end_amdhsa_kernel"]

def build(path, verbose=True):
    g = Gen()
    ref = open(f"cdna_kernels/{NAME}.s.ref").read().splitlines()
    g.L += [l for l in ref if l.startswith(";") and "@launch" not in l]
    g.L += ["; @launch grid=(256,1,1) block=(256,1,1) lds=163840"]
    g.L += ['.amdgcn_target "amdgcn-amd-amdhsa--gfx950"', ".text"]
    probs = g.attn_kernel()
    g.L += ['.section .rodata,"a"', ".p2align 6"] + desc(NAME + "_kernel", 512, 256)
    open(path, "w").write("\n".join(g.L) + "\n")
    seen = set()
    for p in probs:
        k = p.split("]", 1)[1]
        if k not in seen: print(p); seen.add(k)
    if verbose:
        tot = 0
        for k, (v, added) in g.sec.items():
            ins = [Ins(x) for x in v]
            nm = sum(1 for i in ins if i.kind == "mfma"); tot += est_cycles(v)
            print(f"{k}: instr {sum(1 for i in ins if i.states)} mfma {nm} ({nm*16} cyc) est {est_cycles(v)} nops {added} waits {sum(1 for i in ins if i.mn=='s_waitcnt')}")
        print("total est", tot, "staged", g.nstaged, "touch", g.ntch)
    return g

if __name__ == "__main__":
    out = sys.argv[1] if len(sys.argv) > 1 else "k6.s"
    for kv in sys.argv[2:]:
        k, v = kv.split("=", 1)
        setattr(P, k, eval(v))
    build(out)
```

```python
import sys, math, struct, re
from asmlib import Ins, check_hazards, autowait, fix_hazards
from sched3 import Sch, cost, est_cycles

NAME = "concat_heads__mha_block_cached__mha_block_cached__near_ridge"
MF = "v_mfma_f32_16x16x32_bf16"
def f2u(x): return struct.unpack("<I", struct.pack("<f", x))[0]
def vr(b, n=4): return f"v[{b}:{b+n-1}]"
def ar(b, n=4): return f"a[{b}:{b+n-1}]"
def srd(b): return f"s[{b}:{b+3}]"
def u32(x): return hex(x & 0xffffffff)

class P:
    STAMP = False
    BB = 12
    BQ = 68
    BP = 54
    NPK = 10
    NPV = 6
    KVNT = " nt"
    STMOD = " sc1"
    LTH = 2.0 ** 40
    HQ = [("c2", 0, 2), ("K0", 28, 2), ("c3", 100, 3), ("c4", 150, 2), ("V0", 180, 2), ("c5", 255, 3), ("c6", 310, 2),
          ("V1", 340, 8), ("K1", 410, 10), ("K2", 490, 8), ("K3", 555, 6), ("V2", 640, 6)]
    HST = (3, 4)
    KVINC = 32768
    LV = [(0, 3), (3, 3), (6, 3), (9, 2), (11, 2), (13, 1)]
    SPIN = 20000
    WNT = ""
    STRIP = []
    STRIPT = []
    STRIPH = []
    WNT0 = [0]
    WO0 = [58, 59, 60, 61, 62, 63, 64, 65]
    SH = {}
    ST = {}
    SL = {}
    UG = (2, 2240)
    UP = 1.0
    UF = 9
    UL = 110
    UT = [12, 22]
    FC = []
    FCL = 1
    FCG = 3
    FCN = 60
    FCS = 4352
    FORCE = False
    BXG = 34
    BAG = 22
    BBG = 50
    TCH = []
    TNT = ""
    WSP = False
    VN = 0
    WG = None
    ROTW = True
    WP = 0
    WONT = []
    RDMOD = " sc1"
    OUMOD = ""
    VSP = 0
    EPW = 4
    SMAJ = None
    BF = None
    TQ = [(38, 3), (64, 4), (98, 5), (150, 5), (191, 5)]
    TS0 = 0
    TSP = 1
    TSS = 1
    PT = ""
    PTS = 16
    WT = []
    MAP = 4
    RSK = 0
    VL = None
    F2 = False
    NS = (7, 6, 2)
    CG = (70,)
    ZK = (4, 8)
    PG = 470
    EF = [(3, 425), (5, None)]
    FP = True
    HCH = 8
    QCH = 1
    TCN = 1
    PCH = None
    PCT = None
    BPH = 54
    BPT = None
    L2 = None
    PQ = []
    RA = 3
    NOCW = False
    GCW = False
    RB = 1
    RH = 1

def QA(s, j): return 32 * s + 4 * j
def QR(s, i): return vr(32 * s + 8 * i) if i < 4 else ar(64 + 4 * (5 * (i - 4) + s))
def OV(t): return 8 * t + 4
def OR(s, j):
    t = 8 * s + j
    return vr(OV(t)) if t < 20 else ar(144 + 4 * (t - 20))
def OT(s, j):
    t = 8 * s + j
    return OV(t) if t < 20 else 8 * (t - 20)
SB = 160
TL = {"b0": (0, 1, 2), "b1": (0, 1, 2), "a0": (3, 4), "a1": (3, 4)}
TB = {"b0": 0, "b1": 3, "a0": 3, "a1": 5}
def HF(s): return "b" if s < 3 else "a"
def S(t, s): return SB + 4 * (TB[t] + s)
def PR(s): return S(HF(s) + "0", s)
def PP(s): return S(HF(s) + "1", s)
def CI(s): return 200 + 4 * s
KA, VA, VO, OWNP, PARP, T0, T1 = 244, 246, 248, 250, 251, 252, 253
FCV = T1
STR, STC = 254, 255
def FB(k): return 4 * k
def LS(s): return 224 + 4 * s
ONES = 244
def STG(b): return vr(220 + 4 * b) if b < 6 else ar(248 + 4 * (b - 6))
def STR_(n, k):
    if n == 0: return vr(SB + 4 * k)
    if n == 1: return ar(144 + 4 * k) if k < 4 else ar(32 + 4 * k)
    if n in (3, 4): return ar(160 + 32 * (n - 3) + 4 * k)
    assert n == 6
    return STG(k)
def SLOT(n): return (n % 5) * 32768
def PX(n, s): return SLOT(2 * n - 1) + (5 + s) * 1024 if s < 3 else SLOT(2 * n) + (3 + s) * 1024
MXA = SLOT(4) + 28 * 1024
sA, sB_, sX, sWQ, sWS = 8, 12, 16, 20, 24
sW, sW8K = 28, 29
sRET = 30
sTH, sH, sPH, sNH, sD, sMODE = 32, 33, 34, 35, 36, 37
sOA, sOB = 45, 46
sT0, sT1, sT2, sT3 = 47, 48, 49, 50
sBLK, sBt, sHd, sC, sSC, sBAD = 51, 52, 53, 54, 55, 56
sCW, sCX = 57, 58
sWO = 60
sF = 62
sM0 = 63
sPT = 64
sCO = 64
sCS = 74
sRT2 = 96
sST = 84
PART = 144384
MBOX = 143360 + 768
MB0 = 143360
sCLS = 71
class F:
    PO, OO, POS, MP, TV, BY, LN, Q2, D0, IDN, LO, PB = 237, 240, 245, 213, 214, 215, 216, 217, 218, 206, 205, 244
    sDB, sPR, sOU, sFL = sA, sB_, sX, 40
    IDX, FRC, CNT, GU, PEND, ST, SEEN, NEW, C, t0, t1, HO = 98, 99, 100, 101, 46, 38, 33, 81, 64, 6, 7, 36
STAMP_OFF = 48 << 20
FC_OFF = 0x2500000
sFC, sFM, sFN, sFT, sF1 = 40, 38, 39, 44, 6

def vmpass(lines, q):
    out = []; done = q[0]
    for l in lines:
        if l.startswith("@vmw"):
            p = l.split(None, 2)
            idx = max(k for k, t in enumerate(q) if k and t and p[1] in t)
            n = min(63, len(q) - 1 - idx)
            if idx <= done:
                if len(p) > 2: out.append("s_waitcnt " + p[2])
                continue
            done = q[0] = idx
            out.append(f"s_waitcnt vmcnt({n})" + (" " + p[2] if len(p) > 2 else ""))
            continue
        if l.startswith("@vml"):
            n = int(l.split()[1])
            if len(q) - 1 - n > done: done = q[0] = len(q) - 1 - n; out.append(f"s_waitcnt vmcnt({n})")
            if len(l.split()) > 2 and len(q) - 1 - int(l.split()[2]) > done:
                out += [f"s_bitcmp1_b32 s{sCLS}, {l.split()[3]}", f"s_cbranch_scc0 Lvl{len(q)}", f"s_waitcnt vmcnt({l.split()[2]})", f"Lvl{len(q)}:"]
            continue
        if l.startswith("buffer_") or l.startswith("global_"):
            q.append(l.split("@t:")[1].split() if "@t:" in l else None)
            l = l.split(";")[0].strip()
        out.append(l)
    return out
def so2(): return sPH if P.PCH else 38 if P.L2 else 0
def tn(n): return "KV"[n % 2] + str(n // 2)

class Gen:
    def __init__(self):
        self.L = []; self.R = []; self.uid = 0; self.sec = {}; self.base = {OWNP: 0, PARP: 0}
    def e(self, s): self.L.append(s)
    def lab(self, p):
        self.uid += 1; return f"L{p}_{self.uid}"
    def stamp(self, k):
        if not P.STAMP: return []
        if k == "start": return [f"s_memrealtime s[{sST+4}:{sST+5}]", f"s_memtime s[{sST+6}:{sST+7}]"]
        o = ["s_waitcnt lgkmcnt(0)", f"s_memrealtime s[{sST}:{sST+1}]", f"s_memtime s[{sST+2}:{sST+3}]", "s_waitcnt lgkmcnt(0)"]
        if P.STAMP == 3 and k in (1, 2, 4, 5, 6, 7, 8, 49, 50): return []
        if P.STAMP in (2, 4) and k in (1, 2, 4, 5, 7, 8, 9, 11, 42, 43, 44, 46, 47, 49, 50, 58, 59): return []
        return o + [f"v_writelane_b32 v{STR}, s{sST}, {k}", f"v_writelane_b32 v{STC}, s{sST+2}, {k}"]

    def softmax(self, t, n, add=False):
        it = []; pend = []; o = 2 * int(t[1])
        for s in TL[t]:
            if add: it += [[f"v_add_f32 v{S(t,s)+k}, v{S(t,s)+k}, v{CI(s)}"] for k in range(4)]
            for k in range(4):
                it.append([f"v_exp_f32 v{S(t,s)+k}, v{S(t,s)+k}"])
                if pend: it.append(pend.pop(0))
                if k % 2 == 1: pend.append([f"v_cvt_pk_bf16_f32 v{PR(s)+o+k//2}, v{S(t,s)+k-1}, v{S(t,s)+k}"])
            if o: pend.append([f"ds_write_b128 v{PARP}, {vr(PR(s))} offset:@{PX(n,s)}"])
        return it + pend
    def pprd(self, n, s): return f"ds_read_b128 {vr(PP(s))}, v{OWNP} offset:@{PX(n,s)}"

    def krd(self, b, kt, i): return [f"ds_read_b128 {ar(FB(b))}, v{KA+(i>>2)} offset:{kt*2048 + (i&3)*256}"]
    def trd(self, b, reg, j, base=0):
        off = base + (j >> 1) * 256
        return [f"ds_read_b64_tr_b16 {ar(FB(b),2)}, v{reg+(j&1)} offset:{off}", f"ds_read_b64_tr_b16 {ar(FB(b)+2,2)}, v{reg+(j&1)} offset:{off+2048}"]
    def kfrags(self, sc, tag, rel, due, d0, n=16, use=None):
        for k in range(n):
            pre = [f"v_add_u32 v{KA+(k>>2)}, {d0}, v{KA+(k>>2)}"] if k in (0, 4) and d0 else []
            sc.add_frag((tag, k), k, self.krd(k, k >> 3, k & 7), pre, rel, due, use=None if use is None else use + 3 * k)
    def vord(self, nb): return [(h, j) for h in range(2) for j in range(nb)] + [(h, j) for j in range(nb, 8) for h in range(2)]
    def vfrags(self, sc, tag, rel, due, d0, n=16, use=None, ch=None):
        if P.PCH:
            for k, (h, j) in enumerate(self.vord((ch or P.PCH)[0])[:n]):
                r = VA + 2 * h
                pre = [f"v_add_u32 v{r+j}, {d0}, v{r+j}"] if j < 2 and d0 else []
                sc.add_frag((tag, k), k, self.trd(k, r, j), pre, rel, due, use=None if use is None else use + 3 * (k & ~1) + (k & 1))
            return
        for k in range(n):
            pre = []
            if k < 2 and d0: pre = [f"v_add_u32 v{VA+k}, {d0}, v{VA+k}"]
            if k in (8, 9): pre = [f"v_add_u32 v{VA+k-8}, s{sH}, v{VA+k-8}"]
            sc.add_frag((tag, k), k, self.trd(k, VA, k & 7), pre, rel, due, use=None if use is None else use + 3 * k)
    def qk_mfmas(self, sc, tag):
        end = {}
        for h in "ba":
            n = P.QCH if isinstance(P.QCH, int) else P.QCH[h == "a"]
            for k, s in [(k0 + c, s) for k0 in range(0, 16, n) for s in TL[h + "0"] for c in range(n)]:
                t = h + str(k >> 3); i = k & 7
                end[t] = sc.m(f"{MF} {vr(S(t,s))}, {ar(FB(k))}, {QR(s,i)}, {vr(CI(s)) if i == 0 else vr(S(t,s))}", [(tag, k)])
        return end
    def pv_mfmas(self, sc, tag, first=False, og=OR, ch=None):
        start = {}; fin = {}
        for h in "ba":
            start[h] = sc.n()
            for s in TL[h + "0"]: fin[("l", s)] = sc.m(f"{MF} {ar(LS(s))}, {ar(ONES)}, {vr(PR(s))}, {'0' if first else ar(LS(s))}")
            if P.PCH:
                ch = ch or P.PCH; vo = self.vord(ch[0]); nu = ch[h == "a"]; T = TL[h + "0"]
                for hh, j, s in [(hh, j, s) for hh in range(2) for j in range(nu) for s in T] + [(hh, j, s) for j in range(nu, 8) for s in T for hh in range(2)]:
                    o = og(s, j); k = vo.index((hh, j))
                    fin[(s, j)] = sc.m(f"{MF} {o}, {ar(FB(k))}, {vr(PP(s) if hh else PR(s))}, {'0' if first and not hh else o}", [(tag, k)])
                continue
            for k in range(16):
                if k == 8: start[h + "p"] = sc.n()
                for s in TL[h + "0"]:
                    o = og(s, k & 7)
                    fin[(s, k & 7)] = sc.m(f"{MF} {o}, {ar(FB(k))}, {vr(PR(s) if k < 8 else PP(s))}, {'0' if first and k < 8 else o}", [(tag, k)])
        return start, fin

    def place_dma(self, sc, it, pos):
        k = 0; pend = []; prev = max(-1, pos[0] - 2)
        for x in it:
            if x[0].startswith("buffer"):
                for j, y in enumerate(pend): sc.fix(max(prev, pos[k] - len(pend) + j), y)
                pend = []
                sc.fix(pos[k], x); prev = pos[k]; k += 1
            else: pend.append(x)
        for y in pend: sc.fix(pos[-1] + 1, y)
    def basepass(self, L):
        out = []
        for l in L:
            m = re.search(r"offset:@(\d+)", l)
            if m:
                a = int(m.group(1)); r = OWNP if f"v{OWNP}" in l else PARP
                if not 0 <= a - self.base[r] < 65536:
                    b = min(a & ~32767, 98304)
                    out.append(f"v_add_u32 v{r}, {u32(b - self.base[r])}, v{r}"); self.base[r] = b
                l = l.replace(m.group(0), f"offset:{a - self.base[r]}")
            out.append(l)
        return out
    def split_writes(self, L):
        def halves(l):
            m = re.match(r"ds_write_b128 (v\d+), ([va])\[(\d+):\d+\] offset:(@?)(\d+)$", l)
            a, k, r, at, o = m.group(1), m.group(2), int(m.group(3)), m.group(4), int(m.group(5))
            return [f"ds_write_b64 {a}, {k}[{r+2*h}:{r+2*h+1}] offset:{at}{o+8*h}" for h in range(2)]
        out = []; pend = []
        for l in L:
            if l.startswith("@waitt ds_write_b128"): l = "@waitt " + halves(l[7:])[1]
            if pend:
                stop = l.startswith("@waitw") or "lgkmcnt(0)" in l or l == "s_barrier" or l.startswith("s_cbranch") or l[7:] in pend
                if not stop and not l.startswith("@"):
                    w = Ins(l.split(";")[0]).wr
                    stop = any(w & Ins(x).rd for x in pend)
                if stop: out += pend; pend = []
            if l.startswith("ds_write_b128"):
                h = halves(l)
                if pend: pend += h
                else: out.append(h[0]); pend.append(h[1])
                continue
            out.append(l)
            if l.startswith("v_mfma") and pend: out.append(pend.pop(0))
        return out + pend
    def finish(self, L, name, pre=()):
        if P.WSP: L = self.split_writes(L)
        L = vmpass(L, self.vq)
        L, self.fifo, _ = autowait(L, self.fifo, look=False)
        L = self.basepass(L)
        L, added = fix_hazards(L, pre)
        if name[:2] in ("qk", "pv"):
            for pat in P.STRIP: L = [l for l in L if not l.startswith(pat)]
        if name == "tail":
            for pat in P.STRIPT: L = [l for l in L if not l.startswith(pat)]
        if name == "head":
            i0 = next(k for k, l in enumerate(L) if l.startswith("s_barrier"))
            for pat in P.STRIPH: L = L[:i0+1] + [l for l in L[i0+1:] if not l.startswith(pat)]
        self.sec[name] = (L, added)
        return L
    def cw2(self):
        lb = self.lab("cw"); sr = sX; vt = T0
        if P.GCW:
            assert T1 == T0 + 1 and T0 % 2 == 0
            return [[f"s_getpc_b64 s[{sr}:{sr+1}]", f"{lb}:"],
                [f"v_mbcnt_lo_u32_b32 v{vt}, -1, 0"], [f"v_mbcnt_hi_u32_b32 v{vt}, -1, v{vt}"], [f"v_lshlrev_b32 v{vt}, 14, v{vt}"],
                [f"s_lshr_b32 s{sT1}, s2, 3"], [f"s_lshl_b32 s{sT1}, s{sT1}, 9"],
                [f"s_lshl_b32 s{sT2}, s{sW}, 7"], [f"s_add_u32 s{sT1}, s{sT1}, s{sT2}"], [f"v_add_u32 v{vt}, s{sT1}, v{vt}"],
                [f"v_min_u32 v{vt}, L_code_end-{lb}-4, v{vt}"], [f"v_mov_b32 v{vt+1}, s{sr+1}"],
                [f"v_add_co_u32 v{vt}, vcc, s{sr}, v{vt}", f"v_addc_co_u32 v{vt+1}, vcc, 0, v{vt+1}, vcc"],
                [f"global_load_dword v{vt}, v[{vt}:{vt+1}], off ; @t:cw"]]
        return [[f"s_getpc_b64 s[{sr}:{sr+1}]", f"{lb}:"], [f"s_mov_b32 s{sr+2}, L_code_end-{lb}"],
                [f"v_mbcnt_lo_u32_b32 v{vt}, -1, 0"], [f"v_mbcnt_hi_u32_b32 v{vt}, -1, v{vt}"], [f"v_lshlrev_b32 v{vt}, 14, v{vt}"],
                [f"s_lshr_b32 s{sT1}, s2, 3"], [f"s_lshl_b32 s{sT1}, s{sT1}, 9"],
                [f"s_lshl_b32 s{sT2}, s{sW}, 7"], [f"s_add_u32 s{sT1}, s{sT1}, s{sT2}"], [f"v_add_u32 v{vt}, s{sT1}, v{vt}"],
                [f"buffer_load_dword v{vt}, v{vt}, {srd(sX)}, 0 offen ; @t:cw"]]

    def wo_touch(self):
        vt = T0
        return [[f"s_mul_i32 s{sT1}, s{sHd}, 32"], [f"s_lshl_b32 s{sT2}, s{sBt}, 2"], [f"s_add_u32 s{sT1}, s{sT1}, s{sT2}"], [f"s_add_u32 s{sT1}, s{sT1}, s{sW}"],
                [f"s_mul_i32 s{sT1}, s{sT1}, 7168"], [f"s_add_u32 s{sWQ}, s{sWO}, s{sT1}", f"s_addc_u32 s{sWQ+1}, s{sWO+1}, 0"], [f"s_mov_b32 s{sWQ+2}, 7168"],
                ["@vmw cw", f"v_mbcnt_lo_u32_b32 v{vt}, -1, 0"], [f"v_mbcnt_hi_u32_b32 v{vt}, -1, v{vt}"], [f"v_lshlrev_b32 v{vt}, 7, v{vt}"],
                [f"buffer_load_dword v{vt}, v{vt}, {srd(sWQ)}, 0 offen ; @t:cw"]]

    HW, HX, WA, XA, TV = 192, 200, 205, 209, 215
    WS_ = [SLOT(3), SLOT(2), SLOT(0)]
    XM = [SLOT(4), SLOT(1), SLOT(1) + 16384]
    def w_items(self, c):
        it = []
        for g in range(2):
            it.append([f"s_add_u32 m0, s{sW8K}, {self.WS_[c % 3] + g*4096}"])
            for u in range(4):
                it.append([f"buffer_load_dwordx4 v{self.HW+4*g+u}, {srd(sWQ)}, s{sCW} offen offset:{u*1024}{' nt' if c in P.WNT0 else P.WNT} lds ; @t:c{c}"])
        it.append([f"s_add_u32 s{sCW}, s{sCW}, 0x80000", f"s_cmp_eq_u32 s{sCW}, 0x380000"]); it[-1].append(f"s_cselect_b32 s{sCW}, 0, s{sCW}")
        return it
    def x_items(self, c):
        it = [[f"s_add_u32 m0, s{sT2}, {self.XM[c % 3]}"]]
        for k in range(4): it.append([f"buffer_load_dwordx4 v{self.HX+k}, {srd(sX)}, s{sCX} offen offset:{k*1024}{' nt' if c in P.WNT0 else P.WNT} lds ; @t:c{c}"])
        it.append([f"s_add_u32 m0, s{sT3}, {SLOT(4) + 16384 + 4096*(c % 3)}"])
        it.append([f"buffer_load_dwordx4 v{self.HX+4}, {srd(sX)}, s{sCX} offen{' nt' if c in P.WNT0 else P.WNT} lds ; @t:c{c}"])
        it.append([f"s_add_u32 s{sCX}, s{sCX}, 128", f"s_cmp_eq_u32 s{sCX}, 896", f"s_cselect_b32 s{sCX}, 0, s{sCX}"])
        return it
    def ld(self, p, dst):
        n = p // 8; u = p & 3
        sr, so = (sA, sOA) if n % 2 == 0 else (sB_, sOB)
        if so2() and not u & 1: so = so2() + n % 2
        return f"buffer_load_dwordx4 {dst + ', ' if dst else ''}v{T1 if P.PCH else VO+1 if so2() else VO+(u&1)}, {srd(sr)}, s{so} offen offset:{u*1024}{P.KVNT}{'' if dst else ' lds'} ; @t:{tn(n)} p{p}"
    def kv_head_items(self, n, np_=8, k0=0):
        so = sOA if n % 2 == 0 else sOB
        reg = n in (0, 1, 6) + tuple(P.HST)
        it = []
        for k in range(k0, np_):
            if (k % 4 == 0 or k == k0) and so2(): it.append([f"s_mov_b32 s{so2() + n % 2}, {(n//2)*P.KVINC + (k&4)*1024 + 768}"])
            if k % 4 == 0 or k == k0: it.append([f"s_mov_b32 s{so}, {(n//2)*P.KVINC + (k&4)*1024}"] + ([] if reg else [f"s_add_u32 m0, s{sW8K}, {SLOT(n) + (k&4)*1024}"]))
            it.append([self.ld(8 * n + k, STR_(n, k) if reg else None)])
        return it
    def touch(self, p):
        n = p // 8
        return [[f"s_mov_b32 s40, {(n//2)*P.KVINC + (p&7)*1024}"], [f"buffer_load_dword v{VO}, v{T1}, {srd(sA if n % 2 == 0 else sB_)}, s40 offen offset:768{P.TNT} ; @t:h{p}"]]
    def flush_items(self, n):
        return [["@vmw " + tn(n)]] + [[f"ds_write_b128 v{OWNP}, {STR_(n, k)} offset:@{SLOT(n) + k*1024}"] for k in range(8)]
    def uni_plan(self):
        N = lambda k: 80 if k % 2 == 0 else 85
        g0 = {2: 0, 1: -85}
        for k in range(3, 33): g0[k] = g0[k - 1] + N(k - 1)
        bar = lambda k: g0[k] + (P.BQ if k % 2 == 0 else P.BP if k > 1 else P.BPH)
        def rel(p):
            n, k = p // 8, p % 8
            if n % 2 == 0 and k >= 5: return g0[n - 3] + 14, self.pprd((n - 4) // 2, k - 5)
            if n % 2 == 1 and k >= 6: return bar(n - 4) + 12, self.pprd((n - 5) // 2, k - 3)
            return bar(n - 5) + 1, None
        seq = [46, 47] + list(range(56, 256))
        G = {p: -200 for p in range(48, 56)}
        pool = [(b, 48 + b) for b in range(8)]
        fl = {}; buf = {48 + b: b for b in range(8)}; prevo = {}
        prev = -1; tch = {}; hit = set()
        for q, p in enumerate(seq):
            g = max(int(P.UG[0] + (P.UG[1] - P.UG[0]) * (q / (len(seq) - 1)) ** P.UP), prev + 1)
            if q < 2: g = min(g, 2 + 11 * q)
            if P.L2:
                Z = P.L2; pts = [(Z["p0"], P.UG[0])] + list(Z["pts"]) + [(255, P.UG[1])]
                (pa, ga), (pb, gb) = next((x, y) for x, y in zip(pts, pts[1:]) if p <= y[0])
                h = int(ga + (gb - ga) * (p - pa) / (pb - pa))
                o = pool[0][1]; f = max(rel(o)[0], G[o] + P.UL, 0)
                if p >= Z["p0"] and p % Z["tw"] == 0 and max(prev + 1, min(rel(p + Z["tw"] - 1)[0], f + 3 if Z["stg"] else 9999)) - h > Z["mg"]: tch[p] = h
                tc = p < Z["p0"] or p - p % Z["tw"] in tch
                g = max(prev + Z["sp"], tch.get(p - p % Z["tw"], -99) + 20, 2) if tc else max(h, prev + 1)
                if tc: hit.add(p)
            if g < rel(p)[0]:
                b, o = pool[0]
                f = max(rel(o)[0], G[o] + P.UL, 0)
                if f + 3 >= rel(p)[0] or (p in hit and P.L2["stg"] < 2): g = rel(p)[0]
                else:
                    g = max(g, f + 3); fl[o] = max(f, min(g - P.UF, bar(o // 8 - 1) - 12))
                    pool = pool[1:] + [(b, p)]; buf[p] = b; prevo[p] = o
            G[p] = prev = g
            assert g < bar(p // 8 - 1) - 40, p
        pf = 0
        for b, o in pool: pf = fl[o] = max(rel(o)[0], min(G[o] + 180, bar(o // 8 - 1) - 30), pf + 3)
        ev = []; wr = {}
        for o in sorted(fl):
            assert fl[o] < bar(o // 8 - 1) - 2, o
            wr[o] = f"ds_write_b128 v{OWNP}, {STG(buf[o])} offset:@{SLOT(o // 8) + (o % 8)*1024}"
            ev.append((fl[o], 1, [f"@vmw p{o}"] + (["@waitt " + rel(o)[1]] if rel(o)[1] else []) + [wr[o]]))
        m0 = None; sv = {}
        for p in seq:
            n = p // 8; g = (p >> 2) & 1; so = sOA if n % 2 == 0 else sOB
            pre = []
            if so2() and not p & 1: so = so2() + n % 2
            if sv.get(so) != (n, g): sv[so] = (n, g); pre.append(f"s_mov_b32 s{so}, {(n//2)*P.KVINC + g*4096 + (768 if so < sOA else 0)}")
            if p in buf: pre.append("@waitt " + wr[prevo[p]])
            else:
                if rel(p)[1]: pre.append("@waitt " + rel(p)[1])
                if m0 != SLOT(n) + g * 4096: m0 = SLOT(n) + g * 4096; pre.append(f"s_add_u32 m0, s{sW8K}, {m0}")
            for x in pre: ev.append((G[p] - 1, 3, [x]))
            ev.append((G[p], 2, ([] if p in hit else [f"@hb 1 p{p}"] if P.L2 else self.vml(p)) + [self.ld(p, STG(buf[p]) if p in buf else None)]))
        for p, h in tch.items():
            a, b = self.touch(p); ev.append((h - 1, 3, a)); ev.append((h, 2.5, [f"@hb {P.L2['tw']} h{p}"] + b))
        self.ntch = len(tch)
        assert max(x[0] for x in ev) < g0[30] - 1
        if P.WG:
            assert max(fl.values()) < g0[P.WG[2]] - 20
            g = max(P.WG[0], prev + 2)
            for j in range(2):
                k = 0; pre = []
                for x in self.wo_items(j, 2 + j):
                    if not x[0].startswith("buffer"): pre += x; continue
                    r, w = rel(8 * (32 + j) + k)
                    g = max(g, r)
                    for y in ([f"@waitt {w}"] if w else []) + pre: ev.append((g - 1, 3, [y]))
                    ev.append((g, 2, ([f"@vml {P.WG[3] - 1}"] if P.WG[3] else []) + x))
                    pre = []; k += 1; g += P.WG[1]
        ev.sort(key=lambda x: (x[0], x[1]))
        if P.L2:
            hb = [(f"h{p}", P.L2["tw"]) for p, g in P.L2["hd"]]
            for _, _, it in ev:
                if not it[0].startswith("@hb"): continue
                _, w, tg = it[0].split(); w = int(w); k = len(hb) - 1; t = w
                while k >= 0 and t + hb[k][1] <= P.VN: t += hb[k][1]; k -= 1
                it[0:1] = [f"@vmw {hb[k][0]}"] if k >= 0 else []
                hb.append((tg, w))
        self.nstaged = len(buf)
        out = {k: [] for k in range(2, 31)}
        for g, _, it in ev:
            k = max(k for k in range(2, 31) if g0[k] - 1 <= g)
            out[k].append((g - g0[k], it))
        return out
    def vml(self, p):
        if P.VL:
            pm, wk, st, bit = next(x for x in P.VL[1:] if p < x[0])
            return [f"@vml {wk-1} {st-1} {bit}" if st < wk else f"@vml {wk-1}"]
        return [f"@vml {(P.VN(p) if callable(P.VN) else P.VN) - 1}"] if P.VN else []
    def kd(self, n): return u32(SLOT(n) - SLOT(n - 2))
    def vd(self, n): return self.kd(n) if P.PCH else f"s{sPH}" if SLOT(n) > SLOT(n - 2) else f"s{sNH}"
    def qk_part(self, sc, k):
        self.kfrags(sc, "k", None, "B", None); sc.init = [("k", j) for j in range(P.NPK)]
        end = self.qk_mfmas(sc, "k")
        a = self.softmax("b0", k // 2); b = self.softmax("b1", k // 2)
        sc.chain(end["b0"] + 2, P.BQ - 2, a + b, rels=[0] * len(a) + [end["b1"] + 2] * len(b))
        if P.PCH:
            for s in range(3): sc.fix(P.BQ + 3 + 2 * s, [self.pprd(k // 2, s)])
        return end
    def pv_soft(self, sc, k, n0=0, bp=None):
        a = self.softmax("a0", k // 2); b = self.softmax("a1", k // 2); bp = bp or P.BP
        sc.chain(n0 - 1, n0 + min(bp, 51) - 3, a + b, rels=[-1] * len(a) + [n0 + 1] * len(b))
        if not P.PCH:
            for s in range(3): sc.fix(n0 + 2 + 2 * s, [self.pprd(k // 2, s)])
        for s in (3, 4): sc.fix(n0 + bp + s - 2, [self.pprd(k // 2, s)])
    def static_body(self, k, ops):
        sc = Sch(**P.SL); qk = k % 2 == 0
        if qk:
            self.qk_part(sc, k); n = sc.n()
            self.vfrags(sc, "v", "B", None, self.vd(k + 1), n=P.NPV, use=n + 3)
        else:
            self.vfrags(sc, "v", None, "B", None); sc.init = [("v", j) for j in range(P.NPV)]
            self.pv_mfmas(sc, "v"); n = sc.n()
            self.kfrags(sc, "k", "B", None, self.kd(k + 1), n=P.NPK, use=n)
            self.pv_soft(sc, k)
        sc.bar("B", P.BQ if qk else P.BP, ["@vmw " + tn(k + 1) + " lgkmcnt(0)", "s_barrier"] + (self.stamp(11 + k) if P.STAMP == 1 or (P.STAMP == 4 and k % 4 == 1) else []))
        for g, it in ops: sc.fix(g, it)
        if k in P.UT: sc.chain(0, 20, self.cw2())
        if P.WG and k == P.WG[2]: sc.chain(2, 44, self.wo_setup())
        if k in P.WT: sc.chain(0, 20, self.wo_touch())
        if P.F2 and k == P.ZK[0]: sc.chain(0, 24, self.f2_zero())
        if P.F2 and k == P.ZK[1]: sc.chain(0, 20, self.f2_started())
        if k in P.FC: sc.chain(P.FCG, 22, self.fc_items(k))
        return self.finish(sc.run(), f"{'qk' if qk else 'pv'}{k}", self.L[-30:])
    def fc_items(self, k):
        i = P.FC.index(k) + 1
        it = []
        if i - 1 - P.FCL >= 1:
            a, r = self.lab("fs"), self.lab("fq")
            it += [[f"@vmw fc{i-1}"], [f"v_cmp_gt_u32 s[4:5], {i-1-P.FCL}, v{FCV}"], [f"s_and_b32 s4, s4, s{sFM}", f"s_cbranch_scc1 {a}", f"{r}:"]]
            self.R += [f"{a}:", f"s_movk_i32 s{sFT}, {i-P.FCL}", f"s_call_b64 s[{sRT2}:{sRT2+1}], L_fcspin", f"s_branch {r}"]
        elif i > 1: it += [[f"@vmw fc{i-1}"]]
        if i <= len(P.FC) - 1:
            it += [[f"v_cndmask_b32 v{FCV}, 0, 1, s[{sF1}:{sF1+1}]"], [f"buffer_atomic_add v{FCV}, v{VO+1}, {srd(sFC)}, 0 offen sc0 ; @t:fc{i}"]]
        return it
    def fc_spin(self):
        return ["L_fcspin:", f"buffer_load_dword v{FCV}, v{VO+1}, {srd(sFC)}, 0 offen sc1", "s_waitcnt vmcnt(0)",
                f"v_cmp_gt_u32 s[4:5], s{sFT}, v{FCV}", f"s_and_b32 s4, s4, s{sFM}", "s_cbranch_scc0 L_fcret",
                f"s_sub_u32 s{sFN}, s{sFN}, 1", "s_cbranch_scc0 L_fcspin", f"s_mov_b32 s{sFM}, 0", "L_fcret:", f"s_setpc_b64 s[{sRT2}:{sRT2+1}]"]

    def head_sched(self):
        sc = Sch(**P.SH)
        XF = lambda c, ks, s: 64 + 40 * (1 - c % 2) + 20 * ks + 4 * s
        fk = 0; done = {}
        for c in range(7):
            rel = f"p{c}" if c else None; due = f"p{c+1}"
            wreg, wb = [(self.WA + 2, 32768), (self.WA + 2, 0), (self.WA, 0)][c % 3]
            for ks in range(2):
                for s in range(5):
                    if s == 4: a = f"v{self.XA+4+ks} offset:{4096*(c%3)}"
                    elif c % 3 == 0: a = f"v{self.XA+2+ks} offset:{2048*s}"
                    else: a = f"v{self.XA+ks} offset:{self.XM[c%3] - SLOT(1) + 2048*s}"
                    sc.add_frag(("x", c, ks, s), ("x", c % 2, ks, s), [f"ds_read_b128 {ar(XF(c,ks,s))}, {a}"], rel=rel, due=due, q="x")
            seq = [(ks, j) for ks in range(2) for j in range(P.HCH)] if c < 6 else [(ks, j) for j in range(P.HCH) for ks in range(2)]
            seq += [(ks, j) for j in range(P.HCH, 8) for ks in range(2)]
            bu = {}
            for (ks, j) in seq:
                f = ("w", c, ks, j); b = bu[ks] = (fk + 4) % 12
                sc.add_frag(f, b, self.trd(b, wreg, j, wb + ks * 4096), rel=rel, due=due)
                fk += 1
                if j >= P.HCH and ks == 0: continue
                for s in range(5):
                    o = vr(QA(s, j))
                    for k2 in ((ks,) if j < P.HCH else (0, 1)):
                        done[j] = sc.m(f"{MF} {o}, {ar(FB(bu[k2]))}, {ar(XF(c,k2,s))}, {'0' if c == 0 and k2 == 0 else o}", [("w", c, k2, j), ("x", c, k2, s)])
            lines = [f"@vmw c{c+1} lgkmcnt(0)" if c < 6 else "s_waitcnt lgkmcnt(0)", "s_barrier"] + self.stamp(4 + c)
            sc.bar(due, sc.n() - 1 - P.BB, lines)
        nq = sc.n(); p6 = nq - 80 - 1 - P.BB; p7 = nq - 1 - P.BB
        XQ = lambda x: SLOT(1) + x * 1024 if x < 8 else SLOT(3) + (x - 8) * 1024 if x < 16 else SLOT(4) + (x - 16) * 1024
        qrd = lambda x: f"ds_read_b128 {QR(x % 5, 4 + x // 5)}, v{OWNP} offset:@{XQ(x)}"
        for x in range(20): sc.add_frag(("qx", x), ("qx", x), [qrd(x)], rel="p7" if x < 8 else "BX", q="qx", by=nq + 14 if x < 8 else nq + P.BXG + 16)
        order = [(kt, i) for i in (0, 1, 4, 2, 3) for kt in range(2)] + [(kt, i) for kt in range(2) for i in (5, 6, 7)]
        bufs = [8, 9, 10, 11, 0, 1, 2, 3, 4, 5, 6, 12, 13, 7, 14, 15]
        use = {}; end = {}
        for (kt, i), b in zip(order, bufs):
            sc.add_frag(("k0", kt, i), b, self.krd(b, kt, i), rel="BX" if b >= 12 else "p7", due="B0")
            for s in range(5):
                t = HF(s) + str(kt)
                g = sc.m(f"{MF} {vr(S(t,s))}, {ar(FB(b))}, {QR(s,i)}, {'0' if i == 0 else vr(S(t,s))}", [("k0", kt, i)] + ([("qx", 5 * (i - 4) + s)] if i >= 4 else []))
                use.setdefault((s, i), g); end[(kt, s)] = g
        n0 = sc.n(); b0 = end[(0, 4)] + 9
        sc.bar("B0", b0, ["s_waitcnt lgkmcnt(0)", "s_barrier"] + self.stamp(11))
        self.vfrags(sc, "v0", "B0", "B1", None, ch=(8, 8))
        start, _ = self.pv_mfmas(sc, "v0", True, ch=(8, 8))
        n1 = sc.n(); b1 = n0 + P.BPH; bp = n0 + 8
        sc.bar("BP", bp, ["@waitw", "s_barrier"] + self.stamp(59), clears=False)
        sc.bar("B1", b1, ["@vmw K1 lgkmcnt(0)", "s_barrier"] + self.stamp(12))
        self.kfrags(sc, "k1", "B1", None, self.kd(2), n=P.NPK, use=n1)
        bx = nq + P.BXG
        wl = []; wrl = []
        for i in range(4):
            it = []; sw = []
            for s in range(5):
                r = QA(s, 2 * i)
                it += [[f"v_mul_f32 v{r+k}, s{sSC}, v{r+k}"] for k in range(8)] + sw
                it += [[f"v_cvt_pk_bf16_f32 v{r+k}, v{r+2*k}, v{r+2*k+1}"] for k in range(4)]
                sw = [[f"v_permlane16_swap_b32 v{r+k}, v{r+2+k}"] for k in range(2)]
                x = 5 * i + s
                w = [f"ds_write_b128 v{PARP}, {vr(r)} offset:@{XQ(x)}"]
                if x < 8 or i == 3: sw.append(w)
                else: wl.append(w)
            it += sw
            g1 = max(use[(0, i)] - 2, done[2 * i + 1] + 2)
            if i < 2: g1 = min(g1, p7 - 2 if i else p7 - 20)
            g1 = min(g1, bx - 2)
            sc.chain(done[2 * i + 1] + 2, g1, it, hard=2.5)
            wrl += [g1 + 1] * (len(wl) - len(wrl))
        sc.chain(p7 + 1, bx - 2, wl, rels=wrl, after="p7")
        sc.bar("BX", bx, ["@waitw", "s_barrier"] + self.stamp(58), clears=False)
        sc.chain(p6 + 2, p6 + 30, self.flush_items(0))
        sc.chain(use[(0, 4)], bx - 1, [["@waitt " + qrd(7)]] + self.flush_items(1))
        mx = []; rl = []
        for s in range(5):
            r = S(HF(s) + "0", s); c = CI(s)
            mx += [[f"v_min3_f32 v{c}, -v{r}, -v{r+1}, -v{r+2}"], [f"v_min_f32 v{c}, -v{r+3}, v{c}"]]; rl += [end[(0, s)] + 2] * 2
        mx += [[f"s_cmp_lg_u32 s{sMODE}, 0", "s_cbranch_scc1 L_tmax", "L_tmax_ret:"]]
        mx += [[f"ds_min_f32 v{T0}, v{CI(s)} offset:{64*s}"] for s in range(5)]
        sc.chain(rl[0], b0 - 1, mx, rels=rl + [0] * 6, hard=3)
        rd = [[f"ds_read2_b32 {vr(CI(s)+k,2)}, v{T0} offset0:{16*s} offset1:{16*s}"] for k in (0, 2) for s in range(5)]
        c0 = self.softmax("b0", 0, True); c1 = self.softmax("b1", 0, True)
        wr = [x for x in c1 if x[0].startswith("ds_")]; c1 = [x for x in c1 if x not in wr]
        sc.chain(b0, n0 - 1, rd + c0 + c1, rels=[0] * (len(rd) + len(c0)) + [end[(1, 2)] + 2] * len(c1), after="B0", hard=4)
        sc.chain(n0, bp - 1, wr)
        sc.chain(n0 + 1, b1 - 5, self.softmax("a0", 0, True) + self.softmax("a1", 0, True))
        for s in range(3): sc.fix(bp + 1 + s, [self.pprd(0, s)])
        for s in (3, 4): sc.fix(b1 + s - 2, [self.pprd(0, s)])
        if 3 in P.HST: sc.chain(end[(0, 0)], b0 - 1, [["@waitt " + qrd(15)]] + self.flush_items(3))
        if 4 in P.HST: sc.chain(bp + 10, start["a"] - 4, [["@waitt " + self.pprd(0, 2)]] + self.flush_items(4))
        free = {"c3": "p1", "c4": "p2", "c5": "p3", "c6": "p4", "K1": "p5", "V2": "B0"}
        bgap = {v[0]: g for g, v in sc.bars.items()}
        bgap["V1"] = end[(0, 0)]; bgap["K2"] = bp + 10
        if 3 not in P.HST: free["V1"] = "V1"
        if 4 not in P.HST: free["K2"] = "K2"
        lastg = -10; used = []
        HQ = P.HQ if not P.VSP else [x for x in P.HQ if x[0][0] == "c"] + [x for x in P.HQ if x[0][0] != "c"]
        for (nm, g0, st, *rg) in HQ:
            if P.VSP and nm == HQ[5][0]: lastc = lastg; lastg = -10
            if P.VSP and nm in free and nm[0] != "c": g0 = max(g0, lastc + 3)
            if nm[0] == "c": it = self.w_items(int(nm[1])) + self.x_items(int(nm[1]))
            elif rg: it = self.kv_head_items(2 * int(nm[1]) + (nm[0] == "V"), rg[1], rg[0])
            else: it = self.kv_head_items(2 * int(nm[1]) + (nm[0] == "V"), 6 if nm == "V2" else 8)
            if nm == "V1" and nm in free: it = [["@waitt " + qrd(15)]] + it
            if nm == "K2" and nm in free: it = [["@waitt " + self.pprd(0, 2)]] + it
            if nm in free: g0 = max(g0, bgap[free[nm]] + 2)
            g0 = max(g0, lastg + 3)
            nb = sum(1 for x in it if x[0].startswith("buffer"))
            pos = [int(g0 + k * st) for k in range(nb)]
            for k in range(nb):
                if k: pos[k] = max(pos[k], pos[k - 1] + 1)
                while any(abs(pos[k] - u) < P.VSP for u in used): pos[k] += 1
            used += pos
            self.place_dma(sc, it, pos); lastg = pos[-1]
            if nm[0] == "c": assert lastg < bgap[f"p{nm[1]}"], nm
        assert lastg < n1 - 2
        if P.WP > 1: sc.fix(P.WP, [f"buffer_load_dword v{T1}, v{T1}, {srd(sFC)}, 0 offen{P.TNT}"])
        for (p, g) in (P.L2["hd"] if P.L2 else []):
            a, b = self.touch(p); sc.fix(g - 1, a); sc.fix(g, b)
        for (n, g) in P.TCH:
            assert g < b0
            sc.fix(g, [f"s_mov_b32 s{sT1}, {(n//2)*P.KVINC}", f"buffer_load_dword v{T1}, v{self.TV}, {srd(sA if n % 2 == 0 else sB_)}, s{sT1} offen offset:768{P.TNT}"])
        L = sc.run()
        ix = lambda t: L.index(t)
        bars = [k for k, l in enumerate(L) if l == "s_barrier"]
        for x in range(20):
            k = ix(f"ds_write_b128 v{PARP}, {vr(QA(x % 5, 2 * (x // 5)))} offset:@{XQ(x)}")
            assert (bars[5] < k < bars[6]) if x < 8 else (bars[6] < k < bars[7]), x
        assert ix(qrd(7)) < ix("@waitt " + qrd(7)) and ix(qrd(15)) < ix("@waitt " + qrd(15)) and ix(self.pprd(0, 2)) < ix("@waitt " + self.pprd(0, 2))
        return L
    def tmax(self):
        F = lambda i: OV(i); A = lambda s: OV(8 + s); AD = OV(13); X = OV(13) + 1
        R = ["L_tmax:", f"v_mbcnt_lo_u32_b32 v{X}, -1, 0", f"v_mbcnt_hi_u32_b32 v{X}, -1, v{X}",
             f"v_lshrrev_b32 v{AD}, 4, v{X}", f"v_lshlrev_b32 v{AD}, 1, v{AD}", f"s_movk_i32 s{sD}, 0xd8", f"v_bfe_u32 v{AD}, s{sD}, v{AD}, 2",
             f"v_lshlrev_b32 v{AD}, 4, v{AD}", f"v_and_b32 v{X}, 15, v{X}", f"v_lshl_add_u32 v{AD}, v{X}, 9, v{AD}",
             f"s_and_b32 s{sD}, s{sW}, 1", f"s_mul_i32 s{sD}, s{sD}, {262144 + 256}", f"v_add_u32 v{AD}, s{sD}, v{AD}", f"v_xor_b32 v{X}, 256, v{AD}",
             f"s_movk_i32 s{sD}, 768", "L_tmax_l:"]
        R += [f"buffer_load_dwordx4 {vr(F(i))}, v{AD if i < 4 else X}, {srd(sA)}, s{sD} offen offset:{64*(i&3)}" for i in range(8)]
        R += ["s_waitcnt vmcnt(0) lgkmcnt(0)"]
        for i in range(8):
            for s in range(5): R.append(f"{MF} {vr(A(s))}, {vr(F(i))}, {QR(s,i)}, {'0' if i == 0 else vr(A(s))}")
        R += ["s_nop 7", "s_nop 1"]
        for s in range(5): R += [f"v_min3_f32 v{CI(s)}, v{CI(s)}, -v{A(s)}, -v{A(s)+1}", f"v_min3_f32 v{CI(s)}, v{CI(s)}, -v{A(s)+2}, -v{A(s)+3}"]
        R += [f"s_add_u32 s{sD}, s{sD}, 8192", f"s_cmp_lt_u32 s{sD}, 262144", "s_cbranch_scc1 L_tmax_l", "s_branch L_tmax_ret"]
        return R

    WV = 220
    def wo_items(self, j, slot):
        it = []
        for g in range(2):
            it.append([f"s_add_u32 m0, s{sW8K}, {SLOT(slot) + g*4096}"] + ([f"s_add_u32 s{sT0}, s{sCO+j}, 28672"] if g else []))
            for u in range(4):
                it.append([f"buffer_load_dwordx4 v{self.WV+u}, {srd(sWQ)}, s{sT0 if g else sCO+j} offen offset:{u*1024}{' nt' if j in P.WONT else ''} lds ; @t:o{j}"])
        return it
    def wo_setup(self):
        WV = self.WV; L_ = WV + 3
        sw = [f"s_mul_i32 s{sT0}, s{sHd}, 229376", f"s_add_u32 s{sWQ}, s{sWO}, s{sT0}", f"s_addc_u32 s{sWQ+1}, s{sWO+1}, 0", f"s_mov_b32 s{sWQ+2}, 229376",
              f"v_mbcnt_lo_u32_b32 v{L_}, -1, 0", f"v_mbcnt_hi_u32_b32 v{L_}, -1, v{L_}",
              f"v_bfe_u32 v{WV}, v{L_}, 2, 3", f"v_mul_u32_u24 v{WV}, 896, v{WV}", f"v_lshrrev_b32 v{WV+1}, 5, v{L_}",
              f"v_lshl_add_u32 v{WV}, v{WV+1}, 6, v{WV}", f"v_lshrrev_b32 v{WV+1}, 3, v{L_}", f"v_and_b32 v{WV+1}, 2, v{WV+1}",
              f"v_and_b32 v{WV+2}, 3, v{L_}", f"v_xor_b32 v{WV+1}, v{WV+1}, v{WV+2}", f"v_lshl_add_u32 v{WV}, v{WV+1}, 4, v{WV}",
              f"s_mul_i32 s{sT0}, s{sW}, 57344", f"v_add_u32 v{WV}, s{sT0}, v{WV}"]
        sw += [f"v_add_u32 v{WV+u}, {6144*u}, v{WV}" for u in range(1, 4)]
        sw = [[x] for x in sw]
        sw[1:3] = [sw[1] + sw[2]]
        for j in range(7):
            nf = max(P.ROTW - 1, 0)
            if j == 0 and P.ROTW < 2: sw.append([f"s_lshl_b32 s{sCO}, s{sC}, 7" if P.ROTW else f"s_mov_b32 s{sCO}, 0"])
            elif j < nf: sw.append([f"s_movk_i32 s{sCO+j}, {128*j}"])
            elif j == nf: sw += [[f"s_cmp_ge_u32 s{sBt}, {7-nf}", f"s_cselect_b32 s{sT0}, {2*nf-7}, {nf}"], [f"s_add_u32 s{sCO+j}, s{sBt}, s{sT0}"], [f"s_lshl_b32 s{sCO+j}, s{sCO+j}, 7"]]
            else: sw.append([f"s_add_u32 s{sCO+j}, s{sCO+j-1}, 128", f"s_cmp_eq_u32 s{sCO+j}, 896", f"s_cselect_b32 s{sCO+j}, {128*nf}, s{sCO+j}"])
            sw.append([f"s_mul_i32 s{sCS+j}, s{sCO+j}, 160"])
        return sw
    def tail_sched(self):
        sc = Sch(**P.ST)
        WAr = lambda st, par: 224 + 2 * st + par
        SO = 230
        RL = lambda s: CI(0) + s
        LP = CI(2)
        end = self.qk_part(sc, 30)
        n0 = sc.n()
        wo_items = self.wo_items
        L_ = 233; O4 = 234
        sw = [] if P.WG else self.wo_setup()
        sw += [[f"v_mbcnt_lo_u32_b32 v{L_}, -1, 0"], [f"v_mbcnt_hi_u32_b32 v{L_}, -1, v{L_}"]]
        G_, R_ = WAr(0, 0), WAr(0, 1)
        su = [f"v_lshrrev_b32 v{G_}, 5, v{L_}", f"v_bfe_u32 v{R_}, v{L_}, 2, 3", f"v_lshlrev_b32 v{R_}, 6, v{R_}",
              f"v_lshl_add_u32 v{G_}, v{G_}, 10, v{R_}", f"v_and_b32 v{R_}, 3, v{L_}", f"v_lshl_add_u32 v{G_}, v{R_}, 3, v{G_}",
              f"v_and_b32 v{R_}, 16, v{L_}", f"v_lshl_add_u32 v{G_}, v{R_}, 1, v{G_}",
              f"s_and_b32 s{sT1}, s{sW}, 1", f"s_mul_i32 s{sT2}, s{sT1}, {16384+32}", f"v_xor_b32 v{G_}, s{sT2}, v{G_}", f"v_xor_b32 v{R_}, 0x4000, v{G_}"]
        su += [f"v_add_u32 v{WAr(st,k)}, {0x10000*st}, v{WAr(0,k)}" for st in (1, 2) for k in range(2)]
        su += [f"v_lshlrev_b32 v{L_}, 4, v{L_}", f"s_lshl_b32 s{sT1}, s{sT1}, 10", f"s_lshr_b32 s{sT2}, s{sW}, 1", f"s_lshl_b32 s{sT2}, s{sT2}, 13",
               f"s_add_u32 s{sT2}, s{sT2}, s{sT1}", f"v_add_u32 v{SO}, s{sT2}, v{L_}", f"v_add_u32 v{SO+1}, 4096, v{SO}",
               f"s_lshl_b32 s{sT2}, s{sW}, 10", f"s_add_u32 s{sT2}, s{sT2}, 16384", f"v_add_u32 v{SO+2}, s{sT2}, v{L_}",
               f"s_add_u32 s{sT2}, s{sW8K}, {SLOT(4)}", f"v_add_u32 v{O4}, s{sT2}, v{L_}", f"v_xor_b32 v{O4+1}, 0x2000, v{O4}", f"v_xor_b32 v{O4+2}, 0x4000, v{O4}"]
        sc.chain(0, 44, sw + [[x] for x in su])
        if P.WG:
            for g, it in self.plan[30]: sc.fix(g, it)
        else: self.place_dma(sc, wo_items(0, 2), P.WO0)
        sc.bar("B", P.BQ, ["@vmw V15 lgkmcnt(0)", "s_barrier"] + self.stamp(41))
        self.vfrags(sc, "v", "B", "B31", self.vd(31), ch=P.PCT)
        start, fin = self.pv_mfmas(sc, "v", og=lambda s, j: vr(OT(s, j)), ch=P.PCT)
        n1 = sc.n(); b1 = n0 + (P.BPT or P.BP)
        self.pv_soft(sc, 31, n0, P.BPT)
        if not P.WG: self.place_dma(sc, wo_items(1, 3), [n0 + 4 + 5 * k for k in range(8)])
        mv = lambda t: [[f"v_accvgpr_read_b32 v{8*(t-20)+k}, a{144+4*(t-20)+k}"] for k in range(4)]
        sc.chain(end["b1"] + 2, n0 + 8, [x for t in range(20, 24) for x in mv(t)])
        sc.chain(end["b1"] + 2, start["a"] - 2, [x for t in range(24, 40) for x in mv(t)], rels=[0] * 32 + [n0 + 1] * 32)
        sc.bar("B31", b1, ["s_waitcnt lgkmcnt(0)", "s_barrier"] + self.stamp(42))
        def XO(s, i, r):
            if s < 2: return f"v{O4 + r - OWNP}", f"offset:{(4 * s + i) * 1024}"
            return f"v{r}", f"offset:@{SLOT(0) + i * 1024 if s == 2 else SLOT(1) + (4 * (s - 3) + i) * 1024}"
        XL = SLOT(0) + 4096
        ord_ = lambda s, i: f"ds_read_b128 {QR(s, 4+i)}, {' '.join(XO(s, i, OWNP))}"
        g0 = sc.n(); ba = g0 + P.BAG; bb = g0 + P.BBG
        for h, bn, by in (("b", "Ba", ba + 10), ("a", "Bb", bb + 8)):
            for i in range(4):
                for s in TL[h + "0"]: sc.add_frag(("ox", s, i), ("ox", s, i), [ord_(s, i)], rel=bn, q="ox", by=by)
        pool = [S("b0", 0) + 4 * k for k in range(10)] + [OT(s, 2 * i + 1) for s in range(5) for i in range(4)]
        ui = [0]; fk = [0]; buse = {}
        def nacc():
            r = pool[ui[0] % len(pool)]; ui[0] += 1; return r
        SLW = [2, 3, 4, 0, 1, 2, 3]
        def wfrag(j, hi, i, rel, due):
            f = ("o", fk[0]); k = fk[0] % 16; fk[0] += 1; sl = SLW[j]
            off = (sl & 1) * 32768 + (i & 3) * 4096 + hi * 512
            sc.add_frag(f, k, [f"ds_read_b64_tr_b16 {ar(FB(k)+2*rd,2)}, v{WAr(sl>>1,i>>2)} offset:{off+2048*rd}" for rd in range(2)], rel=rel, due=due)
            return f, k
        def mm(fk_, acc, s, hi, i):
            o = vr(acc[s][hi])
            g = sc.m(f"{MF} {o}, {ar(FB(fk_[1]))}, {vr(OT(s,2*i)) if i < 4 else QR(s,i)}, {'0' if i == 0 else o}", [fk_[0]] + ([("ox", s, i - 4)] if i >= 4 else []))
            buse.setdefault((s, i), g); return g
        sts = []
        def epi(j, acc, s, his):
            it = []
            for hi in his:
                r = acc[s][hi]; d = acc[s][0] + 2 * hi
                it += [[f"v_mul_f32 v{r+k}, v{r+k}, v{RL(s)}"] for k in range(4)] + [[f"v_cvt_pk_bf16_f32 v{d+k}, v{r+2*k}, v{r+2*k+1}"] for k in range(2)]
            return it, [f"buffer_store_dwordx4 {vr(acc[s][0])}, v{SO+(s>>1)}, {srd(sWS)}, s{sCS+j} offen offset:{2048*(s&1)}{P.STMOD} ; @t:s{j}"] if 1 in his else None
        def epis(g, j, acc, subs, his):
            for s in subs:
                it, st = epi(j, acc, s, his); w = P.EPW * len(his)
                sc.chain(g, g + w + 1, it); g += w
                if st: sts.append((g + 2, st))
        acc = {s: (nacc(), nacc()) for s in range(5)}
        fr = {(hi, i): wfrag(0, hi, i, "Bo", "Bc") for par in range(2) for i in range(4 * par, 4 * par + 4) for hi in range(2)}
        ge = {}
        for par in range(2):
            for h in "ba":
                for i in range(4 * par, 4 * par + 4):
                    for hi in range(2):
                        for s in TL[h + "0"]: ge[h] = mm(fr[(hi, i)], acc, s, hi, i)
        sc.bar("Bo", n1 - 1 - P.BB, ["@vmw o0", "s_barrier"], clears=False)
        sc.bar("Ba", ba, ["@waitw", "s_barrier"] + self.stamp(43), clears=False)
        sc.bar("Bb", bb, ["@waitw", "@vmw o1", "s_barrier"] + self.stamp(44), clears=False)
        epis(ge["b"] + 2, 0, acc, range(5), (0, 1))
        relw = {1: "Bb", 2: "Bc", 3: "Bc", 4: "Bd", 5: "Be", 6: "Bf" if P.BF else "Be"}
        gj = {}
        for j in range(1, 7):
            acc = {s: (nacc(), nacc()) for s in range(5)}
            if j == 6 and P.SMAJ:
                fr = {(hi, i): wfrag(j, hi, i, relw[j], None) for hi in range(2) for i in range(8)}
                for subs in P.SMAJ:
                    for hi in range(2):
                        for i in range(8):
                            for s in subs: g = mm(fr[(hi, i)], acc, s, hi, i)
                        if 4 not in subs or not hi: epis(g + 2, j, acc, subs, (hi,))
                pend = subs
            else:
                for hi in range(2):
                    for i0 in range(0, 8, P.TCN):
                        f = {i: wfrag(j, hi, i, relw[j], "Bc" if j == 1 else None) for i in range(i0, i0 + P.TCN)}
                        for s in range(5):
                            for i in f: g = mm(f[i], acc, s, hi, i)
                    if j < 6 or not hi: epis(g + 2 + (12 if j == 1 and not hi else 0), j, acc, range(5), (hi,))
                pend = range(5)
            gj[j] = g
        pend = [epi(6, acc, s, (1,)) for s in pend]
        pend = [x for it, st in pend for x in it + [st]]
        if P.BF: sc.bar("Bf", gj[P.BF[0]] - P.BF[1], ["@vmw o6", "s_barrier"], clears=False)
        sc.bar("Bc", gj[1] - P.BB, ["@vmw o3 lgkmcnt(0)", "s_barrier"] + self.stamp(45))
        sc.bar("Bd", gj[3] - P.BB, ["@vmw o4", "s_barrier"] + self.stamp(46), clears=False)
        sc.bar("Be", gj[4] - P.BB, ["@waitw", "@vmw o5" if P.BF else "@vmw o6", "s_barrier"] + self.stamp(47), clears=False)
        for h, bg in (("b", ba), ("a", bb)):
            wl = []; wr = []
            for i in range(4):
                it = []
                for s in TL[h + "0"]:
                    r, r2 = OT(s, 2 * i), OT(s, 2 * i + 1)
                    it += [[f"v_cvt_pk_bf16_f32 v{r+k}, v{[r,r2][k>>1]+2*(k&1)}, v{[r,r2][k>>1]+2*(k&1)+1}"] for k in range(4)]
                    wl.append([f"ds_write_b128 {XO(s, i, PARP)[0]}, {vr(r)} {XO(s, i, PARP)[1]}"])
                r0 = fin[(TL[h + "0"][-1], 2 * i + 1)] + 2
                g1 = max(r0, min(buse[(TL[h + "0"][0], i)] - 2, r0 + 30))
                sc.chain(r0, g1, it, hard=2.5)
                wr += [g1 + 1] * (len(wl) - len(wr))
            if h == "b":
                wl = [[f"ds_write_b32 v{PARP}, a{LS(s)} offset:@{XL + (4*s if s < 4 else 1024)}"] for s in range(5)] + wl
                wr = [fin[("l", 4)] + 3] * 5 + wr
            sc.chain(max(b1 + 1, wr[0]), bg - 2, wl, rels=wr, after="B31")
        lrd = f"ds_read_b32 v{LP+4}, v{OWNP} offset:@{XL+1024}"
        m = [[f"ds_read_b128 {vr(LP)}, v{OWNP} offset:@{XL}"], [lrd]] + [[f"v_accvgpr_read_b32 v{RL(s)}, a{LS(s)}"] for s in range(5)]
        m += [[f"v_add_f32 v{RL(s)}, v{RL(s)}, v{LP+s}"] for s in range(5)]
        m += [[f"v_add_f32 v{LP}, v{RL(0)}, v{RL(1)}"], [f"v_add_f32 v{LP+1}, v{RL(2)}, v{RL(3)}"], [f"v_add3_u32 v{LP+2}, 0, 0, 0"], [f"v_add_f32 v{LP}, v{LP}, v{RL(4)}"], [f"v_add_f32 v{LP}, v{LP}, v{LP+1}"]]
        del m[-3]
        m += [[f"v_rcp_f32 v{RL(s)}, v{RL(s)}"] for s in range(5)]
        sc.chain(ba + 1, ge["b"], m, after="Ba")
        sc.chain(gj[3] - P.BB + 1, gj[4] - P.BB - 8, [[f"ds_write_b32 v{O4}, v{LP}"]], after="Bd")
        used = []
        pre = {2: [["@waitt " + ord_(1, 3)]], 3: [["@waitt " + ord_(2, 3), "@waitt " + lrd]], 4: [["@waitt " + ord_(4, 3)]]}
        for j, (o, st) in zip(range(2, 7), P.TQ):
            pos = [int(g0 + o + st * k) for k in range(8)]
            assert pos[0] > (ba + 12 if j < 4 else bb + 10 if j == 4 else gj[1] - P.BB + 1) and (not used or pos[0] > used[-1] + 1)
            self.place_dma(sc, pre.get(j, []) + wo_items(j, SLW[j]), pos); used += pos
        g1 = g0 + P.TS0 - P.TSS
        for g, st in sts:
            g1 = max(g, g1 + (P.TSS if g < gj[5] + 30 else min(P.TSS, 4)))
            while any(abs(g1 - u) < P.TSP for u in used): g1 += 1
            g1 = min(g1, sc.n() - 1); assert g1 < g + 150
            sc.fix(g1, st)
        ck = [[f"ds_read_b32 v{LP+1}, v{O4+2}"], [f"v_add_f32 v{LP}, v{LP}, v{LP+1}"], [f"v_cmp_nge_f32 vcc, s{sTH}, v{LP}"], ["s_cbranch_vccnz L_redo", "L_redo_ret:"]]
        if P.F2:
            sc.chain(gj[4] - P.BB + 1, gj[4] + 16, ck, rels=[0, gj[4] + 6, 0, 0], after="Be")
            sc.chain(g0 + P.CG[0], g0 + P.PG - 2, self.f2_setup() + self.f2_share() + [["@vmw by", self.f2_st()]])
            sc.fix(g0 + P.PG, [self.f2_poll() + " ; @t:pl"])
            for n, g in P.EF:
                if g is not None:
                    assert g0 + g > gj[4] + 17
                    sc.fix(g0 + g, [f"@vmw s{n-1}"] + self.f2_flag(n))
        else: sc.chain(gj[4] - P.BB + 1, gj[5], ck, rels=[0, gj[4] + 10, 0, 0], after="Be")
        L = sc.run()
        for x in (ord_(1, 3), ord_(2, 3), lrd, ord_(4, 3)):
            assert L.index(x) < L.index("@waitt " + x), x
        i1 = next(k for k, l in enumerate(L) if l.startswith(f"v_rcp_f32 v{RL(4)},")); i2 = next(k for k, l in enumerate(L) if l.startswith("v_mul_f32"))
        assert i1 < i2
        L += ["s_nop 7"] + [x for it in pend for x in it]
        if P.F2:
            for n, g in P.EF:
                i = L.index(self.f2_flag(n)[1]) if g is not None else len(L)
                assert sum(1 for l in L[:i] if l.endswith(f"@t:s{n-1}")) == 5 and L.index("L_redo_ret:") < i
            assert L.index(self.f2_st()) < L.index(self.f2_poll() + " ; @t:pl")
            L += self.f2_first()
        return L
    def redo(self):
        return ["L_redo:", f"s_cmp_lg_u32 s{sMODE}, 0", "s_cbranch_scc1 L_redo_ret", f"s_mov_b32 s{sMODE}, 1", "s_waitcnt vmcnt(0) lgkmcnt(0)", "s_barrier",
                "v_mbcnt_lo_u32_b32 v0, -1, 0", "v_mbcnt_hi_u32_b32 v0, -1, v0", f"s_lshl_b32 s{sT0}, s{sW}, 6", f"v_add_u32 v0, s{sT0}, v0",
                "s_getpc_b64 s[4:5]", "L_redo_pc:", "s_sub_u32 s4, s4, L_redo_pc-L_again", "s_subb_u32 s5, s5, 0", "s_setpc_b64 s[4:5]"]

    def f2_zero(self):
        a, b = sT1, sT2
        return [[f"v_mbcnt_lo_u32_b32 v{T1}, -1, 0"], [f"v_mbcnt_hi_u32_b32 v{T1}, -1, v{T1}"], [f"v_lshlrev_b32 v{T1}, 4, v{T1}"],
                [f"s_lshl3_add_u32 s{a}, s{sBLK}, s{sBt}"], [f"s_mul_i32 s{a}, s{a}, {16*PART}"], [f"s_lshl_b32 s{b}, s{sW}, 8"], [f"s_lshl2_add_u32 s{b}, s{sHd}, s{b}"],
                [f"s_add_u32 s{a}, s{a}, s{b}"], [f"s_add_u32 s{a}, s{a}, {MB0}"], [f"s_add_u32 s{F.sFL}, s72, s{a}", f"s_addc_u32 s{F.sFL+1}, s73, 0"],
                [f"s_mov_b32 s{F.sFL+2}, 4"], [f"s_mov_b32 s{F.sFL+3}, 0x20000"], [f"buffer_store_dword v{T1}, v{T1}, {srd(F.sFL)}, 0 offen sc1"]]
    def f2_started(self):
        a = sT1
        return [[f"s_lshl3_add_u32 s{a}, s{sBLK}, s{sBt}"], [f"s_lshl4_add_u32 s{a}, s{a}, s{sHd}"], [f"s_add_u32 s{sX}, s94, s{a}", f"s_addc_u32 s{sX+1}, s95, 0"],
                [f"s_cmp_eq_u32 s{sW}, 0", f"s_cselect_b32 s{sX+2}, 1, 0"], [f"buffer_store_byte a{ONES}, v{T1}, {srd(sX)}, 0 offen sc1"]]
    def f2_setup(self):
        L_ = T1; a, b = F.t0, F.t1
        return [[f"s_lshl3_add_u32 s{a}, s{sBLK}, s{sBt}"], [f"s_lshl_b32 s{b}, s{a}, 4"],
                [f"s_add_u32 s{F.sDB}, s94, s{b}", f"s_addc_u32 s{F.sDB+1}, s95, 0"], [f"s_mov_b32 s{F.sDB+2}, 16"], [f"v_lshrrev_b32 v{F.LN}, 4, v{L_}"],
                [self.f2_bytes() + " ; @t:by"],
                [f"s_mul_i32 s{a}, s{a}, {16*PART}"], [f"s_add_u32 s{F.sPR}, s72, s{a}", f"s_addc_u32 s{F.sPR+1}, s73, 0"], [f"s_mov_b32 s{F.sPR+2}, {16*PART}"],
                [f"s_mov_b32 s{F.sOU}, s92"], [f"s_mov_b32 s{F.sOU+1}, s93"], [f"s_mov_b32 s{F.sOU+2}, {8*160*1792}"], [f"s_mov_b32 s{F.sOU+3}, 0x20000"],
                [f"s_mov_b32 s{F.FRC}, 0"], [f"s_movk_i32 s{F.CNT}, {P.SPIN}"], [f"s_mov_b32 s{F.PEND}, -1"], [f"s_mov_b32 s{F.GU}, 0"], [f"s_mov_b32 s{F.IDX}, s{sHd}"],
                [f"s_lshl_b32 s{a}, s{sW}, 8"], [f"s_add_u32 s{a}, s{a}, {MB0}"], [f"v_lshrrev_b32 v{F.MP}, 8, v{L_}"], [f"v_lshl_add_u32 v{F.MP}, v{F.MP}, 26, v{F.LN}"],
                [f"v_lshl_add_u32 v{F.MP}, v{F.MP}, 2, s{a}"], [f"v_and_b32 v{F.Q2}, 3, v{F.LN}"], [f"v_lshlrev_b32 v{F.Q2}, 1, v{F.Q2}"],
                [f"v_and_b32 v{F.LO}, 0xf0, v{L_}"], [f"v_mul_u32_u24 v{F.LO}, 112, v{F.LO}"], [f"v_bfe_u32 v{F.TV}, v{L_}, 8, 1"], [f"v_lshl_add_u32 v{F.LO}, v{F.TV}, 6, v{F.LO}"],
                [f"v_lshrrev_b32 v{F.TV}, 9, v{L_}"], [f"v_lshl_add_u32 v{F.LO}, v{F.TV}, 4, v{F.LO}"],
                [f"v_and_b32 v{F.IDN}, 16, v{L_}"], [f"s_movk_i32 s{a}, 0x3f80"], [f"v_lshlrev_b32 v{F.IDN}, v{F.IDN}, s{a}"], [f"v_bfe_i32 v{F.TV}, v{L_}, 5, 1"],
                [f"v_and_b32 v{F.IDN+1}, v{F.IDN}, v{F.TV}"], [f"v_xor_b32 v{F.IDN}, v{F.IDN}, v{F.IDN+1}"],
                [f"s_mul_i32 s{a}, s{sBt}, {160*1792}"], [f"s_mul_i32 s{b}, s{sBLK}, 896"], [f"s_add_u32 s{a}, s{a}, s{b}"], [f"s_and_b32 s{b}, s{sW}, 1"],
                [f"s_lshl_b32 s{b}, s{b}, 5"], [f"s_add_u32 s{a}, s{a}, s{b}"], [f"v_add_u32 v{F.LO}, s{a}, v{F.LO}"], [f"s_lshl_b32 s{b}, s{b}, 5"],
                [f"v_add_u32 v{F.PB}, s{b}, v{L_}"]]
    def f2_share(self):
        u, s_, d, a = F.t0, F.t1, F.NEW, F.NEW + 1
        it = [[f"s_lshl2_add_u32 s{F.IDX}, s{sW}, s{F.IDX}"], [f"s_and_b32 s{F.IDX}, s{F.IDX}, 15"], [f"s_min_u32 s{u}, s{F.IDX}, 3"], [f"s_lshl1_add_u32 s{u}, s{F.IDX}, s{u}"],
              [f"s_mov_b32 s{F.SEEN}, 0xffff0000"], [f"s_mov_b32 s{F.SEEN+1}, 0xffff0000"], [f"s_cmp_lt_u32 s{F.IDX}, 3", f"s_cselect_b32 s{F.SEEN+2}, 0xffff0000, -1"]]
        for k in range(3):
            it += [[f"s_mul_i32 s{s_}, s{u}, 37"], [f"s_lshr_b32 s{s_}, s{s_}, 8"], [f"s_mul_i32 s{d}, s{s_}, 7"], [f"s_sub_u32 s{d}, s{u}, s{d}"],
                   [f"v_sub_u32 v{F.POS+k}, s{d}, v{F.Q2}"], [f"v_add_u32 v{F.PO+k}, 7, v{F.POS+k}"], [f"v_min_u32 v{F.POS+k}, v{F.POS+k}, v{F.PO+k}"]]
            it += [[f"s_add_u32 s{d}, s{d}, s{sBt}"], [f"s_sub_u32 s{a}, s{d}, 7"], [f"s_min_u32 s{d}, s{d}, s{a}"]]
            it += [[f"s_lshr_b32 s{a}, s{sW}, 1"], [f"s_add_u32 s{F.HO}, s{a}, 8"], [f"s_lshl2_add_u32 s{a}, s{a}, s{s_}"],
                   [f"s_cmp_lt_u32 s{s_}, 4", f"s_cselect_b32 s{s_}, s{a}, s{F.HO}"]]
            it += [[f"s_mul_i32 s{a}, s{d}, 10"], [f"s_add_u32 s{a}, s{a}, s{s_}"], [f"s_lshl_b32 s{a}, s{a}, 11"], [f"v_add_u32 v{F.PO+k}, s{a}, v{F.PB}"],
                   [f"s_mul_i32 s{s_}, s{s_}, {16*14}"], [f"s_add_u32 s{a}, s{s_}, s{d}"], [f"s_lshl_b32 s{a}, s{a}, 7"], [f"v_add_u32 v{F.OO+k}, s{a}, v{F.LO}"]]
            if k < 2: it += [[f"s_add_u32 s{u}, s{u}, 1"]]
        return it
    def f2_poll(self): return f"buffer_load_dword v{F.TV}, v{F.MP}, {srd(F.sPR)}, 0 offen sc1"
    def f2_bytes(self): return f"buffer_load_ubyte v{F.BY}, v{F.LN}, {srd(F.sDB)}, 0 offen sc1"
    def f2_st(self): return f"v_cmp_lt_u32 s[{F.ST}:{F.ST+1}], 64, v{F.BY}"
    def f2_flag(self, n): return [f"v_mov_b32 v{F.D0+(n&1)}, {n}", f"buffer_store_dword v{F.D0+(n&1)}, v{T1}, {srd(F.sFL)}, 0 offen sc1 ; @t:f{n}"]
    def f2_trace(self):
        if not P.STAMP: return []
        return [f"s_bcnt0_i32_b32 s45, s{F.SEEN}", f"s_bcnt0_i32_b32 s84, s{F.SEEN+1}", "s_add_u32 s45, s45, s84", "s_memrealtime s[84:85]", "s_waitcnt lgkmcnt(0)", "s_mov_b32 m0, s44",
                f"v_writelane_b32 v{STR}, s84, m0", f"v_writelane_b32 v{STC}, s45, m0", "s_add_u32 s44, s44, 1", "s_min_u32 s44, s44, 40", f"v_writelane_b32 v{STR}, s44, 61"]
    def f2_first(self):
        L = ["@vmw pl"]; self.npost = 0
        for n, g in P.EF:
            if g is None: L += [f"@vmw s{n-1}"] + self.f2_flag(n); self.npost += 1
        if P.STAMP: L += [f"v_writelane_b32 v{STR}, s{F.IDX}, 60", "s_mov_b32 s44, 16", f"v_writelane_b32 v{STR}, 16, 61"]
        if not P.FP: L += ["@vmw s6", "s_branch L_f_pub"]
        return L
    def fin2(self):
        L = []; e = L.append
        e("L_f_calc:")
        C = [F.C, F.C + 2, F.t0]
        for k in range(3): e(f"v_cmp_gt_u32 s[{C[k]}:{C[k]+1}], v{F.TV}, v{F.POS+k}")
        for k in range(3):
            e(f"s_and_b32 s{C[k]}, s{C[k]}, s{F.ST}"); e(f"s_or_b32 s{C[k]}, s{C[k]}, s{F.FRC}")
            e(f"s_andn2_b32 s{F.NEW+k}, s{C[k]}, s{F.SEEN+k}"); e(f"s_or_b32 s{F.SEEN+k}, s{F.SEEN+k}, s{F.NEW+k}")
        e(f"s_or_b32 s{F.t0}, s{F.NEW}, s{F.NEW+1}"); e(f"s_or_b32 s{F.t0}, s{F.t0}, s{F.NEW+2}"); e("s_cbranch_scc0 L_f_k2h15")
        L += self.f2_trace()
        for k in range(3):
            if k == 2: e(f"s_cmp_eq_u32 s{F.NEW+k}, 0"); e("s_cbranch_scc1 L_f_k2h15")
            for q in range(4):
                hs = [q + 4 * x for x in range(4)]
                e(f"s_and_b32 s{F.t1}, s{F.NEW+k}, {hex(0x1111 << q)}"); e(f"s_cbranch_scc0 L_f_k{k}h{hs[-1]}")
                for h in hs:
                    e(f"s_bitcmp1_b32 s{F.NEW+k}, {h}"); e(f"s_cbranch_scc0 L_f_k{k}h{h}")
                    e(f"s_mov_b32 s{F.HO}, {h*PART}")
                    e(f"buffer_load_dwordx4 {ar(12*h+4*k)}, v{F.PO+k}, {srd(F.sPR)}, s{F.HO} offen{P.RDMOD}")
                    e(f"L_f_k{k}h{h}:")
        e(f"s_cmp_lg_u32 s{F.FRC}, 0"); e("s_cbranch_scc1 L_f_chk")
        e(f"s_bcnt1_i32_b32 s{F.t0}, s{F.NEW}"); e(f"s_bcnt1_i32_b32 s{F.t1}, s{F.NEW+1}"); e(f"s_add_u32 s{F.t0}, s{F.t0}, s{F.t1}")
        e(f"s_bcnt1_i32_b32 s{F.t1}, s{F.NEW+2}"); e(f"s_add_u32 s{F.t0}, s{F.t0}, s{F.t1}")
        for n in (12, 24): e(f"s_cmp_le_u32 s{F.t0}, {n}"); e(f"s_cbranch_scc1 L_f_w{n}")
        for n in range(48, -1, -1):
            if n in (12, 24): e(f"L_f_w{n}:")
            e(f"s_waitcnt vmcnt({n + self.npost})")
            if n: e(f"s_cmp_eq_u32 s{F.t0}, {n}"); e("s_cbranch_scc1 L_f_pub")
        e("L_f_pub:")
        L += self.stamp(48)
        L += [x.split(";")[0].strip() for x in self.f2_flag(7)]
        e(f"s_lshl_b32 s{F.FRC}, 1, s{sHd}"); e("s_branch L_f_calc")
        e("L_f_chk:")
        e(f"s_and_b32 s{F.t0}, s{F.SEEN}, s{F.SEEN+1}"); e(f"s_and_b32 s{F.t0}, s{F.t0}, s{F.SEEN+2}"); e(f"s_not_b32 s{F.t0}, s{F.t0}"); e("s_cbranch_scc0 L_f_sum")
        e(f"s_cmp_lg_u32 s{F.ST}, 0xffff"); e("s_cbranch_scc1 L_f_st")
        e("L_f_poll:")
        e(self.f2_poll()); e(f"s_sub_u32 s{F.CNT}, s{F.CNT}, 1"); e("s_waitcnt vmcnt(0)"); e("s_cbranch_scc0 L_f_calc")
        e(f"s_cmp_lg_u32 s{F.GU}, 0"); e("s_cbranch_scc1 L_f_end")
        e(f"s_and_b32 s{F.t0}, s{sHd}, 3"); e(f"s_lshl3_add_u32 s{F.t0}, s{F.t0}, s{sW}"); e(f"s_lshl_b32 s{F.t0}, 1, s{F.t0}"); e(f"v_mov_b32 v{F.BY}, s{F.t0}")
        e(f"s_and_b32 s{F.t0}, s{sHd}, 12"); e(f"v_add_u32 v{F.D0}, s{F.t0}, v{T1}")
        e(f"buffer_atomic_or v{F.BY}, v{F.D0}, {srd(F.sDB)}, 0 offen sc0"); e("s_waitcnt vmcnt(0)")
        e(f"s_mov_b32 s{F.GU}, 1"); e(f"s_mov_b32 s{F.CNT}, 2")
        e("L_f_st:")
        e(self.f2_bytes()); e("s_waitcnt vmcnt(0)"); e(self.f2_st()); e("s_branch L_f_poll")
        e("L_f_sum:")
        e(f"s_cmp_ge_u32 s{F.IDX}, 3"); e("s_waitcnt vmcnt(0)"); e(self.f2_bytes()); e("s_cbranch_scc1 L_f_s2")
        for U in (3, 2):
            e(f"L_f_s{U}:")
            L += self.stamp(51)
            for h in range(16):
                for k in range(U):
                    for d in range(2):
                        o = vr(8 * k + 4 * d)
                        e(f"v_mfma_f32_4x4x4_16b_bf16 {o}, {vr(F.IDN,2)}, {ar(12*h+4*k+2*d,2)}, {o if h else 0}")
            e("s_nop 4")
            for k in range(U):
                r = 32 + 4 * k
                for d in range(4): e(f"v_cvt_pk_bf16_f32 v{r+d}, v{8*k+2*d}, v{8*k+2*d+1}")
                e(f"v_permlane16_swap_b32 v{r}, v{r+2}"); e(f"v_permlane16_swap_b32 v{r+1}, v{r+3}")
                e(f"buffer_store_dwordx4 {vr(r)}, v{F.OO+k}, {srd(F.sOU)}, 0 offen{P.OUMOD}")
            e(f"s_waitcnt vmcnt({U})")
            if U > 2: e("s_branch L_f_next")
        e("L_f_next:")
        e(f"v_lshrrev_b32 v{F.BY}, s{sW}, v{F.BY}"); e(f"v_and_b32 v{F.BY}, 1, v{F.BY}"); e(f"v_cmp_eq_u32 vcc, 1, v{F.BY}")
        e(f"s_and_b32 s{F.t0}, vcc_lo, s{F.PEND}"); e("s_cbranch_scc0 L_f_end")
        e(f"s_ff1_i32_b32 s{F.IDX}, s{F.t0}"); e(f"s_bitset0_b32 s{F.PEND}, s{F.IDX}")
        L += [x for it in self.f2_share() for x in it]
        e(f"s_mov_b32 s{F.GU}, 1"); e(f"s_mov_b32 s{F.CNT}, 2"); e("s_branch L_f_st")
        e("L_f_end:")
        return L

    def fin(self):
        L = []; e = L.append
        sDB, sPR, sOU = sA, sB_, sX
        sOLD, sIDX, sMASK, sSEEN, sNEW, sPEND, sCNT, sPAR, sOWN, sSZ, sHO = 32, 33, 34, 35, 36, 37, 38, 39, 40, 41, 42
        ACC = lambda h, k, d: 24 * (h >> 1) + 8 * k + 2 * d
        LN, L4, LO, SOF, TV = 236, 237, 238, 239, 240
        PO = [241, 242, 243]; OO = [244, 245, 246]
        zero = [f"v_mov_b64 v[{r}:{r+1}], 0" for r in range(0, 192, 2)]
        e(f"s_lshl_b32 s{sT0}, s{sBLK}, 3"); e(f"s_add_u32 s{sT0}, s{sT0}, s{sBt}")
        e(f"s_lshl_b32 s{sT1}, s{sT0}, 4"); e(f"s_add_u32 s{sDB}, s94, s{sT1}"); e(f"s_addc_u32 s{sDB+1}, s95, 0"); e(f"s_mov_b32 s{sDB+2}, 4")
        e(f"s_mov_b32 s{sSZ}, {16*PART}"); e(f"s_mul_i32 s{sT0}, s{sT0}, s{sSZ}")
        e(f"s_add_u32 s{sPR}, s72, s{sT0}"); e(f"s_addc_u32 s{sPR+1}, s73, 0")
        e(f"s_mov_b32 s{sOU}, s92"); e(f"s_mov_b32 s{sOU+1}, s93"); e(f"s_mov_b32 s{sOU+2}, {8*160*1792}"); e(f"s_mov_b32 s{sOU+3}, 0x20000")
        e(f"s_lshl_b32 s{sOWN}, 1, s{sHd}"); e(f"s_mov_b32 s{sCNT}, {P.SPIN}"); e(f"s_mov_b32 s{sPEND}, 0")
        e(f"v_mbcnt_lo_u32_b32 v{LN}, -1, 0"); e(f"v_mbcnt_hi_u32_b32 v{LN}, -1, v{LN}"); e(f"v_lshlrev_b32 v{L4}, 2, v{LN}")
        e(f"v_and_b32 v{TV}, 15, v{LN}"); e(f"v_mul_u32_u24 v{LO}, 1792, v{TV}"); e(f"v_bfe_u32 v{TV}, v{LN}, 4, 1")
        e(f"v_lshl_add_u32 v{LO}, v{TV}, 6, v{LO}"); e(f"v_lshrrev_b32 v{TV}, 5, v{LN}"); e(f"v_lshl_add_u32 v{LO}, v{TV}, 4, v{LO}")
        MA_, MP_, TW = 247, 248, 249
        e(f"v_mov_b32 v{TV}, s{sOWN}"); e(f"v_mov_b32 v{TW}, s{sOWN}"); e(f"s_mov_b32 s{sPR+2}, s{sSZ}")
        e(f"v_mul_u32_u24 v{MA_}, {PART}, v{LN}"); e(f"v_add_u32 v{MA_}, {MBOX}, v{MA_}")
        e(f"v_lshlrev_b32 v{MP_}, 8, v{LN}"); e(f"v_add_u32 v{MP_}, {MBOX}, v{MP_}")
        IDN = 232
        e(f"v_and_b32 v{IDN}, 1, v{LN}"); e(f"v_lshlrev_b32 v{IDN}, 4, v{IDN}"); e(f"s_movk_i32 s{sT0}, 0x3f80"); e(f"v_lshlrev_b32 v{IDN}, v{IDN}, s{sT0}")
        e(f"v_bfe_i32 v{SOF}, v{LN}, 1, 1"); e(f"v_and_b32 v{IDN+1}, v{IDN}, v{SOF}"); e(f"v_xor_b32 v{IDN}, v{IDN}, v{IDN+1}")
        e("s_waitcnt vmcnt(0)")
        L += self.stamp(48)
        e("s_barrier")
        e(f"s_cmp_lg_u32 s{sW}, 0"); e("s_cbranch_scc1 L_f_b0")
        e(f"buffer_atomic_add v{TV}, v{L4}, {srd(sDB)}, 0 offen sc0")
        e(f"buffer_atomic_add v{TW}, v{MA_}, {srd(sPR)}, 0 offen"); e("s_waitcnt vmcnt(1)")
        e(f"ds_write_b32 v{L4}, v{TV}"); e("s_waitcnt lgkmcnt(0)")
        e("L_f_b0:"); e("s_barrier")
        e(f"ds_read_b32 v{TV}, v{L4}"); e("s_waitcnt lgkmcnt(0)"); e(f"v_readfirstlane_b32 s{sOLD}, v{TV}")
        L += self.stamp(49)
        e(f"s_and_b32 s{sMASK}, s{sOLD}, 0xffff"); e(f"s_bcnt1_i32_b32 s{sIDX}, s{sMASK}"); e(f"s_or_b32 s{sMASK}, s{sMASK}, s{sOWN}")
        if P.STAMP: e(f"v_writelane_b32 v{STR}, s{sIDX}, 60"); e(f"v_writelane_b32 v{STR}, 16, 61")
        e(f"s_cmp_lg_u32 s{sIDX}, 15"); e("s_cbranch_scc1 L_f_share")
        e(f"s_lshr_b32 s{sPEND}, s{sOLD}, 16")
        e("L_f_next:")
        e(f"s_cmp_eq_u32 s{sPEND}, 0"); e("s_cbranch_scc1 L_f_end")
        e(f"s_ff1_i32_b32 s{sIDX}, s{sPEND}"); e(f"s_bitset0_b32 s{sPEND}, s{sIDX}")
        e("L_f_share:")
        lv = list(P.LV) + [(0, 0)] * (7 - len(P.LV))
        tu = sum(u << (4 * k) for k, (u, c) in enumerate(lv)); tc = sum(c << (4 * k) for k, (u, c) in enumerate(lv))
        e(f"s_lshl_b32 s{sT0}, s{sIDX}, 2"); e(f"s_add_u32 s{sT0}, s{sT0}, s{sW}")
        e(f"s_mul_i32 s{sT1}, s{sT0}, 26"); e(f"s_lshr_b32 s{sT1}, s{sT1}, 8")
        e(f"s_mul_i32 s{sT2}, s{sT1}, 10"); e(f"s_sub_u32 s{sT0}, s{sT0}, s{sT2}")
        e(f"s_lshl_b32 s{sT1}, s{sT1}, 2")
        e(f"s_lshr_b32 s{sT2}, {hex(tu)}, s{sT1}"); e(f"s_and_b32 s{sT2}, s{sT2}, 15")
        e(f"s_lshr_b32 s{sT3}, {hex(tc)}, s{sT1}"); e(f"s_and_b32 s{sT3}, s{sT3}, 15")
        e("s_cbranch_scc0 L_f_next")
        e(f"s_mul_i32 s{sHO}, s{sBt}, 10"); e(f"s_add_u32 s{sHO}, s{sHO}, s{sT0}"); e(f"s_mul_i32 s{sHO}, s{sHO}, {16*1792}")
        e(f"s_mul_i32 s{sT1}, s{sBLK}, 896"); e(f"s_add_u32 s{sHO}, s{sHO}, s{sT1}")
        e(f"s_lshl_b32 s{sT0}, s{sT0}, 11")
        a, b, c = sNEW, sSEEN, sOLD
        for k in range(3):
            e(f"s_lshr_b32 s{a}, s{sT2}, 1"); e(f"s_and_b32 s{b}, s{sT2}, 1")
            e(f"s_mul_i32 s{c}, s{a}, 20"); e(f"s_add_u32 s{c}, s{c}, s{b}"); e(f"s_lshl_b32 s{c}, s{c}, 10"); e(f"s_add_u32 s{c}, s{c}, s{sT0}")
            e(f"s_lshl_b32 s{a}, s{a}, 2"); e(f"s_add_u32 s{a}, s{a}, s{b}"); e(f"s_lshl_b32 s{a}, s{a}, 5"); e(f"s_add_u32 s{a}, s{a}, s{sHO}")
            e(f"v_lshl_add_u32 v{PO[k]}, v{LN}, 4, s{c}"); e(f"v_add_u32 v{OO[k]}, s{a}, v{LO}")
            e(f"s_add_u32 s{sT2}, s{sT2}, 1")
        e(f"s_mov_b32 s{sNEW}, s{sMASK}"); e(f"s_mov_b32 s{sSEEN}, s{sMASK}")
        L += self.stamp(50)
        if P.STAMP: e(f"s_mov_b32 s44, {52 if P.STAMP in (1, 4) else 16}")
        e(f"s_cmp_eq_u32 s{sT3}, 2"); e("s_cbranch_scc1 L_f2_i"); e(f"s_cmp_eq_u32 s{sT3}, 1"); e("s_cbranch_scc1 L_f1_i")
        for U in (3, 2, 1):
            e(f"L_f{U}_i:")
            for q in range(4):
                e(f"s_and_b32 s{sT0}, s{sNEW}, {15 << (4*q)}"); e(f"s_cbranch_scc0 L_f{U}_h{4*q+3}")
                for h in range(4 * q, 4 * q + 4):
                    e(f"s_bitcmp1_b32 s{sNEW}, {h}"); e(f"s_cbranch_scc0 L_f{U}_h{h}")
                    e(f"s_mov_b32 s{sHO}, {h*PART}")
                    for k in range(U):
                        if (h * 3 + k) % 7 < P.RSK: continue
                        e(f"buffer_load_dwordx4 {ar(12*h+4*k)}, v{PO[k]}, {srd(sPR)}, s{sHO} offen{P.RDMOD}")
                    e(f"L_f{U}_h{h}:")
            e(f"s_cmp_eq_u32 s{sSEEN}, 0xffff"); e(f"s_cbranch_scc1 L_f{U}_sum")
            e(f"L_f{U}_spin:")
            e(f"buffer_load_dword v{TV}, v{MP_}, {srd(sWS)}, 0 offen sc1"); e("s_waitcnt vmcnt(0)")
            e(f"v_readfirstlane_b32 s{sMASK}, v{TV}"); e(f"s_and_b32 s{sMASK}, s{sMASK}, 0xffff")
            e(f"s_andn2_b32 s{sNEW}, s{sMASK}, s{sSEEN}"); e(f"s_cbranch_scc1 L_f{U}_got")
            e(f"s_sub_u32 s{sCNT}, s{sCNT}, 1"); e(f"s_cbranch_scc0 L_f{U}_spin")
            e(f"s_lshl_b32 s{sT0}, 0x10000, s{sIDX}"); e(f"v_mov_b32 v{TV}, s{sT0}")
            e(f"buffer_atomic_or v{TV}, v{L4}, {srd(sDB)}, 0 offen sc0"); e("s_waitcnt vmcnt(0)")
            e(f"v_readfirstlane_b32 s{sMASK}, v{TV}"); e(f"s_and_b32 s{sMASK}, s{sMASK}, 0xffff")
            e(f"s_cmp_lg_u32 s{sMASK}, 0xffff"); e("s_cbranch_scc1 L_f_end")
            e(f"s_andn2_b32 s{sNEW}, s{sMASK}, s{sSEEN}")
            e(f"L_f{U}_got:")
            e(f"s_or_b32 s{sSEEN}, s{sSEEN}, s{sNEW}")
            if P.STAMP: L += ["s_memrealtime s[84:85]", "s_waitcnt lgkmcnt(0)", "s_mov_b32 m0, s44", f"s_bcnt1_i32_b32 s45, s{sSEEN}", f"v_writelane_b32 v{STR}, s84, m0",
                              f"v_writelane_b32 v{STC}, s45, m0", "s_add_u32 s44, s44, 1", f"v_writelane_b32 v{STR}, s44, 61"]
            e(f"s_branch L_f{U}_i")
            e(f"L_f{U}_sum:")
            e("s_waitcnt vmcnt(0)")
            L += self.stamp(51)
            for h in range(16):
                for k in range(U):
                    for d in range(2):
                        o = vr(8 * k + 4 * d)
                        e(f"v_mfma_f32_4x4x4_16b_bf16 {o}, {vr(IDN,2)}, {ar(12*h+4*k+2*d,2)}, {o if h else 0}")
                if U == 1: e("s_nop 0")
            e("s_nop 4")
            for k in range(U):
                r = 32 + 4 * k
                for d in range(4): e(f"v_cvt_pk_bf16_f32 v{r+d}, v{8*k+2*d}, v{8*k+2*d+1}")
                e(f"v_permlane16_swap_b32 v{r}, v{r+2}"); e(f"v_permlane16_swap_b32 v{r+1}, v{r+3}")
                e(f"buffer_store_dwordx4 {vr(r)}, v{OO[k]}, {srd(sOU)}, 0 offen{P.OUMOD}")
            e(f"s_mov_b32 s{sMASK}, 0xffff"); e("s_branch L_f_next")
        e("L_f_end:")
        return L


    def attn_kernel(self):
        e = self.e
        kn = NAME + "_kernel"
        e(f".globl {kn}"); e(".p2align 8"); e(f".type {kn},@function"); e(f"{kn}:")
        p0 = len(self.L)
        e("s_cmp_ge_u32 s2, 256"); e("s_cbranch_scc1 L_attn_end")
        e(f"s_mov_b32 s{sMODE}, 0")
        e("L_again:")
        e(f"s_and_b32 s{sT0}, s2, 7")
        e(f"s_lshr_b32 s{sBLK}, s{sT0}, 2"); e(f"s_mul_i32 s{sT1}, s{sBLK}, 40")
        e(f"s_add_u32 s4, s0, s{sT1}"); e("s_addc_u32 s5, s1, 0")
        e(f"s_load_dwordx8 s[{sPT}:{sPT+7}], s[4:5], 0")
        e(f"s_load_dwordx2 s[{sWO}:{sWO+1}], s[4:5], 32")
        e("s_load_dwordx2 s[72:73], s[0:1], 96")
        e("s_load_dwordx4 s[92:95], s[0:1], 80")
        for x in self.stamp("start"): e(x)
        t = list(range(100, 116))
        ln, g, r4, x4, tq, tu, tv, fj = t[:8]
        if P.NOCW:
            e(f"s_mov_b32 s{sWS+3}, 0x20000")
            e(f"v_and_b32 v{ln}, 63, v0"); e(f"v_lshrrev_b32 v{tq}, 6, v0"); e(f"s_lshr_b32 s{sT1}, s2, 3"); e("s_nop 0")
        elif P.GCW:
            e(f"s_getpc_b64 s[{sWS}:{sWS+1}]"); e("L_cw0:"); e(f"s_mov_b32 s{sWS+3}, 0x20000")
            e(f"v_and_b32 v{ln}, 63, v0"); e(f"v_lshrrev_b32 v{tq}, 6, v0"); e(f"s_lshr_b32 s{sT1}, s2, 3"); e(f"s_lshl_b32 s{sT2}, s{sT1}, 9")
            e(f"v_lshlrev_b32 v{tu}, 14, v{ln}"); e(f"v_lshl_add_u32 v{tu}, v{tq}, 7, v{tu}"); e(f"v_add_u32 v{tu}, s{sT2}, v{tu}")
            e(f"v_min_u32 v{tu}, L_code_end-L_cw0-4, v{tu}"); e(f"v_mov_b32 v109, s{sWS+1}")
            e(f"v_add_co_u32 v108, vcc, s{sWS}, v{tu}"); e("v_addc_co_u32 v109, vcc, 0, v109, vcc")
            e(f"global_load_dword a{LS(0)}, v[108:109], off")
        else:
            e(f"s_getpc_b64 s[{sWS}:{sWS+1}]"); e("L_cw0:"); e(f"s_mov_b32 s{sWS+2}, L_code_end-L_cw0"); e(f"s_mov_b32 s{sWS+3}, 0x20000")
            e(f"v_and_b32 v{ln}, 63, v0"); e(f"v_lshrrev_b32 v{tq}, 6, v0"); e(f"s_lshr_b32 s{sT1}, s2, 3"); e(f"s_lshl_b32 s{sT2}, s{sT1}, 9")
            e(f"v_lshlrev_b32 v{tu}, 14, v{ln}"); e(f"v_lshl_add_u32 v{tu}, v{tq}, 7, v{tu}"); e(f"v_add_u32 v{tu}, s{sT2}, v{tu}")
            e(f"buffer_load_dword a{LS(0)}, v{tu}, {srd(sWS)}, 0 offen")
        e(f"v_readfirstlane_b32 s{sW}, v{tq}")
        if P.MAP == 4:
            e(f"s_and_b32 s{sHd}, s{sT0}, 3"); e(f"s_lshl_b32 s{sHd}, s{sHd}, 2"); e(f"s_and_b32 s{sT2}, s{sT1}, 3")
            e(f"s_add_u32 s{sHd}, s{sHd}, s{sT2}"); e(f"s_lshr_b32 s{sBt}, s{sT1}, 2")
            e(f"s_lshl_b32 s{sC}, s{sT2}, 1"); e(f"s_add_u32 s{sC}, s{sC}, s{sBt}"); e(f"s_sub_u32 s{sT2}, s{sC}, 7")
            e(f"s_cmp_ge_u32 s{sC}, 7"); e(f"s_cselect_b32 s{sC}, s{sT2}, s{sC}")
        else:
            if P.MAP == 16:
                e(f"s_and_b32 s{sHd}, s{sT1}, 15"); e(f"s_and_b32 s{sT2}, s{sT0}, 3"); e(f"s_lshr_b32 s{sC}, s{sT1}, 4")
                e(f"s_lshl_b32 s{sBt}, s{sT2}, 1"); e(f"s_add_u32 s{sBt}, s{sBt}, s{sC}")
                e(f"s_mul_i32 s{sC}, s{sC}, {P.RA}"); e(f"s_mul_i32 s{sT2}, s{sT2}, {P.RB}"); e(f"s_add_u32 s{sC}, s{sC}, s{sT2}")
                e(f"s_mul_i32 s{sT2}, s{sHd}, {P.RH}"); e(f"s_add_u32 s{sC}, s{sC}, s{sT2}")
            else:
                e(f"s_and_b32 s{sHd}, s{sT0}, 1"); e(f"s_lshl_b32 s{sHd}, s{sHd}, 3"); e(f"s_and_b32 s{sT2}, s{sT1}, 7"); e(f"s_add_u32 s{sHd}, s{sHd}, s{sT2}")
                e(f"s_and_b32 s{sBt}, s{sT0}, 2"); e(f"s_lshr_b32 s{sC}, s{sT1}, 3"); e(f"s_lshl_b32 s{sC}, s{sC}, 1"); e(f"s_add_u32 s{sT2}, s{sT2}, s{sC}")
                e(f"s_lshr_b32 s{sC}, s{sC}, 1"); e(f"s_lshl_b32 s{sBt}, s{sBt}, 1"); e(f"s_add_u32 s{sBt}, s{sBt}, s{sC}")
                e(f"s_bfe_u32 s{sC}, s{sT0}, 0x10001"); e(f"s_add_u32 s{sC}, s{sC}, s{sT2}")
            e(f"s_mul_i32 s{sT2}, s{sC}, 37"); e(f"s_lshr_b32 s{sT2}, s{sT2}, 8"); e(f"s_mul_i32 s{sT2}, s{sT2}, 7"); e(f"s_sub_u32 s{sC}, s{sC}, s{sT2}")
        e(f"s_lshl_b32 s{sCW}, s{sC}, 19"); e(f"s_lshl_b32 s{sCX}, s{sC}, 7")
        e(f"s_lshl_b32 s{sW8K}, s{sW}, 13"); e(f"s_movk_i32 s{sF}, 0x9c")
        e(f"s_lshl_b32 s{sT0}, s{sW}, 1"); e(f"s_lshr_b32 s{sT0}, s{sF}, s{sT0}"); e(f"s_and_b32 s{sT0}, s{sT0}, 3")
        e(f"v_lshrrev_b32 v{g}, 4, v{ln}"); e(f"v_bfe_u32 v{r4}, v{ln}, 2, 2"); e(f"v_and_b32 v{x4}, 3, v{ln}")
        e(f"v_xor_b32 v{tq}, s{sT0}, v{x4}"); e(f"v_lshlrev_b32 v{tq}, 4, v{tq}"); e(f"v_lshl_add_u32 v{tq}, v{g}, 6, v{tq}")
        HW, HX, WA, XA = self.HW, self.HX, self.WA, self.XA
        e(f"s_lshl_b32 s{sT0}, s{sW}, 17"); e(f"v_lshl_add_u32 v{tu}, v{r4}, 13, v{tq}"); e(f"v_add_u32 v{HW+1}, s{sT0}, v{tu}")
        for k in (0, 2, 3, 4, 5, 6, 7):
            gg, u = k >> 2, k & 3
            e(f"v_add_u32 v{HW+k}, {768 + (2*gg + (u>>1))*32768 + (u&1)*256 - u*1024}, v{HW+1}")
        e(f"v_bfe_u32 v{tu}, v{ln}, 2, 3"); e(f"v_mul_u32_u24 v{tu}, 896, v{tu}"); e(f"v_lshrrev_b32 v{tv}, 5, v{ln}")
        e(f"v_lshl_add_u32 v{tu}, v{tv}, 6, v{tu}")
        e(f"v_and_b32 v{tv}, 1, v{g}"); e(f"v_mul_u32_u24 v{tv}, 3, v{tv}"); e(f"v_xor_b32 v{tv}, v{tv}, v{x4}")
        e(f"v_lshl_add_u32 v{tu}, v{tv}, 4, v{tu}")
        e(f"s_mul_i32 s{sT0}, s{sW}, 28672"); e(f"v_add_u32 v{HX}, s{sT0}, v{tu}"); e(f"v_xor_b32 v{tv}, 16, v{HX}")
        e(f"v_add_u32 v{HX+1}, 6144, v{tv}"); e(f"v_add_u32 v{HX+2}, 12288, v{HX}"); e(f"v_add_u32 v{HX+3}, 18432, v{tv}")
        e(f"s_and_b32 s{sT1}, s{sW}, 1"); e(f"s_lshl_b32 s{sT1}, s{sT1}, 4"); e(f"v_xor_b32 v{tv}, s{sT1}, v{tu}")
        e(f"s_mul_i32 s{sT0}, s{sW}, 7168"); e(f"s_add_u32 s{sT0}, s{sT0}, {128*896}"); e(f"v_add_u32 v{HX+4}, s{sT0}, v{tv}")
        e(f"s_lshl_b32 s{sT2}, s{sW}, 12"); e(f"s_lshl_b32 s{sT3}, s{sW}, 10")
        e(f"s_mul_i32 s{sT0}, s{sBt}, 143360"); e(f"s_lshl_b32 s{sT1}, s{sHd}, 9")
        e(f"s_mov_b32 s{sX+2}, 143360"); e(f"s_mov_b32 s{sX+3}, 0x20000"); e(f"s_mov_b32 s{sWQ+3}, 0x20000")
        e(f"s_sub_u32 s{sWQ+2}, {448*8192+768}, s{sT1}")
        e("s_waitcnt lgkmcnt(0)")
        e(f"s_add_u32 s{sWQ}, s{sPT+6}, s{sT1}"); e(f"s_addc_u32 s{sWQ+1}, s{sPT+7}, 0")
        e(f"s_sub_u32 s{sWQ}, s{sWQ}, 768"); e(f"s_subb_u32 s{sWQ+1}, s{sWQ+1}, 0")
        e(f"s_add_u32 s{sX}, s{sPT}, s{sT0}"); e(f"s_addc_u32 s{sX+1}, s{sPT+1}, 0")
        for x in self.stamp(1): e(x)
        for it in self.w_items(0) + self.x_items(0):
            for x in it: e(x)
        for x in self.stamp(2): e(x)
        e(f"s_lshl_b32 s{sT0}, s{sBt}, 4"); e(f"s_add_u32 s{sT0}, s{sT0}, s{sHd}"); e(f"s_lshl_b32 s{sT1}, s{sT0}, 19")
        for s_, p in ((sA, sPT + 2), (sB_, sPT + 4)):
            e(f"s_add_u32 s{s_}, s{p}, s{sT1}"); e(f"s_addc_u32 s{s_+1}, s{p+1}, 0")
            e(f"s_sub_u32 s{s_}, s{s_}, 768"); e(f"s_subb_u32 s{s_+1}, s{s_+1}, 0")
            e(f"s_mov_b32 s{s_+2}, {524288+768}"); e(f"s_mov_b32 s{s_+3}, 0x20000")
        e(f"s_lshl_b32 s{sT1}, s{sBLK}, 7"); e(f"s_add_u32 s{sT0}, s{sT0}, s{sT1}"); e(f"s_mul_i32 s{sT0}, s{sT0}, {PART}")
        e(f"s_add_u32 s{sWS}, s72, s{sT0}"); e(f"s_addc_u32 s{sWS+1}, s73, 0"); e(f"s_mov_b32 s{sWS+2}, {PART}")
        e(f"v_lshl_add_u32 v{tu}, v{r4}, 9, v{tq}"); e(f"v_add_u32 v{T1 if P.PCH else VO+1}, s{sW8K}, v{tu}")
        if not so2(): e(f"v_add_u32 v{VO}, 768, v{VO+1}")
        if P.L2:
            e(f"v_lshl_add_u32 v{T1}, v{ln}, 7, s{sW8K}")
            if P.L2["tw"] < 8: e(f"v_lshrrev_b32 v{tu}, {P.L2['tw'].bit_length() + 2}, v{ln}"); e(f"v_lshl_add_u32 v{T1}, v{tu}, 24, v{T1}")
        e(f"s_and_b32 s{sT0}, s{sW}, 1"); e(f"s_lshl_b32 s{sT1}, s{sT0}, 13"); e(f"s_sub_u32 s{sH}, 4096, s{sT1}")
        e(f"s_sub_u32 s{sPH}, 0x10000, s{sH}"); e(f"s_sub_u32 s{sNH}, {u32(-98304)}, s{sH}")
        e(f"s_lshl_b32 s{sT1}, s{sT0}, 12"); e(f"s_lshl_b32 s{sT0}, s{sT0}, 10")
        e(f"v_lshlrev_b32 v{tv}, 1, v{g}"); e(f"v_bfe_u32 v{tv}, s{sF}, v{tv}, 2"); e(f"v_lshrrev_b32 v{tu}, 1, v{x4}")
        e(f"v_xor_b32 v{tv}, v{tv}, v{tu}"); e(f"v_lshl_add_u32 v{tv}, v{tv}, 4, s{sT0}")
        e(f"v_lshl_add_u32 v{tv}, v{g}, 13, v{tv}"); e(f"v_lshl_add_u32 v{tv}, v{r4}, 6, v{tv}")
        e(f"v_and_b32 v{tu}, 1, v{x4}"); e(f"v_lshl_add_u32 v{WA}, v{tu}, 3, v{tv}"); e(f"v_xor_b32 v{WA+1}, 32, v{WA}")
        e(f"v_add_u32 v{WA+2}, {SLOT(2)}, v{WA}"); e(f"v_add_u32 v{WA+3}, {SLOT(2)}, v{WA+1}")
        e(f"s_add_u32 s{sD}, s{sT1}, {SLOT(1)}"); e(f"v_add_u32 v{VA}, s{sD}, v{WA}"); e(f"v_add_u32 v{VA+1}, s{sD}, v{WA+1}")
        if P.PCH: e(f"v_xor_b32 v{VA+2}, 0x1000, v{VA}"); e(f"v_xor_b32 v{VA+3}, 0x1000, v{VA+1}")
        e(f"v_lshlrev_b32 v{fj}, 1, v{r4}"); e(f"v_bfe_u32 v{fj}, s{sF}, v{fj}, 2")
        e(f"s_movk_i32 s{sD}, 0xd8"); e(f"v_lshlrev_b32 v{tv}, 1, v{g}"); e(f"v_bfe_u32 v{tv}, s{sD}, v{tv}, 2")
        e(f"s_add_u32 s{sT1}, s{sT1}, s{sT0}")
        e(f"v_xor_b32 v{tv}, v{tv}, v{fj}"); e(f"v_lshl_add_u32 v{tv}, v{tv}, 4, s{sT1}")
        e(f"v_lshl_add_u32 v{tv}, v{r4}, 13, v{tv}"); e(f"v_lshl_add_u32 v{KA}, v{x4}, 6, v{tv}"); e(f"v_xor_b32 v{KA+1}, 1024, v{KA}")
        e(f"v_and_b32 v{tv}, 1, v{g}"); e(f"v_lshlrev_b32 v{tv}, 1, v{tv}"); e(f"v_xor_b32 v{tv}, v{tv}, v{fj}"); e(f"v_lshlrev_b32 v{tv}, 4, v{tv}")
        e(f"v_and_b32 v{tu}, 7, v{ln}"); e(f"v_lshl_add_u32 v{tv}, v{tu}, 6, v{tv}")
        e(f"v_lshrrev_b32 v{tu}, 5, v{ln}"); e(f"v_lshl_add_u32 v{tv}, v{tu}, 9, v{tv}")
        e(f"v_bfe_u32 v{tq}, v{ln}, 3, 1"); e(f"v_lshl_add_u32 v{tv}, v{tq}, 10, v{tv}")
        e(f"s_lshr_b32 s{sT1}, s{sW}, 1"); e(f"s_lshl_b32 s{sT0}, s{sT1}, 13"); e(f"s_add_u32 s{sT0}, s{sT0}, {SLOT(1)}")
        e(f"v_add_u32 v{XA}, s{sT0}, v{tv}"); e(f"v_xor_b32 v{XA+1}, 16, v{XA}")
        e(f"v_add_u32 v{XA+2}, {SLOT(4)-SLOT(1)}, v{XA}"); e(f"v_add_u32 v{XA+3}, {SLOT(4)-SLOT(1)}, v{XA+1}")
        e(f"s_lshl_b32 s{sT0}, s{sT1}, 11"); e(f"s_add_u32 s{sT0}, s{sT0}, {SLOT(4)+16384}")
        e(f"v_add_u32 v{XA+4}, s{sT0}, v{tv}"); e(f"v_xor_b32 v{XA+5}, 16, v{XA+4}")
        e(f"v_lshl_add_u32 v{OWNP}, v{ln}, 4, s{sW8K}"); e(f"v_xor_b32 v{PARP}, 0x2000, v{OWNP}")
        if P.TCH: e(f"v_lshl_add_u32 v{self.TV}, v{ln}, 7, s{sW8K}")
        e(f"s_mul_i32 s{sT0}, s{sT1}, 320"); e(f"s_add_u32 s{sT0}, s{sT0}, {MXA}"); e(f"v_and_b32 v{tu}, 15, v{ln}")
        e(f"v_lshl_add_u32 v{T0}, v{tu}, 2, s{sT0}"); e(f"v_mov_b32 v{tv}, 0x7f800000")
        for s in range(5): e(f"ds_write_b32 v{T0}, v{tv} offset:{64*s}")
        e(f"s_mov_b32 s{sSC}, {hex(f2u(math.log2(math.e) / 16.0))}"); e(f"s_mov_b32 s{sTH}, {hex(f2u(-1.0 if P.FORCE else P.LTH))}")
        if P.VL: e(f"s_lshl_b32 s{sT0}, s{sBt}, 2"); e(f"s_lshr_b32 s{sCLS}, {hex(P.VL[0])}, s{sT0}")
        e(f"s_mov_b32 s{sT0}, 0x3f803f80")
        for k in range(4): e(f"v_accvgpr_write_b32 a{ONES+k}, s{sT0}")
        for it in self.x_items(1) + self.w_items(1):
            for x in it: e(x)
        for nm in P.PQ:
            for it in (self.w_items(int(nm[1])) + self.x_items(int(nm[1])) if nm[0] == "c" else self.kv_head_items(2 * int(nm[1]) + (nm[0] == "V"), int(nm[2:] or 8))):
                for x in it: e(x)
        if P.F2: pass
        else:
            e(f"v_add_u32 v{tu}, s{sMODE}, v{ln}"); e(f"v_lshlrev_b32 v{tu}, 8, v{tu}"); e(f"v_add_u32 v{tu}, {MBOX}, v{tu}"); e(f"v_mov_b32 v{tq}, 0")
            e(f"buffer_store_dword v{tq}, v{tu}, {srd(sWS)}, 0 offen sc1")
        if P.WP:
            e(f"s_mul_i32 s{sT1}, s{sHd}, 32"); e(f"s_lshl_b32 s{sT0}, s{sBt}, 2"); e(f"s_add_u32 s{sT1}, s{sT1}, s{sT0}"); e(f"s_add_u32 s{sT1}, s{sT1}, s{sW}")
            e(f"s_mul_i32 s{sT1}, s{sT1}, 7168"); e(f"s_add_u32 s{sFC}, s{sWO}, s{sT1}"); e(f"s_addc_u32 s{sFC+1}, s{sWO+1}, 0"); e(f"s_movk_i32 s{sFC+2}, 7168")
            e(f"s_mov_b32 s{sFC+3}, 0x20000"); e(f"v_lshlrev_b32 v{T1}, 7, v{ln}")
            if P.WP == 1: e(f"buffer_load_dword v{T1}, v{T1}, {srd(sFC)}, 0 offen{P.TNT}")
        if P.PT:
            e(f"v_lshlrev_b32 v{tu}, {P.PTS}, v{ln}"); e(f"s_mov_b32 s{sFC+3}, 0x20000")
            e(f"s_lshl_b32 s{sT1}, s{sBLK}, 3"); e(f"s_add_u32 s{sT1}, s{sT1}, s{sBt}")
            for k, (nm, ptr, idx, sz) in enumerate((("w", sWO, sHd, 229376), ("d", 94, None, 256), ("p", 72, sT1, 16 * PART), ("o", 92, sBt, 160 * 1792))):
                if nm not in P.PT: continue
                if idx is None: e(f"s_mov_b32 s{sT0}, 0")
                else: e(f"s_mul_i32 s{sT0}, s{idx}, {sz}")
                e(f"s_add_u32 s{sFC}, s{ptr}, s{sT0}"); e(f"s_addc_u32 s{sFC+1}, s{ptr+1}, 0"); e(f"s_mov_b32 s{sFC+2}, {sz}")
                e(f"buffer_load_dword a{LS(1)+k}, v{tu}, {srd(sFC)}, 0 offen")
        e("@vmw c0 lgkmcnt(0)"); e("s_barrier")
        for x in self.stamp(3): e(x)
        for x in self.head_sched(): e(x)
        self.vq = [0]; self.fifo = []
        head = self.finish(self.L[p0:], "head")
        self.L[p0:] = head
        plan = self.plan = self.uni_plan()
        for k in range(2, 30):
            for x in self.static_body(k, plan[k]): e(x)
        tail = self.finish(self.tail_sched(), "tail", self.L[-30:])
        for x in tail: e(x)
        fin, _ = fix_hazards(self.fin2() if P.F2 else self.fin(), tail[-30:])
        for x in fin: e(x)
        if P.STAMP:
            e("s_waitcnt vmcnt(0)")
            for x in self.stamp(63): e(x)
            e(f"v_writelane_b32 v{STR}, s{sST+4}, 0"); e(f"v_writelane_b32 v{STC}, s{sST+6}, 0")
            e(f"s_lshl_b32 s{sT0}, s2, 2"); e(f"s_add_u32 s{sT0}, s{sT0}, s{sW}"); e(f"s_lshl_b32 s{sT0}, s{sT0}, 9")
            e(f"s_add_u32 s{sT0}, s{sT0}, {STAMP_OFF}")
            e(f"s_add_u32 s{sWS}, s72, s{sT0}"); e(f"s_addc_u32 s{sWS+1}, s73, 0"); e(f"s_mov_b32 s{sWS+2}, 512")
            e("v_mbcnt_lo_u32_b32 v20, -1, 0"); e("v_mbcnt_hi_u32_b32 v20, -1, v20"); e("v_lshlrev_b32 v20, 2, v20")
            e(f"buffer_store_dword v{STR}, v20, {srd(sWS)}, 0 offen"); e(f"buffer_store_dword v{STC}, v20, {srd(sWS)}, 0 offen offset:256")
        e("L_attn_end:")
        e("s_endpgm")
        e("L_code_end:")
        body = self.L[p0:]
        for x in self.R + fix_hazards(self.tmax())[0] + fix_hazards(self.redo())[0] + (self.fc_spin() if P.FC else []): e(x)
        return check_hazards(body, "all")

def desc(name, vg, acc):
    return [f".amdhsa_kernel {name}", f"  .amdhsa_next_free_vgpr {vg}", "  .amdhsa_next_free_sgpr 102",
            f"  .amdhsa_accum_offset {acc}", "  .amdhsa_group_segment_fixed_size 0", "  .amdhsa_kernarg_size 104",
            "  .amdhsa_user_sgpr_count 2", "  .amdhsa_user_sgpr_kernarg_segment_ptr 1",
            "  .amdhsa_system_sgpr_workgroup_id_x 1", ".end_amdhsa_kernel"]

def build(path, verbose=True):
    g = Gen()
    ref = open(f"cdna_kernels/{NAME}.s.ref").read().splitlines()
    g.L += [l for l in ref if l.startswith(";") and "@launch" not in l]
    g.L += ["; @launch grid=(256,1,1) block=(256,1,1) lds=163840"]
    g.L += ['.amdgcn_target "amdgcn-amd-amdhsa--gfx950"', ".text"]
    probs = g.attn_kernel()
    g.L += ['.section .rodata,"a"', ".p2align 6"] + desc(NAME + "_kernel", 512, 256)
    open(path, "w").write("\n".join(g.L) + "\n")
    seen = set()
    for p in probs:
        k = p.split("]", 1)[1]
        if k not in seen: print(p); seen.add(k)
    if verbose:
        tot = 0
        for k, (v, added) in g.sec.items():
            ins = [Ins(x) for x in v]
            nm = sum(1 for i in ins if i.kind == "mfma"); tot += est_cycles(v)
            print(f"{k}: instr {sum(1 for i in ins if i.states)} mfma {nm} ({nm*16} cyc) est {est_cycles(v)} nops {added} waits {sum(1 for i in ins if i.mn=='s_waitcnt')}")
        print("total est", tot, "staged", g.nstaged, "touch", g.ntch)
    return g

if __name__ == "__main__":
    out = sys.argv[1] if len(sys.argv) > 1 else "k6.s"
    for kv in sys.argv[2:]:
        k, v = kv.split("=", 1)
        setattr(P, k, eval(v))
    build(out)
```
